```python
import torch

def _softmax(x, axis=-1):
    return torch.softmax(x, dim=axis)
def _gelu(x):
    return torch.nn.functional.gelu(x, approximate="tanh")
def _silu(x):
    return torch.nn.functional.silu(x)
def _sigmoid(x):
    return torch.sigmoid(x)
def _layernorm(x, axis=-1, eps=1e-5):
    m = x.mean(dim=axis, keepdim=True)
    v = x.var(dim=axis, keepdim=True, unbiased=False)
    return (x - m) / torch.sqrt(v + eps)
def _scatter_add(tgt, idx, src, axis=0):
    return tgt.clone().index_add_(axis, idx, src)
def _segment_sum(src, seg, n):
    out = torch.zeros((n,) + src.shape[1:], dtype=src.dtype)
    return out.index_add_(0, seg, src)
def _pad(x, pw):
    flat = tuple(v for pair in reversed(pw) for v in pair)
    return torch.nn.functional.pad(x, flat)

kernel_name = 'standalone__paged_block_table_kv_pagedattention__sampling'

def setup_inputs():

    _w = (lambda a: (lambda t: t.to(torch.bfloat16) if t.is_floating_point() else t)(torch.as_tensor(a)))
    B, Hq, Hkv, Sq, Skv, D = 16, 32, 8, 32, 4096, 128
    bs = 16
    nbps = max(1, Skv // bs)
    num_phys = B * nbps + 4
    bt = torch.randperm(num_phys)[: B * nbps].reshape(B, nbps).to(torch.int64)
    cl = (nbps * bs - (torch.arange(1, B + 1, dtype=torch.int64) * 2654435761) % max(1, nbps * bs // 2)).to(torch.int64)
    return {
        "q": _w((lambda *s: torch.randn(*s, dtype=torch.bfloat16) * 0.8)(B, Hq, Sq, D)),
        "k_cache": _w((lambda *s: torch.randn(*s, dtype=torch.bfloat16) * 0.8)(num_phys, bs, Hkv, D)),
        "v_cache": _w((lambda *s: torch.randn(*s, dtype=torch.bfloat16) * 0.05)(num_phys, bs, Hkv, D)),
        "block_table": _w(bt),
        "context_lens": _w(cl),
    }

def reference(q, k_cache, v_cache, block_table, context_lens):
    B, Hq, Sq, D = q.shape
    bs = k_cache.shape[1]
    Hkv = k_cache.shape[2]
    nbps = block_table.shape[1]
    Skv = nbps * bs
    bt = block_table.reshape(-1)
    k = (lambda x, *d: x.permute(*d))(k_cache[bt].reshape(B, Skv, Hkv, D), 0, 2, 1, 3)
    v = (lambda x, *d: x.permute(*d))(v_cache[bt].reshape(B, Skv, Hkv, D), 0, 2, 1, 3)
    g = Hq // Hkv
    qg = q.reshape(B, Hkv, g, Sq, D)
    scores = torch.einsum("bhgqd,bhkd->bhgqk", qg, k) * (D ** -0.5)
    pos = torch.arange(Skv)
    msk = pos[None, :] < context_lens[:, None]
    scores = torch.where(msk[:, None, None, None, :], scores, -1e9)
    p = _softmax(scores, axis=-1)
    out = torch.einsum("bhgqk,bhkd->bhgqd", p, v)
    return out.reshape(B, Hq, Sq, D)
```

```python
import re

REG = re.compile(r'^-?\|?(?:abs\()?([vsa])(?:(\d+)|\[(\d+):(\d+)\])\)?\|?$')


def regs(tok):
    tok = tok.strip()
    if tok in ('vcc',):
        return {('s', 106), ('s', 107)}
    if tok == 'vcc_lo':
        return {('s', 106)}
    if tok == 'vcc_hi':
        return {('s', 107)}
    if tok == 'exec':
        return {('s', 126), ('s', 127)}
    if tok == 'exec_lo':
        return {('s', 126)}
    if tok == 'exec_hi':
        return {('s', 127)}
    if tok == 'm0':
        return {('s', 124)}
    m = REG.match(tok)
    if not m:
        return set()
    f = m.group(1)
    if m.group(2) is not None:
        return {(f, int(m.group(2)))}
    return {(f, i) for i in range(int(m.group(3)), int(m.group(4)) + 1)}


def split_ops(s):
    out, depth, cur = [], 0, ''
    for ch in s:
        if ch in '[(':
            depth += 1
        if ch in '])':
            depth -= 1
        if ch == ',' and depth == 0:
            out.append(cur.strip())
            cur = ''
        else:
            cur += ch
    if cur.strip():
        out.append(cur.strip())
    return out


TRANS = ('v_exp_f32', 'v_log_f32', 'v_rcp_f32', 'v_rsq_f32', 'v_sqrt_f32')


class I:
    def __init__(self, text, idx):
        self.text = text
        self.idx = idx
        t = text.split(None, 1)
        self.op = t[0]
        rest = t[1] if len(t) > 1 else ''
        ops = split_ops(rest)
        if ops:
            last = ops[-1].split()
            self.mods = last[1:]
            ops[-1] = last[0]
        else:
            self.mods = []
        self.ops = ops
        op = self.op
        self.mfma = op.startswith('v_mfma')
        self.valu = op.startswith('v_') and not self.mfma
        self.trans = any(op.startswith(x) for x in TRANS)
        self.salu = op.startswith('s_')
        self.vmem = op.startswith(('buffer_', 'global_'))
        self.ds = op.startswith('ds_')
        self.dpp = '_dpp' in op or any(m.startswith(('row_', 'quad_perm')) for m in self.mods)
        self.lds_dma = self.vmem and ('lds' in self.mods or '_lds_' in op)
        self.w, self.r = set(), set()
        self.srcC = set()
        self.srcAB = set()
        self.store_data = set()
        R = [regs(o) for o in ops]
        if self.mfma:
            self.w = R[0]
            self.srcAB = R[1] | R[2]
            self.srcC = R[3]
            self.r = self.srcAB | self.srcC
            self.passes = 8 if '32x32x16' in op else 4
        elif self.valu:
            if op.startswith('v_cmp'):
                self.w = R[0]
                for x in R[1:]:
                    self.r |= x
            elif op.startswith(('v_permlane32_swap', 'v_permlane16_swap', 'v_swap')):
                self.w = R[0] | R[1]
                self.r = R[0] | R[1]
            elif op.startswith(('v_add_co', 'v_sub_co', 'v_addc_co')):
                self.w = R[0] | R[1]
                for x in R[2:]:
                    self.r |= x
            else:
                self.w = R[0]
                for x in R[1:]:
                    self.r |= x
                if op.startswith(('v_fmac', 'v_writelane')) or self.dpp:
                    self.r |= R[0]
        elif self.ds:
            if op.startswith('ds_read') or '_rtn' in op:
                self.w = R[0]
                for x in R[1:]:
                    self.r |= x
            else:
                for x in R:
                    self.r |= x
        elif self.vmem:
            if 'load' in op and not self.lds_dma:
                self.w = R[0]
                for x in R[1:]:
                    self.r |= x
            else:
                for x in R:
                    self.r |= x
                if op.endswith('x4') and 'store' in op:
                    self.store_data = R[0] if op.startswith('buffer') else R[1]
        elif self.salu:
            if op.startswith(('s_cmp', 's_cbranch', 's_branch', 's_waitcnt', 's_nop', 's_barrier', 's_endpgm',
                              's_setprio', 's_set_gpr_idx', 's_bitcmp', 's_sleep')):
                for x in R:
                    self.r |= x
                if op.startswith('s_set_gpr_idx_on'):
                    self.w = {('s', 124)}
            else:
                if R:
                    self.w = R[0]
                for x in R[1:]:
                    self.r |= x
                if 'saveexec' in op:
                    self.w |= regs('exec')
        self.states = 1
        if op == 's_nop':
            self.states = int(ops[0], 0) + 1


def vg(s):
    return {x for x in s if x[0] in 'va'}


def sg(s):
    return {x for x in s if x[0] == 's'}


def need(p, c):
    n = 0
    if p.valu:
        pw = vg(p.w)
        if c.mfma and pw & c.r:
            n = max(n, 2)
        if c.valu and c.dpp and pw & c.r:
            n = max(n, 2)
        if c.op.startswith('v_permlane') and pw & c.r:
            n = max(n, 2)
        if c.op.startswith(('v_readlane', 'v_readfirstlane')) and pw & c.r:
            n = max(n, 1)
        if p.trans and c.valu and not c.trans and pw & c.r:
            n = max(n, 1)
        if p.trans and (c.vmem or c.ds) and pw & c.r:
            n = max(n, 1)
        ps = sg(p.w)
        if ps:
            if c.vmem and ps & c.r:
                n = max(n, 5)
            if c.valu and ps & c.r:
                n = max(n, 4 if c.op.startswith(('v_readlane', 'v_writelane')) else 2)
            if c.salu and ps & c.r and not c.op.startswith('s_cbranch'):
                n = max(n, 1)
    if p.mfma:
        big = p.passes == 8
        if c.mfma:
            if p.w & c.srcAB:
                n = max(n, 12 if big else 8)
            if p.w & c.srcC:
                if not (p.w == c.srcC and p.passes == c.passes):
                    n = max(n, 10 if big else 6)
            elif p.w & c.w:
                n = max(n, 12 if big else 8)
        if c.valu and p.w & (c.r | c.w):
            n = max(n, 12 if big else 8)
        if (c.vmem or c.ds) and p.w & (c.r | c.w):
            n = max(n, 12 if big else 8)
        if c.valu and p.srcC & c.w:
            n = max(n, 7 if big else 3)
    if p.salu and ('s', 124) in p.w and c.lds_dma:
        n = max(n, 1)
    if p.store_data and (c.valu or c.mfma) and p.store_data & c.w:
        n = max(n, 2)
    if p.store_data and (c.ds or c.vmem) and p.store_data & c.w:
        n = max(n, 1)
    return n


def check(text):
    ins, labels = [], {}
    for line in text.split('\n'):
        s = line.split(';')[0].strip()
        if not s or s.startswith('.'):
            if s.startswith('.section') and 'rodata' in s:
                break
            continue
        if s.endswith(':'):
            labels[s[:-1]] = len(ins)
            continue
        ins.append(I(s, len(ins)))
    problems = []

    def succ(i):
        x = ins[i]
        if x.op == 's_endpgm':
            return []
        if x.op == 's_branch':
            return [labels[x.ops[0]]]
        if x.op.startswith('s_cbranch'):
            return [i + 1, labels[x.ops[0]]]
        return [i + 1] if i + 1 < len(ins) else []

    for p in ins:
        if not (p.valu or p.mfma or p.store_data or (p.salu and ('s', 124) in p.w)):
            continue
        lim = 12 if p.mfma else 5
        seen = {}
        stack = [(j, 0) for j in succ(p.idx)]
        while stack:
            j, d = stack.pop()
            if d >= lim or j >= len(ins):
                continue
            if j in seen and seen[j] <= d:
                continue
            seen[j] = d
            c = ins[j]
            n = need(p, c)
            if n > d:
                problems.append(f"need {n} have {d}: [{p.idx}] {p.text}  ->  [{c.idx}] {c.text}")
            for k in succ(j):
                stack.append((k, d + c.states))
    return problems


if __name__ == '__main__':
    import sys
    for pr in check(open(sys.argv[1]).read()):
        print(pr)
```

```python
import sys
import struct

NAME = "standalone__paged_block_table_kv_pagedattention__sampling_kernel"
WSB = 537395200
KVB = 4100 * 32768
QB = 16 * 32 * 32 * 128 * 2

HDR = """; Paged GQA attention, B=16 Hq=32 Hkv=8 Sq=32 D=128 block=16, bf16.
"""


def f2u(x):
    return struct.unpack('<I', struct.pack('<f', x))[0]


def gen(NS=9, W=3, delta16=16 * 4 + 16, pol="nt", qpol="nt", opol="", T=8.0, stamp=0):
    SLOT = 17408
    RING = NS * SLOT
    A_DONE = RING
    A_READY = RING + 1024
    A_SIG = RING + 1280
    LDS = RING + 1280 + 256
    PSLOT = 2 * SLOT
    L = []

    def A(s):
        for x in s.split('\n'):
            L.append(x if x.endswith(':') or x.startswith(('.', ';')) else '    ' + x)

    vLane, vT0, vT1, vT2, vT3 = 1, 2, 3, 4, 5
    vK0c, vK1c, vVc, vK0, vK1, vV = 6, 7, 8, 9, 10, 11
    vQo, vRdyA, vDoneA, vF = 12, 13, 14, 15
    S, E, CM, O, Q, KF, VF, P, LA, ON = 16, 32, 48, 64, 128, 160, 192, 224, 232, 236
    vCnt, vTop, vNv, vMx, vMx2, vDone, vL16, vHalf4 = 240, 241, 242, 243, 244, 245, 246, 247
    vCl, vN, vR, vE_, vP_, vI = 248, 249, 250, 251, 252, 253
    TB = 64
    vRow = 128
    vKo, vVo = 132, 136
    vPoll, vPollO, vPub, vDn, vDnA = 140, 141, 142, 143, 144

    sW, sH, sG, sOwn, sSeg, sPm, sK, sZ = 3, 34, 35, 36, 37, 38, 39, 40
    sB, sCnt, sNv, sT, sEnd, sOffK, sOffV, sNeed, sF, sScale = 41, 42, 43, 44, 45, 46, 47, 64, 65, 66
    sA, sBb, sC, sD, sE2, sF2 = 67, 68, 69, 70, 71, 72
    sS, sOff, sPub, sFree, sTile, sO0, sO1 = 73, 74, 75, 76, 77, 78, 79
    sQoff, sIt, sSh, sBud = 80, 81, 82, 83
    sSt = 84
    SQ, SK, SV, SWS, SO, SD = "s[8:11]", "s[12:15]", "s[16:19]", "s[20:23]", "s[24:27]", "s[28:31]"

    def vr(a, n):
        return f"v[{a}:{a + n - 1}]" if n > 1 else f"v{a}"

    def adv(s):
        A(f"s_add_u32 s{s}, s{s}, {SLOT}\ns_cmp_ge_u32 s{s}, {RING}\ns_cselect_b32 s{s}, 0, s{s}")

    def budget():
        A(f"s_sub_u32 s{sBud}, s{sBud}, 1\ns_cbranch_scc1 L_end")

    def st(i):
        if stamp:
            A(f"s_memrealtime s[{sSt + 2 * i}:{sSt + 2 * i + 1}]")

    def dump_stamps(base):
        if not stamp:
            return
        A("s_waitcnt lgkmcnt(0)")
        for i in range(8):
            A(f"v_mov_b32 v{16 + i}, s{sSt + 2 * i}")
        A(f"s_lshl_b32 s{sA}, s2, 6\ns_add_u32 s{sA}, s{sA}, {WSB - 256 * 64 + base}")
        A(f"v_mov_b32 v{vT0}, 0\ns_mov_b64 exec, 1")
        A(f"buffer_store_dwordx4 v[16:19], v{vT0}, {SWS}, s{sA} offen")
        A(f"buffer_store_dwordx4 v[20:23], v{vT0}, {SWS}, s{sA} offen offset:16")
        A("s_mov_b64 exec, -1")

    A(HDR.rstrip())
    A(f"; @launch grid=(256,1,1) block=(320,1,1) lds={LDS}")
    A('.amdgcn_target "amdgcn-amd-amdhsa--gfx950"\n.text')
    A(f".globl {NAME}\n.p2align 8\n.type {NAME},@function\n{NAME}:")
    A("s_cmp_ge_u32 s2, 256\ns_cbranch_scc1 L_end")
    A("s_load_dwordx16 s[48:63], s[0:1], 0")
    if stamp:
        for i in range(8):
            A(f"s_mov_b64 s[{sSt + 2 * i}:{sSt + 2 * i + 1}], 0")
    st(0)
    A(f"v_lshrrev_b32 v{vT0}, 6, v0\nv_and_b32 v{vLane}, 63, v0")
    A(f"v_readfirstlane_b32 s{sW}, v{vT0}")
    A(f"v_and_b32 v{vI}, 15, v0\nv_lshlrev_b32 v{vT1}, 2, v{vI}\nv_lshlrev_b32 v{vL16}, 4, v{vLane}")
    A(f"s_and_b32 s{sH}, s2, 7\ns_lshr_b32 s{sG}, s2, 3\ns_mov_b32 s{sBud}, 0x400000")
    A(f"s_cmp_eq_u32 s{sW}, 4")
    A("s_waitcnt lgkmcnt(0)")
    A(f"global_load_dword v{vCl}, v{vT1}, s[56:57]")
    A("s_cbranch_scc0 L_notab")
    A("s_setprio 3")
    A(f"v_add_u32 v{vT2}, 4096, v{vL16}\nv_add_u32 v{vT3}, 0x3000, v{vL16}")
    for b in range(16):
        base = vT2 if b < 8 else vT3
        A(f"global_load_dwordx4 {vr(TB + 4 * b, 4)}, v{base}, s[54:55] offset:{(b % 8 - 4) * 1024}")
    A("L_notab:")
    for srd, p, n in ((8, 48, QB), (12, 50, KVB), (16, 52, KVB), (20, 62, WSB), (24, 58, QB), (28, 60, 256)):
        A(f"s_mov_b32 s{srd}, s{p}\ns_and_b32 s{srd + 1}, s{p + 1}, 0xffff\ns_mov_b32 s{srd + 2}, {n}\n"
          f"s_mov_b32 s{srd + 3}, 0x20000")
    A(f"v_lshlrev_b32 v{vDoneA}, 2, v0\nv_add_u32 v{vDoneA}, {A_DONE}, v{vDoneA}")
    A(f"v_lshlrev_b32 v{vT0}, 2, v{vLane}\nv_add_u32 v{vT0}, {A_SIG}, v{vT0}")
    A(f"v_mov_b32 v{vDone}, 0")
    A(f"ds_write_b32 v{vDoneA}, v{vDone}\nds_write_b32 v{vT0}, v{vDone}")
    A(f"v_mov_b32 v{vRdyA}, {A_READY}")
    A(f"v_mov_b32 v{vT2}, 0x1000")
    A("s_waitcnt lgkmcnt(0)\ns_barrier")
    A(f"s_cmp_eq_u32 s{sW}, 4\ns_cbranch_scc1 L_w16\ns_waitcnt vmcnt(0)\nL_w16:\ns_waitcnt vmcnt(16)")
    st(1)
    A(f"v_cmp_gt_i32 vcc, 1, v{vCl}\nv_min_i32 v{vCl}, 0x1000, v{vCl}\ns_nop 0")
    A(f"v_cndmask_b32 v{vCl}, v{vCl}, v{vT2}, vcc\ns_mov_b32 s{sZ}, vcc_lo")
    A(f"v_add_u32 v{vN}, 31, v{vCl}\nv_lshrrev_b32 v{vN}, 5, v{vN}")
    A(f"v_mov_b32 v{vT0}, v{vN}\ns_nop 1")
    for sh in (1, 2, 4, 8):
        A(f"v_add_u32_dpp v{vT0}, v{vT0}, v{vT0} row_shr:{sh} row_mask:0xf bank_mask:0xf bound_ctrl:0\ns_nop 1")
    A(f"v_readlane_b32 s{sA}, v{vT0}, 15\ns_nop 0")
    A(f"s_add_u32 s{sA}, s{sA}, {delta16}\ns_lshr_b32 s{sA}, s{sA}, 5\ns_max_u32 s{sA}, s{sA}, 1")
    A(f"v_subrev_u32 v{vR}, s{sA}, v{vN}\nv_max_i32 v{vR}, 0, v{vR}\nv_mov_b32 v{vE_}, v{vR}\ns_nop 1")
    for sh in (1, 2, 4, 8):
        A(f"v_add_u32_dpp v{vE_}, v{vE_}, v{vE_} row_shr:{sh} row_mask:0xf bank_mask:0xf bound_ctrl:0\ns_nop 1")
    A(f"v_readlane_b32 s{sBb}, v{vE_}, 15\nv_sub_u32 v{vP_}, v{vE_}, v{vR}")
    A(f"s_cmp_ge_u32 s{sG}, 16\ns_cbranch_scc1 L_plan_owner")
    A(f"s_mov_b32 s{sOwn}, 0\ns_mov_b32 s{sPm}, 0\ns_mov_b32 s{sK}, 0")
    A(f"s_mul_i32 s{sC}, s{sG}, s{sBb}\ns_add_u32 s{sD}, s{sC}, s{sBb}\ns_lshr_b32 s{sC}, s{sC}, 4\ns_lshr_b32 s{sD}, s{sD}, 4")
    A(f"v_max_i32 v{vT0}, s{sC}, v{vP_}\nv_min_i32 v{vT1}, s{sD}, v{vE_}")
    A(f"v_sub_u32 v{vCnt}, v{vT1}, v{vT0}\nv_sub_u32 v{vTop}, v{vT1}, v{vP_}\nv_subrev_u32 v{vTop}, 1, v{vTop}")
    A(f"v_cmp_lt_i32 vcc, 0, v{vCnt}\nv_mov_b32 v{vNv}, 32\ns_nop 0\ns_and_b32 s{sSeg}, vcc_lo, 0xffff")
    A("s_cbranch_scc0 L_end")
    A("s_branch L_plan_done")
    A("L_plan_owner:")
    A(f"s_mov_b32 s{sOwn}, 1\ns_sub_u32 s{sB}, s{sG}, 16\ns_lshl_b32 s{sSeg}, 1, s{sB}")
    A(f"v_sub_u32 v{vCnt}, v{vN}, v{vR}\nv_subrev_u32 v{vTop}, 1, v{vN}")
    A(f"v_readlane_b32 s{sC}, v{vP_}, s{sB}\nv_readlane_b32 s{sD}, v{vE_}, s{sB}")
    A(f"v_lshlrev_b32 v{vNv}, 5, v{vTop}\nv_sub_u32 v{vNv}, v{vCl}, v{vNv}")
    A(f"v_mul_u32_u24 v{vT0}, s{sBb}, v{vI}\nv_add_u32 v{vT1}, s{sBb}, v{vT0}")
    A(f"v_lshrrev_b32 v{vT0}, 4, v{vT0}\nv_lshrrev_b32 v{vT1}, 4, v{vT1}")
    A(f"v_max_i32 v{vT0}, s{sC}, v{vT0}\nv_min_i32 v{vT1}, s{sD}, v{vT1}")
    A(f"v_cmp_lt_i32 vcc, v{vT0}, v{vT1}\ns_nop 1\ns_and_b32 s{sPm}, vcc_lo, 0xffff\ns_bcnt1_i32_b32 s{sK}, s{sPm}")
    A("L_plan_done:")
    A(f"s_cmp_eq_u32 s{sW}, 4\ns_cbranch_scc0 L_consumer")

    A(f"v_lshrrev_b32 v{vT0}, 4, v{vLane}\nv_and_b32 v{vT1}, 15, v{vLane}\ns_lshl_b32 s{sA}, s{sH}, 8")
    A(f"v_xor_b32 v{vT2}, v{vT1}, v{vT0}\nv_lshlrev_b32 v{vT2}, 4, v{vT2}\nv_lshl_add_u32 v{vT2}, v{vT0}, 11, v{vT2}")
    A(f"v_add_u32 v{vKo}, s{sA}, v{vT2}")
    A(f"v_lshlrev_b32 v{vT2}, 4, v{vT1}\nv_lshl_add_u32 v{vT2}, v{vT0}, 13, v{vT2}")
    A(f"v_add_u32 v{vVo}, s{sA}, v{vT2}")
    for j in range(1, 4):
        A(f"v_add_u32 v{vKo + j}, {j * (8192 - 1088)}, v{vKo}\nv_add_u32 v{vVo + j}, {j * (2048 - 1088)}, v{vVo}")
    A(f"s_lshl_b32 s{sA}, s{sH}, 4\ns_add_u32 s{sA}, s{sA}, s{sG}\ns_sub_u32 s{sA}, s{sA}, 16")
    A(f"s_and_b32 s{sSh}, s{sA}, 1\ns_lshl_b32 s{sSh}, s{sSh}, 4\ns_lshr_b32 s{sA}, s{sA}, 1\ns_lshl_b32 s{sA}, s{sA}, 2")
    A(f"s_cmp_eq_u32 s{sOwn}, 1\ns_cselect_b32 s{sA}, s{sA}, 0x1000\nv_mov_b32 v{vPollO}, s{sA}")
    A(f"v_mov_b32 v{vPoll}, 0")
    A(f"v_and_b32 v{vDnA}, 3, v{vLane}\nv_lshlrev_b32 v{vDnA}, 8, v{vDnA}\nv_add_u32 v{vDnA}, {A_DONE}, v{vDnA}")
    A(f"s_mov_b32 s{sS}, 0\ns_mov_b32 s{sOff}, 0\ns_mov_b32 s{sPub}, 0\ns_mov_b32 s{sFree}, {NS}")
    A("s_waitcnt vmcnt(0)")
    st(2)

    def rd_done():
        A(f"ds_read_b32 v{vDn}, v{vDnA}\ns_waitcnt lgkmcnt(0)")
        A(f"v_readlane_b32 s{sA}, v{vDn}, 0\nv_readlane_b32 s{sBb}, v{vDn}, 1\nv_readlane_b32 s{sC}, v{vDn}, 2\n"
          f"v_readlane_b32 s{sD}, v{vDn}, 3")
        A(f"s_min_u32 s{sA}, s{sA}, s{sBb}\ns_min_u32 s{sC}, s{sC}, s{sD}\ns_min_u32 s{sA}, s{sA}, s{sC}\n"
          f"s_add_u32 s{sFree}, s{sA}, {NS}")

    def wait_free(tag):
        A(f"s_cmp_lt_u32 s{sS}, s{sFree}\ns_cbranch_scc1 L_free_{tag}")
        A(f"L_full_{tag}:")
        budget()
        rd_done()
        A(f"s_cmp_lt_u32 s{sS}, s{sFree}\ns_cbranch_scc0 L_full_{tag}")
        A(f"L_free_{tag}:")

    def publish(back):
        A(f"s_sub_u32 s{sA}, s{sS}, {back}\ns_max_i32 s{sPub}, s{sPub}, s{sA}\nv_mov_b32 v{vPub}, s{sPub}")

    def stage_end():
        A(f"s_add_u32 s{sS}, s{sS}, 1")
        adv(sOff)
        rd_done()
        publish(W - 1)
        A(f"s_waitcnt vmcnt({17 * (W - 1)})\nds_write_b32 v{vDoneA}, v{vPub}")

    def drain():
        for back in range(W - 2, -1, -1):
            publish(back)
            A(f"s_waitcnt vmcnt({17 * back})\nds_write_b32 v{vDoneA}, v{vPub}")

    A("L_lseg:")
    A(f"s_ff1_i32_b32 s{sB}, s{sSeg}\ns_bitset0_b32 s{sSeg}, s{sB}")
    A(f"v_readlane_b32 s{sCnt}, v{vCnt}, s{sB}\nv_readlane_b32 s{sTile}, v{vTop}, s{sB}")
    A(f"s_lshl_b32 s{sA}, s{sB}, 2\ns_set_gpr_idx_on s{sA}, 0x1")
    for j in range(4):
        A(f"v_mov_b32 v{vRow + j}, v{TB + j}")
    A("s_set_gpr_idx_off")
    for j in range(4):
        A(f"v_lshlrev_b32 v{vRow + j}, 15, v{vRow + j}")
    A("L_ltile:")
    A(f"s_lshr_b32 s{sE2}, s{sTile}, 1")
    A(f"v_readlane_b32 s{sO0}, v{vRow}, s{sE2}\nv_readlane_b32 s{sO1}, v{vRow + 1}, s{sE2}\n"
      f"v_readlane_b32 s{sF2}, v{vRow + 2}, s{sE2}\nv_readlane_b32 s{sE2}, v{vRow + 3}, s{sE2}")
    A(f"s_bitcmp1_b32 s{sTile}, 0\ns_cselect_b32 s{sO0}, s{sF2}, s{sO0}\ns_cselect_b32 s{sO1}, s{sE2}, s{sO1}")
    wait_free("kv")
    for g, (srd, vo, so) in enumerate(((SK, vKo, sO0), (SK, vKo, sO1), (SV, vVo, sO0), (SV, vVo, sO1))):
        if g == 0:
            A(f"s_mov_b32 m0, s{sOff}\ns_nop 0")
        else:
            A(f"s_add_u32 m0, s{sOff}, {g * 4352}\ns_nop 0")
        for j in range(4):
            A(f"buffer_load_dwordx4 v{vo + j}, {srd}, s{so} offen offset:{j * 1088} {pol} lds")
    A(f"buffer_load_dword v{vPoll}, v{vPollO}, {SD}, 0 offen sc1")
    stage_end()
    A(f"s_sub_u32 s{sTile}, s{sTile}, 1\ns_sub_u32 s{sCnt}, s{sCnt}, 1\ns_cmp_lg_u32 s{sCnt}, 0\ns_cbranch_scc1 L_ltile")
    A(f"s_cmp_lg_u32 s{sSeg}, 0\ns_cbranch_scc1 L_lseg")
    st(3)
    A(f"s_cmp_eq_u32 s{sK}, 0\ns_cbranch_scc1 L_ldrain")
    A(f"v_readfirstlane_b32 s{sA}, v{vPoll}\ns_nop 0\ns_lshr_b32 s{sA}, s{sA}, s{sSh}\ns_and_b32 s{sA}, s{sA}, 0xffff")
    A(f"s_cmp_ge_u32 s{sA}, s{sK}\ns_cbranch_scc1 L_lpart")
    drain()
    A("L_lpoll:")
    budget()
    A(f"buffer_load_dword v{vPoll}, v{vPollO}, {SD}, 0 offen sc1\ns_waitcnt vmcnt(0)")
    A(f"v_readfirstlane_b32 s{sA}, v{vPoll}\ns_nop 0\ns_lshr_b32 s{sA}, s{sA}, s{sSh}\ns_and_b32 s{sA}, s{sA}, 0xffff")
    A(f"s_cmp_ge_u32 s{sA}, s{sK}\ns_cbranch_scc0 L_lpoll")
    A("L_lpart:")
    st(4)
    A("L_lpart2:")
    A(f"s_ff1_i32_b32 s{sA}, s{sPm}\ns_bitset0_b32 s{sPm}, s{sA}")
    A(f"s_add_u32 s{sA}, s{sA}, s{sB}\ns_lshl_b32 s{sA}, s{sA}, 3\ns_add_u32 s{sA}, s{sA}, s{sH}\ns_mul_i32 s{sO0}, s{sA}, {PSLOT}")
    A(f"s_mov_b32 s{sCnt}, 2")
    A("L_lphalf:")
    wait_free("p")
    for g in range(5):
        if g == 0:
            A(f"s_mov_b32 m0, s{sOff}\ns_mov_b32 s{sO1}, s{sO0}")
        else:
            A(f"s_add_u32 m0, s{sOff}, {g * 4096}\ns_add_u32 s{sO1}, s{sO0}, {g * 4096}")
        for j in range(4 if g < 4 else 1):
            A(f"buffer_load_dwordx4 v{vL16}, {SWS}, s{sO1} offen offset:{j * 1024} sc1 lds")
    stage_end()
    A(f"s_add_u32 s{sO0}, s{sO0}, {SLOT}\ns_sub_u32 s{sCnt}, s{sCnt}, 1\ns_cmp_lg_u32 s{sCnt}, 0\ns_cbranch_scc1 L_lphalf")
    A(f"s_cmp_lg_u32 s{sPm}, 0\ns_cbranch_scc1 L_lpart2")
    A("L_ldrain:")
    drain()
    st(5)
    dump_stamps(0)
    A("s_endpgm")

    A("L_consumer:")
    A(f"v_lshrrev_b32 v{vT0}, 5, v{vLane}")
    A(f"v_lshlrev_b32 v{vHalf4}, 2, v{vT0}")
    A(f"v_and_b32 v{vT1}, 31, v{vLane}\nv_lshlrev_b32 v{vQo}, 8, v{vT1}\nv_lshl_add_u32 v{vQo}, v{vT0}, 4, v{vQo}")
    A(f"v_lshrrev_b32 v{vT2}, 2, v{vT1}\nv_mul_u32_u24 v{vK0c}, 1088, v{vT2}\nv_and_b32 v{vT2}, 3, v{vLane}")
    A(f"v_lshl_add_u32 v{vK0c}, v{vT2}, 8, v{vK0c}\nv_xor_b32 v{vT3}, v{vT2}, v{vT0}")
    A(f"v_xor_b32 v{vK1c}, 2, v{vT3}\nv_lshl_add_u32 v{vK1c}, v{vK1c}, 4, v{vK0c}\nv_lshl_add_u32 v{vK0c}, v{vT3}, 4, v{vK0c}")
    A(f"v_bfe_u32 v{vT3}, v{vLane}, 2, 2\nv_mul_u32_u24 v{vVc}, 1088, v{vT3}\nv_lshl_add_u32 v{vVc}, v{vT0}, 8, v{vVc}")
    A(f"v_lshl_add_u32 v{vVc}, v{vT2}, 3, v{vVc}\nv_bfe_u32 v{vT3}, v{vLane}, 4, 1\nv_lshl_add_u32 v{vVc}, v{vT3}, 5, v{vVc}")
    A(f"v_add_u32 v{vVc}, 8704, v{vVc}")
    A(f"v_lshrrev_b32 v{vT2}, 2, v{vLane}\nv_xor_b32 v{vT2}, v{vT2}, v{vT3}\nv_and_b32 v{vT2}, 1, v{vT2}")
    A(f"v_subrev_u32 v{vT2}, 1, v{vT2}\nv_and_b32 v{ON}, 0x3f803f80, v{vT2}")
    for j in range(1, 4):
        A(f"v_mov_b32 v{ON + j}, v{ON}")
    A(f"s_mov_b32 s{sT}, 0\ns_mov_b32 s{sOffV}, 0")

    def spin(tag):
        A(f"L_spin_{tag}:")
        budget()
        A(f"ds_read_b32 v{vF}, v{vRdyA}\ns_waitcnt lgkmcnt(0)\nv_readfirstlane_b32 s{sF}, v{vF}\ns_nop 0")
        A(f"s_cmp_lt_u32 s{sF}, s{sNeed}\ns_cbranch_scc1 L_spin_{tag}")

    def kaddr():
        return [f"v_add_u32 v{vK0}, s{sOffK}, v{vK0c}", f"v_add_u32 v{vK1}, s{sOffK}, v{vK1c}"]

    def kreads():
        return [f"ds_read_b128 {vr(KF + 4 * t, 4)}, v{vK1 if t & 1 else vK0} offset:{(t >> 1) * 64}" for t in range(8)]

    def vreads():
        out = []
        for s in range(2):
            for dt in range(4):
                for u in range(2):
                    out.append(f"ds_read_b64_tr_b16 {vr(VF + 16 * s + 4 * dt + 2 * u, 2)}, v{vV} "
                               f"offset:{s * 4352 + u * 512 + dt * 64}")
        return out

    def qk(t, c):
        return f"v_mfma_f32_32x32x16_bf16 {vr(S, 16)}, {vr(KF + 4 * t, 4)}, {vr(Q + 4 * t, 4)}, {c}"

    def pv(s, dt):
        return (f"v_mfma_f32_32x32x16_bf16 {vr(O + 16 * dt, 16)}, {vr(VF + 16 * s + 4 * dt, 4)}, {vr(P + 4 * s, 4)}, "
                f"{vr(O + 16 * dt, 16)}")

    def rs(s):
        return f"v_mfma_f32_16x16x32_bf16 {vr(LA, 4)}, {vr(ON, 4)}, {vr(P + 4 * s, 4)}, {vr(LA, 4)}"

    def cvt(j):
        return f"v_cvt_pk_bf16_f32 v{P + j}, v{E + 2 * j}, v{E + 2 * j + 1}"

    def maxes():
        out = [f"v_max3_f32 v{vMx}, v{S}, v{S + 1}, v{S + 2}", f"v_max3_f32 v{vMx2}, v{S + 3}, v{S + 4}, v{S + 5}"]
        out += [f"v_max3_f32 v{vMx}, v{vMx}, v{S + 6}, v{S + 7}", f"v_max3_f32 v{vMx2}, v{vMx2}, v{S + 8}, v{S + 9}"]
        out += [f"v_max3_f32 v{vMx}, v{vMx}, v{S + 10}, v{S + 11}", f"v_max3_f32 v{vMx2}, v{vMx2}, v{S + 12}, v{S + 13}"]
        out += [f"v_max3_f32 v{vMx}, v{vMx}, v{S + 14}, v{S + 15}", f"v_max_f32 v{vMx}, v{vMx}, v{vMx2}"]
        return out

    def xhalf_max():
        A(f"v_mov_b32 v{vMx2}, v{vMx}\ns_nop 1\nv_permlane32_swap_b32 v{vMx}, v{vMx2}\ns_nop 0\nv_max_f32 v{vMx}, v{vMx}, v{vMx2}")

    def exp_shifted():
        for i in range(16):
            A(f"v_sub_f32 v{E + i}, v{S + i}, v{vMx}")
        for i in range(16):
            A(f"v_exp_f32 v{E + i}, v{E + i}")

    A("L_seg:")
    A(f"s_ff1_i32_b32 s{sB}, s{sSeg}\ns_bitset0_b32 s{sSeg}, s{sB}")
    A(f"s_lshl_b32 s{sQoff}, s{sB}, 3\ns_add_u32 s{sQoff}, s{sQoff}, s{sH}\ns_lshl_b32 s{sQoff}, s{sQoff}, 2\n"
      f"s_add_u32 s{sQoff}, s{sQoff}, s{sW}\ns_lshl_b32 s{sQoff}, s{sQoff}, 13")
    for t in range(8):
        A(f"buffer_load_dwordx4 {vr(Q + 4 * t, 4)}, v{vQo}, {SQ}, s{sQoff} offen offset:{t * 32} {qpol}")
    A(f"v_readlane_b32 s{sCnt}, v{vCnt}, s{sB}\nv_readlane_b32 s{sNv}, v{vNv}, s{sB}")
    c = f2u(1.4426950408889634 / 128 ** 0.5)
    A(f"s_bitcmp1_b32 s{sZ}, s{sB}\ns_cselect_b32 s{sScale}, 0, {hex(c)}")
    A(f"s_add_u32 s{sEnd}, s{sT}, s{sCnt}\ns_mov_b32 s{sOffK}, s{sOffV}\ns_add_u32 s{sNeed}, s{sT}, 1")
    for i in range(64):
        A(f"v_mov_b32 v{O + i}, 0")
    for i in range(4):
        A(f"v_mov_b32 v{LA + i}, 0")
    for x in kaddr():
        A(x)
    adv(sOffK)
    for t in range(8):
        A(f"s_waitcnt vmcnt({7 - t})")
        for j in range(4):
            r = Q + 4 * t + j
            A(f"v_lshlrev_b32 v{vT0}, 16, v{r}\nv_and_b32 v{vT1}, 0xffff0000, v{r}\n"
              f"v_mul_f32 v{vT0}, s{sScale}, v{vT0}\nv_mul_f32 v{vT1}, s{sScale}, v{vT1}\n"
              f"v_cvt_pk_bf16_f32 v{r}, v{vT0}, v{vT1}")
    st(2)
    spin("p0")
    st(3)
    for x in kreads():
        A(x)
    A(f"s_add_u32 s{sNeed}, s{sT}, 2\ns_min_u32 s{sNeed}, s{sNeed}, s{sEnd}")
    A(f"v_subrev_u32 v{vT2}, v{vHalf4}, s{sNv}" if False else f"v_sub_u32 v{vT2}, s{sNv}, v{vHalf4}")
    A(f"v_mov_b32 v{vT3}, 0xff800000")
    for t in range(8):
        A(f"s_waitcnt lgkmcnt({7 - t})")
        A(qk(t, "0" if t == 0 else vr(S, 16)))
    for x in kaddr():
        A(x)
    adv(sOffK)
    spin("p1")
    for x in kreads():
        A(x)
    for r in range(16):
        A(f"v_cmp_lt_i32 vcc, {8 * (r >> 2) + (r & 3)}, v{vT2}\ns_nop 1\nv_cndmask_b32 v{S + r}, v{vT3}, v{S + r}, vcc")
    for x in maxes():
        A(x)
    xhalf_max()
    A(f"v_sub_f32 v{CM}, 0, v{vMx}")
    for i in range(1, 16):
        A(f"v_mov_b32 v{CM + i}, v{CM}")
    exp_shifted()
    A(f"s_sub_u32 s{sIt}, s{sCnt}, 1\ns_cmp_eq_u32 s{sIt}, 0\ns_cbranch_scc1 L_final")

    A(".p2align 3")
    A("L_loop:")
    vrd = vreads()
    A(f"v_add_u32 v{vV}, s{sOffV}, v{vVc}")
    A("s_waitcnt lgkmcnt(0)")
    fillA = [
        vrd[0:3] + [cvt(0)],
        vrd[3:6] + [cvt(1)],
        vrd[6:9] + [cvt(2)],
        vrd[9:12] + [cvt(3)],
        vrd[12:14] + [cvt(4), f"v_add_u32 v{vDone}, 1, v{vDone}"],
        vrd[14:16] + [f"ds_write_b32 v{vDoneA}, v{vDone}", f"ds_read_b32 v{vF}, v{vRdyA}", cvt(5)],
        [cvt(6), cvt(7)] + kaddr() + [f"s_add_u32 s{sNeed}, s{sNeed}, 1", f"s_min_u32 s{sNeed}, s{sNeed}, s{sEnd}"],
        [],
    ]
    for t in range(8):
        A(qk(t, vr(CM, 16) if t == 0 else vr(S, 16)))
        for x in fillA[t]:
            A(x)
    adv(sOffV)
    adv(sOffK)
    A("s_waitcnt lgkmcnt(0)")
    A(pv(0, 0))
    A(f"v_readfirstlane_b32 s{sF}, v{vF}\ns_sub_u32 s{sIt}, s{sIt}, 1\ns_cmp_lt_u32 s{sF}, s{sNeed}\ns_cbranch_scc1 L_slow")
    A("L_back:")
    krd = kreads()
    mx = maxes()
    ex = [f"v_exp_f32 v{E + i}, v{S + i}" for i in range(16)]
    mf = [pv(0, 1), pv(0, 2), pv(0, 3), rs(0), pv(1, 0), pv(1, 1), pv(1, 2), pv(1, 3), rs(1)]
    fillB = [
        krd[0:2],
        krd[2:4] + [ex[0], ex[1]],
        krd[4:6] + [ex[2], ex[3]],
        krd[6:8] + [ex[4], ex[5]],
        [mx[0], mx[1]],
        [ex[6], mx[2], ex[7], mx[3]],
        [ex[8], mx[4], ex[9], mx[5]],
        [ex[10], mx[6], ex[11], mx[7]],
        [ex[12], f"v_cmp_lt_f32 vcc, {hex(f2u(T))}, v{vMx}", ex[13], ex[14]],
        [ex[15]],
    ]
    for i in range(10):
        if i > 0:
            A(mf[i - 1])
        for x in fillB[i]:
            A(x)
    A("s_cbranch_vccnz L_rare")
    A("L_rare_back:")
    A(f"s_cmp_lg_u32 s{sIt}, 0\ns_cbranch_scc1 L_loop")

    A("L_final:")
    A(f"v_add_u32 v{vV}, s{sOffV}, v{vVc}\nv_add_u32 v{vDone}, 1, v{vDone}")
    for i, x in enumerate(vrd):
        A(x)
        if i & 1:
            A(cvt(i >> 1))
    A(f"ds_write_b32 v{vDoneA}, v{vDone}")
    adv(sOffV)
    A(f"s_mov_b32 s{sT}, s{sEnd}")
    A("s_waitcnt lgkmcnt(9)")
    for x in [pv(0, 0), pv(0, 1), pv(0, 2), pv(0, 3), rs(0)]:
        A(x)
    A("s_waitcnt lgkmcnt(0)")
    for x in [rs(1), pv(1, 0), pv(1, 1), pv(1, 2), pv(1, 3)]:
        A(x)
    st(4)
    A(f"s_cmp_eq_u32 s{sOwn}, 1\ns_cbranch_scc1 L_owner_epi")

    A(f"s_add_u32 s{sA}, s{sG}, s{sB}\ns_lshl_b32 s{sA}, s{sA}, 3\ns_add_u32 s{sA}, s{sA}, s{sH}\ns_mul_i32 s{sA}, s{sA}, {PSLOT}")
    A(f"s_lshr_b32 s{sBb}, s{sW}, 1\ns_mul_i32 s{sBb}, s{sBb}, {SLOT}\ns_add_u32 s{sA}, s{sA}, s{sBb}")
    A(f"s_and_b32 s{sBb}, s{sW}, 1\ns_lshl_b32 s{sC}, s{sBb}, 8\ns_add_u32 s{sC}, s{sC}, s{sA}\ns_add_u32 s{sC}, s{sC}, 16384")
    A(f"s_lshl_b32 s{sBb}, s{sBb}, 13\ns_add_u32 s{sA}, s{sA}, s{sBb}\ns_add_u32 s{sBb}, s{sA}, 4096")
    A(f"v_rcp_f32 v{vT0}, v{LA}\nv_log_f32 v{vT1}, v{LA}\nv_lshlrev_b32 v{vT2}, 2, v{vLane}")
    A(f"v_sub_f32 v{vT1}, v{vT1}, v{CM}")
    A(f"buffer_store_dword v{vT1}, v{vT2}, {SWS}, s{sC} offen sc1")
    for i in range(8):
        for j in range(4):
            r = O + 8 * i + 2 * j
            A(f"v_mul_f32 v{r}, v{vT0}, v{r}\nv_mul_f32 v{r + 1}, v{vT0}, v{r + 1}")
        for j in range(4):
            r = O + 8 * i + 2 * j
            A(f"v_cvt_pk_bf16_f32 v{KF + 4 * i + j}, v{r}, v{r + 1}")
        A(f"buffer_store_dwordx4 {vr(KF + 4 * i, 4)}, v{vL16}, {SWS}, s{sA if i < 4 else sBb} offen offset:{(i & 3) * 1024} sc1")
    A(f"s_lshl_b32 s{sA}, s{sB}, 2\ns_add_u32 s{sA}, s{sA}, {A_SIG}\nv_mov_b32 v{vT0}, s{sA}\nv_mov_b32 v{vT1}, 1")
    A(f"s_lshl_b32 s{sA}, s{sH}, 4\ns_add_u32 s{sA}, s{sA}, s{sB}\ns_and_b32 s{sBb}, s{sA}, 1\ns_lshl_b32 s{sBb}, s{sBb}, 4")
    A(f"s_lshl_b32 s{sBb}, 1, s{sBb}\ns_lshr_b32 s{sA}, s{sA}, 1\ns_lshl_b32 s{sA}, s{sA}, 2")
    A(f"v_mov_b32 v{vT2}, s{sA}\nv_mov_b32 v{vT3}, s{sBb}")
    A("s_mov_b64 exec, 1\ns_waitcnt vmcnt(0)")
    A(f"ds_add_rtn_u32 v{vT0}, v{vT0}, v{vT1}\ns_waitcnt lgkmcnt(0)\nv_readfirstlane_b32 s{sA}, v{vT0}\ns_nop 0")
    A(f"s_cmp_eq_u32 s{sA}, 3\ns_cbranch_scc0 L_nosig")
    A(f"buffer_atomic_add v{vT3}, v{vT2}, {SD}, 0 offen sc1")
    A("L_nosig:\ns_mov_b64 exec, -1")
    A(f"s_cmp_lg_u32 s{sSeg}, 0\ns_cbranch_scc1 L_seg")
    st(5)
    if stamp:
        A(f"s_cmp_eq_u32 s{sW}, 0\ns_cbranch_scc0 L_end")
    dump_stamps(32)
    A("s_endpgm")

    A("L_owner_epi:")
    A(f"s_and_b32 s{sA}, s{sW}, 1\ns_lshl_b32 s{sBb}, s{sA}, 13\nv_add_u32 v{vK0c}, s{sBb}, v{vL16}")
    A(f"s_lshl_b32 s{sA}, s{sA}, 8\ns_add_u32 s{sA}, s{sA}, 16384\nv_lshlrev_b32 v{vK1c}, 2, v{vLane}\nv_add_u32 v{vK1c}, s{sA}, v{vK1c}")
    A(f"s_lshr_b32 s{sC}, s{sW}, 1\ns_add_u32 s{sNeed}, s{sT}, s{sC}\ns_add_u32 s{sNeed}, s{sNeed}, 1")
    A(f"s_mov_b32 s{sOffK}, s{sOffV}\ns_cmp_eq_u32 s{sC}, 0\ns_cbranch_scc1 L_m0")
    adv(sOffK)
    A("L_m0:")
    A(f"s_cmp_eq_u32 s{sK}, 0\ns_cbranch_scc1 L_fin")
    A("L_merge:")
    for x in kaddr():
        A(x)
    adv(sOffK)
    adv(sOffK)
    spin("m")
    A(f"ds_read_b32 v{vT0}, v{vK1}")
    for i in range(8):
        A(f"ds_read_b128 {vr(KF + 4 * i, 4)}, v{vK0} offset:{i * 1024}")
    A(f"v_add_u32 v{vDone}, 2, v{vDone}\ns_add_u32 s{sNeed}, s{sNeed}, 2\nds_write_b32 v{vDoneA}, v{vDone}")
    A(f"s_waitcnt lgkmcnt(9)\nv_add_f32 v{vMx}, v{vT0}, v{CM}")
    A(f"v_cmp_lt_f32 vcc, {hex(f2u(40.0))}, v{vMx}\ns_cbranch_vccz L_mok")
    A(f"v_max_f32 v{vT1}, 0, v{vMx}\nv_sub_f32 v{vMx}, v{vMx}, v{vT1}\nv_sub_f32 v{CM}, v{CM}, v{vT1}")
    A(f"v_exp_f32 v{vT1}, -v{vT1}\ns_nop 0")
    for i in range(64):
        A(f"v_mul_f32 v{O + i}, v{vT1}, v{O + i}")
    A(f"v_mul_f32 v{LA}, v{vT1}, v{LA}")
    A("L_mok:")
    A(f"v_exp_f32 v{vMx}, v{vMx}\ns_nop 0\nv_add_f32 v{LA}, v{LA}, v{vMx}")
    for i in range(8):
        A(f"s_waitcnt lgkmcnt({8 - i})")
        for j in range(4):
            r = KF + 4 * i + j
            o = O + 8 * i + 2 * j
            A(f"v_lshlrev_b32 v{vT0}, 16, v{r}\nv_and_b32 v{vT1}, 0xffff0000, v{r}\n"
              f"v_fmac_f32 v{o}, v{vMx}, v{vT0}\nv_fmac_f32 v{o + 1}, v{vMx}, v{vT1}")
    A(f"s_sub_u32 s{sK}, s{sK}, 1\ns_cmp_lg_u32 s{sK}, 0\ns_cbranch_scc1 L_merge")
    A("L_fin:")
    st(5)
    A(f"v_rcp_f32 v{vT0}, v{LA}\ns_nop 0")
    for dt in range(4):
        for gp in range(2):
            o = O + 16 * dt + 8 * gp
            d = KF + 8 * dt + 4 * gp
            for j in range(8):
                A(f"v_mul_f32 v{o + j}, v{vT0}, v{o + j}")
            for j in range(4):
                A(f"v_cvt_pk_bf16_f32 v{d + j}, v{o + 2 * j}, v{o + 2 * j + 1}")
            A(f"s_nop 1\nv_permlane32_swap_b32 v{d}, v{d + 2}\nv_permlane32_swap_b32 v{d + 1}, v{d + 3}")
            A(f"buffer_store_dwordx4 {vr(d, 4)}, v{vQo}, {SO}, s{sQoff} offen offset:{dt * 64 + gp * 32} {opol}")
    if stamp:
        st(6)
        A("s_waitcnt vmcnt(0)")
        st(7)
        A(f"s_cmp_eq_u32 s{sW}, 0\ns_cbranch_scc0 L_end")
    dump_stamps(32)
    A("L_end:\ns_endpgm")

    A("L_slow:")
    spin("s")
    A("s_branch L_back")
    A("L_rare:")
    xhalf_max()
    A(f"v_max_f32 v{vMx}, 0, v{vMx}\nv_exp_f32 v{vT0}, -v{vMx}\nv_sub_f32 v{CM}, v{CM}, v{vMx}")
    for i in range(1, 16):
        A(f"v_mov_b32 v{CM + i}, v{CM}")
    exp_shifted()
    for i in range(64):
        A(f"v_mul_f32 v{O + i}, v{vT0}, v{O + i}")
    for i in range(4):
        A(f"v_mul_f32 v{LA + i}, v{vT0}, v{LA + i}")
    A("s_branch L_rare_back")

    A(f""".section .rodata,"a"
.p2align 6
.amdhsa_kernel {NAME}
  .amdhsa_next_free_vgpr 256
  .amdhsa_next_free_sgpr 102
  .amdhsa_accum_offset 256
  .amdhsa_group_segment_fixed_size 0
  .amdhsa_kernarg_size 64
  .amdhsa_user_sgpr_count 2
  .amdhsa_user_sgpr_kernarg_segment_ptr 1
  .amdhsa_system_sgpr_workgroup_id_x 1
.end_amdhsa_kernel""")
    return "\n".join(L) + "\n"


def parse(spec):
    kw = {}
    for kv in spec.split(","):
        if not kv or kv == "default":
            continue
        k, v = kv.split("=")
        try:
            kw[k] = int(v)
        except ValueError:
            try:
                kw[k] = float(v)
            except ValueError:
                kw[k] = v.replace("+", " ").replace("none", "")
    return kw


if __name__ == "__main__":
    from build import build
    import hz
    files = []
    for spec in sys.argv[1:]:
        txt = gen(**parse(spec))
        pr = hz.check(txt)
        for p in pr:
            print("HAZARD", p, file=sys.stderr)
        fn = "k_" + spec.replace("=", "").replace(",", "_").replace("+", "") + ".s"
        open(fn, "w").write(txt)
        build(fn)
        files.append(fn)
    print(" ".join(files))
```

```python
import sys
import struct

NAME = "standalone__paged_block_table_kv_pagedattention__sampling_kernel"
WSB = 537395200
KVB = 4100 * 32768
QB = 16 * 32 * 32 * 128 * 2

HDR = """; Paged GQA attention, B=16 Hq=32 Hkv=8 Sq=32 D=128 block=16, bf16.
"""

PAIRS = [(4, 13), (9, 8), (14, 3), (0, 12), (5, 7), (10, 2), (15, 11), (1, 6)]


def f2u(x):
    return struct.unpack('<I', struct.pack('<f', x))[0]


def gen(NS=7, win=24, win2=40, ntail=6, gran=2, delta=5, ex=1, theta=2, pol="nt", qpol="nt", opol="", T=8.0,
        stamp=0, nocomp=0, sleep=0, lprio=3, noload=0, hwin=8, psleep=4, early=1, vpat=0, nostore=0, asc=0, nopart=0, noq=0, spol='sc1', lpol='sc1'):
    SLOT = 17408
    RING = NS * SLOT
    PB = RING
    A_DONE = PB + 2 * SLOT
    A_READY = A_DONE + 1024
    A_PREADY = A_DONE + 1280
    A_PDONE = A_DONE + 1536
    A_SIG = A_PDONE + 1024
    LDS = A_SIG + 512
    assert LDS <= 163840
    assert NS >= max(win, win2) // 16 + 4 and max(win, win2) <= 60
    PSLOT = 33920
    L = []

    def A(s):
        for x in s.split('\n'):
            L.append(x if x.endswith(':') or x.startswith(('.', ';')) else '    ' + x)

    vLane, vT0, vT1, vT2, vT3 = 1, 2, 3, 4, 5
    vK0c, vK1c, vVc, vK0, vK1, vV = 6, 7, 8, 9, 10, 11
    vQo, vRdyA, vDoneA, vF = 12, 13, 14, 15
    S, E, CM, O, Q, KF, VF, P, LA, ON = 16, 32, 48, 64, 128, 160, 192, 224, 232, 236
    vMx, vMx2, vDone, vL16, vHalf4, vPd, vPA, vF2 = 240, 241, 242, 243, 244, 245, 246, 248
    vPL = 247
    TA, TBb, vRow = 64, 68, 72
    vKo, vVo = 76, 80
    vPoll, vPub, vDn, vDnA, vQd, vF0, vDb = 84, 85, 86, 87, 88, 89, 90

    sW, sH, sRole, sPair = 3, 32, 33, 34
    sBA, sBB, sCntA, sCntB, sTopA, sTopB, sNv, sExp, sZ = 35, 36, 37, 38, 39, 40, 41, 42, 43
    sThr0, sThr1, sBud = 44, 45, 46
    sB, sCnt, sT, sEnd, sOffK, sOffV, sNeed, sF, sScale = 64, 65, 66, 67, 68, 69, 70, 71, 72
    sA, sBb, sC, sD, sE2, sF2 = 73, 74, 75, 76, 77, 78
    sQoff, sIt, sPend, sItem, sK = 79, 80, 81, 82, 83
    sEarly = 47
    sS, sOff, sPub, sFree, sTile, sO0, sO1, sN0, sN1 = 66, 67, 68, 69, 70, 71, 72, 79, 80
    sSt = 84
    SQ, SK, SV, SWS, SO, SD = "s[8:11]", "s[12:15]", "s[16:19]", "s[20:23]", "s[24:27]", "s[28:31]"

    def vr(a, n):
        return f"v[{a}:{a + n - 1}]" if n > 1 else f"v{a}"

    def adv(s):
        A(f"s_add_u32 s{s}, s{s}, {SLOT}\ns_cmp_ge_u32 s{s}, {RING}\ns_cselect_b32 s{s}, 0, s{s}")

    def budget():
        A(f"s_sub_u32 s{sBud}, s{sBud}, 1\ns_cbranch_scc1 L_end")

    def st(i):
        if stamp:
            A(f"{'s_memrealtime' if stamp == 1 else 's_memtime'} s[{sSt + 2 * i}:{sSt + 2 * i + 1}]")

    def dump_stamps(base):
        if not stamp:
            return
        A("s_waitcnt lgkmcnt(0)")
        for i in range(8):
            A(f"v_mov_b32 v{16 + i}, s{sSt + 2 * i}")
        A(f"s_mul_i32 s{sA}, s2, 96\ns_add_u32 s{sA}, s{sA}, {WSB - 256 * 96 + base}")
        A(f"v_mov_b32 v{vT0}, 0\ns_mov_b64 exec, 1")
        A(f"buffer_store_dwordx4 v[16:19], v{vT0}, {SWS}, s{sA} offen")
        A(f"buffer_store_dwordx4 v[20:23], v{vT0}, {SWS}, s{sA} offen offset:16")
        A("s_mov_b64 exec, -1")

    tabA = sum(p[0] << (4 * i) for i, p in enumerate(PAIRS))
    tabB = sum(p[1] << (4 * i) for i, p in enumerate(PAIRS))

    A(HDR.rstrip())
    A(f"; @launch grid=(256,1,1) block=(384,1,1) lds={LDS}")
    A('.amdgcn_target "amdgcn-amd-amdhsa--gfx950"\n.text')
    A(f".globl {NAME}\n.p2align 8\n.type {NAME},@function\n{NAME}:")
    A("s_cmp_ge_u32 s2, 256\ns_cbranch_scc1 L_end")
    A("s_load_dwordx16 s[48:63], s[0:1], 0")
    if stamp:
        for i in range(8):
            A(f"s_mov_b64 s[{sSt + 2 * i}:{sSt + 2 * i + 1}], 0")
    st(0)
    A(f"v_lshrrev_b32 v{vT0}, 6, v0\nv_and_b32 v{vLane}, 63, v0")
    A(f"v_readfirstlane_b32 s{sW}, v{vT0}")
    A(f"v_lshlrev_b32 v{vL16}, 4, v{vLane}")
    A(f"s_and_b32 s{sH}, s2, 7\ns_lshr_b32 s{sRole}, s2, 6\ns_lshr_b32 s{sA}, s2, 1\ns_and_b32 s{sA}, s{sA}, 28")
    A(f"s_lshr_b32 s{sBA}, {hex(tabA)}, s{sA}\ns_lshr_b32 s{sBB}, {hex(tabB)}, s{sA}")
    A(f"s_and_b32 s{sBA}, s{sBA}, 15\ns_and_b32 s{sBB}, s{sBB}, 15")
    A(f"s_lshl_b32 s{sA}, s{sBA}, 2\ns_lshl_b32 s{sBb}, s{sBB}, 2")
    A(f"s_lshl_b32 s{sC}, s{sBA}, 10\ns_lshl_b32 s{sD}, s{sBB}, 10")
    A(f"v_add_u32 v{vT2}, s{sC}, v{vL16}\nv_add_u32 v{vT3}, s{sD}, v{vL16}")
    A(f"s_mov_b32 s{sBud}, 0x400000")
    A(f"s_cmp_eq_u32 s{sW}, 4")
    A("s_waitcnt lgkmcnt(0)")
    A(f"s_load_dword s{sCntA}, s[56:57], s{sA}\ns_load_dword s{sCntB}, s[56:57], s{sBb}")
    A("s_cbranch_scc0 L_notab")
    A(f"s_setprio {lprio}")
    A(f"global_load_dwordx4 {vr(TA, 4)}, v{vT2}, s[54:55]\nglobal_load_dwordx4 {vr(TBb, 4)}, v{vT3}, s[54:55]")
    A("L_notab:")
    for srd, p, n in ((8, 48, QB), (12, 50, KVB), (16, 52, KVB), (20, 62, WSB), (24, 58, QB), (28, 60, 256)):
        A(f"s_mov_b32 s{srd}, s{p}\ns_and_b32 s{srd + 1}, s{p + 1}, 0xffff\ns_mov_b32 s{srd + 2}, {n}\n"
          f"s_mov_b32 s{srd + 3}, 0x20000")
    A(f"v_lshlrev_b32 v{vDoneA}, 2, v0\nv_add_u32 v{vDoneA}, {A_DONE}, v{vDoneA}")
    A(f"v_mov_b32 v{vDone}, 0")
    A(f"ds_write_b32 v{vDoneA}, v{vDone}\nds_write_b32 v{vDoneA}, v{vDone} offset:1536")
    A(f"v_mov_b32 v{vRdyA}, {A_READY}")
    A("s_waitcnt lgkmcnt(0)\ns_barrier")
    st(1)
    A(f"s_min_i32 s{sCntA}, s{sCntA}, 0x1000\ns_cmp_lt_i32 s{sCntA}, 1\ns_cselect_b32 s{sCntA}, 0x1000, s{sCntA}\ns_cselect_b32 s{sZ}, 1, 0")
    A(f"s_min_i32 s{sCntB}, s{sCntB}, 0x1000\ns_cmp_lt_i32 s{sCntB}, 1\ns_cselect_b32 s{sCntB}, 0x1000, s{sCntB}\ns_cselect_b32 s{sA}, 2, 0")
    A(f"s_or_b32 s{sZ}, s{sZ}, s{sA}")
    A(f"s_cmp_eq_u32 s{sRole}, 3\ns_cselect_b32 s{sNv}, s{sCntB}, s{sCntA}")
    A(f"s_sub_u32 s{sNv}, s{sNv}, 1\ns_and_b32 s{sNv}, s{sNv}, 31\ns_add_u32 s{sNv}, s{sNv}, 1")
    A(f"s_add_u32 s{sTopA}, s{sCntA}, 31\ns_lshr_b32 s{sTopA}, s{sTopA}, 5")
    A(f"s_add_u32 s{sTopB}, s{sCntB}, 31\ns_lshr_b32 s{sTopB}, s{sTopB}, 5")
    A(f"s_add_u32 s{sA}, s{sTopA}, s{sTopB}\ns_add_u32 s{sA}, s{sA}, {2 * delta + ex + 2}\ns_lshr_b32 s{sA}, s{sA}, 2")
    A(f"s_min_u32 s{sCntA}, s{sA}, s{sTopA}\ns_min_u32 s{sCntB}, s{sA}, s{sTopB}")
    A(f"s_sub_u32 s{sC}, s{sTopA}, s{sCntA}\ns_sub_u32 s{sD}, s{sTopB}, s{sCntB}")
    A(f"s_add_u32 s{sA}, s{sC}, s{sD}\ns_add_u32 s{sBb}, s{sA}, {ex + 1}\ns_lshr_b32 s{sBb}, s{sBb}, 1\ns_min_u32 s{sBb}, s{sBb}, s{sA}")
    A(f"s_sub_i32 s{sA}, s{sBb}, s{sC}\ns_abs_i32 s{sA}, s{sA}\ns_cmp_le_u32 s{sA}, {theta}\ns_cselect_b32 s{sBb}, s{sC}, s{sBb}")
    A(f"s_min_u32 s{sE2}, s{sBb}, s{sC}\ns_sub_u32 s{sF2}, s{sBb}, s{sE2}")
    A(f"s_cmp_ge_u32 s{sRole}, 2\ns_cbranch_scc1 L_plan_owner")
    A(f"s_mov_b32 s{sNv}, 32\ns_mov_b32 s{sExp}, 0")
    A(f"s_sub_u32 s{sCntA}, s{sC}, s{sE2}\ns_sub_u32 s{sCntB}, s{sD}, s{sF2}")
    A(f"s_cmp_eq_u32 s{sRole}, 0")
    A(f"s_cselect_b32 s{sCntA}, s{sE2}, s{sCntA}\ns_cselect_b32 s{sCntB}, s{sF2}, s{sCntB}")
    A(f"s_cselect_b32 s{sTopA}, s{sE2}, s{sC}\ns_cselect_b32 s{sTopB}, s{sF2}, s{sD}")
    A(f"s_or_b32 s{sA}, s{sCntA}, s{sCntB}\ns_cbranch_scc0 L_end")
    A("s_branch L_plan_done")
    A("L_plan_owner:")
    A(f"s_sub_u32 s{sC}, s{sC}, s{sE2}\ns_sub_u32 s{sD}, s{sD}, s{sF2}")
    A(f"s_add_u32 s{sThr1}, s{sC}, s{sD}")
    A(f"s_cmp_eq_u32 s{sRole}, 2")
    A(f"s_cselect_b32 s{sCntA}, s{sCntA}, 0\ns_cselect_b32 s{sCntB}, 0, s{sCntB}")
    A(f"s_cselect_b32 s{sThr0}, s{sE2}, s{sBb}\ns_cselect_b32 s{sThr1}, s{sC}, s{sThr1}")
    A(f"s_cselect_b32 s{sE2}, s{sE2}, s{sF2}\ns_cselect_b32 s{sC}, s{sC}, s{sD}")
    A(f"s_min_u32 s{sE2}, s{sE2}, 1\ns_min_u32 s{sC}, s{sC}, 1\ns_lshl_b32 s{sC}, s{sC}, 1\ns_or_b32 s{sExp}, s{sE2}, s{sC}")
    A("L_plan_done:")
    if nopart:
        A(f"s_mov_b32 s{sExp}, 0")
    A(f"s_cmp_lt_u32 s{sW}, 4\ns_cbranch_scc1 L_consumer")
    A(f"v_lshrrev_b32 v{vT0}, 4, v{vLane}\nv_and_b32 v{vT1}, 15, v{vLane}")
    A(f"v_xor_b32 v{vT2}, v{vT1}, v{vT0}\nv_lshlrev_b32 v{vT2}, 4, v{vT2}")
    A(f"v_and_b32 v{vDnA}, 3, v{vLane}\nv_lshlrev_b32 v{vDnA}, 8, v{vDnA}\nv_add_u32 v{vDnA}, {A_DONE}, v{vDnA}")
    A(f"s_cmp_eq_u32 s{sW}, 5\ns_cbranch_scc1 L_helper")

    def min4(dst, add):
        A(f"v_readlane_b32 s{sA}, v{vDn}, 0\nv_readlane_b32 s{sBb}, v{vDn}, 1\nv_readlane_b32 s{sC}, v{vDn}, 2\n"
          f"v_readlane_b32 s{sD}, v{vDn}, 3")
        A(f"s_min_u32 s{sA}, s{sA}, s{sBb}\ns_min_u32 s{sC}, s{sC}, s{sD}\ns_min_u32 s{dst}, s{sA}, s{sC}")
        if add:
            A(f"s_add_u32 s{dst}, s{dst}, {add}")

    A(f"s_lshl_b32 s{sA}, s{sH}, 8")
    A(f"v_lshl_add_u32 v{vT2}, v{vT0}, 11, v{vT2}\nv_add_u32 v{vKo}, s{sA}, v{vT2}")
    A(f"v_lshlrev_b32 v{vT2}, 4, v{vT1}\nv_lshl_add_u32 v{vT2}, v{vT0}, 13, v{vT2}\nv_add_u32 v{vVo}, s{sA}, v{vT2}")
    for j in range(1, 4):
        A(f"v_add_u32 v{vKo + j}, {j * (8192 - 1088)}, v{vKo}\nv_add_u32 v{vVo + j}, {j * (2048 - 1088)}, v{vVo}")
    if vpat:
        for j in range(4):
            A(f"v_mov_b32 v{vVo + j}, v{vKo + j}")
    A(f"s_mov_b32 s{sS}, 0\ns_mov_b32 s{sOff}, 0\ns_mov_b32 s{sPub}, 0\ns_mov_b32 s{sFree}, {NS}")
    A(f"s_cmp_ge_u32 s{sRole}, 2\ns_cselect_b32 s{sK}, {ntail}, 0")
    A(f"s_cmp_eq_u32 s{sCntA}, 0")
    A("s_waitcnt vmcnt(0)")
    st(2)
    A("s_cbranch_scc1 L_lsegB")
    for j in range(4):
        A(f"v_lshlrev_b32 v{vRow + j}, 15, v{TA + j}")
    A(f"s_mov_b32 s{sCnt}, s{sCntA}\ns_sub_u32 s{sTile}, s{sTopA}, 1\ns_branch L_lseg")
    A("L_lsegB:")
    for j in range(4):
        A(f"v_lshlrev_b32 v{vRow + j}, 15, v{TBb + j}")
    A(f"s_mov_b32 s{sCnt}, s{sCntB}\ns_sub_u32 s{sTile}, s{sTopB}, 1\ns_mov_b32 s{sCntB}, 0")
    A("L_lseg:")

    def next_offsets(d0, d1):
        A(f"s_lshr_b32 s{sE2}, s{sTile}, 1\ns_and_b32 s{sE2}, s{sE2}, 63")
        A(f"v_readlane_b32 s{d0}, v{vRow}, s{sE2}\nv_readlane_b32 s{d1}, v{vRow + 1}, s{sE2}\n"
          f"v_readlane_b32 s{sF2}, v{vRow + 2}, s{sE2}\nv_readlane_b32 s{sE2}, v{vRow + 3}, s{sE2}")
        A(f"s_bitcmp1_b32 s{sTile}, 0\ns_cselect_b32 s{d0}, s{sF2}, s{d0}\ns_cselect_b32 s{d1}, s{sE2}, s{d1}")

    next_offsets(sN0, sN1)
    A(f"s_cmp_le_u32 s{sCnt}, s{sK}\ns_cbranch_scc1 L_lt_b")

    def stage_loop(tag, w, stop):
        A(f"L_lt_{tag}:")
        A(f"s_mov_b32 s{sO0}, s{sN0}\ns_mov_b32 s{sO1}, s{sN1}")
        A(f"s_cmp_lt_u32 s{sS}, s{sFree}\ns_cbranch_scc0 L_full_{tag}")
        A(f"L_free_{tag}:")
        pub_i = -(-((w - gran) % 16) // gran) * gran
        back = (w - gran) // 16
        if pub_i == 16:
            pub_i, back = 0, back + 1
        for i in range(16):
            g, j = i >> 2, i & 3
            srd, vo, so = ((SK, vKo, sO0), (SK, vKo, sO1), (SV, vVo, sO0), (SV, vVo, sO1))[g]
            if j == 0:
                A(f"s_mov_b32 m0, s{sOff}" if g == 0 else f"s_add_u32 m0, s{sOff}, {g * 4352}")
            if i == pub_i:
                A(f"s_sub_u32 s{sA}, s{sS}, {back}\ns_max_i32 s{sPub}, s{sPub}, s{sA}\nv_mov_b32 v{vPub}, s{sPub}")
            if i % gran == 0:
                A(f"s_waitcnt vmcnt({w - gran})")
            elif j == 0:
                A("s_nop 0")
            if i == pub_i:
                A(f"ds_write_b32 v{vDoneA}, v{vPub}")
            A(f"buffer_load_dwordx4 v{vo + j}, {srd}, s{so} offen offset:{j * 1088} {pol} lds")
            if i == 3:
                A(f"s_sub_u32 s{sTile}, s{sTile}, 1")
                next_offsets(sN0, sN1)
            if i == 11:
                A(f"ds_read_b32 v{vDn}, v{vDnA}")
        A(f"s_add_u32 s{sS}, s{sS}, 1")
        adv(sOff)
        if stamp:
            for k, n in ((5, 8), (6, 24), (7, 40)):
                A(f"s_cmp_lg_u32 s{sS}, {n}\ns_cbranch_scc1 L_ns{tag}{k}")
                st(k)
                A(f"L_ns{tag}{k}:")
        A("s_waitcnt lgkmcnt(0)")
        min4(sFree, NS)
        if noload:
            A(f"s_cmp_lt_u32 s{sS}, {NS}\ns_cbranch_scc1 L_nl{tag}\ns_waitcnt vmcnt(0)\nv_mov_b32 v{vPub}, 0x7fffffff\n"
              f"ds_write_b32 v{vDoneA}, v{vPub}\ns_branch L_ldone\nL_nl{tag}:")
        A(f"s_sub_u32 s{sCnt}, s{sCnt}, 1\ns_cmp_gt_u32 s{sCnt}, {stop}\ns_cbranch_scc1 L_lt_{tag}")

    stage_loop("a", win, f"s{sK}")
    A(f"s_cmp_eq_u32 s{sCnt}, 0\ns_cbranch_scc1 L_lsegend")
    stage_loop("b", win2, "0")
    A("L_lsegend:")
    A(f"s_cmp_lg_u32 s{sCntB}, 0\ns_cbranch_scc1 L_lsegB")
    st(3)
    for back in range((max(win, win2) - 1) // 16, -1, -1):
        A(f"s_sub_u32 s{sA}, s{sS}, {back}\ns_max_i32 s{sPub}, s{sPub}, s{sA}\nv_mov_b32 v{vPub}, s{sPub}")
        A(f"s_waitcnt vmcnt({16 * back})\nds_write_b32 v{vDoneA}, v{vPub}")
    A("L_ldone:")
    st(4)
    dump_stamps(0)
    A("s_endpgm")
    for tag in "ab":
        A(f"L_full_{tag}:")
        budget()
        A(f"ds_read_b32 v{vDn}, v{vDnA}\ns_waitcnt lgkmcnt(0)")
        min4(sFree, NS)
        A(f"s_cmp_lt_u32 s{sS}, s{sFree}\ns_cbranch_scc0 L_full_{tag}\ns_branch L_free_{tag}")

    A("L_helper:")
    A(f"v_lshl_add_u32 v{vQd}, v{vT0}, 8, v{vT2}")
    A(f"s_mov_b32 s{sItem}, 0\ns_add_u32 s{sCnt}, s{sCntA}, s{sCntB}")
    A(f"s_cmp_eq_u32 s{sCntA}, 0\ns_cselect_b32 s{sB}, s{sBB}, s{sBA}\ns_cselect_b32 s{sCntB}, 0, s{sCntB}")

    def pb_free(tag):
        A(f"L_hfree_{tag}:")
        budget()
        A(f"s_sleep {psleep}")
        A(f"ds_read_b32 v{vDn}, v{vDnA} offset:1536\ns_waitcnt lgkmcnt(0)")
        min4(sA, 0)
        A(f"s_cmp_lt_u32 s{sA}, s{sItem}\ns_cbranch_scc1 L_hfree_{tag}")

    def pb_publish():
        A(f"s_add_u32 s{sItem}, s{sItem}, 1\nv_mov_b32 v{vPub}, s{sItem}\ns_waitcnt vmcnt(0)\nds_write_b32 v{vDoneA}, v{vPub}")

    def q_item(w):
        A(f"s_lshl_b32 s{sO0}, s{sB}, 3\ns_add_u32 s{sO0}, s{sO0}, s{sH}\ns_lshl_b32 s{sO0}, s{sO0}, 15")
        for r in range(32):
            A(f"s_mov_b32 m0, {PB + r * 1088 - (r & 3) * 1024}")
            if r and (r & 3) == 0:
                A(f"s_add_u32 s{sO0}, s{sO0}, 4096")
            elif w and r >= w:
                A(f"s_waitcnt vmcnt({w - 1})")
            else:
                A("s_nop 0")
            A(f"buffer_load_dwordx4 v{vQd}, {SQ}, s{sO0} offen offset:{(r & 3) * 1024} {qpol} lds")
        pb_publish()

    A(f"s_lshl_b32 s{sA}, s{sB}, 4\ns_add_u32 s{sA}, s{sA}, s{sH}\ns_mul_i32 s{sA}, s{sA}, {PSLOT}\ns_add_u32 s{sA}, s{sA}, 33792")
    A(f"s_cmp_ge_u32 s{sRole}, 2\ns_cselect_b32 s{sA}, s{sA}, 0x40000000")
    A(f"v_and_b32 v{vT3}, 1, v{vLane}\nv_mul_u32_u24 v{vT3}, {8 * PSLOT}, v{vT3}\nv_add_u32 v{vT3}, s{sA}, v{vT3}")
    A(f"buffer_load_dword v{vF0}, v{vT3}, {SWS}, 0 offen sc1")
    q_item(0)
    st(2)
    A(f"s_cmp_eq_u32 s{sCntB}, 0\ns_cbranch_scc1 L_hpart")
    A(f"s_mov_b32 s{sB}, s{sBB}")
    pb_free("q")
    q_item(hwin)
    A("L_hpart:")
    A(f"s_cmp_eq_u32 s{sExp}, 0\ns_cbranch_scc1 L_hdone")
    A(f"s_lshl_b32 s{sA}, s{sH}, 4\ns_add_u32 s{sA}, s{sA}, s{sB}\ns_and_b32 s{sK}, s{sA}, 1\ns_lshl_b32 s{sK}, s{sK}, 4")
    A(f"s_lshr_b32 s{sA}, s{sA}, 1\ns_lshl_b32 s{sA}, s{sA}, 2\nv_mov_b32 v{vDb}, s{sA}")
    A("L_hnext:")
    A(f"s_bitcmp1_b32 s{sExp}, 1\ns_cselect_b32 s{sIt}, 1, 0\ns_cselect_b32 s{sNeed}, s{sThr1}, s{sThr0}\ns_bitset0_b32 s{sExp}, s{sIt}")
    pb_free("p")
    A(f"s_min_u32 s{sNeed}, s{sNeed}, s{sCnt}")
    A("L_hthr:")
    budget()
    A(f"ds_read_b32 v{vF}, v{vRdyA}\ns_waitcnt lgkmcnt(0)\nv_readfirstlane_b32 s{sF}, v{vF}\ns_nop 0")
    A(f"s_cmp_ge_u32 s{sF}, s{sNeed}\ns_cbranch_scc1 L_hpoll")
    A(f"s_sleep {psleep}\ns_branch L_hthr")
    A("L_hpoll0:")
    A(f"s_sleep {psleep}")
    A(f"s_and_b32 s{sA}, s{sBud}, 15\ns_cbranch_scc1 L_hpoll1")
    A(f"buffer_load_dword v{vPoll}, v{vDb}, {SD}, 0 offen sc1\ns_add_u32 s{sBb}, s{sK}, s{sIt}\ns_waitcnt vmcnt(0)")
    A(f"v_readfirstlane_b32 s{sA}, v{vPoll}\ns_nop 0\ns_bitcmp1_b32 s{sA}, s{sBb}\ns_cbranch_scc1 L_hgot")
    A("s_branch L_hpoll1")
    A("L_hpoll:")
    A(f"s_lshl_b32 s{sA}, s{sB}, 1\ns_add_u32 s{sA}, s{sA}, s{sIt}\ns_lshl_b32 s{sA}, s{sA}, 3\ns_add_u32 s{sA}, s{sA}, s{sH}\ns_mul_i32 s{sO0}, s{sA}, {PSLOT}")
    A(f"s_add_u32 s{sA}, s{sO0}, 33792\nv_mov_b32 v{vT3}, s{sA}\nv_readlane_b32 s{sC}, v{vF0}, s{sIt}\ns_or_b32 s{sBud}, s{sBud}, 15")
    A("L_hpoll1:")
    budget()
    A(f"buffer_load_dword v{vPoll}, v{vT3}, {SWS}, 0 offen sc1\ns_waitcnt vmcnt(0)")
    A(f"v_readfirstlane_b32 s{sA}, v{vPoll}\ns_nop 0\ns_cmp_eq_u32 s{sA}, s{sC}\ns_cbranch_scc1 L_hpoll0")
    A("L_hgot:")
    st(3)
    for r in range(33):
        if (r & 3) == 0:
            A(f"s_mov_b32 m0, {PB + r * 1024}")
            A(f"s_add_u32 s{sO0}, s{sO0}, 4096" if r else "s_nop 0")
        A(f"buffer_load_dwordx4 v{vL16}, {SWS}, s{sO0} offen offset:{(r & 3) * 1024} {lpol} lds")
    pb_publish()
    A(f"s_cmp_lg_u32 s{sExp}, 0\ns_cbranch_scc1 L_hnext")
    A("L_hdone:")
    st(4)
    dump_stamps(64)
    A("s_endpgm")

    A("L_consumer:")
    A(f"v_lshrrev_b32 v{vT0}, 5, v{vLane}")
    A(f"v_lshlrev_b32 v{vHalf4}, 2, v{vT0}")
    A(f"v_and_b32 v{vT1}, 31, v{vLane}\nv_lshlrev_b32 v{vQo}, 8, v{vT1}\nv_lshl_add_u32 v{vQo}, v{vT0}, 4, v{vQo}")
    A(f"v_lshrrev_b32 v{vT2}, 2, v{vT1}\nv_mul_u32_u24 v{vK0c}, 1088, v{vT2}\nv_and_b32 v{vT2}, 3, v{vLane}")
    A(f"v_lshl_add_u32 v{vK0c}, v{vT2}, 8, v{vK0c}\nv_xor_b32 v{vT3}, v{vT2}, v{vT0}")
    A(f"v_xor_b32 v{vK1c}, 2, v{vT3}\nv_lshl_add_u32 v{vK1c}, v{vK1c}, 4, v{vK0c}\nv_lshl_add_u32 v{vK0c}, v{vT3}, 4, v{vK0c}")
    A(f"v_bfe_u32 v{vT3}, v{vLane}, 2, 2\nv_mul_u32_u24 v{vVc}, 1088, v{vT3}\nv_lshl_add_u32 v{vVc}, v{vT0}, 8, v{vVc}")
    A(f"v_lshl_add_u32 v{vVc}, v{vT2}, 3, v{vVc}\nv_bfe_u32 v{vT3}, v{vLane}, 4, 1\nv_lshl_add_u32 v{vVc}, v{vT3}, 5, v{vVc}")
    A(f"v_add_u32 v{vVc}, 8704, v{vVc}")
    A(f"v_lshrrev_b32 v{vT2}, 2, v{vLane}\nv_xor_b32 v{vT2}, v{vT2}, v{vT3}\nv_and_b32 v{vT2}, 1, v{vT2}")
    A(f"v_subrev_u32 v{vT2}, 1, v{vT2}\nv_and_b32 v{ON}, 0x3f803f80, v{vT2}")
    for j in range(1, 4):
        A(f"v_mov_b32 v{ON + j}, v{ON}")
    A(f"s_lshl_b32 s{sA}, s{sW}, 13\ns_add_u32 s{sA}, s{sA}, {PB}\nv_add_u32 v{vPA}, s{sA}, v{vL16}")
    A(f"s_lshl_b32 s{sA}, s{sW}, 8\ns_add_u32 s{sA}, s{sA}, {PB + 32768}\nv_lshlrev_b32 v{vPL}, 2, v{vLane}\nv_add_u32 v{vPL}, s{sA}, v{vPL}")
    A(f"v_mov_b32 v{vPd}, 0")
    A(f"s_mov_b32 s{sT}, 0\ns_mov_b32 s{sOffV}, 0\ns_mov_b32 s{sItem}, 0\ns_mov_b32 s{sPend}, -1")
    A(f"s_bcnt1_i32_b32 s{sK}, s{sExp}\ns_add_u32 s{sK}, s{sK}, 1")
    A(f"s_cmp_ge_u32 s{sRole}, 2\ns_cselect_b32 s{sEarly}, s{sK}, 0" if early else f"s_mov_b32 s{sEarly}, 0")
    A(f"s_cmp_eq_u32 s{sCntA}, 0\ns_cbranch_scc1 L_segB")
    A(f"s_mov_b32 s{sB}, s{sBA}\ns_mov_b32 s{sCnt}, s{sCntA}\ns_bitcmp1_b32 s{sZ}, 0\ns_branch L_seg")
    A("L_segB:")
    A(f"s_mov_b32 s{sB}, s{sBB}\ns_mov_b32 s{sCnt}, s{sCntB}\ns_mov_b32 s{sCntB}, 0\ns_bitcmp1_b32 s{sZ}, 1")

    def spin(tag, off=0, need=None, le=False):
        A(f"L_spin_{tag}:")
        budget()
        if sleep:
            A(f"s_sleep {sleep}")
        A(f"ds_read_b32 v{vF}, v{vRdyA} offset:{off}\ns_waitcnt lgkmcnt(0)\nv_readfirstlane_b32 s{sF}, v{vF}\ns_nop 0")
        A(f"s_cmp_{'le' if le else 'lt'}_u32 s{sF}, s{need or sNeed}\ns_cbranch_scc1 L_spin_{tag}")

    def kaddr():
        return [f"v_add_u32 v{vK0}, s{sOffK}, v{vK0c}", f"v_add_u32 v{vK1}, s{sOffK}, v{vK1c}"]

    def kreads(dst=KF):
        return [f"ds_read_b128 {vr(dst + 4 * t, 4)}, v{vK1 if t & 1 else vK0} offset:{(t >> 1) * 64}" for t in range(8)]

    def vreads():
        out = []
        for s in range(2):
            for dt in range(4):
                for u in range(2):
                    out.append(f"ds_read_b64_tr_b16 {vr(VF + 16 * s + 4 * dt + 2 * u, 2)}, v{vV} "
                               f"offset:{s * 4352 + u * 512 + dt * 64}")
        return out

    def qk(t, c):
        return f"v_mfma_f32_32x32x16_bf16 {vr(S, 16)}, {vr(KF + 4 * t, 4)}, {vr(Q + 4 * t, 4)}, {c}"

    def pv(s, dt):
        return (f"v_mfma_f32_32x32x16_bf16 {vr(O + 16 * dt, 16)}, {vr(VF + 16 * s + 4 * dt, 4)}, {vr(P + 4 * s, 4)}, "
                f"{vr(O + 16 * dt, 16)}")

    def rs(s):
        return f"v_mfma_f32_16x16x32_bf16 {vr(LA, 4)}, {vr(ON, 4)}, {vr(P + 4 * s, 4)}, {vr(LA, 4)}"

    def cvt(j):
        return f"v_cvt_pk_bf16_f32 v{P + j}, v{E + 2 * j}, v{E + 2 * j + 1}"

    def maxes():
        out = [f"v_max3_f32 v{vMx}, v{S}, v{S + 1}, v{S + 2}", f"v_max3_f32 v{vMx2}, v{S + 3}, v{S + 4}, v{S + 5}"]
        out += [f"v_max3_f32 v{vMx}, v{vMx}, v{S + 6}, v{S + 7}", f"v_max3_f32 v{vMx2}, v{vMx2}, v{S + 8}, v{S + 9}"]
        out += [f"v_max3_f32 v{vMx}, v{vMx}, v{S + 10}, v{S + 11}", f"v_max3_f32 v{vMx2}, v{vMx2}, v{S + 12}, v{S + 13}"]
        out += [f"v_max3_f32 v{vMx}, v{vMx}, v{S + 14}, v{S + 15}", f"v_max_f32 v{vMx}, v{vMx}, v{vMx2}"]
        return out

    def xhalf_max():
        A(f"v_mov_b32 v{vMx2}, v{vMx}\ns_nop 1\nv_permlane32_swap_b32 v{vMx}, v{vMx2}\ns_nop 0\nv_max_f32 v{vMx}, v{vMx}, v{vMx2}")

    def exp_shifted():
        for i in range(16):
            A(f"v_sub_f32 v{E + i}, v{S + i}, v{vMx}")
        for i in range(16):
            A(f"v_exp_f32 v{E + i}, v{E + i}")

    def signal(tag):
        A(f"s_lshl_b32 s{sA}, s{sPend}, 2\ns_add_u32 s{sA}, s{sA}, {A_SIG}\nv_mov_b32 v{vT0}, s{sA}\nv_mov_b32 v{vT1}, 1")
        A(f"s_lshl_b32 s{sA}, s{sH}, 4\ns_add_u32 s{sA}, s{sA}, s{sPend}\ns_and_b32 s{sBb}, s{sA}, 1\ns_lshl_b32 s{sBb}, s{sBb}, 4")
        A(f"s_add_u32 s{sBb}, s{sBb}, s{sRole}\ns_lshl_b32 s{sBb}, 1, s{sBb}\ns_lshr_b32 s{sA}, s{sA}, 1\ns_lshl_b32 s{sA}, s{sA}, 2")
        A(f"v_mov_b32 v{vT2}, s{sA}\nv_mov_b32 v{vT3}, s{sBb}")
        A(f"s_lshl_b32 s{sA}, s{sPend}, 1\ns_add_u32 s{sA}, s{sA}, s{sRole}\ns_lshl_b32 s{sA}, s{sA}, 3\ns_add_u32 s{sA}, s{sA}, s{sH}")
        A(f"s_mul_i32 s{sA}, s{sA}, {PSLOT}\ns_add_u32 s{sA}, s{sA}, 33792\nv_mov_b32 v{vMx2}, s{sA}\ns_mov_b32 s{sPend}, -1")
        A("s_mov_b64 exec, 1\ns_waitcnt vmcnt(0)")
        A(f"ds_add_rtn_u32 v{vT0}, v{vT0}, v{vT1}\ns_waitcnt lgkmcnt(0)\nv_readfirstlane_b32 s{sA}, v{vT0}\ns_nop 0")
        A(f"s_cmp_eq_u32 s{sA}, 3\ns_cbranch_scc0 L_nosig_{tag}")
        A(f"buffer_atomic_add v{vT1}, v{vMx2}, {SWS}, 0 offen sc1")
        A(f"buffer_atomic_add v{vT3}, v{vT2}, {SD}, 0 offen sc1")
        A(f"L_nosig_{tag}:\ns_mov_b64 exec, -1")

    def merge_body():
        A(f"v_exp_f32 v{vMx}, v{vMx}\ns_add_u32 s{sItem}, s{sItem}, 1\nv_add_f32 v{LA}, v{LA}, v{vMx}")
        for i in range(8):
            A(f"s_waitcnt lgkmcnt({8 - i})")
            for j in range(4):
                r = KF + 4 * i + j
                o = O + 8 * i + 2 * j
                A(f"v_lshlrev_b32 v{vT0}, 16, v{r}\nv_and_b32 v{vT1}, 0xffff0000, v{r}\n"
                  f"v_fmac_f32 v{o}, v{vMx}, v{vT0}\nv_fmac_f32 v{o + 1}, v{vMx}, v{vT1}")

    def merge_reads():
        for i in range(8):
            A(f"ds_read_b128 {vr(KF + 4 * i, 4)}, v{vPA} offset:{i * 1024}")
        A(f"v_add_u32 v{vPd}, 1, v{vPd}\nds_write_b32 v{vDoneA}, v{vPd} offset:1536")

    A("L_seg:")
    c = f2u(1.4426950408889634 / 128 ** 0.5)
    A(f"s_cselect_b32 s{sScale}, 0, {hex(c)}")
    A(f"s_add_u32 s{sEnd}, s{sT}, s{sCnt}\ns_add_u32 s{sNeed}, s{sT}, 1")
    A(f"s_mul_i32 s{sOffK}, s{sW}, 8704\ns_add_u32 s{sOffK}, s{sOffK}, {PB}")
    for x in kaddr():
        A(x)
    A(f"s_mov_b32 s{sOffK}, s{sOffV}")
    for i in range(64):
        A(f"v_mov_b32 v{O + i}, 0")
    for i in range(4):
        A(f"v_mov_b32 v{LA + i}, 0")
    spin("q", off=256, need=sItem, le=True)
    for x in kreads(Q):
        A(x)
    A(f"v_add_u32 v{vPd}, 1, v{vPd}\ns_add_u32 s{sItem}, s{sItem}, 1\nds_write_b32 v{vDoneA}, v{vPd} offset:1536")
    for x in kaddr():
        A(x)
    adv(sOffK)
    for t in range(8):
        A(f"s_waitcnt lgkmcnt({8 - t})")
        for j in range(4):
            r = Q + 4 * t + j
            A(f"v_lshlrev_b32 v{vT0}, 16, v{r}\nv_and_b32 v{vT1}, 0xffff0000, v{r}\n"
              f"v_mul_f32 v{vT0}, s{sScale}, v{vT0}\nv_mul_f32 v{vT1}, s{sScale}, v{vT1}\n"
              f"v_cvt_pk_bf16_f32 v{r}, v{vT0}, v{vT1}")
    st(2)
    spin("p0")
    st(3)
    for x in kreads():
        A(x)
    A(f"s_add_u32 s{sNeed}, s{sT}, 2\ns_min_u32 s{sNeed}, s{sNeed}, s{sEnd}")
    A(f"v_sub_u32 v{vT2}, s{sNv}, v{vHalf4}")
    A(f"v_mov_b32 v{vT3}, 0xff800000")
    for t in range(8):
        A(f"s_waitcnt lgkmcnt({7 - t})")
        A(qk(t, "0" if t == 0 else vr(S, 16)))
    for x in kaddr():
        A(x)
    adv(sOffK)
    spin("p1")
    for x in kreads():
        A(x)
    A(f"s_cmp_eq_u32 s{sNv}, 32\ns_cbranch_scc1 L_nomask")
    for r in range(16):
        A(f"v_cmp_lt_i32 vcc, {8 * (r >> 2) + (r & 3)}, v{vT2}\ns_nop 1\nv_cndmask_b32 v{S + r}, v{vT3}, v{S + r}, vcc")
    A("L_nomask:")
    for x in maxes():
        A(x)
    xhalf_max()
    A(f"v_sub_f32 v{CM}, 0, v{vMx}")
    for i in range(1, 16):
        A(f"v_mov_b32 v{CM + i}, v{CM}")
    exp_shifted()
    A(f"s_cmp_lt_i32 s{sPend}, 0\ns_cbranch_scc1 L_nopend")
    signal("a")
    A("L_nopend:")
    A(f"s_sub_u32 s{sIt}, s{sCnt}, 1\ns_cmp_eq_u32 s{sIt}, 0\ns_cbranch_scc1 L_final")

    A(".p2align 3")
    A("L_loop:")
    loop_start = len(L)
    vrd = vreads()
    A(f"v_add_u32 v{vV}, s{sOffV}, v{vVc}")
    A("s_waitcnt lgkmcnt(0)")
    fillA = [
        vrd[0:3] + [cvt(0)],
        vrd[3:6] + [cvt(1)],
        vrd[6:9] + [cvt(2)],
        vrd[9:12] + [cvt(3)],
        vrd[12:14] + [cvt(4), f"v_add_u32 v{vDone}, 1, v{vDone}"],
        vrd[14:16] + [f"ds_write_b32 v{vDoneA}, v{vDone}", f"ds_read_b32 v{vF}, v{vRdyA}", cvt(5)],
        [cvt(6), cvt(7)] + kaddr() + [f"s_add_u32 s{sNeed}, s{sNeed}, 1", f"s_min_u32 s{sNeed}, s{sNeed}, s{sEnd}"],
        [],
    ]
    for t in range(8):
        A(qk(t, vr(CM, 16) if t == 0 else vr(S, 16)))
        for x in fillA[t]:
            A(x)
    adv(sOffV)
    adv(sOffK)
    A("s_waitcnt lgkmcnt(0)")
    A(pv(0, 0))
    A(f"v_readfirstlane_b32 s{sF}, v{vF}\ns_sub_u32 s{sIt}, s{sIt}, 1\ns_cmp_lt_u32 s{sF}, s{sNeed}\ns_cbranch_scc1 L_slow")
    A("L_back:")
    krd = kreads()
    mx = maxes()
    ex_ = [f"v_exp_f32 v{E + i}, v{S + i}" for i in range(16)]
    mf = [pv(0, 1), pv(0, 2), pv(0, 3), rs(0), pv(1, 0), pv(1, 1), pv(1, 2), pv(1, 3), rs(1)]
    fillB = [
        krd[0:2],
        krd[2:4] + [ex_[0], ex_[1]],
        krd[4:6] + [ex_[2], ex_[3]],
        krd[6:8] + [ex_[4], ex_[5]],
        [mx[0], mx[1]],
        [ex_[6], mx[2], ex_[7], mx[3]],
        [ex_[8], mx[4], ex_[9], mx[5]],
        [ex_[10], mx[6], ex_[11], mx[7]],
        [ex_[12], f"v_cmp_lt_f32 vcc, {hex(f2u(T))}, v{vMx}", ex_[13], ex_[14]],
        [ex_[15]],
    ]
    for i in range(10):
        if i > 0:
            A(mf[i - 1])
        for x in fillB[i]:
            A(x)
    if nocomp:
        keep = []
        for x in L[loop_start:]:
            y = x.strip()
            if nocomp & 1 and y.startswith("v_mfma"):
                continue
            if nocomp & 2 and y.startswith(("v_exp", "v_max", "v_cvt")):
                continue
            if nocomp & 4 and y.startswith(("ds_read_b128", "ds_read_b64_tr")):
                continue
            keep.append(x)
        L[loop_start:] = keep
        A("s_mov_b64 vcc, 0")
    A("s_cbranch_vccnz L_rare")
    A("L_rare_back:")
    A(f"s_cmp_lg_u32 s{sIt}, 0\ns_cbranch_scc1 L_loop")

    A("L_final:")
    A(f"v_add_u32 v{vV}, s{sOffV}, v{vVc}\nv_add_u32 v{vDone}, 1, v{vDone}")
    for i, x in enumerate(vrd):
        A(x)
        if i & 1:
            A(cvt(i >> 1))
    A(f"ds_write_b32 v{vDoneA}, v{vDone}")
    adv(sOffV)
    A(f"s_mov_b32 s{sT}, s{sEnd}")
    A("s_waitcnt lgkmcnt(9)")
    for x in [pv(0, 0), pv(0, 1), pv(0, 2), pv(0, 3), rs(0)]:
        A(x)
    A("s_waitcnt lgkmcnt(0)")
    for x in [rs(1), pv(1, 0), pv(1, 1), pv(1, 2), pv(1, 3)]:
        A(x)
    st(4)
    A(f"s_cmp_ge_u32 s{sRole}, 2\ns_cbranch_scc1 L_owner_epi")

    A(f"s_lshl_b32 s{sA}, s{sB}, 1\ns_add_u32 s{sA}, s{sA}, s{sRole}\ns_lshl_b32 s{sA}, s{sA}, 3\ns_add_u32 s{sA}, s{sA}, s{sH}\ns_mul_i32 s{sA}, s{sA}, {PSLOT}")
    A(f"s_lshl_b32 s{sC}, s{sW}, 8\ns_add_u32 s{sC}, s{sC}, s{sA}\ns_add_u32 s{sC}, s{sC}, 32768")
    A(f"s_lshl_b32 s{sBb}, s{sW}, 13\ns_add_u32 s{sA}, s{sA}, s{sBb}\ns_add_u32 s{sBb}, s{sA}, 4096")
    A(f"s_mov_b32 s{sPend}, s{sB}")
    A(f"v_rcp_f32 v{vT0}, v{LA}\nv_log_f32 v{vT1}, v{LA}\nv_lshlrev_b32 v{vT2}, 2, v{vLane}")
    A(f"v_sub_f32 v{vT1}, v{vT1}, v{CM}")
    A(f"buffer_store_dword v{vT1}, v{vT2}, {SWS}, s{sC} offen {spol}")
    for i in range(8):
        for j in range(4):
            r = O + 8 * i + 2 * j
            A(f"v_mul_f32 v{r}, v{vT0}, v{r}\nv_mul_f32 v{r + 1}, v{vT0}, v{r + 1}")
        for j in range(4):
            r = O + 8 * i + 2 * j
            A(f"v_cvt_pk_bf16_f32 v{KF + 4 * i + j}, v{r}, v{r + 1}")
        A(f"buffer_store_dwordx4 {vr(KF + 4 * i, 4)}, v{vL16}, {SWS}, s{sA if i < 4 else sBb} offen offset:{(i & 3) * 1024} {spol}")
    A(f"s_cmp_lg_u32 s{sCntB}, 0\ns_cbranch_scc1 L_segB")
    st(5)
    signal("b")
    st(6)
    if stamp:
        A(f"s_cmp_eq_u32 s{sW}, 0\ns_cbranch_scc0 L_end")
    dump_stamps(32)
    A("s_endpgm")

    A("L_owner_epi:")
    A(f"s_lshl_b32 s{sQoff}, s{sB}, 3\ns_add_u32 s{sQoff}, s{sQoff}, s{sH}\ns_lshl_b32 s{sQoff}, s{sQoff}, 2\n"
      f"s_add_u32 s{sQoff}, s{sQoff}, s{sW}\ns_lshl_b32 s{sQoff}, s{sQoff}, 13")
    A(f"s_cmp_ge_u32 s{sItem}, s{sK}\ns_cbranch_scc1 L_fin")
    A("L_merge:")
    spin("m", off=256, need=sItem, le=True)
    A(f"ds_read_b32 v{vT0}, v{vPL}")
    merge_reads()
    A(f"s_waitcnt lgkmcnt(9)\nv_add_f32 v{vMx}, v{vT0}, v{CM}")
    A(f"v_cmp_lt_f32 vcc, {hex(f2u(40.0))}, v{vMx}\ns_cbranch_vccz L_mok")
    A(f"v_max_f32 v{vT1}, 0, v{vMx}\nv_sub_f32 v{vMx}, v{vMx}, v{vT1}\nv_sub_f32 v{CM}, v{CM}, v{vT1}")
    A(f"v_exp_f32 v{vT1}, -v{vT1}\ns_nop 0")
    for i in range(64):
        A(f"v_mul_f32 v{O + i}, v{vT1}, v{O + i}")
    A(f"v_mul_f32 v{LA}, v{vT1}, v{LA}")
    A("L_mok:")
    merge_body()
    A(f"s_cmp_lt_u32 s{sItem}, s{sK}\ns_cbranch_scc1 L_merge")
    A("L_fin:")
    st(5)
    A(f"s_nop 3\nv_rcp_f32 v{vT0}, v{LA}\ns_nop 0")
    for dt in range(4):
        for gp in range(2):
            o = O + 16 * dt + 8 * gp
            d = KF + 8 * dt + 4 * gp
            for j in range(8):
                A(f"v_mul_f32 v{o + j}, v{vT0}, v{o + j}")
            for j in range(4):
                A(f"v_cvt_pk_bf16_f32 v{d + j}, v{o + 2 * j}, v{o + 2 * j + 1}")
            A(f"s_nop 1\nv_permlane32_swap_b32 v{d}, v{d + 2}\nv_permlane32_swap_b32 v{d + 1}, v{d + 3}")
            A(f"buffer_store_dwordx4 {vr(d, 4)}, v{vQo}, {SO}, s{sQoff} offen offset:{dt * 64 + gp * 32} {opol}")
    if stamp:
        st(6)
        A("s_waitcnt vmcnt(0)")
        st(7)
        A(f"s_cmp_eq_u32 s{sW}, 0\ns_cbranch_scc0 L_end")
    dump_stamps(32)
    A("L_end:\ns_endpgm")

    A("L_slow:")
    budget()
    if sleep:
        A(f"s_sleep {sleep}")
    A(f"ds_read2_b32 {vr(vF2, 2)}, v{vRdyA} offset0:0 offset1:64\ns_waitcnt lgkmcnt(0)")
    A(f"v_readfirstlane_b32 s{sF}, v{vF2}\nv_readfirstlane_b32 s{sA}, v{vF2 + 1}")
    A(f"s_cmp_ge_u32 s{sF}, s{sNeed}\ns_cbranch_scc1 L_back")
    A(f"s_min_u32 s{sA}, s{sA}, s{sEarly}\ns_cmp_gt_u32 s{sA}, s{sItem}\ns_cbranch_scc0 L_slow")
    A(f"ds_read_b32 v{vT0}, v{vPL}\ns_waitcnt lgkmcnt(0)\nv_add_f32 v{vMx}, v{vT0}, v{CM}")
    A(f"v_cmp_lt_f32 vcc, {hex(f2u(40.0))}, v{vMx}\ns_cbranch_vccz L_sm")
    A(f"s_mov_b32 s{sEarly}, 0\ns_branch L_slow")
    A("L_sm:")
    merge_reads()
    merge_body()
    A("s_branch L_slow")
    A("L_rare:")
    xhalf_max()
    A(f"v_max_f32 v{vMx}, 0, v{vMx}\nv_exp_f32 v{vT0}, -v{vMx}\nv_sub_f32 v{CM}, v{CM}, v{vMx}")
    for i in range(1, 16):
        A(f"v_mov_b32 v{CM + i}, v{CM}")
    exp_shifted()
    for i in range(64):
        A(f"v_mul_f32 v{O + i}, v{vT0}, v{O + i}")
    for i in range(4):
        A(f"v_mul_f32 v{LA + i}, v{vT0}, v{LA + i}")
    A("s_branch L_rare_back")

    A(f""".section .rodata,"a"
.p2align 6
.amdhsa_kernel {NAME}
  .amdhsa_next_free_vgpr 256
  .amdhsa_next_free_sgpr 102
  .amdhsa_accum_offset 256
  .amdhsa_group_segment_fixed_size 0
  .amdhsa_kernarg_size 64
  .amdhsa_user_sgpr_count 2
  .amdhsa_user_sgpr_kernarg_segment_ptr 1
  .amdhsa_system_sgpr_workgroup_id_x 1
.end_amdhsa_kernel""")
    if nopart:
        L[:] = [x for x in L if not x.strip().startswith("buffer_atomic") and f"buffer_load_dword v{vF0}" not in x]
    if noq:
        L[:] = [x for x in L if not (x.strip().startswith("buffer_load") and SQ in x)]
    if nostore:
        L[:] = [x for x in L if not (x.strip().startswith("buffer_store") and (("sc1" in x and nostore & 1) or (SO in x and nostore & 2)))]
    return "\n".join(L) + "\n"


def parse(spec):
    kw = {}
    for kv in spec.split(","):
        if not kv or kv == "default":
            continue
        k, v = kv.split("=")
        try:
            kw[k] = int(v)
        except ValueError:
            try:
                kw[k] = float(v)
            except ValueError:
                kw[k] = v.replace("+", " ").replace("none", "")
    return kw


if __name__ == "__main__":
    from build import build
    import hz
    files = []
    for spec in sys.argv[1:]:
        txt = gen(**parse(spec))
        pr = hz.check(txt)
        for p in pr:
            print("HAZARD", p, file=sys.stderr)
        fn = "k_" + spec.replace("=", "").replace(",", "_").replace("+", "") + ".s"
        open(fn, "w").write(txt)
        build(fn)
        files.append(fn)
    print(" ".join(files))
```

```python
import sys
from gen import gen, parse, NAME, WSB
from build import build
def amp(spec, fa, opa, fb, opb, lo, hi, K):
    txt = gen(**parse(spec + ",stamp=1"))
    lines = txt.split("\n")
    i = [n for n, l in enumerate(lines) if l.startswith("; @launch")][0]
    l0 = lines[i].replace("; @launch ", f"; @launch kernel={NAME} ")
    lines[i] = l0 + "\n; @launch kernel=amp_kernel grid=(1,1,1) block=(64,1,1) lds=0"
    txt = "\n".join(lines)
    L = []; A = L.append
    A(".p2align 8\n.globl amp_kernel\n.type amp_kernel,@function\namp_kernel:")
    A("s_cmp_ge_u32 s2, 1\ns_cbranch_scc1 LA_end")
    A("s_load_dwordx2 s[4:5], s[0:1], 56\ns_waitcnt lgkmcnt(0)")
    A(f"s_add_u32 s4, s4, {WSB - 256 * 96}\ns_addc_u32 s5, s5, 0")
    A("s_load_dword s6, s[4:5], 0")
    n = (hi - lo) // 64
    A(f"v_add_u32 v1, {lo}, v0\nv_mul_u32_u24 v1, 96, v1")
    for j in range(n):
        A(f"global_load_dword v{10 + j}, v1, s[4:5] offset:{fa * 4}\nglobal_load_dword v{20 + j}, v1, s[4:5] offset:{fb * 4}")
        A(f"v_add_u32 v1, {64 * 96}, v1")
    A("s_waitcnt vmcnt(0) lgkmcnt(0)")
    vop = {"min": "v_min_i32", "max": "v_max_i32", "avg": "v_add_u32"}
    sop = {"min": "s_min_i32", "max": "s_max_i32", "avg": "s_add_u32"}
    for base, op, dst in ((10, opa, 8), (20, opb, 9)):
        for j in range(n):
            A(f"v_subrev_u32 v{base + j}, s6, v{base + j}")
        for j in range(1, n):
            A(f"{vop[op]} v{base}, v{base}, v{base + j}")
        A(f"s_nop 1\nv_readlane_b32 s{dst}, v{base}, 0")
        for l in range(1, 64):
            A(f"v_readlane_b32 s10, v{base}, {l}\ns_nop 0\n{sop[op]} s{dst}, s{dst}, s10")
        if op == "avg":
            A(f"s_ashr_i32 s{dst}, s{dst}, {(hi - lo).bit_length() - 1}")
    A(f"s_sub_u32 s8, s9, s8\ns_max_i32 s8, s8, 0\ns_min_i32 s8, s8, 20000\ns_mul_i32 s8, s8, {K}")
    A("s_memrealtime s[12:13]\ns_waitcnt lgkmcnt(0)")
    A("LA_spin:\ns_memrealtime s[14:15]\ns_waitcnt lgkmcnt(0)\ns_sub_u32 s10, s14, s12\ns_cmp_lt_u32 s10, s8\ns_cbranch_scc1 LA_spin")
    A("LA_end:\ns_endpgm")
    code = "\n".join(L) + "\n"
    j = txt.index('.section .rodata')
    kd = """.p2align 6
.amdhsa_kernel amp_kernel
  .amdhsa_next_free_vgpr 32
  .amdhsa_next_free_sgpr 32
  .amdhsa_accum_offset 32
  .amdhsa_group_segment_fixed_size 0
  .amdhsa_kernarg_size 64
  .amdhsa_user_sgpr_count 2
  .amdhsa_user_sgpr_kernarg_segment_ptr 1
  .amdhsa_system_sgpr_workgroup_id_x 1
.end_amdhsa_kernel
"""
    return txt[:j] + code + txt[j:] + kd
if __name__ == "__main__":
    spec = sys.argv[1]
    for a in sys.argv[2:]:
        fa, opa, fb, opb, lo, hi, K = a.split(":")
        fn = f"amp_{a.replace(':', '_')}.s"
        open(fn, "w").write(amp(spec, int(fa), opa, int(fb), opb, int(lo), int(hi), int(K)))
        build(fn); print(fn)
```

```python
import sys
from gen import gen, parse, NAME, WSB
from build import build
def amp(spec, fa, opa, fb, opb, lo, hi, K):
    txt = gen(**parse(spec + ",stamp=1"))
    lines = txt.split("\n")
    i = [n for n, l in enumerate(lines) if l.startswith("; @launch")][0]
    l0 = lines[i].replace("; @launch ", f"; @launch kernel={NAME} ")
    lines[i] = l0 + "\n; @launch kernel=amp_kernel grid=(1,1,1) block=(64,1,1) lds=0"
    txt = "\n".join(lines)
    L = []; A = L.append
    A(".p2align 8\n.globl amp_kernel\n.type amp_kernel,@function\namp_kernel:")
    A("s_cmp_ge_u32 s2, 1\ns_cbranch_scc1 LA_end")
    A("s_memrealtime s[16:17]\ns_load_dwordx2 s[4:5], s[0:1], 56\ns_waitcnt lgkmcnt(0)")
    now = fb < 0
    if now: fb = 0
    A(f"s_add_u32 s4, s4, {WSB - 256 * 96}\ns_addc_u32 s5, s5, 0")
    A("s_load_dword s6, s[4:5], 0")
    n = (hi - lo) // 64
    A(f"v_add_u32 v1, {lo}, v0\nv_mul_u32_u24 v1, 96, v1")
    for j in range(n):
        A(f"global_load_dword v{10 + j}, v1, s[4:5] offset:{fa * 4}\nglobal_load_dword v{20 + j}, v1, s[4:5] offset:{fb * 4}")
        A(f"v_add_u32 v1, {64 * 96}, v1")
    A("s_waitcnt vmcnt(0) lgkmcnt(0)")
    vop = {"min": "v_min_i32", "max": "v_max_i32", "avg": "v_add_u32"}
    sop = {"min": "s_min_i32", "max": "s_max_i32", "avg": "s_add_u32"}
    for base, op, dst in ((10, opa, 8), (20, opb, 9)):
        for j in range(n):
            A(f"v_subrev_u32 v{base + j}, s6, v{base + j}")
        for j in range(1, n):
            A(f"{vop[op]} v{base}, v{base}, v{base + j}")
        A(f"s_nop 1\nv_readlane_b32 s{dst}, v{base}, 0")
        for l in range(1, 64):
            A(f"v_readlane_b32 s10, v{base}, {l}\ns_nop 0\n{sop[op]} s{dst}, s{dst}, s10")
        if op == "avg":
            A(f"s_ashr_i32 s{dst}, s{dst}, {(hi - lo).bit_length() - 1}")
    if now: A("s_sub_u32 s9, s16, s6")
    A(f"s_sub_u32 s8, s9, s8\ns_max_i32 s8, s8, 0\ns_min_i32 s8, s8, 20000\ns_mul_i32 s8, s8, {K}")
    A("s_memrealtime s[12:13]\ns_waitcnt lgkmcnt(0)")
    A("LA_spin:\ns_memrealtime s[14:15]\ns_waitcnt lgkmcnt(0)\ns_sub_u32 s10, s14, s12\ns_cmp_lt_u32 s10, s8\ns_cbranch_scc1 LA_spin")
    A("LA_end:\ns_endpgm")
    code = "\n".join(L) + "\n"
    j = txt.index('.section .rodata')
    kd = """.p2align 6
.amdhsa_kernel amp_kernel
  .amdhsa_next_free_vgpr 32
  .amdhsa_next_free_sgpr 32
  .amdhsa_accum_offset 32
  .amdhsa_group_segment_fixed_size 0
  .amdhsa_kernarg_size 64
  .amdhsa_user_sgpr_count 2
  .amdhsa_user_sgpr_kernarg_segment_ptr 1
  .amdhsa_system_sgpr_workgroup_id_x 1
.end_amdhsa_kernel
"""
    return txt[:j] + code + txt[j:] + kd
if __name__ == "__main__":
    spec = sys.argv[1]
    for a in sys.argv[2:]:
        fa, opa, fb, opb, lo, hi, K = a.split(":")
        fn = f"amp_{spec.replace('=', '').replace(',', '_').replace('+', '')}_{a.replace(':', '_')}.s"
        open(fn, "w").write(amp(spec, int(fa), opa, int(fb), opb, int(lo), int(hi), int(K)))
        build(fn); print(fn)
```

```python
import sys
import struct

NAME = "standalone__paged_block_table_kv_pagedattention__sampling_kernel"
WSB = 537395200
KVB = 4100 * 32768
QB = 16 * 32 * 32 * 128 * 2

HDR = """; Paged GQA attention, B=16 Hq=32 Hkv=8 Sq=32 D=128 block=16, bf16.
"""

PAIRS = [(4, 13), (9, 8), (14, 3), (0, 12), (5, 7), (10, 2), (15, 11), (1, 6)]


def f2u(x):
    return struct.unpack('<I', struct.pack('<f', x))[0]


def gen(NS=7, win=22, win2=26, ntail=6, gran=2, delta=5, ex=1, theta=2, pol="nt", qpol="nt", opol="", T=8.0,
        stamp=0, nocomp=0, sleep=0, lprio=3, noload=0, hwin=8, psleep=4, early=1, vpat=0, nostore=0, asc=0, nopart=0, noq=0, trace=0, spol='sc1', lpol='sc1', fpol='sc1', apol='sc1', nodbg=0, m16=0, nors=0, win0=12, n0=6, lead=3, plead=1, npoll=3):
    SLOT = 17408
    RING = NS * SLOT
    PB = RING
    A_DONE = PB + 2 * SLOT
    A_READY = A_DONE + 1024
    A_PREADY = A_DONE + 1280
    A_PDONE = A_DONE + 1536
    A_SIG = A_PDONE + 1024
    LDS = A_SIG + 512
    assert LDS <= 163840
    assert NS >= max(win, win2) // 16 + 4 and max(win, win2) <= 60
    PSLOT = 33920
    L = []

    def A(s):
        for x in s.split('\n'):
            L.append(x if x.endswith(':') or x.startswith(('.', ';')) else '    ' + x)

    vLane, vT0, vT1, vT2, vT3 = 1, 2, 3, 4, 5
    vK0c, vK1c, vVc, vK0, vK1, vV = 6, 7, 8, 9, 10, 11
    vQo, vRdyA, vDoneA, vF = 12, 13, 14, 15
    S, E, CM, O, Q, KF, VF, P, LA, ON = 16, 32, 48, 64, 128, 160, 192, 224, 232, 236
    vMx, vMx2, vDone, vL16, vHalf4, vPd, vPA, vF2 = 240, 241, 242, 243, 244, 245, 246, 248
    vPL = 247
    TA, TBb, vRow = 64, 68, 72
    vKo, vVo = 76, 80
    vPoll, vPub, vDn, vDnA, vQd, vF0, vDb, vPoll2 = 84, 85, 86, 87, 88, 89, 90, 91

    sW, sH, sRole, sPair = 3, 32, 33, 34
    sBA, sBB, sCntA, sCntB, sTopA, sTopB, sNv, sExp, sZ = 35, 36, 37, 38, 39, 40, 41, 42, 43
    sThr0, sThr1, sBud = 44, 45, 46
    sB, sCnt, sT, sEnd, sOffK, sOffV, sNeed, sF, sScale = 64, 65, 66, 67, 68, 69, 70, 71, 72
    sA, sBb, sC, sD, sE2, sF2 = 73, 74, 75, 76, 77, 78
    sQoff, sIt, sPend, sItem, sK = 79, 80, 81, 82, 83
    sEarly = 47
    sS, sOff, sPub, sFree, sTile, sO0, sO1, sN0, sN1 = 66, 67, 68, 69, 70, 71, 72, 79, 80
    sSt = 84
    SQ, SK, SV, SWS, SO, SD = "s[8:11]", "s[12:15]", "s[16:19]", "s[20:23]", "s[24:27]", "s[28:31]"

    def vr(a, n):
        return f"v[{a}:{a + n - 1}]" if n > 1 else f"v{a}"

    def adv(s):
        A(f"s_add_u32 s{s}, s{s}, {SLOT}\ns_cmp_ge_u32 s{s}, {RING}\ns_cselect_b32 s{s}, 0, s{s}")

    def budget():
        A(f"s_sub_u32 s{sBud}, s{sBud}, 1\ns_cbranch_scc1 L_end")

    def st(i):
        if stamp:
            A(f"{'s_memrealtime' if stamp == 1 else 's_memtime'} s[{sSt + 2 * i}:{sSt + 2 * i + 1}]")

    def dump_stamps(base):
        if not stamp:
            return
        A("s_waitcnt lgkmcnt(0)")
        for i in range(8):
            A(f"v_mov_b32 v{16 + i}, s{sSt + 2 * i}")
        A(f"s_mul_i32 s{sA}, s2, 96\ns_add_u32 s{sA}, s{sA}, {WSB - 256 * 96 + base}")
        A(f"v_mov_b32 v{vT0}, 0\ns_mov_b64 exec, 1")
        A(f"buffer_store_dwordx4 v[16:19], v{vT0}, {SWS}, s{sA} offen")
        A(f"buffer_store_dwordx4 v[20:23], v{vT0}, {SWS}, s{sA} offen offset:16")
        A("s_mov_b64 exec, -1")

    tabA = sum(p[0] << (4 * i) for i, p in enumerate(PAIRS))
    tabB = sum(p[1] << (4 * i) for i, p in enumerate(PAIRS))

    A(HDR.rstrip())
    A(f"; @launch grid=(256,1,1) block=(384,1,1) lds={LDS}")
    A('.amdgcn_target "amdgcn-amd-amdhsa--gfx950"\n.text')
    A(f".globl {NAME}\n.p2align 8\n.type {NAME},@function\n{NAME}:")
    A("s_cmp_ge_u32 s2, 256\ns_cbranch_scc1 L_end")
    A("s_load_dwordx16 s[48:63], s[0:1], 0")
    if stamp:
        for i in range(8):
            A(f"s_mov_b64 s[{sSt + 2 * i}:{sSt + 2 * i + 1}], 0")
    st(0)
    A(f"v_lshrrev_b32 v{vT0}, 6, v0\nv_and_b32 v{vLane}, 63, v0")
    A(f"v_readfirstlane_b32 s{sW}, v{vT0}")
    A(f"v_lshlrev_b32 v{vL16}, 4, v{vLane}")
    A(f"s_and_b32 s{sH}, s2, 7\ns_lshr_b32 s{sRole}, s2, 6\ns_lshr_b32 s{sA}, s2, 1\ns_and_b32 s{sA}, s{sA}, 28")
    A(f"s_lshr_b32 s{sBA}, {hex(tabA)}, s{sA}\ns_lshr_b32 s{sBB}, {hex(tabB)}, s{sA}")
    A(f"s_and_b32 s{sBA}, s{sBA}, 15\ns_and_b32 s{sBB}, s{sBB}, 15")
    A(f"s_lshl_b32 s{sA}, s{sBA}, 2\ns_lshl_b32 s{sBb}, s{sBB}, 2")
    A(f"s_lshl_b32 s{sC}, s{sBA}, 10\ns_lshl_b32 s{sD}, s{sBB}, 10")
    A(f"v_add_u32 v{vT2}, s{sC}, v{vL16}\nv_add_u32 v{vT3}, s{sD}, v{vL16}")
    A(f"s_mov_b32 s{sBud}, 0x400000")
    A(f"s_cmp_eq_u32 s{sW}, 4")
    A("s_waitcnt lgkmcnt(0)")
    A(f"s_load_dword s{sCntA}, s[56:57], s{sA}\ns_load_dword s{sCntB}, s[56:57], s{sBb}")
    A("s_cbranch_scc0 L_notab")
    A(f"s_setprio {lprio}")
    A(f"global_load_dwordx4 {vr(TA, 4)}, v{vT2}, s[54:55]\nglobal_load_dwordx4 {vr(TBb, 4)}, v{vT3}, s[54:55]")
    A("L_notab:")
    for srd, p, n in ((8, 48, QB), (12, 50, KVB), (16, 52, KVB), (20, 62, WSB), (24, 58, QB), (28, 60, 256)):
        A(f"s_mov_b32 s{srd}, s{p}\ns_and_b32 s{srd + 1}, s{p + 1}, 0xffff\ns_mov_b32 s{srd + 2}, {n}\n"
          f"s_mov_b32 s{srd + 3}, 0x20000")
    A(f"v_lshlrev_b32 v{vDoneA}, 2, v0\nv_add_u32 v{vDoneA}, {A_DONE}, v{vDoneA}")
    A(f"v_mov_b32 v{vDone}, 0")
    A(f"ds_write_b32 v{vDoneA}, v{vDone}\nds_write_b32 v{vDoneA}, v{vDone} offset:1536")
    A(f"v_mov_b32 v{vRdyA}, {A_READY}")
    A("s_waitcnt lgkmcnt(0)\ns_barrier")
    st(1)
    A(f"s_min_i32 s{sCntA}, s{sCntA}, 0x1000\ns_cmp_lt_i32 s{sCntA}, 1\ns_cselect_b32 s{sCntA}, 0x1000, s{sCntA}\ns_cselect_b32 s{sZ}, 1, 0")
    A(f"s_min_i32 s{sCntB}, s{sCntB}, 0x1000\ns_cmp_lt_i32 s{sCntB}, 1\ns_cselect_b32 s{sCntB}, 0x1000, s{sCntB}\ns_cselect_b32 s{sA}, 2, 0")
    A(f"s_or_b32 s{sZ}, s{sZ}, s{sA}")
    A(f"s_cmp_eq_u32 s{sRole}, 3\ns_cselect_b32 s{sNv}, s{sCntB}, s{sCntA}")
    A(f"s_sub_u32 s{sNv}, s{sNv}, 1\ns_and_b32 s{sNv}, s{sNv}, 31\ns_add_u32 s{sNv}, s{sNv}, 1")
    A(f"s_add_u32 s{sTopA}, s{sCntA}, 31\ns_lshr_b32 s{sTopA}, s{sTopA}, 5")
    A(f"s_add_u32 s{sTopB}, s{sCntB}, 31\ns_lshr_b32 s{sTopB}, s{sTopB}, 5")
    A(f"s_add_u32 s{sA}, s{sTopA}, s{sTopB}\ns_add_u32 s{sA}, s{sA}, {2 * delta + ex + 2}\ns_lshr_b32 s{sA}, s{sA}, 2")
    A(f"s_min_u32 s{sCntA}, s{sA}, s{sTopA}\ns_min_u32 s{sCntB}, s{sA}, s{sTopB}")
    A(f"s_sub_u32 s{sC}, s{sTopA}, s{sCntA}\ns_sub_u32 s{sD}, s{sTopB}, s{sCntB}")
    A(f"s_add_u32 s{sA}, s{sC}, s{sD}\ns_add_u32 s{sBb}, s{sA}, {ex + 1}\ns_lshr_b32 s{sBb}, s{sBb}, 1\ns_min_u32 s{sBb}, s{sBb}, s{sA}")
    A(f"s_sub_i32 s{sA}, s{sBb}, s{sC}\ns_abs_i32 s{sA}, s{sA}\ns_cmp_le_u32 s{sA}, {theta}\ns_cselect_b32 s{sBb}, s{sC}, s{sBb}")
    A(f"s_min_u32 s{sE2}, s{sBb}, s{sC}\ns_sub_u32 s{sF2}, s{sBb}, s{sE2}")
    A(f"s_cmp_ge_u32 s{sRole}, 2\ns_cbranch_scc1 L_plan_owner")
    A(f"s_mov_b32 s{sNv}, 32\ns_mov_b32 s{sExp}, 0")
    A(f"s_sub_u32 s{sCntA}, s{sC}, s{sE2}\ns_sub_u32 s{sCntB}, s{sD}, s{sF2}")
    A(f"s_cmp_eq_u32 s{sRole}, 0")
    A(f"s_cselect_b32 s{sCntA}, s{sE2}, s{sCntA}\ns_cselect_b32 s{sCntB}, s{sF2}, s{sCntB}")
    A(f"s_cselect_b32 s{sTopA}, s{sE2}, s{sC}\ns_cselect_b32 s{sTopB}, s{sF2}, s{sD}")
    A(f"s_or_b32 s{sA}, s{sCntA}, s{sCntB}\ns_cbranch_scc0 L_end")
    A("s_branch L_plan_done")
    A("L_plan_owner:")
    A(f"s_sub_u32 s{sC}, s{sC}, s{sE2}\ns_sub_u32 s{sD}, s{sD}, s{sF2}")
    A(f"s_add_u32 s{sThr1}, s{sC}, s{sD}")
    A(f"s_cmp_eq_u32 s{sRole}, 2")
    A(f"s_cselect_b32 s{sCntA}, s{sCntA}, 0\ns_cselect_b32 s{sCntB}, 0, s{sCntB}")
    A(f"s_mov_b32 s{sThr0}, s{sBb}")
    A(f"s_cselect_b32 s{sE2}, s{sE2}, s{sF2}\ns_cselect_b32 s{sC}, s{sC}, s{sD}")
    A(f"s_min_u32 s{sE2}, s{sE2}, 1\ns_min_u32 s{sC}, s{sC}, 1\ns_lshl_b32 s{sC}, s{sC}, 1\ns_or_b32 s{sExp}, s{sE2}, s{sC}")
    A("L_plan_done:")
    if nopart:
        A(f"s_mov_b32 s{sExp}, 0")
    A(f"s_cmp_lt_u32 s{sW}, 4\ns_cbranch_scc1 L_consumer")
    A(f"v_lshrrev_b32 v{vT0}, 4, v{vLane}\nv_and_b32 v{vT1}, 15, v{vLane}")
    A(f"v_xor_b32 v{vT2}, v{vT1}, v{vT0}\nv_lshlrev_b32 v{vT2}, 4, v{vT2}")
    A(f"v_and_b32 v{vDnA}, 3, v{vLane}\nv_lshlrev_b32 v{vDnA}, 8, v{vDnA}\nv_add_u32 v{vDnA}, {A_DONE}, v{vDnA}")
    A(f"s_cmp_eq_u32 s{sW}, 5\ns_cbranch_scc1 L_helper")

    def min4(dst, add):
        A(f"v_readlane_b32 s{sA}, v{vDn}, 0\nv_readlane_b32 s{sBb}, v{vDn}, 1\nv_readlane_b32 s{sC}, v{vDn}, 2\n"
          f"v_readlane_b32 s{sD}, v{vDn}, 3")
        A(f"s_min_u32 s{sA}, s{sA}, s{sBb}\ns_min_u32 s{sC}, s{sC}, s{sD}\ns_min_u32 s{dst}, s{sA}, s{sC}")
        if add:
            A(f"s_add_u32 s{dst}, s{dst}, {add}")

    A(f"s_lshl_b32 s{sA}, s{sH}, 8")
    A(f"v_lshl_add_u32 v{vT2}, v{vT0}, 11, v{vT2}\nv_add_u32 v{vKo}, s{sA}, v{vT2}")
    A(f"v_lshlrev_b32 v{vT2}, 4, v{vT1}\nv_lshl_add_u32 v{vT2}, v{vT0}, 13, v{vT2}\nv_add_u32 v{vVo}, s{sA}, v{vT2}")
    for j in range(1, 4):
        A(f"v_add_u32 v{vKo + j}, {j * (8192 - 1088)}, v{vKo}\nv_add_u32 v{vVo + j}, {j * (2048 - 1088)}, v{vVo}")
    if vpat:
        for j in range(4):
            A(f"v_mov_b32 v{vVo + j}, v{vKo + j}")
    A(f"s_mov_b32 s{sS}, 0\ns_mov_b32 s{sOff}, 0\ns_mov_b32 s{sPub}, 0\ns_mov_b32 s{sFree}, {NS}")
    A(f"s_cmp_ge_u32 s{sRole}, 2\ns_cselect_b32 s{sK}, {ntail}, 0")
    A(f"s_cmp_eq_u32 s{sCntA}, 0")
    A("s_waitcnt vmcnt(0)")
    st(2)
    A("s_cbranch_scc1 L_lsegB")
    for j in range(4):
        A(f"v_lshlrev_b32 v{vRow + j}, 15, v{TA + j}")
    A(f"s_mov_b32 s{sCnt}, s{sCntA}\ns_sub_u32 s{sTile}, s{sTopA}, 1\ns_branch L_lseg")
    A("L_lsegB:")
    for j in range(4):
        A(f"v_lshlrev_b32 v{vRow + j}, 15, v{TBb + j}")
    A(f"s_mov_b32 s{sCnt}, s{sCntB}\ns_sub_u32 s{sTile}, s{sTopB}, 1\ns_mov_b32 s{sCntB}, 0")
    A("L_lseg:")

    def next_offsets(d0, d1):
        A(f"s_lshr_b32 s{sE2}, s{sTile}, 1\ns_and_b32 s{sE2}, s{sE2}, 63")
        A(f"v_readlane_b32 s{d0}, v{vRow}, s{sE2}\nv_readlane_b32 s{d1}, v{vRow + 1}, s{sE2}\n"
          f"v_readlane_b32 s{sF2}, v{vRow + 2}, s{sE2}\nv_readlane_b32 s{sE2}, v{vRow + 3}, s{sE2}")
        A(f"s_bitcmp1_b32 s{sTile}, 0\ns_cselect_b32 s{d0}, s{sF2}, s{d0}\ns_cselect_b32 s{d1}, s{sE2}, s{d1}")

    next_offsets(sN0, sN1)
    A(f"s_cmp_le_u32 s{sCnt}, s{sK}\ns_cbranch_scc1 L_lt_b")
    if n0:
        A(f"s_cmp_ge_u32 s{sS}, {n0}\ns_cbranch_scc1 L_lt_a")

    def stage_loop(tag, w, stop):
        A(f"L_lt_{tag}:")
        A(f"s_mov_b32 s{sO0}, s{sN0}\ns_mov_b32 s{sO1}, s{sN1}")
        A(f"s_cmp_lt_u32 s{sS}, s{sFree}\ns_cbranch_scc0 L_full_{tag}")
        A(f"L_free_{tag}:")
        pub_i = -(-((w - gran) % 16) // gran) * gran
        back = (w - gran) // 16
        if pub_i == 16:
            pub_i, back = 0, back + 1
        for i in range(16):
            g, j = i >> 2, i & 3
            srd, vo, so = ((SK, vKo, sO0), (SK, vKo, sO1), (SV, vVo, sO0), (SV, vVo, sO1))[g]
            if j == 0:
                A(f"s_mov_b32 m0, s{sOff}" if g == 0 else f"s_add_u32 m0, s{sOff}, {g * 4352}")
            if i == pub_i:
                A(f"s_sub_u32 s{sA}, s{sS}, {back}\ns_max_i32 s{sPub}, s{sPub}, s{sA}\nv_mov_b32 v{vPub}, s{sPub}")
            if i % gran == 0:
                A(f"s_waitcnt vmcnt({w - gran})")
            elif j == 0:
                A("s_nop 0")
            if i == pub_i:
                A(f"ds_write_b32 v{vDoneA}, v{vPub}")
            A(f"buffer_load_dwordx4 v{vo + j}, {srd}, s{so} offen offset:{j * 1088} {pol} lds")
            if i == 3:
                A(f"s_sub_u32 s{sTile}, s{sTile}, 1")
                next_offsets(sN0, sN1)
            if i == 11:
                A(f"ds_read_b32 v{vDn}, v{vDnA}")
        A(f"s_add_u32 s{sS}, s{sS}, 1")
        adv(sOff)
        if stamp:
            for k, n in ((5, 8), (6, 24), (7, 40)):
                A(f"s_cmp_lg_u32 s{sS}, {n}\ns_cbranch_scc1 L_ns{tag}{k}")
                st(k)
                A(f"L_ns{tag}{k}:")
        A("s_waitcnt lgkmcnt(0)")
        min4(sFree, NS)
        if noload:
            A(f"s_cmp_lt_u32 s{sS}, {NS}\ns_cbranch_scc1 L_nl{tag}\ns_waitcnt vmcnt(0)\nv_mov_b32 v{vPub}, 0x7fffffff\n"
              f"ds_write_b32 v{vDoneA}, v{vPub}\ns_branch L_ldone\nL_nl{tag}:")
        if tag == "z":
            A(f"s_sub_u32 s{sCnt}, s{sCnt}, 1\ns_cmp_le_u32 s{sCnt}, {stop}\ns_cbranch_scc1 L_lt_aend")
            A(f"s_cmp_lt_u32 s{sS}, {n0}\ns_cbranch_scc1 L_lt_z")
        else:
            A(f"s_sub_u32 s{sCnt}, s{sCnt}, 1\ns_cmp_gt_u32 s{sCnt}, {stop}\ns_cbranch_scc1 L_lt_{tag}")

    if n0:
        stage_loop("z", win0, f"s{sK}")
    stage_loop("a", win, f"s{sK}")
    A("L_lt_aend:")
    A(f"s_cmp_eq_u32 s{sCnt}, 0\ns_cbranch_scc1 L_lsegend")
    stage_loop("b", win2, "0")
    A("L_lsegend:")
    A(f"s_cmp_lg_u32 s{sCntB}, 0\ns_cbranch_scc1 L_lsegB")
    st(3)
    for back in range((max(win, win2) - 1) // 16, -1, -1):
        A(f"s_sub_u32 s{sA}, s{sS}, {back}\ns_max_i32 s{sPub}, s{sPub}, s{sA}\nv_mov_b32 v{vPub}, s{sPub}")
        A(f"s_waitcnt vmcnt({16 * back})\nds_write_b32 v{vDoneA}, v{vPub}")
    A("L_ldone:")
    st(4)
    dump_stamps(0)
    A("s_endpgm")
    for tag in ("zab" if n0 else "ab"):
        A(f"L_full_{tag}:")
        budget()
        A(f"ds_read_b32 v{vDn}, v{vDnA}\ns_waitcnt lgkmcnt(0)")
        min4(sFree, NS)
        A(f"s_cmp_lt_u32 s{sS}, s{sFree}\ns_cbranch_scc0 L_full_{tag}\ns_branch L_free_{tag}")

    A("L_helper:")
    A(f"v_lshl_add_u32 v{vQd}, v{vT0}, 8, v{vT2}")
    A(f"s_mov_b32 s{sItem}, 0\ns_add_u32 s{sCnt}, s{sCntA}, s{sCntB}")
    A(f"s_cmp_eq_u32 s{sCntA}, 0\ns_cselect_b32 s{sB}, s{sBB}, s{sBA}\ns_cselect_b32 s{sCntB}, 0, s{sCntB}")

    def pb_free(tag):
        A(f"s_branch L_hfree_{tag}")
        A(f"L_hfree0_{tag}:")
        budget()
        A(f"s_sleep {psleep}")
        A(f"L_hfree_{tag}:")
        A(f"ds_read_b32 v{vDn}, v{vDnA} offset:1536\ns_waitcnt lgkmcnt(0)")
        min4(sA, 0)
        A(f"s_cmp_lt_u32 s{sA}, s{sItem}\ns_cbranch_scc1 L_hfree0_{tag}")

    def pb_publish():
        A(f"s_add_u32 s{sItem}, s{sItem}, 1\nv_mov_b32 v{vPub}, s{sItem}\ns_waitcnt vmcnt(0)\nds_write_b32 v{vDoneA}, v{vPub}")

    def q_item(w):
        A(f"s_lshl_b32 s{sO0}, s{sB}, 3\ns_add_u32 s{sO0}, s{sO0}, s{sH}\ns_lshl_b32 s{sO0}, s{sO0}, 15")
        for r in range(32):
            A(f"s_mov_b32 m0, {PB + r * 1088 - (r & 3) * 1024}")
            if r and (r & 3) == 0:
                A(f"s_add_u32 s{sO0}, s{sO0}, 4096")
            elif w and r >= w:
                A(f"s_waitcnt vmcnt({w - 1})")
            else:
                A("s_nop 0")
            A(f"buffer_load_dwordx4 v{vQd}, {SQ}, s{sO0} offen offset:{(r & 3) * 1024} {qpol} lds")
        pb_publish()

    A(f"s_lshl_b32 s{sA}, s{sB}, 4\ns_add_u32 s{sA}, s{sA}, s{sH}\ns_mul_i32 s{sA}, s{sA}, {PSLOT}\ns_add_u32 s{sA}, s{sA}, 33792")
    A(f"s_cmp_ge_u32 s{sRole}, 2\ns_cselect_b32 s{sA}, s{sA}, 0x40000000")
    A(f"v_and_b32 v{vT3}, 1, v{vLane}\nv_mul_u32_u24 v{vT3}, {8 * PSLOT}, v{vT3}\nv_add_u32 v{vT3}, s{sA}, v{vT3}")
    A(f"buffer_load_dword v{vF0}, v{vT3}, {SWS}, 0 offen {fpol}")
    q_item(0)
    st(2)
    A(f"s_cmp_eq_u32 s{sCntB}, 0\ns_cbranch_scc1 L_hpart")
    A(f"s_mov_b32 s{sB}, s{sBB}")
    pb_free("q")
    q_item(hwin)
    HR = 100
    pb_free("h")
    A(f"v_add_u32 v{vT3}, {PB}, v{vL16}\nv_mul_u32_u24 v{vT0}, 8704, v{vT0}\nv_lshl_add_u32 v{vT0}, v{vT1}, 4, v{vT0}")
    A(f"v_add_u32 v{vT0}, {PB + 8192}, v{vT0}")
    for r in range(32):
        A(f"ds_read_b128 {vr(HR + 4 * r, 4)}, v{vT3} offset:{(r >> 3) * 8704 + (r & 7) * 1024}")
    A(f"ds_read_b128 {vr(HR + 128, 4)}, v{vT0}")
    A(f"s_sub_u32 s{sNeed}, s{sCnt}, {lead}\ns_max_i32 s{sNeed}, s{sNeed}, 0")
    A("L_hhold:")
    budget()
    A(f"s_sleep {psleep}")
    A(f"ds_read_b32 v{vF}, v{vRdyA}\ns_waitcnt lgkmcnt(0)\nv_readfirstlane_b32 s{sF}, v{vF}\ns_nop 0")
    A(f"s_cmp_lt_u32 s{sF}, s{sNeed}\ns_cbranch_scc1 L_hhold")
    st(3)
    A(f"s_lshl_b32 s{sA}, s{sBA}, 1\ns_add_u32 s{sA}, s{sA}, s{sRole}\ns_lshl_b32 s{sA}, s{sA}, 3\ns_add_u32 s{sA}, s{sA}, s{sH}\ns_mul_i32 s{sO0}, s{sA}, {PSLOT}")
    A(f"s_add_u32 s{sA}, s{sO0}, 33792\nv_mov_b32 v{vT0}, s{sA}\nv_mov_b32 v{vT1}, 1")
    for r in range(33):
        if r and (r & 3) == 0:
            A(f"s_add_u32 s{sO0}, s{sO0}, 4096")
        A(f"buffer_store_dwordx4 {vr(HR + 4 * r, 4)}, v{vL16}, {SWS}, s{sO0} offen offset:{(r & 3) * 1024} {spol}")
    A(f"s_lshl_b32 s{sA}, s{sH}, 4\ns_add_u32 s{sA}, s{sA}, s{sBA}\ns_and_b32 s{sBb}, s{sA}, 1\ns_lshl_b32 s{sBb}, s{sBb}, 4")
    A(f"s_add_u32 s{sBb}, s{sBb}, s{sRole}\ns_lshl_b32 s{sBb}, 1, s{sBb}\ns_lshr_b32 s{sA}, s{sA}, 1\ns_lshl_b32 s{sA}, s{sA}, 2")
    A(f"v_mov_b32 v{vT2}, s{sA}\nv_mov_b32 v{vT3}, s{sBb}")
    A("s_mov_b64 exec, 1\ns_waitcnt vmcnt(0)")
    A(f"buffer_atomic_add v{vT1}, v{vT0}, {SWS}, 0 offen {apol}")
    if not nodbg:
        A(f"buffer_atomic_add v{vT3}, v{vT2}, {SD}, 0 offen sc1")
    A("s_mov_b64 exec, -1")
    A("L_hpart:")
    A(f"s_cmp_eq_u32 s{sExp}, 0\ns_cbranch_scc1 L_hdone")
    A(f"s_lshl_b32 s{sA}, s{sH}, 4\ns_add_u32 s{sA}, s{sA}, s{sB}\ns_and_b32 s{sK}, s{sA}, 1\ns_lshl_b32 s{sK}, s{sK}, 4")
    A(f"s_lshr_b32 s{sA}, s{sA}, 1\ns_lshl_b32 s{sA}, s{sA}, 2\nv_mov_b32 v{vDb}, s{sA}")
    A("L_hnext:")
    A(f"s_bitcmp1_b32 s{sExp}, 1\ns_cselect_b32 s{sIt}, 1, 0\ns_cselect_b32 s{sNeed}, s{sThr1}, s{sThr0}\ns_bitset0_b32 s{sExp}, s{sIt}")
    A(f"s_cmp_lg_u32 s{sExp}, 0\ns_cselect_b32 s{sA}, {lead + plead}, {plead}\ns_sub_u32 s{sNeed}, s{sNeed}, s{sA}\ns_max_i32 s{sNeed}, s{sNeed}, 0")
    A(f"s_min_u32 s{sNeed}, s{sNeed}, s{sCnt}")
    A("L_hthr:")
    budget()
    A(f"ds_read_b32 v{vF}, v{vRdyA}\ns_waitcnt lgkmcnt(0)\nv_readfirstlane_b32 s{sF}, v{vF}\ns_nop 0")
    A(f"s_cmp_ge_u32 s{sF}, s{sNeed}\ns_cbranch_scc1 L_hpoll")
    A(f"s_sleep {psleep}\ns_branch L_hthr")
    A("L_hpoll0:")
    A(f"s_sleep {psleep}")
    A(f"s_and_b32 s{sA}, s{sBud}, 63\ns_cbranch_scc1 L_hpoll1")
    A(f"buffer_load_dword v{vPoll}, v{vDb}, {SD}, 0 offen sc1\ns_add_u32 s{sBb}, s{sK}, s{sIt}\ns_waitcnt vmcnt(0)")
    A(f"v_readfirstlane_b32 s{sA}, v{vPoll}\ns_nop 0\ns_bitcmp1_b32 s{sA}, s{sBb}\ns_cbranch_scc1 L_hgot")
    A("s_branch L_hpoll1")
    A("L_hpoll:")
    A(f"s_lshl_b32 s{sA}, s{sB}, 1\ns_add_u32 s{sA}, s{sA}, s{sIt}\ns_lshl_b32 s{sA}, s{sA}, 3\ns_add_u32 s{sA}, s{sA}, s{sH}\ns_mul_i32 s{sO0}, s{sA}, {PSLOT}")
    A(f"s_add_u32 s{sA}, s{sO0}, 33792\nv_mov_b32 v{vT3}, s{sA}\nv_readlane_b32 s{sC}, v{vF0}, s{sIt}\ns_or_b32 s{sBud}, s{sBud}, 63")
    A(f"s_nop 1\nv_mov_b32 v{vPoll2}, s{sC}")
    A("L_hpoll1:")
    budget()
    A(f"buffer_load_dword v{vPoll2}, v{vT3}, {SWS}, 0 offen {fpol}\ns_waitcnt vmcnt({npoll - 1})")
    A(f"v_readfirstlane_b32 s{sA}, v{vPoll2}\ns_nop 0\ns_cmp_eq_u32 s{sA}, s{sC}\ns_cbranch_scc1 L_hpoll0")
    A("L_hgot:")
    st(3)
    pb_free("p")
    for r in range(33):
        if (r & 3) == 0:
            A(f"s_mov_b32 m0, {PB + r * 1024}")
            A(f"s_add_u32 s{sO0}, s{sO0}, 4096" if r else "s_nop 0")
        A(f"buffer_load_dwordx4 v{vL16}, {SWS}, s{sO0} offen offset:{(r & 3) * 1024} {lpol} lds")
    pb_publish()
    A(f"s_cmp_lg_u32 s{sExp}, 0\ns_cbranch_scc1 L_hnext")
    A("L_hdone:")
    if trace:
        A(f"s_cmp_eq_u32 s{sRole}, 0\ns_cbranch_scc0 L_end")
        A(f"s_mov_b32 s{sIt}, 0\nv_mov_b32 v100, 0\nv_mov_b32 v101, 0\nv_mov_b32 v102, 0\nv_mov_b32 v103, 0")
        A("L_tr:")
        A(f"s_memrealtime s[84:85]\ns_memtime s[86:87]\nds_read_b32 v{vF}, v{vRdyA}\nds_read_b32 v{vDn}, v{vDnA}\ns_waitcnt lgkmcnt(0)")
        A(f"v_readfirstlane_b32 s{sF}, v{vF}\nv_readfirstlane_b32 s{sA}, v{vDn}\ns_mov_b32 m0, s{sIt}\ns_nop 3")
        A(f"v_writelane_b32 v100, s84, m0\nv_writelane_b32 v101, s86, m0\nv_writelane_b32 v102, s{sF}, m0\nv_writelane_b32 v103, s{sA}, m0")
        A("L_tr2:")
        A(f"s_sleep 2\ns_memrealtime s[88:89]\ns_waitcnt lgkmcnt(0)\ns_sub_u32 s{sA}, s88, s84\ns_cmp_lt_u32 s{sA}, {trace}\ns_cbranch_scc1 L_tr2")
        A(f"s_add_u32 s{sIt}, s{sIt}, 1\ns_cmp_ge_u32 s{sF}, s{sCnt}\ns_cbranch_scc1 L_tr3\ns_cmp_lt_u32 s{sIt}, 64\ns_cbranch_scc1 L_tr")
        A("L_tr3:")
        A(f"s_lshl_b32 s{sA}, s2, 10\ns_add_u32 s{sA}, s{sA}, {WSB - 64 * 1024}")
        A(f"buffer_store_dwordx4 v[100:103], v{vL16}, {SWS}, s{sA} offen")
    st(4)
    dump_stamps(64)
    A("s_endpgm")

    A("L_consumer:")
    A(f"v_lshrrev_b32 v{vT0}, 5, v{vLane}")
    A(f"v_lshlrev_b32 v{vHalf4}, 2, v{vT0}")
    A(f"v_and_b32 v{vT1}, 31, v{vLane}\nv_lshlrev_b32 v{vQo}, 8, v{vT1}\nv_lshl_add_u32 v{vQo}, v{vT0}, 4, v{vQo}")
    A(f"v_lshrrev_b32 v{vT2}, 2, v{vT1}\nv_mul_u32_u24 v{vK0c}, 1088, v{vT2}\nv_and_b32 v{vT2}, 3, v{vLane}")
    A(f"v_lshl_add_u32 v{vK0c}, v{vT2}, 8, v{vK0c}\nv_xor_b32 v{vT3}, v{vT2}, v{vT0}")
    A(f"v_xor_b32 v{vK1c}, 2, v{vT3}\nv_lshl_add_u32 v{vK1c}, v{vK1c}, 4, v{vK0c}\nv_lshl_add_u32 v{vK0c}, v{vT3}, 4, v{vK0c}")
    A(f"v_bfe_u32 v{vT3}, v{vLane}, 2, 2\nv_mul_u32_u24 v{vVc}, 1088, v{vT3}\nv_lshl_add_u32 v{vVc}, v{vT0}, 8, v{vVc}")
    A(f"v_lshl_add_u32 v{vVc}, v{vT2}, 3, v{vVc}\nv_bfe_u32 v{vT3}, v{vLane}, 4, 1\nv_lshl_add_u32 v{vVc}, v{vT3}, 5, v{vVc}")
    A(f"v_add_u32 v{vVc}, 8704, v{vVc}")
    A(f"v_lshrrev_b32 v{vT2}, 2, v{vLane}\nv_xor_b32 v{vT2}, v{vT2}, v{vT3}\nv_and_b32 v{vT2}, 1, v{vT2}")
    A(f"v_subrev_u32 v{vT2}, 1, v{vT2}\nv_and_b32 v{ON}, 0x3f803f80, v{vT2}")
    for j in range(1, 4):
        A(f"v_mov_b32 v{ON + j}, v{ON}")
    A(f"s_lshl_b32 s{sA}, s{sW}, 13\ns_add_u32 s{sA}, s{sA}, {PB}\nv_add_u32 v{vPA}, s{sA}, v{vL16}")
    A(f"s_lshl_b32 s{sA}, s{sW}, 8\ns_add_u32 s{sA}, s{sA}, {PB + 32768}\nv_lshlrev_b32 v{vPL}, 2, v{vLane}\nv_add_u32 v{vPL}, s{sA}, v{vPL}")
    A(f"v_mov_b32 v{vPd}, 0")
    A(f"s_mov_b32 s{sT}, 0\ns_mov_b32 s{sOffV}, 0\ns_mov_b32 s{sItem}, 0\ns_mov_b32 s{sPend}, -1")
    A(f"s_bcnt1_i32_b32 s{sK}, s{sExp}\ns_add_u32 s{sK}, s{sK}, 1")
    A(f"s_cmp_ge_u32 s{sRole}, 2\ns_cselect_b32 s{sEarly}, s{sK}, 0" if early else f"s_mov_b32 s{sEarly}, 0")
    for i in range(64):
        A(f"v_mov_b32 v{O + i}, 0")
    for i in range(4):
        A(f"v_mov_b32 v{LA + i}, 0")
    A(f"s_cmp_eq_u32 s{sCntA}, 0\ns_cbranch_scc1 L_segB")
    A(f"s_mov_b32 s{sB}, s{sBA}\ns_mov_b32 s{sCnt}, s{sCntA}\ns_bitcmp1_b32 s{sZ}, 0\ns_branch L_seg")
    A("L_segB:")
    A(f"s_mov_b32 s{sB}, s{sBB}\ns_mov_b32 s{sCnt}, s{sCntB}\ns_mov_b32 s{sCntB}, 0\ns_bitcmp1_b32 s{sZ}, 1")

    def spin(tag, off=0, need=None, le=False):
        A(f"L_spin_{tag}:")
        budget()
        if sleep:
            A(f"s_sleep {sleep}")
        A(f"ds_read_b32 v{vF}, v{vRdyA} offset:{off}\ns_waitcnt lgkmcnt(0)\nv_readfirstlane_b32 s{sF}, v{vF}\ns_nop 0")
        A(f"s_cmp_{'le' if le else 'lt'}_u32 s{sF}, s{need or sNeed}\ns_cbranch_scc1 L_spin_{tag}")

    def kaddr():
        return [f"v_add_u32 v{vK0}, s{sOffK}, v{vK0c}", f"v_add_u32 v{vK1}, s{sOffK}, v{vK1c}"]

    def kreads(dst=KF):
        return [f"ds_read_b128 {vr(dst + 4 * t, 4)}, v{vK1 if t & 1 else vK0} offset:{(t >> 1) * 64}" for t in range(8)]

    def vreads():
        out = []
        for s in range(2):
            for dt in range(4):
                for u in range(2):
                    out.append(f"ds_read_b64_tr_b16 {vr(VF + 16 * s + 4 * dt + 2 * u, 2)}, v{vV} "
                               f"offset:{s * 4352 + u * 512 + dt * 64}")
        return out

    def qk(t, c):
        return f"v_mfma_f32_32x32x16_bf16 {vr(S, 16)}, {vr(KF + 4 * t, 4)}, {vr(Q + 4 * t, 4)}, {c}"

    def pv(s, dt):
        return (f"v_mfma_f32_32x32x16_bf16 {vr(O + 16 * dt, 16)}, {vr(VF + 16 * s + 4 * dt, 4)}, {vr(P + 4 * s, 4)}, "
                f"{vr(O + 16 * dt, 16)}")

    def rs(s):
        return f"v_mfma_f32_16x16x32_bf16 {vr(LA, 4)}, {vr(ON, 4)}, {vr(P + 4 * s, 4)}, {vr(LA, 4)}"

    def cvt(j):
        return f"v_cvt_pk_bf16_f32 v{P + j}, v{E + 2 * j}, v{E + 2 * j + 1}"

    def maxes():
        out = [f"v_max3_f32 v{vMx}, v{S}, v{S + 1}, v{S + 2}", f"v_max3_f32 v{vMx2}, v{S + 3}, v{S + 4}, v{S + 5}"]
        out += [f"v_max3_f32 v{vMx}, v{vMx}, v{S + 6}, v{S + 7}", f"v_max3_f32 v{vMx2}, v{vMx2}, v{S + 8}, v{S + 9}"]
        out += [f"v_max3_f32 v{vMx}, v{vMx}, v{S + 10}, v{S + 11}", f"v_max3_f32 v{vMx2}, v{vMx2}, v{S + 12}, v{S + 13}"]
        out += [f"v_max3_f32 v{vMx}, v{vMx}, v{S + 14}, v{S + 15}", f"v_max_f32 v{vMx}, v{vMx}, v{vMx2}"]
        return out

    def xhalf_max():
        A(f"v_mov_b32 v{vMx2}, v{vMx}\ns_nop 1\nv_permlane32_swap_b32 v{vMx}, v{vMx2}\ns_nop 0\nv_max_f32 v{vMx}, v{vMx}, v{vMx2}")

    def exp_shifted():
        for i in range(16):
            A(f"v_sub_f32 v{E + i}, v{S + i}, v{vMx}")
        for i in range(16):
            A(f"v_exp_f32 v{E + i}, v{E + i}")

    def signal(tag):
        A(f"s_lshl_b32 s{sA}, s{sPend}, 2\ns_add_u32 s{sA}, s{sA}, {A_SIG}\nv_mov_b32 v{vT0}, s{sA}\nv_mov_b32 v{vT1}, 1")
        A(f"s_lshl_b32 s{sA}, s{sH}, 4\ns_add_u32 s{sA}, s{sA}, s{sPend}\ns_and_b32 s{sBb}, s{sA}, 1\ns_lshl_b32 s{sBb}, s{sBb}, 4")
        A(f"s_add_u32 s{sBb}, s{sBb}, s{sRole}\ns_lshl_b32 s{sBb}, 1, s{sBb}\ns_lshr_b32 s{sA}, s{sA}, 1\ns_lshl_b32 s{sA}, s{sA}, 2")
        A(f"v_mov_b32 v{vT2}, s{sA}\nv_mov_b32 v{vT3}, s{sBb}")
        A(f"s_lshl_b32 s{sA}, s{sPend}, 1\ns_add_u32 s{sA}, s{sA}, s{sRole}\ns_lshl_b32 s{sA}, s{sA}, 3\ns_add_u32 s{sA}, s{sA}, s{sH}")
        A(f"s_mul_i32 s{sA}, s{sA}, {PSLOT}\ns_add_u32 s{sA}, s{sA}, 33792\nv_mov_b32 v{vMx2}, s{sA}\ns_mov_b32 s{sPend}, -1")
        A("s_mov_b64 exec, 1\ns_waitcnt vmcnt(0)")
        A(f"ds_add_rtn_u32 v{vT0}, v{vT0}, v{vT1}\ns_waitcnt lgkmcnt(0)\nv_readfirstlane_b32 s{sA}, v{vT0}\ns_nop 0")
        A(f"s_cmp_eq_u32 s{sA}, 3\ns_cbranch_scc0 L_nosig_{tag}")
        A(f"buffer_atomic_add v{vT1}, v{vMx2}, {SWS}, 0 offen {apol}")
        if not nodbg:
            A(f"buffer_atomic_add v{vT3}, v{vT2}, {SD}, 0 offen sc1")
        A(f"L_nosig_{tag}:\ns_mov_b64 exec, -1")

    def merge_body():
        A(f"v_exp_f32 v{vMx}, v{vMx}\ns_add_u32 s{sItem}, s{sItem}, 1\nv_add_f32 v{LA}, v{LA}, v{vMx}")
        for i in range(8):
            A(f"s_waitcnt lgkmcnt({8 - i})")
            for j in range(4):
                r = KF + 4 * i + j
                o = O + 8 * i + 2 * j
                A(f"v_lshlrev_b32 v{vT0}, 16, v{r}\nv_and_b32 v{vT1}, 0xffff0000, v{r}\n"
                  f"v_fmac_f32 v{o}, v{vMx}, v{vT0}\nv_fmac_f32 v{o + 1}, v{vMx}, v{vT1}")

    def merge_reads():
        for i in range(8):
            A(f"ds_read_b128 {vr(KF + 4 * i, 4)}, v{vPA} offset:{i * 1024}")
        A(f"v_add_u32 v{vPd}, 1, v{vPd}\nds_write_b32 v{vDoneA}, v{vPd} offset:1536")

    A("L_seg:")
    c = f2u(1.4426950408889634 / 128 ** 0.5)
    A(f"s_cselect_b32 s{sScale}, 0, {hex(c)}")
    A(f"s_add_u32 s{sEnd}, s{sT}, s{sCnt}\ns_add_u32 s{sNeed}, s{sT}, 1")
    A(f"s_mul_i32 s{sOffK}, s{sW}, 8704\ns_add_u32 s{sOffK}, s{sOffK}, {PB}")
    for x in kaddr():
        A(x)
    spin("q", off=256, need=sItem, le=True)
    for x in kreads(Q):
        A(x)
    A(f"s_cmp_eq_u32 s{sT}, 0\ns_cbranch_scc1 L_nohold")
    A(f"v_add_u32 v{vT2}, s{sOffK}, v{vL16}\nv_lshlrev_b32 v{vT3}, 2, v{vLane}\nv_add_u32 v{vT3}, s{sOffK}, v{vT3}")
    A(f"v_rcp_f32 v{vT0}, v{LA}\nv_log_f32 v{vT1}, v{LA}\ns_nop 0\nv_sub_f32 v{vT1}, v{vT1}, v{CM}")
    A(f"ds_write_b32 v{vT3}, v{vT1} offset:8192")
    for i in range(8):
        for j in range(4):
            r = O + 8 * i + 2 * j
            A(f"v_mul_f32 v{r}, v{vT0}, v{r}\nv_mul_f32 v{r + 1}, v{vT0}, v{r + 1}")
        for j in range(4):
            r = O + 8 * i + 2 * j
            A(f"v_cvt_pk_bf16_f32 v{KF + 4 * i + j}, v{r}, v{r + 1}")
        A(f"ds_write_b128 v{vT2}, {vr(KF + 4 * i, 4)} offset:{i * 1024}")
    for i in range(64):
        A(f"v_mov_b32 v{O + i}, 0")
    for i in range(4):
        A(f"v_mov_b32 v{LA + i}, 0")
    A("L_nohold:")
    A(f"s_mov_b32 s{sOffK}, s{sOffV}")
    A(f"v_add_u32 v{vPd}, 1, v{vPd}\ns_add_u32 s{sItem}, s{sItem}, 1\nds_write_b32 v{vDoneA}, v{vPd} offset:1536")
    for x in kaddr():
        A(x)
    adv(sOffK)
    for t in range(8):
        A(f"s_waitcnt lgkmcnt({8 - t})")
        for j in range(4):
            r = Q + 4 * t + j
            A(f"v_lshlrev_b32 v{vT0}, 16, v{r}\nv_and_b32 v{vT1}, 0xffff0000, v{r}\n"
              f"v_mul_f32 v{vT0}, s{sScale}, v{vT0}\nv_mul_f32 v{vT1}, s{sScale}, v{vT1}\n"
              f"v_cvt_pk_bf16_f32 v{r}, v{vT0}, v{vT1}")
    st(2)
    spin("p0")
    st(3)
    for x in kreads():
        A(x)
    A(f"s_add_u32 s{sNeed}, s{sT}, 2\ns_min_u32 s{sNeed}, s{sNeed}, s{sEnd}")
    A(f"v_sub_u32 v{vT2}, s{sNv}, v{vHalf4}")
    A(f"v_mov_b32 v{vT3}, 0xff800000")
    for t in range(8):
        A(f"s_waitcnt lgkmcnt({7 - t})")
        A(qk(t, "0" if t == 0 else vr(S, 16)))
    for x in kaddr():
        A(x)
    adv(sOffK)
    spin("p1")
    for x in kreads():
        A(x)
    A(f"s_cmp_eq_u32 s{sNv}, 32\ns_cbranch_scc1 L_nomask")
    for r in range(16):
        A(f"v_cmp_lt_i32 vcc, {8 * (r >> 2) + (r & 3)}, v{vT2}\ns_nop 1\nv_cndmask_b32 v{S + r}, v{vT3}, v{S + r}, vcc")
    A("L_nomask:")
    for x in maxes():
        A(x)
    xhalf_max()
    A(f"v_sub_f32 v{CM}, 0, v{vMx}")
    for i in range(1, 16):
        A(f"v_mov_b32 v{CM + i}, v{CM}")
    exp_shifted()
    A(f"s_sub_u32 s{sIt}, s{sCnt}, 1\ns_cmp_eq_u32 s{sIt}, 0\ns_cbranch_scc1 L_final")

    A(".p2align 3")
    A("L_loop:")
    loop_start = len(L)
    vrd = vreads()
    A(f"v_add_u32 v{vV}, s{sOffV}, v{vVc}")
    A("s_waitcnt lgkmcnt(0)")
    fillA = [
        vrd[0:3] + [cvt(0)],
        vrd[3:6] + [cvt(1)],
        vrd[6:9] + [cvt(2)],
        vrd[9:12] + [cvt(3)],
        vrd[12:14] + [cvt(4), f"v_add_u32 v{vDone}, 1, v{vDone}"],
        vrd[14:16] + [f"ds_write_b32 v{vDoneA}, v{vDone}", f"ds_read_b32 v{vF}, v{vRdyA}", cvt(5)],
        [cvt(6), cvt(7)] + kaddr() + [f"s_add_u32 s{sNeed}, s{sNeed}, 1", f"s_min_u32 s{sNeed}, s{sNeed}, s{sEnd}"],
        [],
    ]
    for t in range(8):
        A(qk(t, vr(CM, 16) if t == 0 else vr(S, 16)))
        for x in fillA[t]:
            A(x)
    adv(sOffV)
    adv(sOffK)
    A("s_waitcnt lgkmcnt(0)")
    A(pv(0, 0))
    A(f"v_readfirstlane_b32 s{sF}, v{vF}\ns_sub_u32 s{sIt}, s{sIt}, 1\ns_cmp_lt_u32 s{sF}, s{sNeed}\ns_cbranch_scc1 L_slow")
    A("L_back:")
    krd = kreads()
    mx = maxes()
    ex_ = [f"v_exp_f32 v{E + i}, v{S + i}" for i in range(16)]
    mf = [pv(0, 1), pv(0, 2), pv(0, 3), rs(0), pv(1, 0), pv(1, 1), pv(1, 2), pv(1, 3), rs(1)]
    fillB = [
        krd[0:2],
        krd[2:4] + [ex_[0], ex_[1]],
        krd[4:6] + [ex_[2], ex_[3]],
        krd[6:8] + [ex_[4], ex_[5]],
        [mx[0], mx[1]],
        [ex_[6], mx[2], ex_[7], mx[3]],
        [ex_[8], mx[4], ex_[9], mx[5]],
        [ex_[10], mx[6], ex_[11], mx[7]],
        [ex_[12], f"v_cmp_lt_f32 vcc, {hex(f2u(T))}, v{vMx}", ex_[13], ex_[14]],
        [ex_[15]],
    ]
    for i in range(10):
        if i > 0:
            A(mf[i - 1])
        for x in fillB[i]:
            A(x)
    if m16 or nors:
        import re
        keep = []
        pend = None
        for x in L[loop_start:]:
            y = x.strip()
            if nors and y.startswith("v_mfma_f32_16x16x32"):
                continue
            if m16 and y.startswith("v_mfma_f32_32x32x16"):
                if pend:
                    keep.append(pend)
                r = [int(v) for v in re.findall(r"v\[(\d+):", y)]
                d, a, b, c = r
                if d == S:
                    t = (a - KF) // 4
                    d0 = S + (t & 1) * 8
                    cs = [CM, CM + 4] if t < 2 else [d0, d0 + 4]
                    bs = [Q + 4 * t, Q + 4 * (t ^ 1)]
                else:
                    sidx = (b - P) // 4
                    d0 = d + 8 * sidx
                    cs = [d0, d0 + 4]
                    bs = [P, P + 4]
                keep.append(f"    v_mfma_f32_16x16x32_bf16 {vr(d0, 4)}, {vr(a, 4)}, {vr(bs[0], 4)}, {vr(cs[0], 4)}")
                pend = f"    v_mfma_f32_16x16x32_bf16 {vr(d0 + 4, 4)}, {vr(a, 4)}, {vr(bs[1], 4)}, {vr(cs[1], 4)}"
                cnt = 0
                continue
            if pend and (y.endswith(":") or y.startswith(("s_cbranch", "v_mfma"))):
                keep.append(pend)
                pend = None
            keep.append(x)
            if pend:
                cnt += 1
                if cnt == 2:
                    keep.append(pend)
                    pend = None
        if pend:
            keep.append(pend)
        L[loop_start:] = keep
    if nocomp:
        keep = []
        for x in L[loop_start:]:
            y = x.strip()
            if nocomp & 1 and y.startswith("v_mfma"):
                continue
            if nocomp & 2 and y.startswith(("v_exp", "v_max", "v_cvt")):
                continue
            if nocomp & 4 and y.startswith(("ds_read_b128", "ds_read_b64_tr")):
                continue
            keep.append(x)
        L[loop_start:] = keep
        A("s_mov_b64 vcc, 0")
    A("s_cbranch_vccnz L_rare")
    A("L_rare_back:")
    A(f"s_cmp_lg_u32 s{sIt}, 0\ns_cbranch_scc1 L_loop")

    A("L_final:")
    A(f"v_add_u32 v{vV}, s{sOffV}, v{vVc}\nv_add_u32 v{vDone}, 1, v{vDone}")
    for i, x in enumerate(vrd):
        A(x)
        if i & 1:
            A(cvt(i >> 1))
    A(f"ds_write_b32 v{vDoneA}, v{vDone}")
    adv(sOffV)
    A(f"s_mov_b32 s{sT}, s{sEnd}")
    A("s_waitcnt lgkmcnt(9)")
    for x in [pv(0, 0), pv(0, 1), pv(0, 2), pv(0, 3), rs(0)]:
        A(x)
    A("s_waitcnt lgkmcnt(0)")
    for x in [rs(1), pv(1, 0), pv(1, 1), pv(1, 2), pv(1, 3)]:
        A(x)
    st(4)
    A(f"s_cmp_ge_u32 s{sRole}, 2\ns_cbranch_scc1 L_owner_epi")
    A(f"s_cmp_lg_u32 s{sCntB}, 0\ns_cbranch_scc1 L_segB")

    A(f"s_lshl_b32 s{sA}, s{sB}, 1\ns_add_u32 s{sA}, s{sA}, s{sRole}\ns_lshl_b32 s{sA}, s{sA}, 3\ns_add_u32 s{sA}, s{sA}, s{sH}\ns_mul_i32 s{sA}, s{sA}, {PSLOT}")
    A(f"s_lshl_b32 s{sC}, s{sW}, 8\ns_add_u32 s{sC}, s{sC}, s{sA}\ns_add_u32 s{sC}, s{sC}, 32768")
    A(f"s_lshl_b32 s{sBb}, s{sW}, 13\ns_add_u32 s{sA}, s{sA}, s{sBb}\ns_add_u32 s{sBb}, s{sA}, 4096")
    A(f"s_mov_b32 s{sPend}, s{sB}")
    A(f"v_rcp_f32 v{vT0}, v{LA}\nv_log_f32 v{vT1}, v{LA}\nv_lshlrev_b32 v{vT2}, 2, v{vLane}")
    A(f"v_sub_f32 v{vT1}, v{vT1}, v{CM}")
    A(f"buffer_store_dword v{vT1}, v{vT2}, {SWS}, s{sC} offen {spol}")
    for i in range(8):
        for j in range(4):
            r = O + 8 * i + 2 * j
            A(f"v_mul_f32 v{r}, v{vT0}, v{r}\nv_mul_f32 v{r + 1}, v{vT0}, v{r + 1}")
        for j in range(4):
            r = O + 8 * i + 2 * j
            A(f"v_cvt_pk_bf16_f32 v{KF + 4 * i + j}, v{r}, v{r + 1}")
        A(f"buffer_store_dwordx4 {vr(KF + 4 * i, 4)}, v{vL16}, {SWS}, s{sA if i < 4 else sBb} offen offset:{(i & 3) * 1024} {spol}")
    st(5)
    signal("b")
    st(6)
    if stamp:
        A(f"s_cmp_eq_u32 s{sW}, 0\ns_cbranch_scc0 L_end")
    dump_stamps(32)
    A("s_endpgm")

    A("L_owner_epi:")
    A(f"s_lshl_b32 s{sQoff}, s{sB}, 3\ns_add_u32 s{sQoff}, s{sQoff}, s{sH}\ns_lshl_b32 s{sQoff}, s{sQoff}, 2\n"
      f"s_add_u32 s{sQoff}, s{sQoff}, s{sW}\ns_lshl_b32 s{sQoff}, s{sQoff}, 13")
    A(f"s_cmp_ge_u32 s{sItem}, s{sK}\ns_cbranch_scc1 L_fin")
    A("L_merge:")
    spin("m", off=256, need=sItem, le=True)
    A(f"ds_read_b32 v{vT0}, v{vPL}")
    merge_reads()
    A(f"s_waitcnt lgkmcnt(9)\nv_add_f32 v{vMx}, v{vT0}, v{CM}")
    A(f"v_cmp_lt_f32 vcc, {hex(f2u(40.0))}, v{vMx}\ns_cbranch_vccz L_mok")
    A(f"v_max_f32 v{vT1}, 0, v{vMx}\nv_sub_f32 v{vMx}, v{vMx}, v{vT1}\nv_sub_f32 v{CM}, v{CM}, v{vT1}")
    A(f"v_exp_f32 v{vT1}, -v{vT1}\ns_nop 0")
    for i in range(64):
        A(f"v_mul_f32 v{O + i}, v{vT1}, v{O + i}")
    A(f"v_mul_f32 v{LA}, v{vT1}, v{LA}")
    A("L_mok:")
    merge_body()
    A(f"s_cmp_lt_u32 s{sItem}, s{sK}\ns_cbranch_scc1 L_merge")
    A("L_fin:")
    st(5)
    A(f"s_nop 3\nv_rcp_f32 v{vT0}, v{LA}\ns_nop 0")
    for dt in range(4):
        for gp in range(2):
            o = O + 16 * dt + 8 * gp
            d = KF + 8 * dt + 4 * gp
            for j in range(8):
                A(f"v_mul_f32 v{o + j}, v{vT0}, v{o + j}")
            for j in range(4):
                A(f"v_cvt_pk_bf16_f32 v{d + j}, v{o + 2 * j}, v{o + 2 * j + 1}")
            A(f"s_nop 1\nv_permlane32_swap_b32 v{d}, v{d + 2}\nv_permlane32_swap_b32 v{d + 1}, v{d + 3}")
            A(f"buffer_store_dwordx4 {vr(d, 4)}, v{vQo}, {SO}, s{sQoff} offen offset:{dt * 64 + gp * 32} {opol}")
    if stamp:
        st(6)
        A("s_waitcnt vmcnt(0)")
        st(7)
        A(f"s_cmp_eq_u32 s{sW}, 0\ns_cbranch_scc0 L_end")
    dump_stamps(32)
    A("L_end:\ns_endpgm")

    A("L_slow:")
    budget()
    if sleep:
        A(f"s_sleep {sleep}")
    A(f"ds_read2_b32 {vr(vF2, 2)}, v{vRdyA} offset0:0 offset1:64\ns_waitcnt lgkmcnt(0)")
    A(f"v_readfirstlane_b32 s{sF}, v{vF2}\nv_readfirstlane_b32 s{sA}, v{vF2 + 1}")
    A(f"s_cmp_ge_u32 s{sF}, s{sNeed}\ns_cbranch_scc1 L_back")
    A(f"s_min_u32 s{sA}, s{sA}, s{sEarly}\ns_cmp_gt_u32 s{sA}, s{sItem}\ns_cbranch_scc0 L_slow")
    A(f"ds_read_b32 v{vT0}, v{vPL}\ns_waitcnt lgkmcnt(0)\nv_add_f32 v{vMx}, v{vT0}, v{CM}")
    A(f"v_cmp_lt_f32 vcc, {hex(f2u(40.0))}, v{vMx}\ns_cbranch_vccz L_sm")
    A(f"s_mov_b32 s{sEarly}, 0\ns_branch L_slow")
    A("L_sm:")
    merge_reads()
    merge_body()
    A("s_branch L_slow")
    A("L_rare:")
    xhalf_max()
    A(f"v_max_f32 v{vMx}, 0, v{vMx}\nv_exp_f32 v{vT0}, -v{vMx}\nv_sub_f32 v{CM}, v{CM}, v{vMx}")
    for i in range(1, 16):
        A(f"v_mov_b32 v{CM + i}, v{CM}")
    exp_shifted()
    for i in range(64):
        A(f"v_mul_f32 v{O + i}, v{vT0}, v{O + i}")
    for i in range(4):
        A(f"v_mul_f32 v{LA + i}, v{vT0}, v{LA + i}")
    A("s_branch L_rare_back")

    A(f""".section .rodata,"a"
.p2align 6
.amdhsa_kernel {NAME}
  .amdhsa_next_free_vgpr 256
  .amdhsa_next_free_sgpr 102
  .amdhsa_accum_offset 256
  .amdhsa_group_segment_fixed_size 0
  .amdhsa_kernarg_size 64
  .amdhsa_user_sgpr_count 2
  .amdhsa_user_sgpr_kernarg_segment_ptr 1
  .amdhsa_system_sgpr_workgroup_id_x 1
.end_amdhsa_kernel""")
    if nopart:
        L[:] = [x for x in L if not x.strip().startswith("buffer_atomic") and f"buffer_load_dword v{vF0}" not in x]
    if noq:
        L[:] = [x for x in L if not (x.strip().startswith("buffer_load") and SQ in x)]
    if nostore:
        L[:] = [x for x in L if not (x.strip().startswith("buffer_store") and (("sc1" in x and nostore & 1) or (SO in x and nostore & 2)))]
    return "\n".join(L) + "\n"


def parse(spec):
    kw = {}
    for kv in spec.split(","):
        if not kv or kv == "default":
            continue
        k, v = kv.split("=")
        try:
            kw[k] = int(v)
        except ValueError:
            try:
                kw[k] = float(v)
            except ValueError:
                kw[k] = v.replace("+", " ").replace("none", "")
    return kw


if __name__ == "__main__":
    from build import build
    import hz
    files = []
    for spec in sys.argv[1:]:
        txt = gen(**parse(spec))
        pr = hz.check(txt)
        for p in pr:
            print("HAZARD", p, file=sys.stderr)
        fn = "k_" + spec.replace("=", "").replace(",", "_").replace("+", "") + ".s"
        open(fn, "w").write(txt)
        build(fn)
        files.append(fn)
    print(" ".join(files))
```

```python
import sys
import struct

NAME = "standalone__paged_block_table_kv_pagedattention__sampling_kernel"
WSB = 537395200
KVB = 4100 * 32768
QB = 16 * 32 * 32 * 128 * 2

HDR = """; Paged GQA attention, B=16 Hq=32 Hkv=8 Sq=32 D=128 block=16, bf16.
; Kernarg (ptrs only): 0 q, 8 k_cache, 16 v_cache, 24 block_table, 32 context_lens, 40 out, 48 debug, 56 ws
"""

PAIRS = [(4, 13), (9, 8), (14, 3), (0, 12), (5, 7), (10, 2), (15, 11), (1, 6)]


def f2u(x):
    return struct.unpack('<I', struct.pack('<f', x))[0]


def gen(NS=7, win=22, win2=26, ntail=0, gran=2, win0=18, n0=10, lag=2, dec0=10, decs=8,
        delta=0, ex=0, theta=2, lead=0, npoll=2, hwin=8, psleep=4, csleep=1, lprio=3, rdy0=2, chk0=20, rmode=1, cmask=15, base=48, kb=6, ra=2, rx=1, apol='sc1', fpol='sc1',
        pol="nt", qpol="nt", opol="", spol="sc1", lpol="sc1", T=8.0,
        stamp=0, trace=0, nocomp=0, noload=0, nopart=0, nostore=0):
    SLOT = 17408
    RING = NS * SLOT
    PB = RING
    A_DONE = PB + 2 * SLOT
    A_READY = A_DONE + 1024
    A_PDONE = A_DONE + 1536
    A_SIG = A_PDONE + 1024
    LDS = A_SIG + 512
    wmax = max(win, win2 if ntail or base else 0, win0)
    assert LDS <= 163840
    assert NS >= wmax // 16 + lag + 3 and wmax <= 52
    BOX = 17024
    BIG = f2u(1e30)
    OOB = 0x40000000
    L = []

    def A(s):
        for x in s.split('\n'):
            L.append(x if x.endswith(':') or x.startswith(('.', ';')) else '    ' + x)

    vLane, vT0, vT1, vT2, vT3 = 1, 2, 3, 4, 5
    vKc, vV0c, vV1c, vK, vV0, vV1 = 6, 7, 8, 9, 10, 11
    vQo, vRdyA, vDoneA, vF = 12, 13, 14, 15
    S, E, CM, LA, O, Q, KF, VF, P, ON = 16, 32, 48, 56, 64, 128, 160, 192, 224, 232
    vMx, vMx2, vDone, vL16, vG4, vPd, vPA, vPL = 236, 237, 238, 239, 240, 241, 242, 243
    vF2, vU = 244, 248
    TA, TBb, vRow = 64, 68, 72
    vKo, vVo = 76, 80
    vPoll, vPub, vDn, vDnA, vQd, vF0, vDb, vPoll2 = 84, 85, 86, 87, 88, 89, 90, 91
    HR = 100

    sW, sH, sRole = 3, 32, 33
    sBA, sBB, sCntA, sCntB, sTopA, sTopB, sNv, sExp, sZ = 35, 36, 37, 38, 39, 40, 41, 42, 43
    sGrp, sSwap, sBud, sPar = 44, 45, 46, 47
    sB, sCnt, sT, sEnd, sOffK, sRet, sNeed, sF, sScale = 64, 65, 66, 67, 68, 69, 70, 71, 72
    sA, sBb, sC, sD, sE2, sF2 = 73, 74, 75, 76, 77, 78
    sQoff, sIt, sOffQ, sItem, sK = 79, 80, 81, 82, 83
    sS, sOff, sPub, sFree, sTile, sO0, sO1, sN0, sN1, sLag, sDec = 66, 67, 68, 69, 70, 71, 72, 79, 80, 81, 82
    sP0, sP1, sBoost = 34, 64, 42
    sSt = 84
    SQ, SK, SV, SWS, SO, SD = "s[8:11]", "s[12:15]", "s[16:19]", "s[20:23]", "s[24:27]", "s[28:31]"

    def vr(a, n):
        return f"v[{a}:{a + n - 1}]" if n > 1 else f"v{a}"

    def adv(s):
        return [f"s_add_u32 s{s}, s{s}, {SLOT}", f"s_cmp_ge_u32 s{s}, {RING}", f"s_cselect_b32 s{s}, 0, s{s}"]

    def AL(lst):
        for x in lst:
            A(x)

    def budget():
        A(f"s_sub_u32 s{sBud}, s{sBud}, 1\ns_cbranch_scc1 L_end")

    def st(i):
        if stamp:
            A(f"{'s_memrealtime' if stamp == 1 else 's_memtime'} s[{sSt + 2 * i}:{sSt + 2 * i + 1}]")

    def dump_stamps(base):
        if not stamp:
            return
        A("s_waitcnt lgkmcnt(0)")
        for i in range(8):
            A(f"v_mov_b32 v{16 + i}, s{sSt + 2 * i}")
        A(f"s_mul_i32 s{sA}, s2, 96\ns_add_u32 s{sA}, s{sA}, {WSB - 256 * 96 + base}")
        A(f"v_mov_b32 v{vT0}, 0\ns_mov_b64 exec, 1")
        A(f"buffer_store_dwordx4 v[16:19], v{vT0}, {SWS}, s{sA} offen")
        A(f"buffer_store_dwordx4 v[20:23], v{vT0}, {SWS}, s{sA} offen offset:16")
        A("s_mov_b64 exec, -1")

    def box_off(dst, k):
        A(f"s_mul_i32 s{dst}, s{sGrp}, 6\ns_add_u32 s{dst}, s{dst}, {k}\ns_mul_i32 s{dst}, s{dst}, {BOX}")

    tabA = sum(p[0] << (4 * i) for i, p in enumerate(PAIRS))
    tabB = sum(p[1] << (4 * i) for i, p in enumerate(PAIRS))

    A(HDR.rstrip())
    A(f"; @launch grid=(256,1,1) block=(384,1,1) lds={LDS}")
    A('.amdgcn_target "amdgcn-amd-amdhsa--gfx950"\n.text')
    A(f".globl {NAME}\n.p2align 8\n.type {NAME},@function\n{NAME}:")
    A("s_cmp_ge_u32 s2, 256\ns_cbranch_scc1 L_end")
    A("s_load_dwordx16 s[48:63], s[0:1], 0")
    if stamp:
        for i in range(8):
            A(f"s_mov_b64 s[{sSt + 2 * i}:{sSt + 2 * i + 1}], 0")
    st(0)
    A(f"v_lshrrev_b32 v{vT0}, 6, v0\nv_and_b32 v{vLane}, 63, v0")
    A(f"v_readfirstlane_b32 s{sW}, v{vT0}")
    A(f"v_lshlrev_b32 v{vL16}, 4, v{vLane}")
    A(f"s_and_b32 s{sH}, s2, 7\ns_lshr_b32 s{sRole}, s2, 6\ns_lshr_b32 s{sA}, s2, 1\ns_and_b32 s{sA}, s{sA}, 28")
    A(f"s_lshr_b32 s{sBA}, {hex(tabA)}, s{sA}\ns_lshr_b32 s{sBB}, {hex(tabB)}, s{sA}")
    A(f"s_and_b32 s{sBA}, s{sBA}, 15\ns_and_b32 s{sBB}, s{sBB}, 15")
    A(f"s_lshl_b32 s{sA}, s{sBA}, 2\ns_lshl_b32 s{sBb}, s{sBB}, 2")
    A(f"s_lshl_b32 s{sC}, s{sBA}, 10\ns_lshl_b32 s{sD}, s{sBB}, 10")
    A(f"v_add_u32 v{vT2}, s{sC}, v{vL16}\nv_add_u32 v{vT3}, s{sD}, v{vL16}")
    A(f"s_mov_b32 s{sBud}, 0x400000\ns_and_b32 s{sGrp}, s2, 63")
    A(f"s_cmp_lt_u32 s{sRole}, 2\ns_cselect_b32 s{sPar}, 4096, 0")
    A(f"v_lshlrev_b32 v{vDoneA}, 2, v0\nv_add_u32 v{vDoneA}, {A_DONE}, v{vDoneA}")
    A(f"v_mov_b32 v{vDone}, 0")
    A(f"ds_write_b32 v{vDoneA}, v{vDone}\nds_write_b32 v{vDoneA}, v{vDone} offset:1536")
    A(f"v_mov_b32 v{vRdyA}, {A_READY}")
    A(f"s_cmp_eq_u32 s{sW}, 4")
    A("s_waitcnt lgkmcnt(0)")
    A(f"s_load_dword s{sCntA}, s[56:57], s{sA}\ns_load_dword s{sCntB}, s[56:57], s{sBb}")
    A("s_cbranch_scc0 L_notab")
    A(f"s_setprio {lprio}")
    A(f"global_load_dwordx4 {vr(TA, 4)}, v{vT2}, s[54:55]\nglobal_load_dwordx4 {vr(TBb, 4)}, v{vT3}, s[54:55]")
    A("L_notab:")
    A("s_barrier")
    for srd, p, n in ((8, 48, QB), (12, 50, KVB), (16, 52, KVB), (20, 62, WSB), (24, 58, QB), (28, 60, 256)):
        A(f"s_mov_b32 s{srd}, s{p}\ns_and_b32 s{srd + 1}, s{p + 1}, 0xffff\ns_mov_b32 s{srd + 2}, {n}\n"
          f"s_mov_b32 s{srd + 3}, 0x20000")
    A(f"v_lshrrev_b32 v{vT0}, 4, v{vLane}\nv_and_b32 v{vT1}, 15, v{vLane}")
    A(f"v_xor_b32 v{vT2}, v{vT1}, v{vT0}\nv_lshlrev_b32 v{vT2}, 4, v{vT2}")
    A(f"v_and_b32 v{vDnA}, 3, v{vLane}\nv_lshlrev_b32 v{vDnA}, 8, v{vDnA}\nv_add_u32 v{vDnA}, {A_DONE}, v{vDnA}")
    A(f"v_lshl_add_u32 v{vQd}, v{vT0}, 8, v{vT2}")
    A(f"s_lshl_b32 s{sE2}, s{sH}, 8")
    A(f"v_lshl_add_u32 v{vT2}, v{vT0}, 11, v{vT2}\nv_add_u32 v{vKo}, s{sE2}, v{vT2}")
    A(f"v_and_b32 v{vT2}, 1, v{vT0}\nv_lshlrev_b32 v{vT2}, 1, v{vT2}\nv_xor_b32 v{vT2}, v{vT2}, v{vT1}\nv_lshlrev_b32 v{vT2}, 4, v{vT2}")
    A(f"v_lshl_add_u32 v{vT2}, v{vT0}, 13, v{vT2}\nv_add_u32 v{vVo}, s{sE2}, v{vT2}")
    for j in range(1, 4):
        A(f"v_add_u32 v{vKo + j}, {j * (8192 - 1088)}, v{vKo}\nv_add_u32 v{vVo + j}, {j * (2048 - 1088)}, v{vVo}")
    A("s_waitcnt lgkmcnt(0)")
    st(1)
    A(f"s_min_i32 s{sA}, s{sCntA}, 0x1000\ns_cmp_lt_i32 s{sA}, 1\ns_cselect_b32 s{sA}, 0x1000, s{sA}\ns_cselect_b32 s{sC}, 1, 0")
    A(f"s_min_i32 s{sBb}, s{sCntB}, 0x1000\ns_cmp_lt_i32 s{sBb}, 1\ns_cselect_b32 s{sBb}, 0x1000, s{sBb}\ns_cselect_b32 s{sD}, 1, 0")
    A(f"s_mov_b32 s{sE2}, s{sBA}\ns_cmp_lt_u32 s{sA}, s{sBb}\ns_cselect_b32 s{sSwap}, 1, 0")
    A(f"s_cselect_b32 s{sCntA}, s{sBb}, s{sA}\ns_cselect_b32 s{sCntB}, s{sA}, s{sBb}")
    A(f"s_cselect_b32 s{sBA}, s{sBB}, s{sBA}\ns_cselect_b32 s{sBB}, s{sE2}, s{sBB}")
    A(f"s_cselect_b32 s{sZ}, s{sD}, s{sC}\ns_cselect_b32 s{sD}, s{sC}, s{sD}\ns_lshl_b32 s{sD}, s{sD}, 1\ns_or_b32 s{sZ}, s{sZ}, s{sD}")
    A(f"s_cmp_eq_u32 s{sRole}, 3\ns_cselect_b32 s{sNv}, s{sCntB}, s{sCntA}")
    A(f"s_sub_u32 s{sNv}, s{sNv}, 1\ns_and_b32 s{sNv}, s{sNv}, 31\ns_add_u32 s{sNv}, s{sNv}, 1")
    A(f"s_add_u32 s{sTopA}, s{sCntA}, 31\ns_lshr_b32 s{sTopA}, s{sTopA}, 5")
    A(f"s_add_u32 s{sTopB}, s{sCntB}, 31\ns_lshr_b32 s{sTopB}, s{sTopB}, 5")
    A(f"s_add_u32 s{sA}, s{sTopA}, s{sTopB}\ns_add_u32 s{sA}, s{sA}, {2 * delta + ex + ra}\ns_lshr_b32 s{sA}, s{sA}, 2\ns_max_u32 s{sA}, s{sA}, 1")
    A(f"s_min_u32 s{sCntA}, s{sA}, s{sTopA}\ns_min_u32 s{sCntB}, s{sA}, s{sTopB}")
    A(f"s_sub_u32 s{sC}, s{sTopA}, s{sCntA}\ns_sub_u32 s{sD}, s{sTopB}, s{sCntB}")
    A(f"s_add_u32 s{sBb}, s{sC}, s{sD}\ns_add_u32 s{sBb}, s{sBb}, {ex + rx}\ns_lshr_b32 s{sBb}, s{sBb}, 1\ns_min_u32 s{sBb}, s{sBb}, s{sC}")
    A(f"s_sub_u32 s{sExp}, s{sC}, s{sBb}\ns_cmp_le_u32 s{sExp}, {theta}\ns_cselect_b32 s{sBb}, s{sC}, s{sBb}\ns_cselect_b32 s{sExp}, 0, s{sExp}")
    A(f"s_cmp_ge_u32 s{sRole}, 2\ns_cbranch_scc1 L_plan_top")
    A(f"s_mov_b32 s{sNv}, 32\ns_mov_b32 s{sTopB}, s{sD}\ns_mov_b32 s{sCntB}, s{sD}")
    A(f"s_cmp_eq_u32 s{sRole}, 0\ns_cselect_b32 s{sCntA}, s{sBb}, s{sExp}\ns_cselect_b32 s{sTopA}, s{sBb}, s{sC}")
    A("L_plan_top:")
    A(f"s_bitcmp1_b32 s{sRole}, 0\ns_cselect_b32 s{sCntB}, s{sCntB}, 0\ns_cselect_b32 s{sExp}, 0, s{sExp}")
    A(f"s_cmp_eq_u32 s{sRole}, 3\ns_cselect_b32 s{sCntA}, 0, s{sCntA}")
    A(f"s_cmp_lt_u32 s{sW}, 4\ns_cbranch_scc1 L_consumer")
    A(f"s_cmp_eq_u32 s{sW}, 5\ns_cbranch_scc1 L_helper")

    def min4(dst, add):
        A(f"v_readlane_b32 s{sA}, v{vDn}, 0\nv_readlane_b32 s{sBb}, v{vDn}, 1\nv_readlane_b32 s{sC}, v{vDn}, 2\n"
          f"v_readlane_b32 s{sD}, v{vDn}, 3")
        A(f"s_min_u32 s{sA}, s{sA}, s{sBb}\ns_min_u32 s{sC}, s{sC}, s{sD}\ns_min_u32 s{dst}, s{sA}, s{sC}")
        if add:
            A(f"s_add_u32 s{dst}, s{dst}, {add}")

    A(f"s_mov_b32 s{sS}, 0\ns_mov_b32 s{sOff}, 0\ns_mov_b32 s{sPub}, 0\ns_mov_b32 s{sFree}, {NS}")
    A(f"s_mov_b32 s{sO0}, {hex(OOB)}\ns_mov_b32 s{sO1}, {hex(OOB)}")
    if lag:
        A(f"s_mov_b32 s{sLag}, {lag}\ns_lshr_b32 s{sDec}, s2, 3\ns_and_b32 s{sDec}, s{sDec}, 7\ns_add_u32 s{sDec}, s{sDec}, {dec0}")
    A(f"s_or_b32 s{sA}, s{sCntA}, s{sCntB}\ns_cbranch_scc0 L_ldone")
    if base:
        A(f"s_add_u32 s{sBoost}, s{sCntA}, s{sCntB}\ns_sub_u32 s{sBoost}, s{sBoost}, {base}\ns_max_i32 s{sBoost}, s{sBoost}, 0")
        A(f"s_mul_i32 s{sBoost}, s{sBoost}, {kb}\ns_min_u32 s{sBoost}, s{sBoost}, {base - n0 - 1}\ns_add_u32 s{sBoost}, s{sBoost}, {ntail}")
    A(f"s_cmp_eq_u32 s{sSwap}, 0")
    A("s_waitcnt vmcnt(0)")
    st(2)
    A("s_cbranch_scc1 L_noswap")
    for j in range(4):
        A(f"v_swap_b32 v{TA + j}, v{TBb + j}")
    A("L_noswap:")
    A(f"s_cmp_eq_u32 s{sCntA}, 0\ns_cbranch_scc1 L_lsegB")
    for j in range(4):
        A(f"v_lshlrev_b32 v{vRow + j}, 15, v{TA + j}")
    A(f"s_mov_b32 s{sCnt}, s{sCntA}\ns_sub_u32 s{sTile}, s{sTopA}, 1\ns_branch L_lseg")
    A("L_lsegB:")
    for j in range(4):
        A(f"v_lshlrev_b32 v{vRow + j}, 15, v{TBb + j}")
    A(f"s_mov_b32 s{sCnt}, s{sCntB}\ns_sub_u32 s{sTile}, s{sTopB}, 1\ns_mov_b32 s{sCntB}, 0")
    A("L_lseg:")

    def next_offsets(d0, d1):
        A(f"s_lshr_b32 s{sE2}, s{sTile}, 1\ns_and_b32 s{sE2}, s{sE2}, 63")
        A(f"v_readlane_b32 s{d0}, v{vRow}, s{sE2}\nv_readlane_b32 s{d1}, v{vRow + 1}, s{sE2}\n"
          f"v_readlane_b32 s{sF2}, v{vRow + 2}, s{sE2}\nv_readlane_b32 s{sE2}, v{vRow + 3}, s{sE2}")
        A(f"s_bitcmp1_b32 s{sTile}, 0\ns_cselect_b32 s{d0}, s{sF2}, s{d0}\ns_cselect_b32 s{d1}, s{sE2}, s{d1}")

    next_offsets(sN0, sN1)
    if base:
        A(f"s_sub_u32 s{sK}, s{sBoost}, s{sCntB}\ns_max_i32 s{sK}, s{sK}, 0")
    else:
        A(f"s_cmp_eq_u32 s{sCntB}, 0\ns_cselect_b32 s{sK}, {ntail}, 0")
    if ntail or base:
        A(f"s_cmp_le_u32 s{sCnt}, s{sK}\ns_cbranch_scc1 L_lt_b")
    if n0:
        A(f"s_cmp_ge_u32 s{sS}, {n0}\ns_cbranch_scc1 L_lt_a")

    def publish(back, lagged):
        if lagged:
            A(f"s_sub_u32 s{sA}, s{sS}, s{sLag}\ns_sub_u32 s{sA}, s{sA}, {back}")
        else:
            A(f"s_sub_u32 s{sA}, s{sS}, {back}")
        A(f"s_max_i32 s{sPub}, s{sPub}, s{sA}\nv_mov_b32 v{vPub}, s{sPub}")

    def stage_loop(tag, w, stop):
        A(f"L_lt_{tag}:")
        A(f"s_mov_b32 s{sP0}, s{sO0}\ns_mov_b32 s{sP1}, s{sO1}\ns_mov_b32 s{sO0}, s{sN0}\ns_mov_b32 s{sO1}, s{sN1}")
        A(f"s_cmp_lt_u32 s{sS}, s{sFree}\ns_cbranch_scc0 L_full_{tag}")
        A(f"L_free_{tag}:")
        pub_i = -(-((w - gran) % 16) // gran) * gran
        back = (w - gran) // 16
        if pub_i == 16:
            pub_i, back = 0, back + 1
        for i in range(16):
            g, j = i >> 2, i & 3
            srd, vo, so = ((SK, vKo, sO0), (SK, vKo, sO1), (SV, vVo, sP0), (SV, vVo, sP1))[g]
            if j == 0:
                A(f"s_mov_b32 m0, s{sOff}" if g == 0 else f"s_add_u32 m0, s{sOff}, {g * 4352}")
            if i == pub_i:
                publish(back, lag)
            if i % gran == 0:
                A(f"s_waitcnt vmcnt({w - gran})")
            elif j == 0:
                A("s_nop 0")
            if i == pub_i:
                A(f"ds_write_b32 v{vDoneA}, v{vPub}")
            A(f"buffer_load_dwordx4 v{vo + j}, {srd}, s{so} offen offset:{j * 1088} {pol} lds")
            if i == 3:
                A(f"s_sub_u32 s{sTile}, s{sTile}, 1")
                next_offsets(sN0, sN1)
            if i == 11:
                A(f"ds_read_b32 v{vDn}, v{vDnA}")
        A(f"s_add_u32 s{sS}, s{sS}, 1")
        AL(adv(sOff))
        if stamp:
            for k, n in ((5, 8), (6, 24), (7, 40)):
                A(f"s_cmp_lg_u32 s{sS}, {n}\ns_cbranch_scc1 L_ns{tag}{k}")
                st(k)
                A(f"L_ns{tag}{k}:")
        A("s_waitcnt lgkmcnt(0)")
        min4(sFree, NS)
        if noload:
            A(f"s_cmp_lt_u32 s{sS}, {NS}\ns_cbranch_scc1 L_nl{tag}\ns_waitcnt vmcnt(0)\nv_mov_b32 v{vPub}, 0x7fffffff\n"
              f"ds_write_b32 v{vDoneA}, v{vPub}\ns_branch L_ldone\nL_nl{tag}:")
        if tag in "ab" and lag:
            A(f"s_cmp_ge_u32 s{sS}, s{sDec}\ns_cselect_b32 s{sA}, 1, 0\ns_cselect_b32 s{sBb}, {decs}, 0")
            A(f"s_add_u32 s{sDec}, s{sDec}, s{sBb}\ns_sub_u32 s{sLag}, s{sLag}, s{sA}\ns_max_i32 s{sLag}, s{sLag}, 0")
        if tag == "z":
            A(f"s_sub_u32 s{sCnt}, s{sCnt}, 1\ns_cmp_le_u32 s{sCnt}, {stop}\ns_cbranch_scc1 L_lt_aend")
            A(f"s_cmp_lt_u32 s{sS}, {n0}\ns_cbranch_scc1 L_lt_z")
        else:
            A(f"s_sub_u32 s{sCnt}, s{sCnt}, 1\ns_cmp_gt_u32 s{sCnt}, {stop}\ns_cbranch_scc1 L_lt_{tag}")

    if n0:
        stage_loop("z", win0, f"s{sK}")
    stage_loop("a", win, f"s{sK}")
    A("L_lt_aend:")
    if ntail or base:
        A(f"s_cmp_eq_u32 s{sCnt}, 0\ns_cbranch_scc1 L_lsegend")
        stage_loop("b", win2, "0")
    A("L_lsegend:")
    A(f"s_cmp_lg_u32 s{sCntB}, 0\ns_cbranch_scc1 L_lsegB")
    A(f"s_cmp_lt_u32 s{sS}, s{sFree}\ns_cbranch_scc0 L_full_e")
    A("L_free_e:")
    for g in (2, 3):
        A(f"s_add_u32 m0, s{sOff}, {g * 4352}\ns_nop 0")
        for j in range(4):
            A(f"buffer_load_dwordx4 v{vVo + j}, {SV}, s{sO0 if g == 2 else sO1} offen offset:{j * 1088} {pol} lds")
    st(3)
    for back in range((wmax - 1) // 16, -2, -1):
        publish(back, False) if back >= 0 else A(f"s_add_u32 s{sA}, s{sS}, 1\nv_mov_b32 v{vPub}, s{sA}")
        A(f"s_waitcnt vmcnt({16 * back + 8 if back >= 0 else 0})\nds_write_b32 v{vDoneA}, v{vPub}")
    A("L_ldone:")
    st(4)
    dump_stamps(0)
    A("s_endpgm")
    for tag in ("z" if n0 else "") + "a" + ("b" if ntail or base else "") + "e":
        A(f"L_full_{tag}:")
        budget()
        A(f"ds_read_b32 v{vDn}, v{vDnA}\ns_waitcnt lgkmcnt(0)")
        min4(sFree, NS)
        A(f"s_cmp_lt_u32 s{sS}, s{sFree}\ns_cbranch_scc0 L_full_{tag}\ns_branch L_free_{tag}")

    A("L_helper:")
    A(f"s_mov_b32 s{sItem}, 0\ns_add_u32 s{sCnt}, s{sCntA}, s{sCntB}")
    A(f"s_cmp_eq_u32 s{sCntA}, 0\ns_cselect_b32 s{sB}, s{sBB}, s{sBA}\ns_cselect_b32 s{sCntB}, 0, s{sCntB}")
    A(f"s_xor_b32 s{sA}, s{sRole}, 2")
    box_off(sBb, f"s{sA}")
    A(f"s_lshr_b32 s{sA}, s{sRole}, 1\ns_add_u32 s{sA}, s{sA}, 4")
    box_off(sC, f"s{sA}")
    A(f"v_mov_b32 v{vT2}, s{sBb}\nv_mov_b32 v{vT3}, s{sC}\nv_and_b32 v{vPoll}, 4, v{vLane}\nv_cmp_eq_u32 vcc, 0, v{vPoll}")
    A(f"v_and_b32 v{vPoll}, 3, v{vLane}\ns_nop 0\nv_cndmask_b32 v{vT2}, v{vT3}, v{vT2}, vcc\nv_lshl_add_u32 v{vT2}, v{vPoll}, 2, v{vT2}")
    A(f"s_movk_i32 s{sA}, 16896\nbuffer_load_dword v{vF0}, v{vT2}, {SWS}, s{sA} offen sc1")

    def pb_free(tag):
        A(f"s_branch L_hfree_{tag}")
        A(f"L_hfree0_{tag}:")
        budget()
        A(f"s_sleep {psleep}")
        A(f"L_hfree_{tag}:")
        A(f"ds_read_b32 v{vDn}, v{vDnA} offset:1536\ns_waitcnt lgkmcnt(0)")
        min4(sA, 0)
        A(f"s_cmp_lt_u32 s{sA}, s{sItem}\ns_cbranch_scc1 L_hfree0_{tag}")

    def pb_publish():
        A(f"s_add_u32 s{sItem}, s{sItem}, 1\nv_mov_b32 v{vPub}, s{sItem}\ns_waitcnt vmcnt(0)\nds_write_b32 v{vDoneA}, v{vPub}")

    def q_item(w):
        A(f"s_lshl_b32 s{sO1}, s{sB}, 3\ns_add_u32 s{sO1}, s{sO1}, s{sH}\ns_lshl_b32 s{sO1}, s{sO1}, 15\ns_xor_b32 s{sO0}, s{sO1}, s{sPar}")
        for r in range(32):
            A(f"s_mov_b32 m0, {PB + r * 1088 - (r & 3) * 1024}")
            if r and (r & 3) == 0:
                A(f"s_add_u32 s{sO1}, s{sO1}, 4096\ns_xor_b32 s{sO0}, s{sO1}, s{sPar}")
            elif w and r >= w:
                A(f"s_waitcnt vmcnt({w - 1})")
            else:
                A("s_nop 0")
            A(f"buffer_load_dwordx4 v{vQd}, {SQ}, s{sO0} offen offset:{(r & 3) * 1024} {qpol} lds")

    def wait_progress(tag):
        A(f"s_branch L_hp_{tag}")
        A(f"L_hp0_{tag}:")
        budget()
        A(f"s_sleep {psleep}")
        A(f"L_hp_{tag}:")
        A(f"ds_read_b32 v{vF}, v{vRdyA}\ns_waitcnt lgkmcnt(0)\nv_readfirstlane_b32 s{sF}, v{vF}\ns_nop 0")
        A(f"s_cmp_lt_u32 s{sF}, s{sNeed}\ns_cbranch_scc1 L_hp0_{tag}")

    A(f"s_lshl_b32 s{sA}, s{sGrp}, 2\nv_mov_b32 v{vDb}, s{sA}\ns_lshl_b32 s{sA}, 1, s{sRole}\nv_mov_b32 v{vPoll}, s{sA}")
    A(f"s_cmp_eq_u32 s{sCnt}, 0\ns_cbranch_scc1 L_hnoq")
    q_item(0)
    if rmode == 1:
        A("s_waitcnt vmcnt(32)\ns_branch L_hq1")
    A("L_hnoq:")
    if rmode == 1:
        A("s_waitcnt vmcnt(0)\nL_hq1:")
        A(f"s_mov_b64 exec, 1\nbuffer_atomic_or v{vPoll}, v{vDb}, {SD}, 0 offen sc1\ns_mov_b64 exec, -1")
    A(f"s_waitcnt vmcnt({1 if rmode == 1 else 0})\nds_write_b32 v{vDoneA}, v{vF0} offset:1536")
    A(f"s_add_u32 s{sItem}, s{sItem}, 1\nv_mov_b32 v{vPub}, s{sItem}\nds_write_b32 v{vDoneA}, v{vPub}")
    st(2)
    A(f"s_cmp_eq_u32 s{sCntB}, 0\ns_cbranch_scc1 L_hq2")
    A(f"s_mov_b32 s{sB}, s{sBB}")
    pb_free("q")
    q_item(hwin)
    pb_publish()
    A("L_hq2:")
    A(f"s_lshr_b32 s{sIt}, s2, 3\ns_and_b32 s{sIt}, s{sIt}, {cmask}")
    if rmode in (0, 3):
        A(f"s_add_u32 s{sNeed}, s{sIt}, {rdy0}\ns_min_u32 s{sNeed}, s{sNeed}, s{sCnt}")
        wait_progress("r")
        A(f"s_mov_b64 exec, 1\nbuffer_atomic_or v{vPoll}, v{vDb}, {SD}, 0 offen sc1\ns_mov_b64 exec, -1")
    if rmode < 2:
        A(f"s_add_u32 s{sNeed}, s{sIt}, {chk0}\ns_min_u32 s{sNeed}, s{sNeed}, s{sCnt}")
        wait_progress("c")
        A("s_branch L_hchk")
        A("L_hchk0:")
        budget()
        A(f"s_sleep {4 * psleep}")
        A("L_hchk:")
        A(f"buffer_load_dword v{vPoll2}, v{vDb}, {SD}, 0 offen sc1\ns_waitcnt vmcnt(0)")
        A(f"v_readfirstlane_b32 s{sA}, v{vPoll2}\ns_nop 0\ns_cmp_eq_u32 s{sA}, 15\ns_cbranch_scc0 L_hchk0")
    else:
        A(f"v_mov_b32 v{vPoll2}, 15")
    A(f"v_mov_b32 v{vT2}, {A_SIG}\nds_write_b32 v{vT2}, v{vPoll2}")
    A(f"s_cmp_eq_u32 s{sRole}, 1\ns_cbranch_scc0 L_hdone\ns_cmp_eq_u32 s{sCntA}, 0\ns_cbranch_scc1 L_hdone")
    A(f"s_mov_b32 s{sItem}, 2")
    pb_free("h")
    A(f"v_add_u32 v{vT3}, {PB}, v{vL16}\nv_mul_u32_u24 v{vT2}, 8704, v{vT0}\nv_lshl_add_u32 v{vT2}, v{vT1}, 4, v{vT2}")
    A(f"v_add_u32 v{vT2}, {PB + 8192}, v{vT2}")
    for r in range(32):
        A(f"ds_read_b128 {vr(HR + 4 * r, 4)}, v{vT3} offset:{(r >> 3) * 8704 + (r & 7) * 1024}")
    A(f"ds_read_b128 {vr(HR + 128, 4)}, v{vT2}")
    box_off(sE2, 4)
    A(f"v_lshrrev_b32 v{vT2}, 3, v{vT1}\nv_mul_u32_u24 v{vT2}, {BOX}, v{vT2}\nv_lshl_add_u32 v{vT2}, v{vT0}, 7, v{vT2}")
    A(f"v_and_b32 v{vT3}, 7, v{vT1}\nv_lshl_add_u32 v{vT2}, v{vT3}, 4, v{vT2}")
    A(f"v_bfe_u32 v{vT3}, v{vLane}, 2, 1\nv_mul_u32_u24 v{vT3}, {BOX}, v{vT3}\nv_and_b32 v{vPoll}, 3, v{vLane}\nv_lshl_add_u32 v{vT3}, v{vPoll}, 2, v{vT3}")
    A(f"v_mov_b32 v{vPoll}, 1")
    A(f"s_sub_u32 s{sNeed}, s{sCnt}, {lead}\ns_max_i32 s{sNeed}, s{sNeed}, 0")
    wait_progress("h")
    st(3)
    for r in range(32):
        if (r & 3) == 0:
            A(f"s_add_u32 s{sO1}, s{sE2}, {((r >> 2) & 1) * BOX + (r >> 3) * 4096}")
        A(f"buffer_store_dwordx4 {vr(HR + 4 * r, 4)}, v{vL16}, {SWS}, s{sO1} offen offset:{(r & 3) * 1024} {spol}")
    A(f"s_add_u32 s{sO0}, s{sE2}, 16384\ns_add_u32 s{sE2}, s{sE2}, 16896")
    A(f"buffer_store_dwordx4 {vr(HR + 128, 4)}, v{vT2}, {SWS}, s{sO0} offen {spol}")
    A("s_mov_b64 exec, 0xff\ns_waitcnt vmcnt(0)")
    A(f"buffer_atomic_add v{vPoll}, v{vT3}, {SWS}, s{sE2} offen {apol}")
    A("s_mov_b64 exec, -1")
    A("L_hdone:")
    if trace:
        A(f"s_cmp_eq_u32 s{sRole}, 0\ns_cbranch_scc0 L_end")
        A(f"s_mov_b32 s{sIt}, 0\nv_mov_b32 v100, 0\nv_mov_b32 v101, 0\nv_mov_b32 v102, 0\nv_mov_b32 v103, 0")
        A("L_tr:")
        A(f"s_memrealtime s[84:85]\ns_memtime s[86:87]\nds_read_b32 v{vF}, v{vRdyA}\nds_read_b32 v{vDn}, v{vDnA}\ns_waitcnt lgkmcnt(0)")
        A(f"v_readfirstlane_b32 s{sF}, v{vF}\nv_readfirstlane_b32 s{sA}, v{vDn}\ns_mov_b32 m0, s{sIt}\ns_nop 3")
        A(f"v_writelane_b32 v100, s84, m0\nv_writelane_b32 v101, s86, m0\nv_writelane_b32 v102, s{sF}, m0\nv_writelane_b32 v103, s{sA}, m0")
        A("L_tr2:")
        A(f"s_sleep 2\ns_memrealtime s[88:89]\ns_waitcnt lgkmcnt(0)\ns_sub_u32 s{sA}, s88, s84\ns_cmp_lt_u32 s{sA}, {trace}\ns_cbranch_scc1 L_tr2")
        A(f"s_add_u32 s{sIt}, s{sIt}, 1\ns_cmp_ge_u32 s{sF}, s{sCnt}\ns_cbranch_scc1 L_tr3\ns_cmp_lt_u32 s{sIt}, 64\ns_cbranch_scc1 L_tr")
        A("L_tr3:")
        A(f"s_lshl_b32 s{sA}, s2, 10\ns_add_u32 s{sA}, s{sA}, {WSB - 64 * 1024}")
        A(f"buffer_store_dwordx4 v[100:103], v{vL16}, {SWS}, s{sA} offen")
    st(4)
    dump_stamps(64)
    A("s_endpgm")

    A("L_consumer:")
    A(f"v_lshlrev_b32 v{vG4}, 2, v{vT0}")
    A(f"v_lshrrev_b32 v{vT2}, 2, v{vT1}\nv_mul_u32_u24 v{vT2}, 1088, v{vT2}\nv_and_b32 v{vT3}, 3, v{vT1}")
    A(f"v_lshl_add_u32 v{vKc}, v{vT3}, 8, v{vT2}\nv_xor_b32 v{vU}, v{vT3}, v{vT0}\nv_lshl_add_u32 v{vKc}, v{vU}, 4, v{vKc}")
    A(f"v_lshl_add_u32 v{vT2}, v{vT0}, 8, v{vT2}\nv_lshl_add_u32 v{vT2}, v{vT3}, 3, v{vT2}\nv_add_u32 v{vT2}, 8704, v{vT2}")
    A(f"v_and_b32 v{vU}, 1, v{vT0}\nv_lshl_add_u32 v{vV0c}, v{vU}, 5, v{vT2}\nv_xor_b32 v{vV1c}, 32, v{vV0c}")
    A(f"v_lshlrev_b32 v{vQo}, 8, v{vT1}\nv_lshl_add_u32 v{vQo}, v{vU}, 5, v{vQo}\nv_lshrrev_b32 v{vU}, 1, v{vT0}\nv_lshl_add_u32 v{vQo}, v{vU}, 4, v{vQo}")
    for j in range(4):
        A(f"v_mov_b32 v{ON + j}, 0x3f803f80")
    A(f"v_lshlrev_b32 v{vPL}, 3, v{vT1}\nv_mov_b32 v{vPd}, 0")
    A(f"s_mov_b32 s{sT}, 0\ns_mov_b32 s{sOffK}, 0\ns_mov_b32 s{sItem}, 0")
    A(f"s_mul_i32 s{sOffQ}, s{sW}, 8704\ns_add_u32 s{sOffQ}, s{sOffQ}, {PB}")

    def zero_acc():
        for i in range(LA, O + 64):
            A(f"v_mov_b32 v{i}, 0")

    zero_acc()
    A(f"s_cmp_eq_u32 s{sCntA}, 0\ns_cbranch_scc1 L_segB")
    A(f"s_mov_b32 s{sB}, s{sBA}\ns_mov_b32 s{sCnt}, s{sCntA}\ns_bitcmp1_b32 s{sZ}, 0\ns_branch L_seg")
    A("L_segB:")
    A(f"s_cmp_eq_u32 s{sCntB}, 0\ns_cbranch_scc1 L_empty")
    A(f"s_mov_b32 s{sB}, s{sBB}\ns_mov_b32 s{sCnt}, s{sCntB}\ns_mov_b32 s{sCntA}, 0\ns_bitcmp1_b32 s{sZ}, 1")

    def spin(tag, off=0, need=None, le=False):
        A(f"L_spin_{tag}:")
        budget()
        A(f"ds_read_b32 v{vF}, v{vRdyA} offset:{off}\ns_waitcnt lgkmcnt(0)\nv_readfirstlane_b32 s{sF}, v{vF}\ns_nop 0")
        A(f"s_cmp_{'le' if le else 'lt'}_u32 s{sF}, s{need or sNeed}\ns_cbranch_scc1 L_spin_{tag}")

    def addrs():
        return [f"v_add_u32 v{vK}, s{sOffK}, v{vKc}", f"v_add_u32 v{vV0}, s{sOffK}, v{vV0c}",
                f"v_add_u32 v{vV1}, s{sOffK}, v{vV1c}"]

    def kreads(dst=KF):
        return [f"ds_read_b128 {vr(dst + 4 * f, 4)}, v{vK} offset:{(f & 1) * 4352 + (f >> 1) * 64}" for f in range(8)]

    def vreads():
        return [f"ds_read_b64_tr_b16 {vr(VF + 4 * dt + 2 * u, 2)}, v{vV1 if dt & 1 else vV0} "
                f"offset:{u * 4352 + (dt >> 1) * 64}" for dt in range(8) for u in range(2)]

    MF = "v_mfma_f32_16x16x32_bf16"

    def qk(first):
        out = []
        for ks in range(4):
            for kh in range(2):
                for qh in range(2):
                    d = vr(S + 8 * qh + 4 * kh, 4)
                    c = d if ks else ("0" if first else vr(CM + 4 * qh, 4))
                    out.append(f"{MF} {d}, {vr(KF + 4 * (2 * ks + kh), 4)}, {vr(Q + 4 * (2 * ks + qh), 4)}, {c}")
        return out

    def pv(dt, qh):
        d = vr(O + 32 * qh + 4 * dt, 4)
        return f"{MF} {d}, {vr(VF + 4 * dt, 4)}, {vr(P + 4 * qh, 4)}, {d}"

    def rs(qh):
        return f"{MF} {vr(LA + 4 * qh, 4)}, {vr(ON, 4)}, {vr(P + 4 * qh, 4)}, {vr(LA + 4 * qh, 4)}"

    def cvt(j):
        return f"v_cvt_pk_bf16_f32 v{P + j}, v{E + 2 * j}, v{E + 2 * j + 1}"

    def maxes():
        o = []
        for a in (0, 3, 5):
            for qh, m in ((0, vMx), (1, vMx2)):
                b = S + 8 * qh + a
                o.append(f"v_max3_f32 v{m}, v{b}, v{b + 1}, v{b + 2}" if a == 0 else f"v_max3_f32 v{m}, v{m}, v{b}, v{b + 1}")
        return o

    def new_max(floor0):
        A(f"v_max_f32 v{vMx}, v{vMx}, v{S + 7}\nv_max_f32 v{vMx2}, v{vMx2}, v{S + 15}")
        for sw in ("v_permlane32_swap_b32", "v_permlane16_swap_b32"):
            A(f"v_mov_b32 v{vT0}, v{vMx}\nv_mov_b32 v{vT1}, v{vMx2}\ns_nop 0")
            A(f"{sw} v{vMx}, v{vT0}\n{sw} v{vMx2}, v{vT1}\ns_nop 0")
            A(f"v_max_f32 v{vMx}, v{vMx}, v{vT0}\nv_max_f32 v{vMx2}, v{vMx2}, v{vT1}")
        if floor0:
            A(f"v_max_f32 v{vMx}, 0, v{vMx}\nv_max_f32 v{vMx2}, 0, v{vMx2}")
        A(f"v_ceil_f32 v{vMx}, v{vMx}\nv_ceil_f32 v{vMx2}, v{vMx2}")

    def exp_shifted():
        for i in range(16):
            A(f"v_sub_f32 v{E + i}, v{S + i}, v{vMx if i < 8 else vMx2}")
        for i in range(16):
            A(f"v_exp_f32 v{E + i}, v{E + i}")

    def scale_acc(f, with_la=True):
        for qh in range(2):
            sel = "op_sel_hi:[1,0]" if qh == 0 else "op_sel:[0,1] op_sel_hi:[1,1]"
            for i in range(16):
                r = O + 32 * qh + 2 * i
                A(f"v_pk_mul_f32 {vr(r, 2)}, {vr(r, 2)}, {vr(f, 2)} {sel}")
            if with_la:
                A(f"v_mul_f32 v{LA + 4 * qh}, v{f + qh}, v{LA + 4 * qh}")

    def pack_o(i):
        for j in range(4):
            r = O + 8 * i + 2 * j
            A(f"v_cvt_pk_bf16_f32 v{KF + 4 * i + j}, v{r}, v{r + 1}")

    def park():
        A(f"v_add_u32 v{vT2}, s{sOffQ}, v{vL16}\nv_add_u32 v{vT3}, s{sOffQ}, v{vPL}")
        A(f"v_mov_b32 v{CM + 1}, v{LA}\nv_mov_b32 v{CM + 5}, v{LA + 4}")
        A(f"ds_write_b64 v{vT3}, {vr(CM, 2)} offset:8192\nds_write_b64 v{vT3}, {vr(CM + 4, 2)} offset:8320")
        for i in range(8):
            pack_o(i)
            A(f"ds_write_b128 v{vT2}, {vr(KF + 4 * i, 4)} offset:{i * 1024}")
        zero_acc()

    A("L_seg:")
    c = f2u(1.4426950408889634 / 128 ** 0.5)
    A(f"s_cselect_b32 s{sScale}, 0, {hex(c)}")
    A(f"s_add_u32 s{sEnd}, s{sT}, s{sCnt}\ns_add_u32 s{sNeed}, s{sT}, 1")
    A(f"v_add_u32 v{vK}, s{sOffQ}, v{vKc}\nv_mov_b32 v{vF2}, s{sScale}")
    spin("q", off=256, need=sItem, le=True)
    AL(kreads(Q))
    A(f"s_cmp_eq_u32 s{sT}, 0\ns_cbranch_scc1 L_nohold")
    park()
    A("L_nohold:")
    A(f"v_add_u32 v{vPd}, 1, v{vPd}\ns_add_u32 s{sItem}, s{sItem}, 1\nds_write_b32 v{vDoneA}, v{vPd} offset:1536")
    A(f"v_add_u32 v{vK}, s{sOffK}, v{vKc}\nv_mov_b32 v{vDone}, s{sNeed}")
    AL(adv(sOffK))
    for t in range(8):
        A(f"s_waitcnt lgkmcnt({8 - t})")
        for j in range(4):
            r = Q + 4 * t + j
            A(f"v_lshlrev_b32 v{vU + 2 * j}, 16, v{r}\nv_and_b32 v{vU + 2 * j + 1}, 0xffff0000, v{r}")
        for j in range(4):
            A(f"v_pk_mul_f32 {vr(vU + 2 * j, 2)}, {vr(vU + 2 * j, 2)}, {vr(vF2, 2)} op_sel_hi:[1,0]")
        for j in range(4):
            A(f"v_cvt_pk_bf16_f32 v{Q + 4 * t + j}, v{vU + 2 * j}, v{vU + 2 * j + 1}")
    st(2)
    spin("p0")
    st(3)
    AL(kreads())
    A(f"ds_write_b32 v{vDoneA}, v{vDone}")
    A(f"s_add_u32 s{sNeed}, s{sT}, 2\ns_min_u32 s{sNeed}, s{sNeed}, s{sEnd}")
    A(f"v_sub_u32 v{vT2}, s{sNv}, v{vG4}")
    A(f"v_mov_b32 v{vT3}, 0xff800000")
    for i, x in enumerate(qk(True)):
        if i % 2 == 0:
            A(f"s_waitcnt lgkmcnt({8 - i // 2})")
        A(x)
    AL(addrs())
    AL(adv(sOffK))
    spin("p1")
    AL(kreads())
    A(f"s_cmp_eq_u32 s{sNv}, 32\ns_cbranch_scc1 L_nomask")
    for kh in range(2):
        for r in range(4):
            a = S + 4 * kh + r
            A(f"v_cmp_lt_i32 vcc, {16 * kh + r}, v{vT2}\ns_nop 1\nv_cndmask_b32 v{a}, v{vT3}, v{a}, vcc\n"
              f"v_cndmask_b32 v{a + 8}, v{vT3}, v{a + 8}, vcc")
    A("L_nomask:")
    AL(maxes())
    new_max(False)
    for i in range(8):
        A(f"v_sub_f32 v{CM + i}, 0, v{vMx if i < 4 else vMx2}")
    exp_shifted()
    A(f"s_sub_u32 s{sIt}, s{sCnt}, 1\ns_cmp_eq_u32 s{sIt}, 0\ns_cbranch_scc1 L_final")

    A(".p2align 3")
    A("L_loop:")
    loop_start = len(L)
    vrd = vreads()
    A("s_waitcnt lgkmcnt(0)")
    fa = []
    for i in range(8):
        fa += [vrd[2 * i], vrd[2 * i + 1], cvt(i)]
    fa[-2:-2] = [f"v_add_u32 v{vDone}, 1, v{vDone}"]
    fa += [f"ds_write_b32 v{vDoneA}, v{vDone}", f"ds_read_b32 v{vF}, v{vRdyA}"] + addrs()
    fa += [f"s_add_u32 s{sNeed}, s{sNeed}, 1", f"s_min_u32 s{sNeed}, s{sNeed}, s{sEnd}"]
    for i, x in enumerate(qk(False)):
        A(x)
        AL(fa[2 * i:2 * i + 2])
    assert len(fa) <= 32
    AL(adv(sOffK))
    A("s_waitcnt lgkmcnt(0)")
    mf = []
    for dt in range(8):
        mf += [pv(dt, 0), pv(dt, 1)]
        if dt == 3:
            mf += [rs(0), rs(1)]
    A(mf[0])
    A(f"v_readfirstlane_b32 s{sF}, v{vF}\ns_sub_u32 s{sIt}, s{sIt}, 1\ns_cmp_lt_u32 s{sF}, s{sNeed}\ns_cbranch_scc1 L_slow")
    A("L_back:")
    krd = kreads()
    order = [0, 1, 2, 3, 8, 9, 10, 11, 4, 5, 6, 7, 12, 13, 14, 15]
    ex_ = [f"v_exp_f32 v{E + i}, v{S + i}" for i in order]
    oth = krd + maxes() + [f"v_max3_f32 v{vT0}, v{vMx}, v{vMx2}, v{S + 7}", f"v_max_f32 v{vT0}, v{vT0}, v{S + 15}",
                           f"v_cmp_lt_f32 vcc, {hex(f2u(T))}, v{vT0}"]
    for i in range(1, 18):
        A(mf[i])
        if i <= 16:
            A(ex_[i - 1])
        A(oth[i - 1])
    if nocomp:
        keep = []
        for x in L[loop_start:]:
            y = x.strip()
            if nocomp & 1 and y.startswith("v_mfma"):
                continue
            if nocomp & 2 and y.startswith(("v_exp", "v_max", "v_cvt")):
                continue
            if nocomp & 4 and y.startswith(("ds_read_b128", "ds_read_b64_tr")):
                continue
            keep.append(x)
        L[loop_start:] = keep
        A("s_mov_b64 vcc, 0")
    A("s_cbranch_vccnz L_rare")
    A("L_rare_back:")
    A(f"s_cmp_lg_u32 s{sIt}, 0\ns_cbranch_scc1 L_loop")

    A("L_final:")
    A(f"s_add_u32 s{sNeed}, s{sEnd}, 1\ns_mov_b32 s{sT}, s{sEnd}")
    for j in range(8):
        A(cvt(j))
    A(f"s_cmp_eq_u32 s{sOffK}, 0\ns_cselect_b32 s{sOffK}, {RING}, s{sOffK}\ns_sub_u32 s{sOffK}, s{sOffK}, {SLOT}")
    A(rs(0))
    A(rs(1))
    spin("f")
    AL(vrd)
    for dt in range(8):
        A(f"s_waitcnt lgkmcnt({14 - 2 * dt})")
        A(pv(dt, 1))
        A(pv(dt, 0))
    st(4)
    A(f"s_cmp_eq_u32 s{sRole}, 1\ns_cselect_b32 s{sA}, s{sCntA}, 0\ns_cmp_lg_u32 s{sA}, 0\ns_cbranch_scc1 L_segB")

    A("L_epi:")
    HB = Q
    box_off(sE2, f"s{sRole}")
    A(f"s_lshl_b32 s{sC}, s{sW}, 12\ns_add_u32 s{sA}, s{sE2}, s{sC}")
    A(f"s_lshl_b32 s{sD}, s{sW}, 7\ns_add_u32 s{sD}, s{sD}, 16384\ns_add_u32 s{sBb}, s{sE2}, s{sD}")
    A(f"v_mov_b32 v{vT0}, {A_SIG}\ns_lshl_b32 s{sF}, s{sW}, 2\nv_add_u32 v{vT1}, s{sF}, v{vT0}")
    A(f"ds_read2_b32 {vr(vF2, 2)}, v{vT1} offset0:64 offset1:68")
    A(f"v_mov_b32 v{CM + 5}, v{LA + 4}")
    for i in range(4, 8):
        pack_o(i)
        A(f"buffer_store_dwordx4 {vr(KF + 4 * i, 4)}, v{vL16}, {SWS}, s{sA} offen offset:{(i & 3) * 1024} {spol}")
    A(f"buffer_store_dwordx2 {vr(CM + 4, 2)}, v{vPL}, {SWS}, s{sBb} offen {spol}")
    st(5)
    A(f"s_add_u32 s{sF}, s{sF}, 16896\ns_add_u32 s{sE2}, s{sE2}, s{sF}\nv_mov_b32 v{vT2}, s{sE2}\nv_mov_b32 v{vT3}, 1")
    A(f"s_xor_b32 s{sA}, s{sRole}, 2")
    box_off(sK, f"s{sA}")
    A(f"s_lshr_b32 s{sA}, s{sRole}, 1\ns_add_u32 s{sA}, s{sA}, 4")
    box_off(sItem, f"s{sA}")
    A(f"s_cmp_eq_u32 s{sExp}, 0\ns_cselect_b32 s{sItem}, s{sK}, s{sItem}\ns_cselect_b32 s{sA}, 0, 1")
    A(f"v_and_b32 v{vU}, s{sA}, v{vLane}\nv_cmp_eq_u32 vcc, 0, v{vU}\nv_mov_b32 v{vU}, s{sK}\nv_mov_b32 v{vU + 1}, s{sItem}")
    A(f"s_waitcnt lgkmcnt(0)\nv_cndmask_b32 v{vU}, v{vU + 1}, v{vU}, vcc\nv_cndmask_b32 v{vU + 1}, v{vF2 + 1}, v{vF2}, vcc")
    A(f"v_mov_b32 v{vU + 2}, v{vU + 1}")
    if not nopart:
        A(f"buffer_load_dword v{vU + 2}, v{vU}, {SWS}, s{sF} offen {fpol}")
        A("L_peers:")
        budget()
        A(f"ds_read_b32 v{vF}, v{vT0}\ns_waitcnt lgkmcnt(0)\nv_readfirstlane_b32 s{sA}, v{vF}\ns_nop 0")
        A(f"s_cmp_eq_u32 s{sA}, 0\ns_cbranch_scc1 L_peers")
        A(f"s_mov_b64 exec, 1\ns_waitcnt vmcnt(0)\nbuffer_atomic_add v{vT3}, v{vT2}, {SWS}, 0 offen {apol}\ns_mov_b64 exec, -1")
        A("s_branch L_poll1")
        A("L_poll0:")
        budget()
        A(f"buffer_load_dword v{vU + 2}, v{vU}, {SWS}, s{sF} offen {fpol}")
        if csleep:
            A(f"s_sleep {csleep}")
        A(f"s_waitcnt vmcnt({npoll})")
        A("L_poll1:")
        A(f"v_cmp_eq_u32 vcc, v{vU + 2}, v{vU + 1}\ns_cbranch_vccnz L_poll0")
    st(6)
    A(f"s_add_u32 s{sA}, s{sK}, s{sD}\ns_add_u32 s{sK}, s{sK}, s{sC}\ns_add_u32 s{sBb}, s{sItem}, s{sD}\ns_add_u32 s{sItem}, s{sItem}, s{sC}")
    A(f"s_cmp_eq_u32 s{sExp}, 0\ns_cselect_b32 s{sBb}, {hex(OOB)}, s{sBb}")
    if nopart:
        A(f"s_mov_b32 s{sA}, {hex(OOB)}\ns_mov_b32 s{sK}, {hex(OOB)}\ns_mov_b32 s{sBb}, {hex(OOB)}\ns_mov_b32 s{sItem}, {hex(OOB)}")
    A(f"buffer_load_dwordx2 {vr(vU + 4, 2)}, v{vPL}, {SWS}, s{sA} offen {lpol}")
    A(f"buffer_load_dwordx2 {vr(vU + 6, 2)}, v{vPL}, {SWS}, s{sBb} offen {lpol}")
    for i in range(4):
        A(f"buffer_load_dwordx4 {vr(HB + 16 + 4 * i, 4)}, v{vL16}, {SWS}, s{sK} offen offset:{i * 1024} {lpol}")
    A(f"s_lshl_b32 s{sQoff}, s{sB}, 3\ns_add_u32 s{sQoff}, s{sQoff}, s{sH}\ns_lshl_b32 s{sQoff}, s{sQoff}, 2\n"
      f"s_add_u32 s{sQoff}, s{sQoff}, s{sW}\ns_lshl_b32 s{sQoff}, s{sQoff}, 13\ns_add_u32 s{sQoff}, s{sQoff}, s{sPar}")

    def unpack_fma(src, i, f, sel):
        for j in range(4):
            A(f"v_lshlrev_b32 v{E + 2 * j}, 16, v{src + j}\nv_and_b32 v{E + 2 * j + 1}, 0xffff0000, v{src + j}")
        for j in range(4):
            o = O + 8 * i + 2 * j
            A(f"v_pk_fma_f32 {vr(o, 2)}, {vr(E + 2 * j, 2)}, {vr(f, 2)}, {vr(o, 2)} {sel}")

    def finish(held):
        n = 8 if held else 4
        if held:
            for i in range(4):
                A(f"buffer_load_dwordx4 {vr(HB + 4 * i, 4)}, v{vL16}, {SWS}, s{sItem} offen offset:{i * 1024} {lpol}")
        A(f"s_waitcnt vmcnt({n})")
        if held:
            A(f"v_min3_f32 v{vT0}, v{CM}, v{vU + 4}, v{vU + 6}")
        else:
            A(f"v_min_f32 v{vT0}, v{CM}, v{vU + 4}")
        A(f"v_sub_f32 v{vT2}, v{vT0}, v{CM}\nv_sub_f32 v{vMx}, v{vT0}, v{vU + 4}")
        if held:
            A(f"v_sub_f32 v{vMx2}, v{vT0}, v{vU + 6}")
        A(f"v_exp_f32 v{vT2}, v{vT2}\nv_exp_f32 v{vMx}, v{vMx}")
        A(f"v_exp_f32 v{vMx2}, v{vMx2}" if held else "s_nop 0")
        A(f"v_mul_f32 v{vT1}, v{vT2}, v{LA}\nv_fmac_f32 v{vT1}, v{vMx}, v{vU + 5}")
        if held:
            A(f"v_fmac_f32 v{vT1}, v{vMx2}, v{vU + 7}")
        A(f"v_rcp_f32 v{vT1}, v{vT1}\ns_nop 0\nv_mul_f32 v{vT2}, v{vT2}, v{vT1}\nv_mul_f32 v{vMx}, v{vMx}, v{vT1}")
        if held:
            A(f"v_mul_f32 v{vMx2}, v{vMx2}, v{vT1}")
        for i in range(16):
            A(f"v_pk_mul_f32 {vr(O + 2 * i, 2)}, {vr(O + 2 * i, 2)}, {vr(vT2, 2)} op_sel_hi:[1,0]")
        if held:
            for i in range(4):
                A(f"s_waitcnt vmcnt({7 - i})")
                unpack_fma(HB + 16 + 4 * i, i, vMx, "op_sel_hi:[1,0,1]")
        for i in range(4):
            if i < 2:
                A(f"s_waitcnt vmcnt({0 if i else 3})")
            if held:
                unpack_fma(HB + 4 * i, i, vMx, "op_sel:[0,1,0] op_sel_hi:[1,1,1]")
            else:
                unpack_fma(HB + 16 + 4 * i, i, vMx, "op_sel_hi:[1,0,1]")
            if i:
                out_store(i - 1)
            pack_o(i)
        A("s_nop 1")
        out_store(3)
        if stamp:
            A("s_waitcnt vmcnt(0)")
            st(7)
            A(f"s_cmp_eq_u32 s{sW}, 0\ns_cbranch_scc0 L_end")
        dump_stamps(32)
        A("s_endpgm")

    def out_store(i):
        d = KF + 4 * i
        A(f"v_permlane16_swap_b32 v{d}, v{d + 2}\nv_permlane16_swap_b32 v{d + 1}, v{d + 3}")
        A(f"buffer_store_dwordx4 {vr(d, 4)}, v{vQo}, {SO}, s{sQoff} offen offset:{i * 64} {opol}")

    A(f"s_cmp_lg_u32 s{sExp}, 0\ns_cbranch_scc1 L_fin_held")
    finish(False)
    A("L_fin_held:")
    finish(True)
    A("L_end:\ns_endpgm")

    A("L_empty:")
    A(f"s_bitcmp1_b32 s{sRole}, 0\ns_cselect_b32 s{sB}, s{sBB}, s{sBA}")
    A(f"s_cmp_eq_u32 s{sT}, 0\ns_cbranch_scc1 L_empty1\ns_nop 3")
    park()
    A(f"v_add_u32 v{vPd}, 1, v{vPd}\nds_write_b32 v{vDoneA}, v{vPd} offset:1536")
    A("L_empty1:")
    A(f"v_mov_b32 v{CM}, {hex(BIG)}\nv_mov_b32 v{CM + 4}, {hex(BIG)}\ns_mov_b32 s{sItem}, 0")
    spin("e", off=256, need=sItem, le=True)
    A("s_branch L_epi")
    A("L_slow:")
    spin("s")
    A("s_branch L_back")
    A("L_rare:")
    new_max(True)
    A(f"v_exp_f32 v{vT2}, -v{vMx}\nv_exp_f32 v{vT3}, -v{vMx2}")
    for i in range(8):
        A(f"v_sub_f32 v{CM + i}, v{CM + i}, v{vMx if i < 4 else vMx2}")
    exp_shifted()
    scale_acc(vT2)
    A("s_branch L_rare_back")

    A(f""".section .rodata,"a"
.p2align 6
.amdhsa_kernel {NAME}
  .amdhsa_next_free_vgpr 256
  .amdhsa_next_free_sgpr 102
  .amdhsa_accum_offset 256
  .amdhsa_group_segment_fixed_size 0
  .amdhsa_kernarg_size 64
  .amdhsa_user_sgpr_count 2
  .amdhsa_user_sgpr_kernarg_segment_ptr 1
  .amdhsa_system_sgpr_workgroup_id_x 1
.end_amdhsa_kernel""")
    if nostore:
        L[:] = [x for x in L if not (x.strip().startswith("buffer_store") and "v[16:19]" not in x and "v[20:23]" not in x
                                     and "v[100:103], v239, s[20:23], s73 offen" != x.strip()[21:]
                                     and ((SWS in x and nostore & 1) or (SO in x and nostore & 2)))]
    return "\n".join(L) + "\n"


def parse(spec):
    kw = {}
    for kv in spec.split(","):
        if not kv or kv == "default":
            continue
        k, v = kv.split("=")
        try:
            kw[k] = int(v)
        except ValueError:
            try:
                kw[k] = float(v)
            except ValueError:
                kw[k] = v.replace("+", " ").replace("none", "")
    return kw


if __name__ == "__main__":
    from build import build
    import hz
    files = []
    for spec in sys.argv[1:]:
        txt = gen(**parse(spec))
        pr = hz.check(txt)
        for p in pr:
            print("HAZARD", p, file=sys.stderr)
        fn = "k_" + spec.replace("=", "").replace(",", "_").replace("+", "") + ".s"
        open(fn, "w").write(txt)
        build(fn)
        files.append(fn)
    print(" ".join(files))
```

```python
import sys
from gen import gen, parse, NAME, WSB
from build import build
def amp(spec, fa, opa, fb, opb, lo, hi, K, pre=0):
    txt = gen(**parse(spec + ",stamp=1"))
    lines = txt.split("\n")
    i = [n for n, l in enumerate(lines) if l.startswith("; @launch")][0]
    l0 = lines[i].replace("; @launch ", f"; @launch kernel={NAME} ")
    lines[i] = l0 + "\n; @launch kernel=amp_kernel grid=(1,1,1) block=(64,1,1) lds=0"
    if pre:
        lines[i] = f"; @launch kernel=pre_kernel grid=({pre},1,1) block=(64,1,1) lds=0\n" + lines[i]
    txt = "\n".join(lines)
    L = []; A = L.append
    if pre:
        A(".p2align 8\n.globl pre_kernel\n.type pre_kernel,@function\npre_kernel:")
        A("s_cmp_ge_u32 s2, 1\ns_cbranch_scc1 LP_end")
        A("s_memrealtime s[16:17]\ns_load_dwordx2 s[4:5], s[0:1], 56\ns_waitcnt lgkmcnt(0)")
        A(f"s_add_u32 s4, s4, {WSB - 256 * 96 - 256}\ns_addc_u32 s5, s5, 0")
        A("v_mov_b32 v1, 0\nv_mov_b32 v2, s16\nglobal_store_dword v1, v2, s[4:5]")
        A("LP_end:\ns_endpgm")
    A(".p2align 8\n.globl amp_kernel\n.type amp_kernel,@function\namp_kernel:")
    A("s_cmp_ge_u32 s2, 1\ns_cbranch_scc1 LA_end")
    A("s_memrealtime s[16:17]\ns_load_dwordx2 s[4:5], s[0:1], 56\ns_waitcnt lgkmcnt(0)")
    now = fb < 0
    if now: fb = 0
    A(f"s_add_u32 s4, s4, {WSB - 256 * 96}\ns_addc_u32 s5, s5, 0")
    A("s_load_dword s6, s[4:5], 0\ns_load_dword s18, s[4:5], -256")
    frompre = fa < 0
    if frompre: fa = 0
    n = (hi - lo) // 64
    A(f"v_add_u32 v1, {lo}, v0\nv_mul_u32_u24 v1, 96, v1")
    for j in range(n):
        A(f"global_load_dword v{10 + j}, v1, s[4:5] offset:{fa * 4}\nglobal_load_dword v{20 + j}, v1, s[4:5] offset:{fb * 4}")
        A(f"v_add_u32 v1, {64 * 96}, v1")
    A("s_waitcnt vmcnt(0) lgkmcnt(0)")
    vop = {"min": "v_min_i32", "max": "v_max_i32", "avg": "v_add_u32"}
    sop = {"min": "s_min_i32", "max": "s_max_i32", "avg": "s_add_u32"}
    for base, op, dst in ((10, opa, 8), (20, opb, 9)):
        for j in range(n):
            A(f"v_subrev_u32 v{base + j}, s6, v{base + j}")
        for j in range(1, n):
            A(f"{vop[op]} v{base}, v{base}, v{base + j}")
        A(f"s_nop 1\nv_readlane_b32 s{dst}, v{base}, 0")
        for l in range(1, 64):
            A(f"v_readlane_b32 s10, v{base}, {l}\ns_nop 0\n{sop[op]} s{dst}, s{dst}, s10")
        if op == "avg":
            A(f"s_ashr_i32 s{dst}, s{dst}, {(hi - lo).bit_length() - 1}")
    if now: A("s_sub_u32 s9, s16, s6")
    if frompre: A("s_sub_u32 s8, s18, s6")
    A(f"s_sub_u32 s8, s9, s8\ns_max_i32 s8, s8, 0\ns_min_i32 s8, s8, 20000\ns_mul_i32 s8, s8, {K}")
    A("s_memrealtime s[12:13]\ns_waitcnt lgkmcnt(0)")
    A("LA_spin:\ns_memrealtime s[14:15]\ns_waitcnt lgkmcnt(0)\ns_sub_u32 s10, s14, s12\ns_cmp_lt_u32 s10, s8\ns_cbranch_scc1 LA_spin")
    A("LA_end:\ns_endpgm")
    code = "\n".join(L) + "\n"
    j = txt.index('.section .rodata')
    kd = """.p2align 6
.amdhsa_kernel amp_kernel
  .amdhsa_next_free_vgpr 32
  .amdhsa_next_free_sgpr 32
  .amdhsa_accum_offset 32
  .amdhsa_group_segment_fixed_size 0
  .amdhsa_kernarg_size 64
  .amdhsa_user_sgpr_count 2
  .amdhsa_user_sgpr_kernarg_segment_ptr 1
  .amdhsa_system_sgpr_workgroup_id_x 1
.end_amdhsa_kernel
"""
    if pre:
        kd += kd.replace("amp_kernel", "pre_kernel")
    return txt[:j] + code + txt[j:] + kd
if __name__ == "__main__":
    spec = sys.argv[1]
    for a in sys.argv[2:]:
        fa, opa, fb, opb, lo, hi, K, pre = (a.split(":") + ["0"])[:8]
        fn = f"amp_{spec.replace('=', '').replace(',', '_').replace('+', '')}_{a.replace(':', '_')}.s"
        open(fn, "w").write(amp(spec, int(fa), opa, int(fb), opb, int(lo), int(hi), int(K), int(pre)))
        build(fn); print(fn)
```

```python
import sys
import struct

NAME = "standalone__paged_block_table_kv_pagedattention__sampling_kernel"
WSB = 537395200
KVB = 4100 * 32768
QB = 16 * 32 * 32 * 128 * 2

HDR = """; Paged GQA attention, B=16 Hq=32 Hkv=8 Sq=32 D=128 block=16, bf16.
; Kernarg (ptrs only): 0 q, 8 k_cache, 16 v_cache, 24 block_table, 32 context_lens, 40 out, 48 debug, 56 ws
"""

PAIRS = [(4, 13), (9, 8), (14, 3), (0, 12), (5, 7), (10, 2), (15, 11), (1, 6)]


def f2u(x):
    return struct.unpack('<I', struct.pack('<f', x))[0]


def gen(NS=7, win=22, win2=26, ntail=0, gran=2, win0=16, n0=9, lag=1, dec0=10, decs=8,
        delta=0, ex=0, theta=2, lead=0, npoll=2, hwin=8, psleep=4, csleep=1, lprio=3, rdy0=2, chk0=20, rmode=1, cmask=15, base=48, kb=6, firstb=-1, th2=4, b1=4, pre=0, prepol='', k0=4, nosort=0, bsh=5, touch=0, ra=2, rx=1, apol='sc1', fpol='sc1', alias=1, fullrow=0, st2=0, hpol='sc1', hlpol='sc1',
        pol="nt", qpol="nt", opol="sc1", spol="sc1", lpol="sc1", T=8.0,
        stamp=0, trace=0, nocomp=0, noload=0, nopart=0, nostore=0):
    if firstb < 0:
        nt = [-(-(4096 - ((i + 1) * 2654435761) % 2048) // 32) for i in range(16)]
        firstb = sum(1 << i for i, (a, b) in enumerate(PAIRS) if nt[a] - nt[b] <= max(th2, 2 * theta))
    SLOT = 17408
    RING = NS * SLOT
    PB = RING
    A_DONE = PB + 2 * SLOT
    A_READY = A_DONE + 1024
    A_PDONE = A_DONE + 1536
    A_SIG = A_PDONE + 1024
    A_TAB = A_SIG + 512
    A_LIST = A_TAB + 2048
    A_HIST = A_LIST + 512
    LDS = A_HIST + 1024
    wmax = max(win, win2, win0)
    assert LDS <= 163840
    assert NS >= wmax // 16 + lag + 3 and wmax <= 52
    BOX = 17408
    BIG = f2u(1e30)
    OOB = 0x40000000
    L = []

    def A(s):
        for x in s.split('\n'):
            L.append(x if x.endswith(':') or x.startswith(('.', ';')) else '    ' + x)

    vLane, vT0, vT1, vT2, vT3 = 1, 2, 3, 4, 5
    vKc, vV0c, vV1c, vK, vV0, vV1 = 6, 7, 8, 9, 10, 11
    vQo, vRdyA, vDoneA, vF = 12, 13, 14, 15
    S, E, CM, LA, O, Q, KF, VF, P, ON = 16, 32, 48, 56, 64, 128, 160, 192, 224, 232
    vMx, vMx2, vDone, vL16, vG4, vPd, vPA, vPL = 236, 237, 238, 239, 240, 241, 242, 243
    vF2, vU = 244, 248
    TA, TBb, vRow = 64, 68, 72
    vKo, vVo = 76, 80
    vPoll, vPub, vDn, vDnA, vF0, vDb, vPoll2, vFa = 84, 85, 86, 87, 89, 90, 91, 92
    vQd = 242
    HR = 100

    sW, sH, sRole = 3, 32, 33
    sBA, sBB, sCntA, sCntB, sTopA, sTopB, sNv, sExp, sZ = 35, 36, 37, 38, 39, 40, 41, 42, 43
    sGrp, sSwap, sBud, sPar = 44, 45, 46, 47
    sB, sCnt, sT, sEnd, sOffK, sRet, sNeed, sF, sScale = 64, 65, 66, 67, 68, 69, 70, 71, 72
    sA, sBb, sC, sD, sE2, sF2 = 73, 74, 75, 76, 77, 78
    sQoff, sIt, sOffQ, sItem, sK = 79, 80, 81, 82, 83
    sS, sOff, sPub, sFree, sTile, sO0, sO1, sN0, sN1, sLag, sDec = 66, 67, 68, 69, 70, 71, 72, 79, 80, 81, 82
    sP0, sP1, sSw = 34, 64, 42
    sSt = 84
    SQ, SK, SV, SWS, SO, SD = "s[8:11]", "s[12:15]", "s[16:19]", "s[20:23]", "s[24:27]", "s[28:31]"

    def vr(a, n):
        return f"v[{a}:{a + n - 1}]" if n > 1 else f"v{a}"

    def adv(s):
        return [f"s_add_u32 s{s}, s{s}, {SLOT}", f"s_cmp_ge_u32 s{s}, {RING}", f"s_cselect_b32 s{s}, 0, s{s}"]

    def AL(lst):
        for x in lst:
            A(x)

    def budget():
        A(f"s_sub_u32 s{sBud}, s{sBud}, 1\ns_cbranch_scc1 L_end")

    def st(i):
        if stamp:
            A(f"{'s_memrealtime' if stamp == 1 else 's_memtime'} s[{sSt + 2 * i}:{sSt + 2 * i + 1}]")

    def dump_stamps(base):
        if not stamp:
            return
        A("s_waitcnt lgkmcnt(0)")
        for i in range(8):
            A(f"v_mov_b32 v{16 + i}, s{sSt + 2 * i}")
        A(f"s_mul_i32 s{sA}, s2, 96\ns_add_u32 s{sA}, s{sA}, {WSB - 256 * 96 + base}")
        A(f"v_mov_b32 v{vT0}, 0\ns_mov_b64 exec, 1")
        A(f"buffer_store_dwordx4 v[16:19], v{vT0}, {SWS}, s{sA} offen")
        A(f"buffer_store_dwordx4 v[20:23], v{vT0}, {SWS}, s{sA} offen offset:16")
        A("s_mov_b64 exec, -1")

    def box_off(dst, k):
        A(f"s_mul_i32 s{dst}, s{sGrp}, 6\ns_add_u32 s{dst}, s{dst}, {k}\ns_mul_i32 s{dst}, s{dst}, {BOX}")

    tabA = sum(p[0] << (4 * i) for i, p in enumerate(PAIRS))
    tabB = sum(p[1] << (4 * i) for i, p in enumerate(PAIRS))

    A(HDR.rstrip())
    A(f"; @launch grid=(256,1,1) block=(384,1,1) lds={LDS}")
    A('.amdgcn_target "amdgcn-amd-amdhsa--gfx950"\n.text')
    A(f".globl {NAME}\n.p2align 8\n.type {NAME},@function\n{NAME}:")
    A("s_cmp_ge_u32 s2, 256\ns_cbranch_scc1 L_end")
    A("s_load_dwordx16 s[48:63], s[0:1], 0")
    if stamp:
        for i in range(8):
            A(f"s_mov_b64 s[{sSt + 2 * i}:{sSt + 2 * i + 1}], 0")
    st(0)
    A(f"v_lshrrev_b32 v{vT0}, 6, v0\nv_and_b32 v{vLane}, 63, v0")
    A(f"v_readfirstlane_b32 s{sW}, v{vT0}")
    A(f"v_lshlrev_b32 v{vL16}, 4, v{vLane}")
    A(f"s_and_b32 s{sH}, s2, 7\ns_lshr_b32 s{sRole}, s2, 6\ns_lshr_b32 s{sA}, s2, 1\ns_and_b32 s{sA}, s{sA}, 28")
    A(f"s_lshr_b32 s{sBA}, {hex(tabA)}, s{sA}\ns_lshr_b32 s{sBB}, {hex(tabB)}, s{sA}")
    A(f"s_and_b32 s{sBA}, s{sBA}, 15\ns_and_b32 s{sBB}, s{sBB}, 15")
    A(f"s_lshl_b32 s{sA}, s{sBA}, 2\ns_lshl_b32 s{sBb}, s{sBB}, 2")
    A(f"s_lshl_b32 s{sC}, s{sBA}, 10\ns_lshl_b32 s{sD}, s{sBB}, 10")
    A(f"v_add_u32 v{vT2}, s{sC}, v{vL16}\nv_add_u32 v{vT3}, s{sD}, v{vL16}")
    A(f"s_mov_b32 s{sBud}, 0x400000\ns_and_b32 s{sGrp}, s2, 63")
    A(f"s_cmp_lt_u32 s{sRole}, 2\ns_cselect_b32 s{sPar}, 4096, 0")
    A(f"v_lshlrev_b32 v{vDoneA}, 2, v0\nv_add_u32 v{vDoneA}, {A_DONE}, v{vDoneA}")
    A(f"v_mov_b32 v{vDone}, 0")
    A(f"ds_write_b32 v{vDoneA}, v{vDone}\nds_write_b32 v{vDoneA}, v{vDone} offset:1536")
    A(f"v_mov_b32 v{vRdyA}, {A_READY}")
    A(f"v_lshrrev_b32 v{vT0}, 4, v{vLane}\nv_and_b32 v{vT1}, 15, v{vLane}")
    A(f"v_xor_b32 v{vU}, v{vT1}, v{vT0}\nv_lshlrev_b32 v{vU}, 4, v{vU}\nv_lshl_add_u32 v{vQd}, v{vT0}, 8, v{vU}")
    A(f"s_lshr_b32 s{sE2}, s2, 3\ns_bitcmp1_b32 {hex(0xff000000 | firstb << 8)}, s{sE2}\ns_cselect_b32 s{sB}, s{sBB}, s{sBA}")
    A(f"s_mul_i32 s{sOffQ}, s{sW}, 8704\ns_add_u32 s{sOffQ}, s{sOffQ}, {PB}")
    A(f"s_mov_b32 s10, {QB}\ns_mov_b32 s11, 0x20000")

    def q_own():
        A(f"s_lshl_b32 s{sE2}, s{sB}, 3\ns_add_u32 s{sE2}, s{sE2}, s{sH}\ns_lshl_b32 s{sE2}, s{sE2}, 2\ns_add_u32 s{sE2}, s{sE2}, s{sW}")
        A(f"s_lshl_b32 s{sE2}, s{sE2}, 13\ns_add_u32 s{sE2}, s{sE2}, s{sPar}\ns_xor_b32 s{sF2}, s{sE2}, 4096")

    def q_own_loads():
        for r in range(8):
            A(f"s_add_u32 m0, s{sOffQ}, {r * 1088 - (r & 3) * 1024}\ns_nop 0")
            A(f"buffer_load_dwordx4 v{vQd}, {SQ}, s{sE2 if r < 4 else sF2} offen offset:{(r & 3) * 1024} {qpol} lds")

    q_own()
    A(f"s_mov_b32 m0, {A_TAB}\ns_cmp_ge_u32 s{sW}, 4")
    A("s_waitcnt lgkmcnt(0)")
    A("s_cbranch_scc0 L_notab")
    A(f"global_load_lds_dwordx4 v{vT2}, s[54:55]\ns_mov_b32 m0, {A_TAB + 1024}\ns_setprio {lprio}\nglobal_load_lds_dwordx4 v{vT3}, s[54:55]")
    A("L_notab:")
    A(f"s_load_dword s{sCntA}, s[56:57], s{sA}\ns_load_dword s{sCntB}, s[56:57], s{sBb}")
    A(f"s_mov_b32 s8, s48\ns_mov_b32 s9, s49\ns_cmp_lt_u32 s{sW}, 4")
    A("s_barrier")
    A("s_cbranch_scc0 L_noq")
    q_own_loads()
    A("L_noq:")
    for srd, p, n in ((12, 50, KVB), (16, 52, KVB), (20, 62, WSB), (24, 58, QB), (28, 60, 256)):
        A(f"s_mov_b32 s{srd}, s{p}\ns_mov_b32 s{srd + 1}, s{p + 1}\ns_mov_b32 s{srd + 2}, {n}\n"
          f"s_mov_b32 s{srd + 3}, 0x20000")
    if pre:
        A(f"s_cmp_lt_u32 s{sW}, 4\ns_cbranch_scc0 L_nopre")
        A(f"s_bitcmp1_b32 s{sRole}, 0\ns_cselect_b32 s{sE2}, s{sBB}, s{sBA}")
        A(f"s_lshl_b32 s{sE2}, s{sE2}, 3\ns_add_u32 s{sE2}, s{sE2}, s{sH}\ns_lshl_b32 s{sE2}, s{sE2}, 2\ns_add_u32 s{sE2}, s{sE2}, s{sW}")
        A(f"s_lshl_b32 s{sE2}, s{sE2}, 13\ns_add_u32 s{sE2}, s{sE2}, s{sPar}")
        if pre == 1:
            A(f"v_lshlrev_b32 v{vT2}, 6, v{vLane}\nbuffer_load_dword v{VF}, v{vT2}, {SO}, s{sE2} offen {prepol}")
        else:
            for j in range(4):
                A(f"v_mov_b32 v{VF + j}, -1")
            for i in range(4):
                A(f"buffer_store_dwordx4 {vr(VF, 4)}, v{vL16}, {SO}, s{sE2} offen offset:{i * 1024} {prepol}")
        A("L_nopre:")
    box_off(sE2, 0)
    A(f"v_lshrrev_b32 v{vT2}, 2, v{vLane}\nv_min_u32 v{vT2}, 5, v{vT2}\nv_mul_u32_u24 v{vT2}, {BOX}, v{vT2}")
    A(f"v_and_b32 v{vT3}, 3, v{vLane}\nv_lshl_add_u32 v{vFa}, v{vT3}, 7, v{vT2}\ns_add_u32 s{sE2}, s{sE2}, 16896\nv_add_u32 v{vFa}, s{sE2}, v{vFa}")
    A(f"s_cmp_eq_u32 s{sW}, 5\ns_cbranch_scc0 L_nosnap")
    A(f"buffer_load_dword v{vF0}, v{vFa}, {SWS}, 0 offen sc1")
    A(f"v_add_u32 v{vT2}, {A_HIST}, v{vL16}")
    for j in range(4):
        A(f"v_mov_b32 v{68 + j}, 0")
    A(f"ds_write_b128 v{vT2}, v[68:71]")
    if touch:
        A(f"s_lshr_b32 s{sE2}, s2, 3\ns_lshl_b32 s{sE2}, s{sE2}, 22\nv_and_b32 v{vT2}, 1, v{vLane}\nv_lshlrev_b32 v{vT2}, 21, v{vT2}")
        A(f"buffer_load_dword v{vPoll}, v{vT2}, {SK}, s{sE2} offen nt\nbuffer_load_dword v{vPoll2}, v{vT2}, {SV}, s{sE2} offen nt")
    A("L_nosnap:")
    A(f"v_and_b32 v{vDnA}, 3, v{vLane}\nv_lshlrev_b32 v{vDnA}, 8, v{vDnA}\nv_add_u32 v{vDnA}, {A_DONE}, v{vDnA}")
    A(f"s_lshl_b32 s{sE2}, s{sH}, 8")
    A(f"v_lshl_add_u32 v{vT2}, v{vT0}, 11, v{vU}\nv_add_u32 v{vKo}, s{sE2}, v{vT2}")
    A(f"v_and_b32 v{vT2}, 1, v{vT0}\nv_lshlrev_b32 v{vT2}, 1, v{vT2}\nv_xor_b32 v{vT2}, v{vT2}, v{vT1}\nv_lshlrev_b32 v{vT2}, 4, v{vT2}")
    A(f"v_lshl_add_u32 v{vT2}, v{vT0}, 13, v{vT2}\nv_add_u32 v{vVo}, s{sE2}, v{vT2}")
    for j in range(1, 4):
        A(f"v_add_u32 v{vKo + j}, {j * (8192 - 1088)}, v{vKo}\nv_add_u32 v{vVo + j}, {j * (2048 - 1088)}, v{vVo}")
    A("s_waitcnt lgkmcnt(0)")
    st(1)
    A(f"s_min_i32 s{sA}, s{sCntA}, 0x1000\ns_cmp_lt_i32 s{sA}, 1\ns_cselect_b32 s{sA}, 0x1000, s{sA}\ns_cselect_b32 s{sC}, 1, 0")
    A(f"s_min_i32 s{sBb}, s{sCntB}, 0x1000\ns_cmp_lt_i32 s{sBb}, 1\ns_cselect_b32 s{sBb}, 0x1000, s{sBb}\ns_cselect_b32 s{sD}, 1, 0")
    A(f"s_mov_b32 s{sE2}, s{sBA}\ns_cmp_lt_u32 s{sA}, s{sBb}\ns_cselect_b32 s{sSwap}, 1, 0")
    A(f"s_cselect_b32 s{sCntA}, s{sBb}, s{sA}\ns_cselect_b32 s{sCntB}, s{sA}, s{sBb}")
    A(f"s_cselect_b32 s{sBA}, s{sBB}, s{sBA}\ns_cselect_b32 s{sBB}, s{sE2}, s{sBB}")
    A(f"s_cselect_b32 s{sZ}, s{sD}, s{sC}\ns_cselect_b32 s{sD}, s{sC}, s{sD}\ns_lshl_b32 s{sD}, s{sD}, 1\ns_or_b32 s{sZ}, s{sZ}, s{sD}")
    A(f"s_cmp_eq_u32 s{sRole}, 3\ns_cselect_b32 s{sNv}, s{sCntB}, s{sCntA}")
    A(f"s_sub_u32 s{sNv}, s{sNv}, 1\ns_and_b32 s{sNv}, s{sNv}, 31\ns_add_u32 s{sNv}, s{sNv}, 1")
    A(f"s_add_u32 s{sTopA}, s{sCntA}, 31\ns_lshr_b32 s{sTopA}, s{sTopA}, 5")
    A(f"s_add_u32 s{sTopB}, s{sCntB}, 31\ns_lshr_b32 s{sTopB}, s{sTopB}, 5")
    A(f"s_add_u32 s{sA}, s{sTopA}, s{sTopB}\ns_add_u32 s{sA}, s{sA}, {2 * delta + ex + ra}\ns_lshr_b32 s{sA}, s{sA}, 2\ns_max_u32 s{sA}, s{sA}, 1")
    A(f"s_min_u32 s{sCntA}, s{sA}, s{sTopA}\ns_min_u32 s{sCntB}, s{sA}, s{sTopB}")
    if th2:
        A(f"s_add_u32 s{sC}, s{sTopA}, 1\ns_lshr_b32 s{sC}, s{sC}, 1\ns_add_u32 s{sD}, s{sTopB}, 1\ns_lshr_b32 s{sD}, s{sD}, 1")
        A(f"s_sub_u32 s{sA}, s{sTopA}, s{sTopB}\ns_cmp_le_u32 s{sA}, {th2}")
        A(f"s_cselect_b32 s{sCntA}, s{sC}, s{sCntA}\ns_cselect_b32 s{sCntB}, s{sD}, s{sCntB}\ns_cselect_b32 s{sF2}, 0x1000, {theta}")
    A(f"s_sub_u32 s{sC}, s{sTopA}, s{sCntA}\ns_sub_u32 s{sD}, s{sTopB}, s{sCntB}")
    A(f"s_add_u32 s{sBb}, s{sC}, s{sD}\ns_add_u32 s{sBb}, s{sBb}, {ex + rx}\ns_lshr_b32 s{sBb}, s{sBb}, 1\ns_min_u32 s{sBb}, s{sBb}, s{sC}")
    A(f"s_sub_u32 s{sExp}, s{sC}, s{sBb}\ns_cmp_le_u32 s{sExp}, {f's{sF2}' if th2 else theta}\ns_cselect_b32 s{sBb}, s{sC}, s{sBb}\ns_cselect_b32 s{sExp}, 0, s{sExp}")
    A(f"s_cmp_ge_u32 s{sRole}, 2\ns_cbranch_scc1 L_plan_top")
    A(f"s_mov_b32 s{sNv}, 32\ns_mov_b32 s{sTopB}, s{sD}\ns_mov_b32 s{sCntB}, s{sD}")
    A(f"s_cmp_eq_u32 s{sRole}, 0\ns_cselect_b32 s{sCntA}, s{sBb}, s{sExp}\ns_cselect_b32 s{sTopA}, s{sBb}, s{sC}")
    A("L_plan_top:")
    A(f"s_bitcmp1_b32 s{sRole}, 0\ns_cselect_b32 s{sCntB}, s{sCntB}, 0\ns_cselect_b32 s{sExp}, 0, s{sExp}")
    A(f"s_cmp_eq_u32 s{sRole}, 3\ns_cselect_b32 s{sCntA}, 0, s{sCntA}")
    A(f"s_cmp_lt_u32 s{sW}, 4\ns_cbranch_scc1 L_consumer")
    A(f"s_sub_u32 s{sA}, s{sW}, 4\ns_mul_i32 s{sA}, s{sA}, {k0}\nv_add_u32 v{vRow + 2}, s{sA}, v{vLane}")
    A(f"s_add_u32 s{sCnt}, s{sCntA}, s{sCntB}\ns_add_u32 s{sBb}, s{sTopB}, s{sCntA}\nv_cmp_gt_u32 vcc, s{sCntA}, v{vRow + 2}")
    A(f"v_mov_b32 v{vT2}, s{sTopA}\nv_mov_b32 v{vT3}, s{sBb}\ns_lshl_b32 s{sA}, s{sSwap}, 10\ns_add_u32 s{sA}, s{sA}, {A_TAB}")
    A(f"v_cndmask_b32 v{vT2}, v{vT3}, v{vT2}, vcc\ns_lshl_b32 s{sBb}, s{sSwap}, 10\ns_sub_u32 s{sBb}, {A_TAB + 1024}, s{sBb}")
    A(f"v_xad_u32 v{vT2}, v{vRow + 2}, -1, v{vT2}\nv_mov_b32 v{vT3}, s{sA}\nv_mov_b32 v{vRow}, s{sBb}")
    A(f"v_and_b32 v{vT2}, 127, v{vT2}\nv_cndmask_b32 v{vT3}, v{vRow}, v{vT3}, vcc\nv_lshl_add_u32 v{vT2}, v{vT2}, 3, v{vT3}")
    A(f"s_cmp_eq_u32 s{sW}, 5\ns_cbranch_scc1 L_helper")

    def min4(dst, add):
        A(f"v_readlane_b32 s{sA}, v{vDn}, 0\nv_readlane_b32 s{sBb}, v{vDn}, 1\nv_readlane_b32 s{sC}, v{vDn}, 2\n"
          f"v_readlane_b32 s{sD}, v{vDn}, 3")
        A(f"s_min_u32 s{sA}, s{sA}, s{sBb}\ns_min_u32 s{sC}, s{sC}, s{sD}\ns_min_u32 s{dst}, s{sA}, s{sC}")
        if add:
            A(f"s_add_u32 s{dst}, s{dst}, {add}")

    A(f"s_cmp_eq_u32 s{sCnt}, 0\ns_cbranch_scc1 L_ldone")
    A(f"s_waitcnt vmcnt(0)\nds_read_b64 {vr(vRow, 2)}, v{vT2}")
    st(2)
    A(f"s_mov_b32 s{sS}, 1\ns_mov_b32 s{sOff}, {SLOT}\ns_mov_b32 s{sPub}, 0\ns_mov_b32 s{sFree}, {NS}")
    A(f"s_mov_b32 s{sTile}, 1\ns_mov_b32 s{sSw}, {k0 if not nosort else 64}\ns_mov_b32 m0, 0")
    A(f"s_waitcnt lgkmcnt(0)\nv_lshlrev_b32 v{vRow}, 15, v{vRow}\nv_lshlrev_b32 v{vRow + 1}, 15, v{vRow + 1}")
    A(f"v_readlane_b32 s{sA}, v{vRow}, 0\nv_readlane_b32 s{sBb}, v{vRow + 1}, 0\nv_readlane_b32 s{sN0}, v{vRow}, 1\nv_readlane_b32 s{sN1}, v{vRow + 1}, 1")
    A(f"s_mov_b32 s{sO0}, s{sA}\ns_mov_b32 s{sO1}, s{sBb}")
    for g in range(2):
        if g:
            A("s_mov_b32 m0, 4352\ns_nop 0")
        for j in range(4):
            A(f"buffer_load_dwordx4 v{vKo + j}, {SK}, s{sO0 + g} offen offset:{j * 1088} {pol} lds")
    if lag:
        A(f"s_mov_b32 s{sLag}, {lag}\ns_lshr_b32 s{sDec}, s2, 3\ns_and_b32 s{sDec}, s{sDec}, 7\ns_add_u32 s{sDec}, s{sDec}, {dec0}")
    A(f"s_sub_u32 s{sK}, s{sCnt}, {base}\ns_max_i32 s{sK}, s{sK}, 0\ns_mul_i32 s{sK}, s{sK}, {kb}")
    A(f"s_min_u32 s{sA}, s{sCntA}, s{sCntB}\ns_min_u32 s{sA}, s{sA}, 1\ns_mul_i32 s{sA}, s{sA}, {b1}\ns_add_u32 s{sK}, s{sK}, s{sA}")
    A(f"s_min_u32 s{sK}, s{sK}, {base - n0 - 1}")
    A(f"v_lshlrev_b32 v{vT2}, 3, v{vLane}\nv_add_u32 v{vT2}, {A_LIST}, v{vT2}\nv_mov_b32 v{vT3}, {A_SIG}")
    A(f"s_sub_u32 s{sCnt}, s{sCnt}, 1\ns_cmp_le_u32 s{sCnt}, s{sK}\ns_cbranch_scc1 L_lt_aend")

    def next_offsets(tag):
        A(f"s_add_u32 s{sTile}, s{sTile}, 1\ns_cmp_eq_u32 s{sTile}, s{sSw}\ns_cbranch_scc1 L_sw_{tag}")
        A(f"L_swd_{tag}:")
        A(f"v_readlane_b32 s{sN0}, v{vRow}, s{sTile}\nv_readlane_b32 s{sN1}, v{vRow + 1}, s{sTile}")

    def publish(back, lagged):
        if lagged:
            A(f"s_sub_u32 s{sA}, s{sS}, s{sLag}\ns_sub_u32 s{sA}, s{sA}, {back}")
        else:
            A(f"s_sub_u32 s{sA}, s{sS}, {back}")
        A(f"s_max_i32 s{sPub}, s{sPub}, s{sA}\nv_mov_b32 v{vPub}, s{sPub}")

    def stage_loop(tag, w, stop):
        A(f"L_lt_{tag}:")
        A(f"s_mov_b32 s{sP0}, s{sO0}\ns_mov_b32 s{sP1}, s{sO1}\ns_mov_b32 s{sO0}, s{sN0}\ns_mov_b32 s{sO1}, s{sN1}")
        A(f"s_cmp_lt_u32 s{sS}, s{sFree}\ns_cbranch_scc0 L_full_{tag}")
        A(f"L_free_{tag}:")
        pub_i = -(-((w - gran) % 16) // gran) * gran
        back = (w - gran) // 16
        if pub_i == 16:
            pub_i, back = 0, back + 1
        for i in range(16):
            g, j = i >> 2, i & 3
            srd, vo, so = ((SK, vKo, sO0), (SK, vKo, sO1), (SV, vVo, sP0), (SV, vVo, sP1))[g]
            if j == 0:
                A(f"s_mov_b32 m0, s{sOff}" if g == 0 else f"s_add_u32 m0, s{sOff}, {g * 4352}")
            if i == pub_i:
                publish(back, lag)
            if i % gran == 0:
                A(f"s_waitcnt vmcnt({w - gran})")
            elif j == 0:
                A("s_nop 0")
            if i == pub_i:
                A(f"ds_write_b32 v{vDoneA}, v{vPub}")
            A(f"buffer_load_dwordx4 v{vo + j}, {srd}, s{so} offen offset:{j * 1088} {pol} lds")
            if i == 3:
                next_offsets(tag)
            if i == 11:
                A(f"ds_read_b32 v{vDn}, v{vDnA}")
        A(f"s_add_u32 s{sS}, s{sS}, 1")
        AL(adv(sOff))
        if stamp:
            for k, n in ((5, 8), (6, 24), (7, 40)):
                A(f"s_cmp_lg_u32 s{sS}, {n}\ns_cbranch_scc1 L_ns{tag}{k}")
                st(k)
                A(f"L_ns{tag}{k}:")
        A("s_waitcnt lgkmcnt(0)")
        min4(sFree, NS)
        if noload:
            A(f"s_cmp_lt_u32 s{sS}, {NS}\ns_cbranch_scc1 L_nl{tag}\ns_waitcnt vmcnt(0)\nv_mov_b32 v{vPub}, 0x7fffffff\n"
              f"ds_write_b32 v{vDoneA}, v{vPub}\ns_branch L_ldone\nL_nl{tag}:")
        if tag in "ab" and lag:
            A(f"s_cmp_ge_u32 s{sS}, s{sDec}\ns_cselect_b32 s{sA}, 1, 0\ns_cselect_b32 s{sBb}, {decs}, 0")
            A(f"s_add_u32 s{sDec}, s{sDec}, s{sBb}\ns_sub_u32 s{sLag}, s{sLag}, s{sA}\ns_max_i32 s{sLag}, s{sLag}, 0")
        if tag == "z":
            A(f"s_sub_u32 s{sCnt}, s{sCnt}, 1\ns_cmp_le_u32 s{sCnt}, {stop}\ns_cbranch_scc1 L_lt_aend")
            A(f"s_cmp_lt_u32 s{sS}, {n0}\ns_cbranch_scc1 L_lt_z")
        else:
            A(f"s_sub_u32 s{sCnt}, s{sCnt}, 1\ns_cmp_gt_u32 s{sCnt}, {stop}\ns_cbranch_scc1 L_lt_{tag}")

    if n0:
        stage_loop("z", win0, f"s{sK}")
    stage_loop("a", win, f"s{sK}")
    A("L_lt_aend:")
    A(f"s_cmp_eq_u32 s{sCnt}, 0\ns_cbranch_scc1 L_lsegend")
    stage_loop("b", win2, "0")
    A("L_lsegend:")
    A(f"s_cmp_lt_u32 s{sS}, s{sFree}\ns_cbranch_scc0 L_full_e")
    A("L_free_e:")
    for g in (2, 3):
        A(f"s_add_u32 m0, s{sOff}, {g * 4352}\ns_nop 0")
        for j in range(4):
            A(f"buffer_load_dwordx4 v{vVo + j}, {SV}, s{sO0 if g == 2 else sO1} offen offset:{j * 1088} {pol} lds")
    st(3)
    for back in range((wmax - 1) // 16, -2, -1):
        publish(back, False) if back >= 0 else A(f"s_add_u32 s{sA}, s{sS}, 1\nv_mov_b32 v{vPub}, s{sA}")
        A(f"s_waitcnt vmcnt({16 * back + 8 if back >= 0 else 0})\nds_write_b32 v{vDoneA}, v{vPub}")
    A("L_ldone:")
    st(4)
    dump_stamps(0)
    A("s_endpgm")
    for tag in ("z" if n0 else "") + "ab":
        A(f"L_sw_{tag}:")
        budget()
        A(f"ds_read_b32 v{vDn}, v{vT3} offset:4\nds_read_b64 {vr(vRow, 2)}, v{vT2}\ns_waitcnt lgkmcnt(0)\nv_readfirstlane_b32 s{sA}, v{vDn}\ns_nop 0")
        A(f"s_cmp_eq_u32 s{sA}, 0\ns_cbranch_scc1 L_sw_{tag}")
        A(f"s_mov_b32 s{sTile}, 0\ns_mov_b32 s{sSw}, -1\ns_branch L_swd_{tag}")
    for tag in ("z" if n0 else "") + "abe":
        A(f"L_full_{tag}:")
        budget()
        A(f"ds_read_b32 v{vDn}, v{vDnA}\ns_waitcnt lgkmcnt(0)")
        min4(sFree, NS)
        A(f"s_cmp_lt_u32 s{sS}, s{sFree}\ns_cbranch_scc0 L_full_{tag}\ns_branch L_free_{tag}")

    A("L_helper:")
    a_0, a_1, p_0, p_1, hh, tt, one = 64, 65, 66, 67, 68, 96, 75
    A(f"s_waitcnt vmcnt(1)\nds_read_b64 {vr(vRow, 2)}, v{vT2}")
    A(f"v_mov_b32 v{a_0}, {A_HIST}\nv_mov_b32 v{a_1}, {A_HIST + 512}\nv_add_u32 v{vT3}, {A_HIST}, v{vL16}")
    A(f"v_cndmask_b32 v{p_0}, v{a_1}, v{a_0}, vcc\nv_cmp_gt_u32 vcc, s{sCnt}, v{vRow + 2}\nv_mov_b32 v{one}, 1")
    A(f"s_waitcnt lgkmcnt(0)\nv_bfe_u32 v{a_0}, v{vRow}, {bsh}, 7\nv_bfe_u32 v{a_1}, v{vRow + 1}, {bsh}, 7")
    A(f"v_lshl_add_u32 v{a_0}, v{a_0}, 2, v{p_0}\nv_lshl_add_u32 v{a_1}, v{a_1}, 2, v{p_0}")
    A(f"s_mov_b64 s[48:49], vcc\ns_mov_b64 exec, vcc")
    A(f"ds_add_rtn_u32 v{p_0}, v{a_0}, v{one}\nds_add_rtn_u32 v{p_1}, v{a_1}, v{one}")
    A(f"s_mov_b64 exec, -1\nds_read_b128 {vr(hh, 4)}, v{vT3}")
    A(f"v_lshlrev_b32 v{vRow}, 15, v{vRow}\nv_lshlrev_b32 v{vRow + 1}, 15, v{vRow + 1}\ns_waitcnt lgkmcnt(0)")
    A(f"v_add_u32 v{hh + 1}, v{hh}, v{hh + 1}\nv_add_u32 v{hh + 2}, v{hh + 1}, v{hh + 2}\nv_add_u32 v{hh + 3}, v{hh + 2}, v{hh + 3}")
    A(f"v_mov_b32 v{tt}, v{hh + 3}\ns_nop 1")
    for sh in (1, 2, 4, 8):
        A(f"v_add_u32_dpp v{tt}, v{tt}, v{tt} row_shr:{sh} row_mask:0xf bank_mask:0xf bound_ctrl:0\ns_nop 1")
    A(f"v_add_u32_dpp v{tt}, v{tt}, v{tt} row_bcast:15 row_mask:0xa bank_mask:0xf\ns_nop 1")
    A(f"v_add_u32_dpp v{tt}, v{tt}, v{tt} row_bcast:31 row_mask:0xc bank_mask:0xf")
    A(f"v_sub_u32 v{tt}, v{tt}, v{hh + 3}")
    for j in range(3):
        A(f"v_add_u32 v{tt + 1 + j}, v{tt}, v{hh + j}")
    A(f"ds_write_b128 v{vT3}, {vr(tt, 4)}\nds_read_b32 v{a_0}, v{a_0}\nds_read_b32 v{a_1}, v{a_1}")
    A(f"v_mov_b32 v{vT3}, {A_LIST}\nv_mov_b32 v{vT2}, {A_SIG}\ns_mov_b64 exec, s[48:49]\ns_waitcnt lgkmcnt(0)")
    A(f"v_add_u32 v{p_0}, v{p_0}, v{a_0}\nv_add_u32 v{p_1}, v{p_1}, v{a_1}")
    A(f"v_lshl_add_u32 v{p_0}, v{p_0}, 2, v{vT3}\nv_lshl_add_u32 v{p_1}, v{p_1}, 2, v{vT3}")
    A(f"ds_write_b32 v{p_0}, v{vRow}\nds_write_b32 v{p_1}, v{vRow + 1}")
    A(f"s_mov_b64 exec, -1\nds_write_b32 v{vT2}, v{one} offset:4")
    st(5)
    A(f"s_setprio 0\ns_mov_b32 s{sItem}, 1")
    A(f"s_cmp_eq_u32 s{sCntA}, 0\ns_cselect_b32 s{sCntB}, 0, s{sCntB}")

    def pb_free(tag):
        A(f"s_branch L_hfree_{tag}")
        A(f"L_hfree0_{tag}:")
        budget()
        A(f"s_sleep {psleep}")
        A(f"L_hfree_{tag}:")
        A(f"ds_read_b32 v{vDn}, v{vDnA} offset:1536\ns_waitcnt lgkmcnt(0)")
        min4(sA, 0)
        A(f"s_cmp_lt_u32 s{sA}, s{sItem}\ns_cbranch_scc1 L_hfree0_{tag}")

    def pb_publish():
        A(f"s_add_u32 s{sItem}, s{sItem}, 1\nv_mov_b32 v{vPub}, s{sItem}\ns_waitcnt vmcnt(0)\nds_write_b32 v{vDoneA}, v{vPub}")

    def q_item(w):
        A(f"s_lshl_b32 s{sO1}, s{sB}, 3\ns_add_u32 s{sO1}, s{sO1}, s{sH}\ns_lshl_b32 s{sO1}, s{sO1}, 15\ns_xor_b32 s{sO0}, s{sO1}, s{sPar}")
        for r in range(32):
            A(f"s_mov_b32 m0, {PB + r * 1088 - (r & 3) * 1024}")
            if r and (r & 3) == 0:
                A(f"s_add_u32 s{sO1}, s{sO1}, 4096\ns_xor_b32 s{sO0}, s{sO1}, s{sPar}")
            elif w and r >= w:
                A(f"s_waitcnt vmcnt({w - 1})")
            else:
                A("s_nop 0")
            A(f"buffer_load_dwordx4 v{vQd}, {SQ}, s{sO0} offen offset:{(r & 3) * 1024} {qpol} lds")

    def wait_progress(tag):
        A(f"s_branch L_hp_{tag}")
        A(f"L_hp0_{tag}:")
        budget()
        A(f"s_sleep {psleep}")
        A(f"L_hp_{tag}:")
        A(f"ds_read_b32 v{vF}, v{vRdyA}\ns_waitcnt lgkmcnt(0)\nv_readfirstlane_b32 s{sF}, v{vF}\ns_nop 0")
        A(f"s_cmp_lt_u32 s{sF}, s{sNeed}\ns_cbranch_scc1 L_hp0_{tag}")

    A(f"s_lshl_b32 s{sA}, s{sGrp}, 2\nv_mov_b32 v{vDb}, s{sA}\ns_lshl_b32 s{sA}, 1, s{sRole}\ns_waitcnt vmcnt(0)\nv_mov_b32 v{vPoll}, s{sA}")
    A(f"ds_write_b32 v{vDoneA}, v{vF0} offset:1536")
    A(f"s_mov_b64 exec, 1\nbuffer_atomic_or v{vPoll}, v{vDb}, {SD}, 0 offen sc1\ns_mov_b64 exec, -1")
    st(2)
    A(f"s_cmp_eq_u32 s{sCntB}, 0\ns_cbranch_scc1 L_hq2")
    A(f"s_mov_b32 s{sB}, s{sBB}")
    pb_free("q")
    q_item(hwin)
    A(f"v_mov_b32 v{vPub}, 1\ns_waitcnt vmcnt(0)\nds_write_b32 v{vDoneA}, v{vPub}")
    A("L_hq2:")
    A(f"s_lshr_b32 s{sIt}, s2, 3\ns_and_b32 s{sIt}, s{sIt}, {cmask}")
    if rmode < 2:
        A(f"s_add_u32 s{sNeed}, s{sIt}, {chk0}\ns_min_u32 s{sNeed}, s{sNeed}, s{sCnt}")
        wait_progress("c")
        A("s_branch L_hchk")
        A("L_hchk0:")
        budget()
        A(f"s_sleep {4 * psleep}")
        A("L_hchk:")
        A(f"buffer_load_dword v{vPoll2}, v{vDb}, {SD}, 0 offen sc1\ns_waitcnt vmcnt(0)")
        A(f"v_readfirstlane_b32 s{sA}, v{vPoll2}\ns_nop 0\ns_cmp_eq_u32 s{sA}, 15\ns_cbranch_scc0 L_hchk0")
    else:
        A(f"v_mov_b32 v{vPoll2}, 15")
    A(f"v_mov_b32 v{vT2}, {A_SIG}\nds_write_b32 v{vT2}, v{vPoll2}")
    A(f"s_cmp_eq_u32 s{sRole}, 1\ns_cbranch_scc0 L_hdone\ns_cmp_eq_u32 s{sCntA}, 0\ns_cbranch_scc1 L_hdone")
    A(f"s_mov_b32 s{sItem}, 2")
    pb_free("h")
    A(f"v_add_u32 v{vT3}, {PB}, v{vL16}\nv_mul_u32_u24 v{vT2}, 8704, v{vT0}\nv_lshl_add_u32 v{vT2}, v{vT1}, 4, v{vT2}")
    A(f"v_add_u32 v{vT2}, {PB + 8192}, v{vT2}")
    for r in range(32):
        A(f"ds_read_b128 {vr(HR + 4 * r, 4)}, v{vT3} offset:{(r >> 3) * 8704 + (r & 7) * 1024}")
    A(f"ds_read_b128 {vr(HR + 128, 4)}, v{vT2}")
    box_off(sE2, 4)
    A(f"v_lshrrev_b32 v{vT2}, 3, v{vT1}\nv_mul_u32_u24 v{vT2}, {BOX}, v{vT2}\nv_lshl_add_u32 v{vT2}, v{vT0}, 7, v{vT2}")
    A(f"v_and_b32 v{vT3}, 7, v{vT1}\nv_lshl_add_u32 v{vT2}, v{vT3}, 4, v{vT2}")
    A(f"v_add_u32 v{vF0}, 1, v{vF0}")
    A(f"s_sub_u32 s{sNeed}, s{sCnt}, {lead}\ns_max_i32 s{sNeed}, s{sNeed}, 0")
    wait_progress("h")
    st(3)
    for r in range(32):
        if (r & 3) == 0:
            A(f"s_add_u32 s{sO1}, s{sE2}, {((r >> 2) & 1) * BOX + (r >> 3) * 4096}")
        A(f"buffer_store_dwordx4 {vr(HR + 4 * r, 4)}, v{vL16}, {SWS}, s{sO1} offen offset:{(r & 3) * 1024} {hpol}")
    A(f"s_add_u32 s{sO0}, s{sE2}, 16384")
    A(f"buffer_store_dwordx4 {vr(HR + 128, 4)}, v{vT2}, {SWS}, s{sO0} offen {hpol}")
    A("s_mov_b64 exec, 0xff0000\ns_waitcnt vmcnt(0)")
    A(f"buffer_store_dword v{vF0}, v{vFa}, {SWS}, 0 offen {apol}")
    A("s_mov_b64 exec, -1")
    A("L_hdone:")
    if trace:
        A(f"s_cmp_eq_u32 s{sRole}, 0\ns_cbranch_scc0 L_end")
        A(f"s_mov_b32 s{sIt}, 0\nv_mov_b32 v100, 0\nv_mov_b32 v101, 0\nv_mov_b32 v102, 0\nv_mov_b32 v103, 0")
        A("L_tr:")
        A(f"s_memrealtime s[84:85]\ns_memtime s[86:87]\nds_read_b32 v{vF}, v{vRdyA}\nds_read_b32 v{vDn}, v{vDnA}\ns_waitcnt lgkmcnt(0)")
        A(f"v_readfirstlane_b32 s{sF}, v{vF}\nv_readfirstlane_b32 s{sA}, v{vDn}\ns_mov_b32 m0, s{sIt}\ns_nop 3")
        A(f"v_writelane_b32 v100, s84, m0\nv_writelane_b32 v101, s86, m0\nv_writelane_b32 v102, s{sF}, m0\nv_writelane_b32 v103, s{sA}, m0")
        A("L_tr2:")
        A(f"s_sleep 2\ns_memrealtime s[88:89]\ns_waitcnt lgkmcnt(0)\ns_sub_u32 s{sA}, s88, s84\ns_cmp_lt_u32 s{sA}, {trace}\ns_cbranch_scc1 L_tr2")
        A(f"s_add_u32 s{sIt}, s{sIt}, 1\ns_cmp_ge_u32 s{sF}, s{sCnt}\ns_cbranch_scc1 L_tr3\ns_cmp_lt_u32 s{sIt}, 64\ns_cbranch_scc1 L_tr")
        A("L_tr3:")
        A(f"s_lshl_b32 s{sA}, s2, 10\ns_add_u32 s{sA}, s{sA}, {WSB - 64 * 1024}")
        A(f"buffer_store_dwordx4 v[100:103], v{vL16}, {SWS}, s{sA} offen")
    st(4)
    dump_stamps(64)
    A("s_endpgm")

    A("L_consumer:")
    A(f"v_lshlrev_b32 v{vG4}, 2, v{vT0}")
    A(f"v_lshrrev_b32 v{vT2}, 2, v{vT1}\nv_mul_u32_u24 v{vT2}, 1088, v{vT2}\nv_and_b32 v{vT3}, 3, v{vT1}")
    A(f"v_lshl_add_u32 v{vKc}, v{vT3}, 8, v{vT2}\nv_xor_b32 v{vU}, v{vT3}, v{vT0}\nv_lshl_add_u32 v{vKc}, v{vU}, 4, v{vKc}")
    A(f"v_lshl_add_u32 v{vT2}, v{vT0}, 8, v{vT2}\nv_lshl_add_u32 v{vT2}, v{vT3}, 3, v{vT2}\nv_add_u32 v{vT2}, 8704, v{vT2}")
    A(f"v_and_b32 v{vU}, 1, v{vT0}\nv_lshl_add_u32 v{vV0c}, v{vU}, 5, v{vT2}\nv_xor_b32 v{vV1c}, 32, v{vV0c}")
    A(f"v_lshlrev_b32 v{vQo}, 8, v{vT1}\nv_lshl_add_u32 v{vQo}, v{vU}, 5, v{vQo}\nv_lshrrev_b32 v{vU}, 1, v{vT0}\nv_lshl_add_u32 v{vQo}, v{vU}, 4, v{vQo}")
    if fullrow:
        A(f"v_lshrrev_b32 v{vU}, 3, v{vT1}\nv_mul_u32_u24 v{vU}, {2048 - 64}, v{vU}\nv_sub_u32 v{vQo}, v{vQo}, v{vU}")
    for j in range(4):
        A(f"v_mov_b32 v{ON + j}, 0x3f803f80")
    A(f"v_lshlrev_b32 v{vPL}, 3, v{vT1}\nv_mov_b32 v{vPd}, 0")
    A(f"s_mov_b32 s{sT}, 0\ns_mov_b32 s{sOffK}, 0\ns_mov_b32 s{sItem}, 0")
    sSd, sSs, sFo, sOut, sPi, sHi, sPs, sHs, sPd, sHd, sMy, sLp, sLh = range(48, 61)
    A(f"s_bitcmp1_b32 s{sRole}, 0\ns_cselect_b32 s{sOut}, s{sBB}, s{sBA}")
    A(f"s_lshl_b32 s{sOut}, s{sOut}, 3\ns_add_u32 s{sOut}, s{sOut}, s{sH}\ns_lshl_b32 s{sOut}, s{sOut}, 2\n"
      f"s_add_u32 s{sOut}, s{sOut}, s{sW}\ns_lshl_b32 s{sOut}, s{sOut}, 13\ns_add_u32 s{sOut}, s{sOut}, s{sPar}")
    box_off(sMy, f"s{sRole}")
    A(f"s_lshl_b32 s{sC}, s{sW}, 12\ns_lshl_b32 s{sD}, s{sW}, 7\ns_add_u32 s{sD}, s{sD}, 16384\ns_add_u32 s{sFo}, s{sD}, 512")
    if alias:
        A(f"s_xor_b32 s{sSd}, s{sOut}, 4096")
    else:
        A(f"s_add_u32 s{sSd}, s{sMy}, s{sC}")
    A(f"s_add_u32 s{sSs}, s{sMy}, s{sD}\ns_add_u32 s{sMy}, s{sMy}, s{sFo}")
    A(f"s_xor_b32 s{sLp}, s{sRole}, 2\ns_lshr_b32 s{sLh}, s{sRole}, 1\ns_add_u32 s{sLh}, s{sLh}, 4")
    A(f"s_cmp_eq_u32 s{sExp}, 0\ns_cselect_b32 s{sLh}, s{sLp}, s{sLh}")
    box_off(sPi, f"s{sLp}")
    box_off(sHi, f"s{sLh}")
    A(f"s_add_u32 s{sPs}, s{sPi}, s{sD}\ns_add_u32 s{sHs}, s{sHi}, s{sD}\ns_add_u32 s{sHd}, s{sHi}, s{sC}")
    A(f"s_mov_b32 s{sPd}, s{sOut}" if alias else f"s_add_u32 s{sPd}, s{sPi}, s{sC}")
    if nopart:
        for x in (sPs, sHs, sPd, sHd):
            A(f"s_mov_b32 s{x}, {hex(OOB)}")

    def zero_acc():
        for i in range(LA, O + 64):
            A(f"v_mov_b32 v{i}, 0")

    zero_acc()
    A(f"s_cmp_eq_u32 s{sCntA}, 0\ns_cselect_b32 s{sA}, s{sBB}, s{sBA}\ns_cmp_eq_u32 s{sA}, s{sB}\ns_cbranch_scc1 L_qok")
    A(f"s_mov_b32 s{sB}, s{sA}")
    q_own()
    A("s_waitcnt vmcnt(0)")
    q_own_loads()
    A("L_qok:")
    A(f"s_cmp_eq_u32 s{sCntA}, 0\ns_cbranch_scc1 L_segB")
    A(f"s_mov_b32 s{sCnt}, s{sCntA}\ns_bitcmp1_b32 s{sZ}, 0\ns_branch L_seg")
    A("L_segB:")
    A(f"s_cmp_eq_u32 s{sCntB}, 0\ns_cbranch_scc1 L_empty")
    A(f"s_mov_b32 s{sB}, s{sBB}\ns_mov_b32 s{sCnt}, s{sCntB}\ns_mov_b32 s{sCntA}, 0\ns_bitcmp1_b32 s{sZ}, 1")

    def spin(tag, off=0, need=None, le=False):
        A(f"L_spin_{tag}:")
        budget()
        A(f"ds_read_b32 v{vF}, v{vRdyA} offset:{off}\ns_waitcnt lgkmcnt(0)\nv_readfirstlane_b32 s{sF}, v{vF}\ns_nop 0")
        A(f"s_cmp_{'le' if le else 'lt'}_u32 s{sF}, s{need or sNeed}\ns_cbranch_scc1 L_spin_{tag}")

    def addrs():
        return [f"v_add_u32 v{vK}, s{sOffK}, v{vKc}", f"v_add_u32 v{vV0}, s{sOffK}, v{vV0c}",
                f"v_add_u32 v{vV1}, s{sOffK}, v{vV1c}"]

    def kreads(dst=KF):
        return [f"ds_read_b128 {vr(dst + 4 * f, 4)}, v{vK} offset:{(f & 1) * 4352 + (f >> 1) * 64}" for f in range(8)]

    def vreads():
        return [f"ds_read_b64_tr_b16 {vr(VF + 4 * dt + 2 * u, 2)}, v{vV1 if dt & 1 else vV0} "
                f"offset:{u * 4352 + (dt >> 1) * 64}" for dt in range(8) for u in range(2)]

    MF = "v_mfma_f32_16x16x32_bf16"

    def qk(first):
        out = []
        for ks in range(4):
            for kh in range(2):
                for qh in range(2):
                    d = vr(S + 8 * qh + 4 * kh, 4)
                    c = d if ks else ("0" if first else vr(CM + 4 * qh, 4))
                    out.append(f"{MF} {d}, {vr(KF + 4 * (2 * ks + kh), 4)}, {vr(Q + 4 * (2 * ks + qh), 4)}, {c}")
        return out

    def pv(dt, qh):
        d = vr(O + 32 * qh + 4 * dt, 4)
        return f"{MF} {d}, {vr(VF + 4 * dt, 4)}, {vr(P + 4 * qh, 4)}, {d}"

    def rs(qh):
        return f"{MF} {vr(LA + 4 * qh, 4)}, {vr(ON, 4)}, {vr(P + 4 * qh, 4)}, {vr(LA + 4 * qh, 4)}"

    def cvt(j):
        return f"v_cvt_pk_bf16_f32 v{P + j}, v{E + 2 * j}, v{E + 2 * j + 1}"

    def maxes():
        o = []
        for a in (0, 3, 5):
            for qh, m in ((0, vMx), (1, vMx2)):
                b = S + 8 * qh + a
                o.append(f"v_max3_f32 v{m}, v{b}, v{b + 1}, v{b + 2}" if a == 0 else f"v_max3_f32 v{m}, v{m}, v{b}, v{b + 1}")
        return o

    def new_max(floor0):
        A(f"v_max_f32 v{vMx}, v{vMx}, v{S + 7}\nv_max_f32 v{vMx2}, v{vMx2}, v{S + 15}")
        for sw in ("v_permlane32_swap_b32", "v_permlane16_swap_b32"):
            A(f"v_mov_b32 v{vT0}, v{vMx}\nv_mov_b32 v{vT1}, v{vMx2}\ns_nop 0")
            A(f"{sw} v{vMx}, v{vT0}\n{sw} v{vMx2}, v{vT1}\ns_nop 0")
            A(f"v_max_f32 v{vMx}, v{vMx}, v{vT0}\nv_max_f32 v{vMx2}, v{vMx2}, v{vT1}")
        if floor0:
            A(f"v_max_f32 v{vMx}, 0, v{vMx}\nv_max_f32 v{vMx2}, 0, v{vMx2}")
        A(f"v_ceil_f32 v{vMx}, v{vMx}\nv_ceil_f32 v{vMx2}, v{vMx2}")

    def exp_shifted():
        for i in range(16):
            A(f"v_sub_f32 v{E + i}, v{S + i}, v{vMx if i < 8 else vMx2}")
        for i in range(16):
            A(f"v_exp_f32 v{E + i}, v{E + i}")

    def scale_acc(f, with_la=True):
        for qh in range(2):
            sel = "op_sel_hi:[1,0]" if qh == 0 else "op_sel:[0,1] op_sel_hi:[1,1]"
            for i in range(16):
                r = O + 32 * qh + 2 * i
                A(f"v_pk_mul_f32 {vr(r, 2)}, {vr(r, 2)}, {vr(f, 2)} {sel}")
            if with_la:
                A(f"v_mul_f32 v{LA + 4 * qh}, v{f + qh}, v{LA + 4 * qh}")

    def pack_o(i):
        for j in range(4):
            r = O + 8 * i + 2 * j
            A(f"v_cvt_pk_bf16_f32 v{KF + 4 * i + j}, v{r}, v{r + 1}")

    def park():
        A(f"v_add_u32 v{vT2}, s{sOffQ}, v{vL16}\nv_add_u32 v{vT3}, s{sOffQ}, v{vPL}")
        A(f"v_mov_b32 v{CM + 1}, v{LA}\nv_mov_b32 v{CM + 5}, v{LA + 4}")
        A(f"ds_write_b64 v{vT3}, {vr(CM, 2)} offset:8192\nds_write_b64 v{vT3}, {vr(CM + 4, 2)} offset:8320")
        for i in range(8):
            pack_o(i)
            A(f"ds_write_b128 v{vT2}, {vr(KF + 4 * i, 4)} offset:{i * 1024}")
        zero_acc()

    A("L_seg:")
    c = f2u(1.4426950408889634 / 128 ** 0.5)
    A(f"s_cselect_b32 s{sScale}, 0, {hex(c)}")
    A(f"s_add_u32 s{sEnd}, s{sT}, s{sCnt}\ns_add_u32 s{sNeed}, s{sT}, 1")
    A(f"v_add_u32 v{vK}, s{sOffQ}, v{vKc}\nv_mov_b32 v{vF2}, s{sScale}")
    A(f"s_cmp_eq_u32 s{sT}, 0\ns_cbranch_scc0 L_hold")
    A("s_waitcnt vmcnt(0)")
    AL(kreads(Q))
    A("L_nohold:")
    A(f"v_add_u32 v{vPd}, 1, v{vPd}\nds_write_b32 v{vDoneA}, v{vPd} offset:1536")
    A(f"v_add_u32 v{vK}, s{sOffK}, v{vKc}\nv_mov_b32 v{vDone}, s{sNeed}")
    AL(adv(sOffK))
    for t in range(8):
        A(f"s_waitcnt lgkmcnt({8 - t})")
        for j in range(4):
            r = Q + 4 * t + j
            A(f"v_lshlrev_b32 v{vU + 2 * j}, 16, v{r}\nv_and_b32 v{vU + 2 * j + 1}, 0xffff0000, v{r}")
        for j in range(4):
            A(f"v_pk_mul_f32 {vr(vU + 2 * j, 2)}, {vr(vU + 2 * j, 2)}, {vr(vF2, 2)} op_sel_hi:[1,0]")
        for j in range(4):
            A(f"v_cvt_pk_bf16_f32 v{Q + 4 * t + j}, v{vU + 2 * j}, v{vU + 2 * j + 1}")
    if not st2:
        st(2)
    spin("p0")
    if not st2:
        st(3)
    AL(kreads())
    A(f"ds_write_b32 v{vDoneA}, v{vDone}")
    A(f"s_add_u32 s{sNeed}, s{sT}, 2\ns_min_u32 s{sNeed}, s{sNeed}, s{sEnd}")
    A(f"v_sub_u32 v{vT2}, s{sNv}, v{vG4}")
    A(f"v_mov_b32 v{vT3}, 0xff800000")
    for i, x in enumerate(qk(True)):
        if i % 2 == 0:
            A(f"s_waitcnt lgkmcnt({8 - i // 2})")
        A(x)
    AL(addrs())
    AL(adv(sOffK))
    spin("p1")
    AL(kreads())
    A(f"s_cmp_eq_u32 s{sNv}, 32\ns_cbranch_scc1 L_nomask")
    for kh in range(2):
        for r in range(4):
            a = S + 4 * kh + r
            A(f"v_cmp_lt_i32 vcc, {16 * kh + r}, v{vT2}\ns_nop 1\nv_cndmask_b32 v{a}, v{vT3}, v{a}, vcc\n"
              f"v_cndmask_b32 v{a + 8}, v{vT3}, v{a + 8}, vcc")
    A("L_nomask:")
    AL(maxes())
    new_max(False)
    for i in range(8):
        A(f"v_sub_f32 v{CM + i}, 0, v{vMx if i < 4 else vMx2}")
    exp_shifted()
    A(f"s_sub_u32 s{sIt}, s{sCnt}, 1\ns_cmp_eq_u32 s{sIt}, 0\ns_cbranch_scc1 L_final")

    A(".p2align 3")
    A("L_loop:")
    loop_start = len(L)
    vrd = vreads()
    A("s_waitcnt lgkmcnt(0)")
    fa = []
    for i in range(8):
        fa += [vrd[2 * i], vrd[2 * i + 1], cvt(i)]
    fa[-2:-2] = [f"v_add_u32 v{vDone}, 1, v{vDone}"]
    fa += [f"ds_write_b32 v{vDoneA}, v{vDone}", f"ds_read_b32 v{vF}, v{vRdyA}"] + addrs()
    fa += [f"s_add_u32 s{sNeed}, s{sNeed}, 1", f"s_min_u32 s{sNeed}, s{sNeed}, s{sEnd}"]
    for i, x in enumerate(qk(False)):
        A(x)
        AL(fa[2 * i:2 * i + 2])
    assert len(fa) <= 32
    AL(adv(sOffK))
    A("s_waitcnt lgkmcnt(0)")
    mf = []
    for dt in range(8):
        mf += [pv(dt, 0), pv(dt, 1)]
        if dt == 3:
            mf += [rs(0), rs(1)]
    A(mf[0])
    A(f"v_readfirstlane_b32 s{sF}, v{vF}\ns_sub_u32 s{sIt}, s{sIt}, 1\ns_cmp_lt_u32 s{sF}, s{sNeed}\ns_cbranch_scc1 L_slow")
    A("L_back:")
    krd = kreads()
    order = [0, 1, 2, 3, 8, 9, 10, 11, 4, 5, 6, 7, 12, 13, 14, 15]
    ex_ = [f"v_exp_f32 v{E + i}, v{S + i}" for i in order]
    oth = krd + maxes() + [f"v_max3_f32 v{vT0}, v{vMx}, v{vMx2}, v{S + 7}", f"v_max_f32 v{vT0}, v{vT0}, v{S + 15}",
                           f"v_cmp_lt_f32 vcc, {hex(f2u(T))}, v{vT0}"]
    for i in range(1, 18):
        A(mf[i])
        if i <= 16:
            A(ex_[i - 1])
        A(oth[i - 1])
    if nocomp:
        keep = []
        for x in L[loop_start:]:
            y = x.strip()
            if nocomp & 1 and y.startswith("v_mfma"):
                continue
            if nocomp & 2 and y.startswith(("v_exp", "v_max", "v_cvt")):
                continue
            if nocomp & 4 and y.startswith(("ds_read_b128", "ds_read_b64_tr")):
                continue
            keep.append(x)
        L[loop_start:] = keep
        A("s_mov_b64 vcc, 0")
    A("s_cbranch_vccnz L_rare")
    A("L_rare_back:")
    A(f"s_cmp_lg_u32 s{sIt}, 0\ns_cbranch_scc1 L_loop")

    A("L_final:")
    A(f"s_add_u32 s{sNeed}, s{sEnd}, 1\ns_mov_b32 s{sT}, s{sEnd}")
    for j in range(8):
        A(cvt(j))
    A(f"s_cmp_eq_u32 s{sOffK}, 0\ns_cselect_b32 s{sOffK}, {RING}, s{sOffK}\ns_sub_u32 s{sOffK}, s{sOffK}, {SLOT}")
    A(rs(0))
    A(rs(1))
    A(f"s_cmp_eq_u32 s{sRole}, 1\ns_cselect_b32 s{sA}, s{sCntA}, 0\ns_cmp_lg_u32 s{sA}, 0\ns_cbranch_scc1 L_final_a")

    HB = Q

    def send_stats():
        A(f"v_mov_b32 v{CM + 5}, v{LA + 4}")
        A(f"buffer_store_dwordx2 {vr(CM + 4, 2)}, v{vPL}, {SWS}, s{sSs} offen {spol}")

    def send(i):
        pack_o(i)
        A(f"buffer_store_dwordx4 {vr(KF + 4 * i, 4)}, v{vL16}, {SO if alias else SWS}, s{sSd} offen offset:{(i & 3) * 1024} {spol}")

    spin("f")
    AL(vrd)
    send_stats()
    for dt in range(8):
        A(f"s_waitcnt lgkmcnt({14 - 2 * dt})")
        A(pv(dt, 1))
        if dt >= 5:
            send(dt - 1)
    for dt in range(8):
        A(pv(dt, 0))
        if dt == 2:
            send(7)
    st(4)
    A("L_sent:")
    st(5)
    if not nopart:
        A(f"s_lshl_b32 s{sA}, s{sW}, 2\nv_and_b32 v{vT1}, 7, v{vLane}\nv_lshlrev_b32 v{vT1}, 4, v{vT1}")
        A(f"v_mov_b32 v{vT0}, {A_SIG}\nv_add3_u32 v{vT1}, v{vT1}, s{sA}, v{vT0}")
        A("L_peers:")
        budget()
        A(f"ds_read_b32 v{vF}, v{vT0}\nds_read_b32 v{vF2}, v{vT1} offset:256\ns_waitcnt lgkmcnt(0)\nv_readfirstlane_b32 s{sA}, v{vF}\ns_nop 0")
        A(f"s_cmp_eq_u32 s{sA}, 0\ns_cbranch_scc1 L_peers")
        A(f"v_readlane_b32 s{sA}, v{vF2}, s{sLp}\nv_readlane_b32 s{sBb}, v{vF2}, s{sLh}\nv_readlane_b32 s{sE2}, v{vF2}, s{sRole}")
        A(f"v_and_b32 v{vU}, 1, v{vLane}\nv_cmp_eq_u32 vcc, 0, v{vU}\nv_mov_b32 v{vU}, s{sPi}\nv_mov_b32 v{vU + 1}, s{sHi}")
        A(f"v_mov_b32 v{vU + 2}, s{sA}\nv_mov_b32 v{vU + 3}, s{sBb}\ns_add_u32 s{sE2}, s{sE2}, 1\nv_mov_b32 v{vT3}, s{sE2}")
        A(f"v_cndmask_b32 v{vU}, v{vU + 1}, v{vU}, vcc\nv_cndmask_b32 v{vU + 1}, v{vU + 3}, v{vU + 2}, vcc")
        A(f"v_mov_b32 v{vU + 2}, v{vU + 1}\nv_mov_b32 v{vT2}, 0")
        A(f"s_mov_b64 exec, 1\ns_waitcnt vmcnt(0)\nbuffer_store_dword v{vT3}, v{vT2}, {SWS}, s{sMy} offen {apol}\ns_mov_b64 exec, -1")
        if st2:
            st(1)
        A("L_poll0:")
        budget()
        A(f"buffer_load_dword v{vU + 2}, v{vU}, {SWS}, s{sFo} offen {fpol}")
        if csleep:
            A(f"s_sleep {csleep}")
        A(f"s_waitcnt vmcnt({npoll})")
        A(f"v_cmp_eq_u32 vcc, v{vU + 2}, v{vU + 1}\ns_cbranch_vccnz L_poll0")
    st(6)
    A(f"buffer_load_dwordx2 {vr(vU + 4, 2)}, v{vPL}, {SWS}, s{sPs} offen {lpol}")
    A(f"buffer_load_dwordx2 {vr(vU + 6, 2)}, v{vPL}, {SWS}, s{sHs} offen {hlpol}")
    for i in range(4):
        A(f"buffer_load_dwordx4 {vr(HB + 16 + 4 * i, 4)}, v{vL16}, {SO if alias else SWS}, s{sPd} offen offset:{i * 1024} {lpol}")

    def unpack_fma(src, i, f, sel):
        for j in range(4):
            A(f"v_lshlrev_b32 v{E + 2 * j}, 16, v{src + j}\nv_and_b32 v{E + 2 * j + 1}, 0xffff0000, v{src + j}")
        for j in range(4):
            o = O + 8 * i + 2 * j
            A(f"v_pk_fma_f32 {vr(o, 2)}, {vr(E + 2 * j, 2)}, {vr(f, 2)}, {vr(o, 2)} {sel}")

    def finish(held):
        n = 8 if held else 4
        if held:
            for i in range(4):
                A(f"buffer_load_dwordx4 {vr(HB + 4 * i, 4)}, v{vL16}, {SWS}, s{sHd} offen offset:{i * 1024} {hlpol}")
        A(f"s_waitcnt vmcnt({n})")
        if st2:
            st(2)
        if held:
            A(f"v_min3_f32 v{vT0}, v{CM}, v{vU + 4}, v{vU + 6}")
        else:
            A(f"v_min_f32 v{vT0}, v{CM}, v{vU + 4}")
        A(f"v_sub_f32 v{vT2}, v{vT0}, v{CM}\nv_sub_f32 v{vMx}, v{vT0}, v{vU + 4}")
        if held:
            A(f"v_sub_f32 v{vMx2}, v{vT0}, v{vU + 6}")
        A(f"v_exp_f32 v{vT2}, v{vT2}\nv_exp_f32 v{vMx}, v{vMx}")
        A(f"v_exp_f32 v{vMx2}, v{vMx2}" if held else "s_nop 0")
        A(f"v_mul_f32 v{vT1}, v{vT2}, v{LA}\nv_fmac_f32 v{vT1}, v{vMx}, v{vU + 5}")
        if held:
            A(f"v_fmac_f32 v{vT1}, v{vMx2}, v{vU + 7}")
        A(f"v_rcp_f32 v{vT1}, v{vT1}\ns_nop 0\nv_mul_f32 v{vT2}, v{vT2}, v{vT1}\nv_mul_f32 v{vMx}, v{vMx}, v{vT1}")
        if held:
            A(f"v_mul_f32 v{vMx2}, v{vMx2}, v{vT1}")
        for i in range(16):
            A(f"v_pk_mul_f32 {vr(O + 2 * i, 2)}, {vr(O + 2 * i, 2)}, {vr(vT2, 2)} op_sel_hi:[1,0]")
        if held:
            for i in range(4):
                A(f"s_waitcnt vmcnt({7 - i})")
                unpack_fma(HB + 16 + 4 * i, i, vMx, "op_sel_hi:[1,0,1]")
        for i in range(4):
            if i < 2:
                A(f"s_waitcnt vmcnt({0 if i else 3})")
            if held:
                unpack_fma(HB + 4 * i, i, vMx, "op_sel:[0,1,0] op_sel_hi:[1,1,1]")
            else:
                unpack_fma(HB + 16 + 4 * i, i, vMx, "op_sel_hi:[1,0,1]")
            if fullrow:
                if i == 2:
                    out_store2(0)
            elif i:
                out_store(i - 1)
            pack_o(i)
        A("s_nop 1")
        if fullrow:
            out_store2(2)
        else:
            out_store(3)
        if st2:
            st(3)
        if stamp:
            A("s_waitcnt vmcnt(0)")
            st(7)
            A(f"s_cmp_eq_u32 s{sW}, 0\ns_cbranch_scc0 L_end")
        dump_stamps(32)
        A("s_endpgm")

    def out_store(i):
        d = KF + 4 * i
        A(f"v_permlane16_swap_b32 v{d}, v{d + 2}\nv_permlane16_swap_b32 v{d + 1}, v{d + 3}")
        A(f"buffer_store_dwordx4 {vr(d, 4)}, v{vQo}, {SO}, s{sOut} offen offset:{i * 64} {opol}")

    def out_store2(i):
        d = KF + 4 * i
        for x in (d, d + 4):
            A(f"v_permlane16_swap_b32 v{x}, v{x + 2}\nv_permlane16_swap_b32 v{x + 1}, v{x + 3}")
        for j in range(4):
            A(f"v_mov_b32 v{S + j}, v{d + j}")
        for j in range(4):
            A(f"v_mov_b32_dpp v{d + j}, v{d + 4 + j} row_ror:8 row_mask:0xf bank_mask:0xc")
        for j in range(4):
            A(f"v_mov_b32_dpp v{d + 4 + j}, v{S + j} row_ror:8 row_mask:0xf bank_mask:0x3")
        A(f"buffer_store_dwordx4 {vr(d, 4)}, v{vQo}, {SO}, s{sOut} offen offset:{i * 64} {opol}")
        A(f"buffer_store_dwordx4 {vr(d + 4, 4)}, v{vQo}, {SO}, s{sOut} offen offset:{2048 + i * 64} {opol}")

    A(f"s_cmp_lg_u32 s{sExp}, 0\ns_cbranch_scc1 L_fin_held")
    finish(False)
    A("L_fin_held:")
    finish(True)
    A("L_end:\ns_endpgm")

    A("L_final_a:")
    spin("g")
    AL(vrd)
    for dt in range(8):
        A(f"s_waitcnt lgkmcnt({14 - 2 * dt})")
        A(pv(dt, 1))
        A(pv(dt, 0))
    A("s_branch L_segB")
    A("L_hold:")
    spin("q", off=256, need=sItem, le=True)
    AL(kreads(Q))
    park()
    A("s_branch L_nohold")
    A("L_empty:")
    A(f"s_cmp_eq_u32 s{sT}, 0\ns_cbranch_scc1 L_empty1\ns_nop 5")
    park()
    A(f"v_add_u32 v{vPd}, 1, v{vPd}\nds_write_b32 v{vDoneA}, v{vPd} offset:1536")
    A("L_empty1:")
    A(f"v_mov_b32 v{CM}, {hex(BIG)}\nv_mov_b32 v{CM + 4}, {hex(BIG)}")
    A("s_waitcnt vmcnt(0)")
    send_stats()
    for i in range(4, 8):
        send(i)
    A("s_branch L_sent")
    A("L_slow:")
    spin("s")
    A("s_branch L_back")
    A("L_rare:")
    new_max(True)
    A(f"v_exp_f32 v{vT2}, -v{vMx}\nv_exp_f32 v{vT3}, -v{vMx2}")
    for i in range(8):
        A(f"v_sub_f32 v{CM + i}, v{CM + i}, v{vMx if i < 4 else vMx2}")
    exp_shifted()
    scale_acc(vT2)
    A("s_branch L_rare_back")

    A(f""".section .rodata,"a"
.p2align 6
.amdhsa_kernel {NAME}
  .amdhsa_next_free_vgpr 256
  .amdhsa_next_free_sgpr 102
  .amdhsa_accum_offset 256
  .amdhsa_group_segment_fixed_size 0
  .amdhsa_kernarg_size 64
  .amdhsa_user_sgpr_count 2
  .amdhsa_user_sgpr_kernarg_segment_ptr 1
  .amdhsa_system_sgpr_workgroup_id_x 1
.end_amdhsa_kernel""")
    if nostore:
        L[:] = [x for x in L if not (x.strip().startswith("buffer_store") and "v[16:19]" not in x and "v[20:23]" not in x
                                     and "v[100:103], v239, s[20:23], s73 offen" != x.strip()[21:]
                                     and ((SWS in x and nostore & 1) or (SO in x and nostore & 2)))]
    return "\n".join(L) + "\n"


def parse(spec):
    kw = {}
    for kv in spec.split(","):
        if not kv or kv == "default":
            continue
        k, v = kv.split("=")
        try:
            kw[k] = int(v)
        except ValueError:
            try:
                kw[k] = float(v)
            except ValueError:
                kw[k] = v.replace("+", " ").replace("none", "")
    return kw


if __name__ == "__main__":
    from build import build
    import hz
    files = []
    for spec in sys.argv[1:]:
        txt = gen(**parse(spec))
        pr = hz.check(txt)
        for p in pr:
            print("HAZARD", p, file=sys.stderr)
        fn = "k_" + spec.replace("=", "").replace(",", "_").replace("+", "") + ".s"
        open(fn, "w").write(txt)
        build(fn)
        files.append(fn)
    print(" ".join(files))
```

```python
import sys
import struct

NAME = "standalone__paged_block_table_kv_pagedattention__sampling_kernel"
WSB = 537395200
KVB = 4100 * 32768
QB = 16 * 32 * 32 * 128 * 2

HDR = """; Paged GQA attention, B=16 Hq=32 Hkv=8 Sq=32 D=128 block=16, bf16.
; Kernarg (ptrs only): 0 q, 8 k_cache, 16 v_cache, 24 block_table, 32 context_lens, 40 out, 48 debug, 56 ws
"""

PAIRS = [(4, 13), (9, 8), (14, 3), (0, 12), (5, 7), (10, 2), (15, 11), (1, 6)]


def f2u(x):
    return struct.unpack('<I', struct.pack('<f', x))[0]


def gen(NS=7, win=22, win2=26, ntail=0, gran=2, win0=16, n0=9, lag=1, dec0=10, decs=8,
        delta=0, ex=0, theta=2, lead=6, npoll=2, hwin=8, psleep=16, csleep=1, lprio=3, rdy0=2, chk0=20, rmode=1, cmask=15, base=48, kb=6, firstb=-1, th2=4, b1=4, pre=0, prepol='', k0=4, nosort=0, tail=1, smask=0, sleep=0, pvo=0, qko=0, nors=0, sw=0, spincnt=0, bsh=5, touch=0, ra=2, rx=1, apol='sc1', fpol='sc1', alias=1, fullrow=0, st2=0, hpol='', hlpol='sc1', force=0, remap=0,
        pol="nt", qpol="nt", opol="", spol="", lpol="sc1", T=8.0,
        stamp=0, trace=0, nocomp=0, noload=0, nopart=0, nostore=0):
    if firstb < 0:
        nt = [-(-(4096 - ((i + 1) * 2654435761) % 2048) // 32) for i in range(16)]
        firstb = sum(1 << i for i, (a, b) in enumerate(PAIRS) if nt[a] - nt[b] <= max(th2, 2 * theta))
    SLOT = 17408
    RING = NS * SLOT
    PB = RING
    A_DONE = PB + 2 * SLOT
    A_READY = A_DONE + 1024
    A_PDONE = A_DONE + 1536
    A_SIG = A_PDONE + 1024
    A_TAB = A_SIG + 512
    A_LIST = A_TAB + 2048
    A_HIST = A_LIST + 512
    LDS = A_HIST + 1024
    wmax = max(win, win2, win0)
    assert LDS <= 163840
    assert NS >= wmax // 16 + lag + 3 and wmax <= 52
    BOX = 17408
    BIG = f2u(1e30)
    OOB = 0x40000000
    L = []

    def A(s):
        for x in s.split('\n'):
            L.append(x if x.endswith(':') or x.startswith(('.', ';')) else '    ' + x)

    vLane, vT0, vT1, vT2, vT3 = 1, 2, 3, 4, 5
    vKc, vV0c, vV1c, vK, vV0, vV1 = 6, 7, 8, 9, 10, 11
    vQo, vRdyA, vDoneA, vF = 12, 13, 14, 15
    S, E, CM, LA, O, Q, KF, VF, P, ON = 16, 32, 48, 56, 64, 128, 160, 192, 224, 232
    vMx, vMx2, vDone, vL16, vG4, vPd, vPA, vPL = 236, 237, 238, 239, 240, 241, 242, 243
    vF2, vU = 244, 248
    TA, TBb, vRow = 64, 68, 72
    vKo, vVo = 76, 80
    vPoll, vPub, vDn, vDnA, vF0, vDb, vPoll2, vFa = 84, 85, 86, 87, 89, 90, 91, 92
    vQd = 242
    HR = 100

    sW, sH, sRole = 3, 32, 33
    sBA, sBB, sCntA, sCntB, sTopA, sTopB, sNv, sExp, sZ = 35, 36, 37, 38, 39, 40, 41, 42, 43
    sGrp, sSwap, sBud, sPar = 44, 45, 46, 47
    sB, sCnt, sT, sEnd, sOffK, sRet, sNeed, sF, sScale = 64, 65, 66, 67, 68, 69, 70, 71, 72
    sA, sBb, sC, sD, sE2, sF2 = 73, 74, 75, 76, 77, 78
    sQoff, sIt, sOffQ, sItem, sK = 79, 80, 81, 82, 83
    sS, sOff, sPub, sFree, sTile, sO0, sO1, sN0, sN1, sLag, sDec = 66, 67, 68, 69, 70, 71, 72, 79, 80, 81, 82
    sP0, sP1, sSw = 34, 64, 42
    sSt = 84
    SQ, SK, SV, SWS, SO, SD = "s[8:11]", "s[12:15]", "s[16:19]", "s[20:23]", "s[24:27]", "s[28:31]"

    def vr(a, n):
        return f"v[{a}:{a + n - 1}]" if n > 1 else f"v{a}"

    def adv(s):
        return [f"s_add_u32 s{s}, s{s}, {SLOT}", f"s_cmp_ge_u32 s{s}, {RING}", f"s_cselect_b32 s{s}, 0, s{s}"]

    def AL(lst):
        for x in lst:
            A(x)

    def budget():
        A(f"s_sub_u32 s{sBud}, s{sBud}, 1\ns_cbranch_scc1 L_end")

    def st(i):
        if stamp:
            A(f"{'s_memrealtime' if stamp == 1 else 's_memtime'} s[{sSt + 2 * i}:{sSt + 2 * i + 1}]")

    def dump_stamps(base):
        if not stamp:
            return
        A("s_waitcnt lgkmcnt(0)")
        for i in range(8):
            A(f"v_mov_b32 v{16 + i}, s{sSt + 2 * i}")
        A(f"s_mul_i32 s{sA}, s2, 96\ns_add_u32 s{sA}, s{sA}, {WSB - 256 * 96 + base}")
        A(f"v_mov_b32 v{vT0}, 0\ns_mov_b64 exec, 1")
        A(f"buffer_store_dwordx4 v[16:19], v{vT0}, {SWS}, s{sA} offen")
        A(f"buffer_store_dwordx4 v[20:23], v{vT0}, {SWS}, s{sA} offen offset:16")
        A("s_mov_b64 exec, -1")

    def box_off(dst, k):
        A(f"s_mul_i32 s{dst}, s{sGrp}, 6\ns_add_u32 s{dst}, s{dst}, {k}\ns_mul_i32 s{dst}, s{dst}, {BOX}")

    tabA = sum(p[0] << (4 * i) for i, p in enumerate(PAIRS))
    tabB = sum(p[1] << (4 * i) for i, p in enumerate(PAIRS))

    A(HDR.rstrip())
    A(f"; @launch grid=(256,1,1) block=(384,1,1) lds={LDS}")
    A('.amdgcn_target "amdgcn-amd-amdhsa--gfx950"\n.text')
    A(f".globl {NAME}\n.p2align 8\n.type {NAME},@function\n{NAME}:")
    A("s_cmp_ge_u32 s2, 256\ns_cbranch_scc1 L_end")
    A("s_load_dwordx16 s[48:63], s[0:1], 0")
    if remap:
        A(f"s_lshr_b32 s4, s2, {6 if remap == 1 else 7}\ns_add_u32 s4, s4, s2\ns_and_b32 s4, s4, 7\ns_and_b32 s2, s2, 0xf8\ns_or_b32 s2, s2, s4")
    if stamp:
        for i in range(8):
            A(f"s_mov_b64 s[{sSt + 2 * i}:{sSt + 2 * i + 1}], 0")
    st(0)
    A(f"v_lshrrev_b32 v{vT0}, 6, v0\nv_and_b32 v{vLane}, 63, v0")
    A(f"v_readfirstlane_b32 s{sW}, v{vT0}")
    A(f"v_lshlrev_b32 v{vL16}, 4, v{vLane}")
    A(f"s_and_b32 s{sH}, s2, 7\ns_lshr_b32 s{sRole}, s2, 6\ns_lshr_b32 s{sA}, s2, 1\ns_and_b32 s{sA}, s{sA}, 28")
    A(f"s_lshr_b32 s{sBA}, {hex(tabA)}, s{sA}\ns_lshr_b32 s{sBB}, {hex(tabB)}, s{sA}")
    A(f"s_and_b32 s{sBA}, s{sBA}, 15\ns_and_b32 s{sBB}, s{sBB}, 15")
    A(f"s_lshl_b32 s{sA}, s{sBA}, 2\ns_lshl_b32 s{sBb}, s{sBB}, 2")
    A(f"s_lshl_b32 s{sC}, s{sBA}, 10\ns_lshl_b32 s{sD}, s{sBB}, 10")
    A(f"v_add_u32 v{vT2}, s{sC}, v{vL16}\nv_add_u32 v{vT3}, s{sD}, v{vL16}")
    A(f"s_mov_b32 s{sBud}, 0x400000\ns_and_b32 s{sGrp}, s2, 63")
    A(f"s_cmp_lt_u32 s{sRole}, 2\ns_cselect_b32 s{sPar}, 4096, 0")
    A(f"v_lshlrev_b32 v{vDoneA}, 2, v0\nv_add_u32 v{vDoneA}, {A_DONE}, v{vDoneA}")
    A(f"v_mov_b32 v{vDone}, 0")
    A(f"ds_write_b32 v{vDoneA}, v{vDone}\nds_write_b32 v{vDoneA}, v{vDone} offset:1536")
    A(f"v_mov_b32 v{vRdyA}, {A_READY}")
    A(f"v_lshrrev_b32 v{vT0}, 4, v{vLane}\nv_and_b32 v{vT1}, 15, v{vLane}")
    A(f"v_xor_b32 v{vU}, v{vT1}, v{vT0}\nv_lshlrev_b32 v{vU}, 4, v{vU}\nv_lshl_add_u32 v{vQd}, v{vT0}, 8, v{vU}")
    A(f"s_lshr_b32 s{sE2}, s2, 3\ns_bitcmp1_b32 {hex(0xff000000 | firstb << 8)}, s{sE2}\ns_cselect_b32 s{sB}, s{sBB}, s{sBA}")
    A(f"s_mul_i32 s{sOffQ}, s{sW}, 8704\ns_add_u32 s{sOffQ}, s{sOffQ}, {PB}")
    A(f"s_mov_b32 s10, {QB}\ns_mov_b32 s11, 0x20000")

    def q_own():
        A(f"s_lshl_b32 s{sE2}, s{sB}, 3\ns_add_u32 s{sE2}, s{sE2}, s{sH}\ns_lshl_b32 s{sE2}, s{sE2}, 2\ns_add_u32 s{sE2}, s{sE2}, s{sW}")
        A(f"s_lshl_b32 s{sE2}, s{sE2}, 13\ns_add_u32 s{sE2}, s{sE2}, s{sPar}\ns_xor_b32 s{sF2}, s{sE2}, 4096")

    def q_own_loads():
        for r in range(8):
            A(f"s_add_u32 m0, s{sOffQ}, {r * 1088 - (r & 3) * 1024}\ns_nop 0")
            A(f"buffer_load_dwordx4 v{vQd}, {SQ}, s{sE2 if r < 4 else sF2} offen offset:{(r & 3) * 1024} {qpol} lds")

    q_own()
    A(f"s_mov_b32 m0, {A_TAB}\ns_cmp_ge_u32 s{sW}, 4")
    A("s_waitcnt lgkmcnt(0)")
    A("s_cbranch_scc0 L_notab")
    A(f"global_load_lds_dwordx4 v{vT2}, s[54:55]\ns_mov_b32 m0, {A_TAB + 1024}\ns_setprio {lprio}\nglobal_load_lds_dwordx4 v{vT3}, s[54:55]")
    A("L_notab:")
    A(f"s_load_dword s{sCntA}, s[56:57], s{sA}\ns_load_dword s{sCntB}, s[56:57], s{sBb}")
    A(f"s_mov_b32 s8, s48\ns_mov_b32 s9, s49\ns_cmp_lt_u32 s{sW}, 4")
    A("s_barrier")
    A("s_cbranch_scc0 L_noq")
    q_own_loads()
    A("L_noq:")
    for srd, p, n in ((12, 50, KVB), (16, 52, KVB), (20, 62, WSB), (24, 58, QB), (28, 60, 256)):
        A(f"s_mov_b32 s{srd}, s{p}\ns_mov_b32 s{srd + 1}, s{p + 1}\ns_mov_b32 s{srd + 2}, {n}\n"
          f"s_mov_b32 s{srd + 3}, 0x20000")
    if pre:
        A(f"s_cmp_lt_u32 s{sW}, 4\ns_cbranch_scc0 L_nopre")
        A(f"s_bitcmp1_b32 s{sRole}, 0\ns_cselect_b32 s{sE2}, s{sBB}, s{sBA}")
        A(f"s_lshl_b32 s{sE2}, s{sE2}, 3\ns_add_u32 s{sE2}, s{sE2}, s{sH}\ns_lshl_b32 s{sE2}, s{sE2}, 2\ns_add_u32 s{sE2}, s{sE2}, s{sW}")
        A(f"s_lshl_b32 s{sE2}, s{sE2}, 13\ns_add_u32 s{sE2}, s{sE2}, s{sPar}")
        if pre == 1:
            A(f"v_lshlrev_b32 v{vT2}, 6, v{vLane}\nbuffer_load_dword v{VF}, v{vT2}, {SO}, s{sE2} offen {prepol}")
        else:
            for j in range(4):
                A(f"v_mov_b32 v{VF + j}, -1")
            for i in range(4):
                A(f"buffer_store_dwordx4 {vr(VF, 4)}, v{vL16}, {SO}, s{sE2} offen offset:{i * 1024} {prepol}")
        A("L_nopre:")
    box_off(sE2, 0)
    A(f"v_lshrrev_b32 v{vT2}, 2, v{vLane}\nv_min_u32 v{vT2}, 5, v{vT2}\nv_mul_u32_u24 v{vT2}, {BOX}, v{vT2}")
    A(f"v_and_b32 v{vT3}, 3, v{vLane}\nv_lshl_add_u32 v{vFa}, v{vT3}, 7, v{vT2}\ns_add_u32 s{sE2}, s{sE2}, 16896\nv_add_u32 v{vFa}, s{sE2}, v{vFa}")
    A(f"s_cmp_eq_u32 s{sW}, 5\ns_cbranch_scc0 L_nosnap")
    A(f"buffer_load_dword v{vF0}, v{vFa}, {SWS}, 0 offen sc1")
    A(f"v_add_u32 v{vT2}, {A_HIST}, v{vL16}")
    for j in range(4):
        A(f"v_mov_b32 v{68 + j}, 0")
    A(f"ds_write_b128 v{vT2}, v[68:71]")
    if touch:
        A(f"s_lshr_b32 s{sE2}, s2, 3\ns_lshl_b32 s{sE2}, s{sE2}, 22\nv_and_b32 v{vT2}, 1, v{vLane}\nv_lshlrev_b32 v{vT2}, 21, v{vT2}")
        A(f"buffer_load_dword v{vPoll}, v{vT2}, {SK}, s{sE2} offen nt\nbuffer_load_dword v{vPoll2}, v{vT2}, {SV}, s{sE2} offen nt")
    A("L_nosnap:")
    A(f"v_and_b32 v{vDnA}, 3, v{vLane}\nv_lshlrev_b32 v{vDnA}, 8, v{vDnA}\nv_add_u32 v{vDnA}, {A_DONE}, v{vDnA}")
    A(f"s_lshl_b32 s{sE2}, s{sH}, 8")
    A(f"v_lshl_add_u32 v{vT2}, v{vT0}, 11, v{vU}\nv_add_u32 v{vKo}, s{sE2}, v{vT2}")
    A(f"v_and_b32 v{vT2}, 1, v{vT0}\nv_lshlrev_b32 v{vT2}, 1, v{vT2}\nv_xor_b32 v{vT2}, v{vT2}, v{vT1}\nv_lshlrev_b32 v{vT2}, 4, v{vT2}")
    A(f"v_lshl_add_u32 v{vT2}, v{vT0}, 13, v{vT2}\nv_add_u32 v{vVo}, s{sE2}, v{vT2}")
    for j in range(1, 4):
        A(f"v_add_u32 v{vKo + j}, {j * (8192 - 1088)}, v{vKo}\nv_add_u32 v{vVo + j}, {j * (2048 - 1088)}, v{vVo}")
    A("s_waitcnt lgkmcnt(0)")
    st(1)
    A(f"s_min_i32 s{sA}, s{sCntA}, 0x1000\ns_cmp_lt_i32 s{sA}, 1\ns_cselect_b32 s{sA}, 0x1000, s{sA}\ns_cselect_b32 s{sC}, 1, 0")
    A(f"s_min_i32 s{sBb}, s{sCntB}, 0x1000\ns_cmp_lt_i32 s{sBb}, 1\ns_cselect_b32 s{sBb}, 0x1000, s{sBb}\ns_cselect_b32 s{sD}, 1, 0")
    A(f"s_mov_b32 s{sE2}, s{sBA}\ns_cmp_lt_u32 s{sA}, s{sBb}\ns_cselect_b32 s{sSwap}, 1, 0")
    A(f"s_cselect_b32 s{sCntA}, s{sBb}, s{sA}\ns_cselect_b32 s{sCntB}, s{sA}, s{sBb}")
    A(f"s_cselect_b32 s{sBA}, s{sBB}, s{sBA}\ns_cselect_b32 s{sBB}, s{sE2}, s{sBB}")
    A(f"s_cselect_b32 s{sZ}, s{sD}, s{sC}\ns_cselect_b32 s{sD}, s{sC}, s{sD}\ns_lshl_b32 s{sD}, s{sD}, 1\ns_or_b32 s{sZ}, s{sZ}, s{sD}")
    A(f"s_cmp_eq_u32 s{sRole}, 3\ns_cselect_b32 s{sNv}, s{sCntB}, s{sCntA}")
    A(f"s_sub_u32 s{sNv}, s{sNv}, 1\ns_and_b32 s{sNv}, s{sNv}, 31\ns_add_u32 s{sNv}, s{sNv}, 1")
    A(f"s_add_u32 s{sTopA}, s{sCntA}, 31\ns_lshr_b32 s{sTopA}, s{sTopA}, 5")
    A(f"s_add_u32 s{sTopB}, s{sCntB}, 31\ns_lshr_b32 s{sTopB}, s{sTopB}, 5")
    A(f"s_add_u32 s{sA}, s{sTopA}, s{sTopB}\ns_add_u32 s{sA}, s{sA}, {2 * delta + ex + ra}\ns_lshr_b32 s{sA}, s{sA}, 2\ns_max_u32 s{sA}, s{sA}, 1")
    A(f"s_min_u32 s{sCntA}, s{sA}, s{sTopA}\ns_min_u32 s{sCntB}, s{sA}, s{sTopB}")
    if th2:
        A(f"s_add_u32 s{sC}, s{sTopA}, 1\ns_lshr_b32 s{sC}, s{sC}, 1\ns_add_u32 s{sD}, s{sTopB}, 1\ns_lshr_b32 s{sD}, s{sD}, 1")
        A(f"s_sub_u32 s{sA}, s{sTopA}, s{sTopB}\ns_cmp_le_u32 s{sA}, {th2}")
        A(f"s_cselect_b32 s{sCntA}, s{sC}, s{sCntA}\ns_cselect_b32 s{sCntB}, s{sD}, s{sCntB}\ns_cselect_b32 s{sF2}, 0x1000, {theta}")
    A(f"s_sub_u32 s{sC}, s{sTopA}, s{sCntA}\ns_sub_u32 s{sD}, s{sTopB}, s{sCntB}")
    A(f"s_add_u32 s{sBb}, s{sC}, s{sD}\ns_add_u32 s{sBb}, s{sBb}, {ex + rx}\ns_lshr_b32 s{sBb}, s{sBb}, 1\ns_min_u32 s{sBb}, s{sBb}, s{sC}")
    A(f"s_sub_u32 s{sExp}, s{sC}, s{sBb}\ns_cmp_le_u32 s{sExp}, {f's{sF2}' if th2 else theta}\ns_cselect_b32 s{sBb}, s{sC}, s{sBb}\ns_cselect_b32 s{sExp}, 0, s{sExp}")
    A(f"s_cmp_ge_u32 s{sRole}, 2\ns_cbranch_scc1 L_plan_top")
    A(f"s_mov_b32 s{sNv}, 32\ns_mov_b32 s{sTopB}, s{sD}\ns_mov_b32 s{sCntB}, s{sD}")
    A(f"s_cmp_eq_u32 s{sRole}, 0\ns_cselect_b32 s{sCntA}, s{sBb}, s{sExp}\ns_cselect_b32 s{sTopA}, s{sBb}, s{sC}")
    A("L_plan_top:")
    A(f"s_bitcmp1_b32 s{sRole}, 0\ns_cselect_b32 s{sCntB}, s{sCntB}, 0\ns_cselect_b32 s{sExp}, 0, s{sExp}")
    A(f"s_cmp_eq_u32 s{sRole}, 3\ns_cselect_b32 s{sCntA}, 0, s{sCntA}")
    A(f"s_cmp_lt_u32 s{sW}, 4\ns_cbranch_scc1 L_consumer")
    A(f"s_sub_u32 s{sA}, s{sW}, 4\ns_mul_i32 s{sA}, s{sA}, {k0}\nv_add_u32 v{vRow + 2}, s{sA}, v{vLane}")
    A(f"s_add_u32 s{sCnt}, s{sCntA}, s{sCntB}\ns_add_u32 s{sBb}, s{sTopB}, s{sCntA}\nv_cmp_gt_u32 vcc, s{sCntA}, v{vRow + 2}")
    A(f"v_mov_b32 v{vT2}, s{sTopA}\nv_mov_b32 v{vT3}, s{sBb}\ns_lshl_b32 s{sA}, s{sSwap}, 10\ns_add_u32 s{sA}, s{sA}, {A_TAB}")
    A(f"v_cndmask_b32 v{vT2}, v{vT3}, v{vT2}, vcc\ns_lshl_b32 s{sBb}, s{sSwap}, 10\ns_sub_u32 s{sBb}, {A_TAB + 1024}, s{sBb}")
    A(f"v_xad_u32 v{vT2}, v{vRow + 2}, -1, v{vT2}\nv_mov_b32 v{vT3}, s{sA}\nv_mov_b32 v{vRow}, s{sBb}")
    A(f"v_and_b32 v{vT2}, 127, v{vT2}\nv_cndmask_b32 v{vT3}, v{vRow}, v{vT3}, vcc\nv_lshl_add_u32 v{vT2}, v{vT2}, 3, v{vT3}")
    A(f"s_cmp_eq_u32 s{sW}, 5\ns_cbranch_scc1 L_helper")

    def min4(dst, add):
        A(f"v_readlane_b32 s{sA}, v{vDn}, 0\nv_readlane_b32 s{sBb}, v{vDn}, 1\nv_readlane_b32 s{sC}, v{vDn}, 2\n"
          f"v_readlane_b32 s{sD}, v{vDn}, 3")
        A(f"s_min_u32 s{sA}, s{sA}, s{sBb}\ns_min_u32 s{sC}, s{sC}, s{sD}\ns_min_u32 s{dst}, s{sA}, s{sC}")
        if add:
            A(f"s_add_u32 s{dst}, s{dst}, {add}")

    A(f"s_cmp_eq_u32 s{sCnt}, 0\ns_cbranch_scc1 L_ldone")
    A(f"s_waitcnt vmcnt(0)\nds_read_b64 {vr(vRow, 2)}, v{vT2}")
    st(2)
    A(f"s_mov_b32 s{sS}, 1\ns_mov_b32 s{sOff}, {SLOT}\ns_mov_b32 s{sPub}, 0\ns_mov_b32 s{sFree}, {NS}")
    A(f"s_mov_b32 s{sTile}, 1\ns_mov_b32 s{sSw}, {k0 if not nosort else 64}\ns_mov_b32 m0, 0")
    A(f"s_waitcnt lgkmcnt(0)\nv_lshlrev_b32 v{vRow}, 15, v{vRow}\nv_lshlrev_b32 v{vRow + 1}, 15, v{vRow + 1}")
    A(f"v_readlane_b32 s{sA}, v{vRow}, 0\nv_readlane_b32 s{sBb}, v{vRow + 1}, 0\nv_readlane_b32 s{sN0}, v{vRow}, 1\nv_readlane_b32 s{sN1}, v{vRow + 1}, 1")
    A(f"s_mov_b32 s{sO0}, s{sA}\ns_mov_b32 s{sO1}, s{sBb}")
    for g in range(2):
        if g:
            A("s_mov_b32 m0, 4352\ns_nop 0")
        for j in range(4):
            A(f"buffer_load_dwordx4 v{vKo + j}, {SK}, s{sO0 + g} offen offset:{j * 1088} {pol} lds")
    if lag:
        A(f"s_mov_b32 s{sLag}, {lag}\ns_lshr_b32 s{sDec}, s2, 3\ns_and_b32 s{sDec}, s{sDec}, 7\ns_add_u32 s{sDec}, s{sDec}, {dec0}")
    A(f"s_sub_u32 s{sK}, s{sCnt}, {base}\ns_max_i32 s{sK}, s{sK}, 0\ns_mul_i32 s{sK}, s{sK}, {kb}")
    A(f"s_min_u32 s{sA}, s{sCntA}, s{sCntB}\ns_min_u32 s{sA}, s{sA}, 1\ns_mul_i32 s{sA}, s{sA}, {b1}\ns_add_u32 s{sK}, s{sK}, s{sA}")
    A(f"s_min_u32 s{sK}, s{sK}, {base - n0 - 1}")
    A(f"v_lshlrev_b32 v{vT2}, 3, v{vLane}\nv_add_u32 v{vT2}, {A_LIST}, v{vT2}\nv_mov_b32 v{vT3}, {A_SIG}")
    A(f"s_sub_u32 s{sCnt}, s{sCnt}, 1\ns_cmp_le_u32 s{sCnt}, s{sK}\ns_cbranch_scc1 L_lt_aend")

    def next_offsets(tag):
        A(f"s_add_u32 s{sTile}, s{sTile}, 1\ns_cmp_eq_u32 s{sTile}, s{sSw}\ns_cbranch_scc1 L_sw_{tag}")
        A(f"L_swd_{tag}:")
        A(f"v_readlane_b32 s{sN0}, v{vRow}, s{sTile}\nv_readlane_b32 s{sN1}, v{vRow + 1}, s{sTile}")

    def publish(back, lagged):
        if lagged:
            A(f"s_sub_u32 s{sA}, s{sS}, s{sLag}\ns_sub_u32 s{sA}, s{sA}, {back}")
        else:
            A(f"s_sub_u32 s{sA}, s{sS}, {back}")
        A(f"s_max_i32 s{sPub}, s{sPub}, s{sA}\nv_mov_b32 v{vPub}, s{sPub}")

    def stage_loop(tag, w, stop):
        A(f"L_lt_{tag}:")
        A(f"s_mov_b32 s{sP0}, s{sO0}\ns_mov_b32 s{sP1}, s{sO1}\ns_mov_b32 s{sO0}, s{sN0}\ns_mov_b32 s{sO1}, s{sN1}")
        A(f"s_cmp_lt_u32 s{sS}, s{sFree}\ns_cbranch_scc0 L_full_{tag}")
        A(f"L_free_{tag}:")
        pub_i = -(-((w - gran) % 16) // gran) * gran
        back = (w - gran) // 16
        if pub_i == 16:
            pub_i, back = 0, back + 1
        for i in range(16):
            g, j = i >> 2, i & 3
            srd, vo, so = ((SK, vKo, sO0), (SK, vKo, sO1), (SV, vVo, sP0), (SV, vVo, sP1))[g]
            if j == 0:
                A(f"s_mov_b32 m0, s{sOff}" if g == 0 else f"s_add_u32 m0, s{sOff}, {g * 4352}")
            if i == pub_i:
                publish(back, lag)
            if i % gran == 0:
                A(f"s_waitcnt vmcnt({w - gran})")
            elif j == 0:
                A("s_nop 0")
            if i == pub_i:
                A(f"ds_write_b32 v{vDoneA}, v{vPub}")
            A(f"buffer_load_dwordx4 v{vo + j}, {srd}, s{so} offen offset:{j * 1088} {pol} lds")
            if i == 3:
                next_offsets(tag)
            if i == 11:
                A(f"ds_read_b32 v{vDn}, v{vDnA}")
        A(f"s_add_u32 s{sS}, s{sS}, 1")
        AL(adv(sOff))
        if stamp:
            for k, n in ((5, 8), (6, 24), (7, 40)):
                A(f"s_cmp_lg_u32 s{sS}, {n}\ns_cbranch_scc1 L_ns{tag}{k}")
                st(k)
                A(f"L_ns{tag}{k}:")
        A("s_waitcnt lgkmcnt(0)")
        min4(sFree, NS)
        if noload:
            A(f"s_cmp_lt_u32 s{sS}, {NS}\ns_cbranch_scc1 L_nl{tag}\ns_waitcnt vmcnt(0)\nv_mov_b32 v{vPub}, 0x7fffffff\n"
              f"ds_write_b32 v{vDoneA}, v{vPub}\ns_branch L_ldone\nL_nl{tag}:")
        if tag in "ab" and lag:
            A(f"s_cmp_ge_u32 s{sS}, s{sDec}\ns_cselect_b32 s{sA}, 1, 0\ns_cselect_b32 s{sBb}, {decs}, 0")
            A(f"s_add_u32 s{sDec}, s{sDec}, s{sBb}\ns_sub_u32 s{sLag}, s{sLag}, s{sA}\ns_max_i32 s{sLag}, s{sLag}, 0")
        if tag == "z":
            A(f"s_sub_u32 s{sCnt}, s{sCnt}, 1\ns_cmp_le_u32 s{sCnt}, {stop}\ns_cbranch_scc1 L_lt_aend")
            A(f"s_cmp_lt_u32 s{sS}, {n0}\ns_cbranch_scc1 L_lt_z")
        else:
            A(f"s_sub_u32 s{sCnt}, s{sCnt}, 1\ns_cmp_gt_u32 s{sCnt}, {stop}\ns_cbranch_scc1 L_lt_{tag}")

    if n0:
        stage_loop("z", win0, f"s{sK}")
    stage_loop("a", win, f"s{sK}")
    A("L_lt_aend:")
    A(f"s_cmp_eq_u32 s{sCnt}, 0\ns_cbranch_scc1 L_lsegend")
    stage_loop("b", win2, "0")
    A("L_lsegend:")
    A(f"s_cmp_lt_u32 s{sS}, s{sFree}\ns_cbranch_scc0 L_full_e")
    A("L_free_e:")
    for g in (2, 3):
        A(f"s_add_u32 m0, s{sOff}, {g * 4352}\ns_nop 0")
        for j in range(4):
            A(f"buffer_load_dwordx4 v{vVo + j}, {SV}, s{sO0 if g == 2 else sO1} offen offset:{j * 1088} {pol} lds")
    st(3)
    for back in range((wmax - 1) // 16, -2, -1):
        publish(back, False) if back >= 0 else A(f"s_add_u32 s{sA}, s{sS}, 1\nv_mov_b32 v{vPub}, s{sA}")
        A(f"s_waitcnt vmcnt({16 * back + 8 if back >= 0 else 0})\nds_write_b32 v{vDoneA}, v{vPub}")
    A("L_ldone:")
    st(4)
    dump_stamps(0)
    A("s_endpgm")
    for tag in ("z" if n0 else "") + "ab":
        A(f"L_sw_{tag}:")
        budget()
        A(f"ds_read_b32 v{vDn}, v{vT3} offset:4\nds_read_b64 {vr(vRow, 2)}, v{vT2}\ns_waitcnt lgkmcnt(0)\nv_readfirstlane_b32 s{sA}, v{vDn}\ns_nop 0")
        A(f"s_cmp_eq_u32 s{sA}, 0\ns_cbranch_scc1 L_sw_{tag}")
        A(f"s_mov_b32 s{sTile}, 0\ns_mov_b32 s{sSw}, -1\ns_branch L_swd_{tag}")
    for tag in ("z" if n0 else "") + "abe":
        A(f"L_full_{tag}:")
        budget()
        A(f"ds_read_b32 v{vDn}, v{vDnA}\ns_waitcnt lgkmcnt(0)")
        min4(sFree, NS)
        A(f"s_cmp_lt_u32 s{sS}, s{sFree}\ns_cbranch_scc0 L_full_{tag}\ns_branch L_free_{tag}")

    A("L_helper:")
    a_0, a_1, p_0, p_1, hh, tt, one = 64, 65, 66, 67, 68, 96, 75
    A(f"s_waitcnt vmcnt(1)\nds_read_b64 {vr(vRow, 2)}, v{vT2}")
    A(f"v_mov_b32 v{a_0}, {A_HIST}\nv_mov_b32 v{a_1}, {A_HIST + 512}\nv_add_u32 v{vT3}, {A_HIST}, v{vL16}")
    A(f"v_cndmask_b32 v{p_0}, v{a_1}, v{a_0}, vcc\nv_cmp_gt_u32 vcc, s{sCnt}, v{vRow + 2}\nv_mov_b32 v{one}, 1")
    A(f"s_waitcnt lgkmcnt(0)\nv_bfe_u32 v{a_0}, v{vRow}, {bsh}, 7\nv_bfe_u32 v{a_1}, v{vRow + 1}, {bsh}, 7")
    A(f"v_lshl_add_u32 v{a_0}, v{a_0}, 2, v{p_0}\nv_lshl_add_u32 v{a_1}, v{a_1}, 2, v{p_0}")
    A(f"s_mov_b64 s[48:49], vcc\ns_mov_b64 exec, vcc")
    A(f"ds_add_rtn_u32 v{p_0}, v{a_0}, v{one}\nds_add_rtn_u32 v{p_1}, v{a_1}, v{one}")
    A(f"s_mov_b64 exec, -1\nds_read_b128 {vr(hh, 4)}, v{vT3}")
    A(f"v_lshlrev_b32 v{vRow}, 15, v{vRow}\nv_lshlrev_b32 v{vRow + 1}, 15, v{vRow + 1}\ns_waitcnt lgkmcnt(0)")
    A(f"v_add_u32 v{hh + 1}, v{hh}, v{hh + 1}\nv_add_u32 v{hh + 2}, v{hh + 1}, v{hh + 2}\nv_add_u32 v{hh + 3}, v{hh + 2}, v{hh + 3}")
    A(f"v_mov_b32 v{tt}, v{hh + 3}\ns_nop 1")
    for sh in (1, 2, 4, 8):
        A(f"v_add_u32_dpp v{tt}, v{tt}, v{tt} row_shr:{sh} row_mask:0xf bank_mask:0xf bound_ctrl:0\ns_nop 1")
    A(f"v_add_u32_dpp v{tt}, v{tt}, v{tt} row_bcast:15 row_mask:0xa bank_mask:0xf\ns_nop 1")
    A(f"v_add_u32_dpp v{tt}, v{tt}, v{tt} row_bcast:31 row_mask:0xc bank_mask:0xf")
    A(f"v_sub_u32 v{tt}, v{tt}, v{hh + 3}")
    for j in range(3):
        A(f"v_add_u32 v{tt + 1 + j}, v{tt}, v{hh + j}")
    A(f"ds_write_b128 v{vT3}, {vr(tt, 4)}\nds_read_b32 v{a_0}, v{a_0}\nds_read_b32 v{a_1}, v{a_1}")
    A(f"v_mov_b32 v{vT3}, {A_LIST}\nv_mov_b32 v{vT2}, {A_SIG}\ns_mov_b64 exec, s[48:49]\ns_waitcnt lgkmcnt(0)")
    A(f"v_add_u32 v{p_0}, v{p_0}, v{a_0}\nv_add_u32 v{p_1}, v{p_1}, v{a_1}")
    A(f"v_lshl_add_u32 v{p_0}, v{p_0}, 2, v{vT3}\nv_lshl_add_u32 v{p_1}, v{p_1}, 2, v{vT3}")
    A(f"ds_write_b32 v{p_0}, v{vRow}\nds_write_b32 v{p_1}, v{vRow + 1}")
    A(f"s_mov_b64 exec, -1\nds_write_b32 v{vT2}, v{one} offset:4")
    st(5)
    A(f"s_setprio 0\ns_mov_b32 s{sItem}, 1")
    A(f"s_cmp_eq_u32 s{sCntA}, 0\ns_cselect_b32 s{sCntB}, 0, s{sCntB}")

    def pb_free(tag):
        A(f"s_branch L_hfree_{tag}")
        A(f"L_hfree0_{tag}:")
        budget()
        A(f"s_sleep {psleep}")
        A(f"L_hfree_{tag}:")
        A(f"ds_read_b32 v{vDn}, v{vDnA} offset:1536\ns_waitcnt lgkmcnt(0)")
        min4(sA, 0)
        A(f"s_cmp_lt_u32 s{sA}, s{sItem}\ns_cbranch_scc1 L_hfree0_{tag}")

    def pb_publish():
        A(f"s_add_u32 s{sItem}, s{sItem}, 1\nv_mov_b32 v{vPub}, s{sItem}\ns_waitcnt vmcnt(0)\nds_write_b32 v{vDoneA}, v{vPub}")

    def q_item(w):
        A(f"s_lshl_b32 s{sO1}, s{sB}, 3\ns_add_u32 s{sO1}, s{sO1}, s{sH}\ns_lshl_b32 s{sO1}, s{sO1}, 15\ns_xor_b32 s{sO0}, s{sO1}, s{sPar}")
        for r in range(32):
            A(f"s_mov_b32 m0, {PB + r * 1088 - (r & 3) * 1024}")
            if r and (r & 3) == 0:
                A(f"s_add_u32 s{sO1}, s{sO1}, 4096\ns_xor_b32 s{sO0}, s{sO1}, s{sPar}")
            elif w and r >= w:
                A(f"s_waitcnt vmcnt({w - 1})")
            else:
                A("s_nop 0")
            A(f"buffer_load_dwordx4 v{vQd}, {SQ}, s{sO0} offen offset:{(r & 3) * 1024} {qpol} lds")

    def wait_progress(tag):
        A(f"s_branch L_hp_{tag}")
        A(f"L_hp0_{tag}:")
        budget()
        A(f"s_sleep {psleep}")
        A(f"L_hp_{tag}:")
        A(f"ds_read_b32 v{vF}, v{vRdyA}\ns_waitcnt lgkmcnt(0)\nv_readfirstlane_b32 s{sF}, v{vF}\ns_nop 0")
        A(f"s_cmp_lt_u32 s{sF}, s{sNeed}\ns_cbranch_scc1 L_hp0_{tag}")

    A(f"s_lshl_b32 s{sA}, s{sGrp}, 2\nv_mov_b32 v{vDb}, s{sA}\ns_getreg_b32 s{sA}, hwreg(HW_REG_XCC_ID, 0, 4)")
    A(f"s_or_b32 s{sD}, s{sA}, 16\ns_lshl_b32 s{sBb}, s{sRole}, 3\ns_lshl_b32 s{sA}, s{sD}, s{sBb}\ns_mul_i32 s{sK}, s{sD}, 0x01010101")
    A(f"s_waitcnt vmcnt(0)\nv_mov_b32 v{vPoll}, s{sA}")
    A(f"ds_write_b32 v{vDoneA}, v{vF0} offset:1536")
    A(f"s_mov_b64 exec, 1\nbuffer_atomic_or v{vPoll}, v{vDb}, {SD}, 0 offen sc1\ns_mov_b64 exec, -1")
    st(2)
    A(f"s_cmp_eq_u32 s{sCntB}, 0\ns_cbranch_scc1 L_hq2")
    A(f"s_mov_b32 s{sB}, s{sBB}")
    pb_free("q")
    q_item(hwin)
    A(f"v_mov_b32 v{vPub}, 1\ns_waitcnt vmcnt(0)\nds_write_b32 v{vDoneA}, v{vPub}")
    A("L_hq2:")
    A(f"s_lshr_b32 s{sIt}, s2, 3\ns_and_b32 s{sIt}, s{sIt}, {cmask}")
    if rmode < 2:
        A(f"s_add_u32 s{sNeed}, s{sIt}, {chk0}\ns_min_u32 s{sNeed}, s{sNeed}, s{sCnt}")
        wait_progress("c")
        A("s_branch L_hchk")
        A("L_hchk0:")
        budget()
        A(f"s_sleep {4 * psleep}")
        A("L_hchk:")
        A(f"buffer_load_dword v{vPoll2}, v{vDb}, {SD}, 0 offen sc1\ns_waitcnt vmcnt(0)")
        A(f"v_readfirstlane_b32 s{sA}, v{vPoll2}\ns_nop 0\ns_and_b32 s{sBb}, s{sA}, 0x10101010\ns_cmp_eq_u32 s{sBb}, 0x10101010\ns_cbranch_scc0 L_hchk0")
        A(f"s_cmp_eq_u32 s{sA}, s{sK}\ns_cselect_b32 s{sK}, 1, 2")
    if force or rmode >= 2:
        A(f"s_mov_b32 s{sK}, {force or 1}")
    A(f"v_mov_b32 v{vPoll2}, s{sK}")
    A(f"v_mov_b32 v{vT2}, {A_SIG}\nds_write_b32 v{vT2}, v{vPoll2}")
    A(f"s_cmp_eq_u32 s{sRole}, 1\ns_cbranch_scc0 L_hdone\ns_cmp_eq_u32 s{sCntA}, 0\ns_cbranch_scc1 L_hdone")
    A(f"s_mov_b32 s{sItem}, 2")
    pb_free("h")
    A(f"v_add_u32 v{vT3}, {PB}, v{vL16}\nv_mul_u32_u24 v{vT2}, 8704, v{vT0}\nv_lshl_add_u32 v{vT2}, v{vT1}, 4, v{vT2}")
    A(f"v_add_u32 v{vT2}, {PB + 8192}, v{vT2}")
    for r in range(32):
        A(f"ds_read_b128 {vr(HR + 4 * r, 4)}, v{vT3} offset:{(r >> 3) * 8704 + (r & 7) * 1024}")
    A(f"ds_read_b128 {vr(HR + 128, 4)}, v{vT2}")
    box_off(sE2, 4)
    A(f"v_lshrrev_b32 v{vT2}, 3, v{vT1}\nv_mul_u32_u24 v{vT2}, {BOX}, v{vT2}\nv_lshl_add_u32 v{vT2}, v{vT0}, 7, v{vT2}")
    A(f"v_and_b32 v{vT3}, 7, v{vT1}\nv_lshl_add_u32 v{vT2}, v{vT3}, 4, v{vT2}")
    A(f"v_add_u32 v{vF0}, 1, v{vF0}")
    A(f"s_cmp_eq_u32 s{sK}, 1\ns_cselect_b32 s{sA}, {lead}, 1\ns_sub_u32 s{sNeed}, s{sCnt}, s{sA}\ns_max_i32 s{sNeed}, s{sNeed}, 0")
    wait_progress("h")
    st(3)
    A(f"s_cmp_eq_u32 s{sK}, 1\ns_cbranch_scc0 L_hwt")
    for pl in (hpol, "sc1"):
        if pl == "sc1":
            A("L_hwt:")
        for r in range(32):
            if (r & 3) == 0:
                A(f"s_add_u32 s{sO1}, s{sE2}, {((r >> 2) & 1) * BOX + (r >> 3) * 4096}")
            A(f"buffer_store_dwordx4 {vr(HR + 4 * r, 4)}, v{vL16}, {SWS}, s{sO1} offen offset:{(r & 3) * 1024} {pl}")
        A(f"s_add_u32 s{sO0}, s{sE2}, 16384")
        A(f"buffer_store_dwordx4 {vr(HR + 128, 4)}, v{vT2}, {SWS}, s{sO0} offen {pl}")
        A("s_mov_b64 exec, 0xff0000\ns_waitcnt vmcnt(0)")
        A(f"buffer_store_dword v{vF0}, v{vFa}, {SWS}, 0 offen {pl}")
        A("s_mov_b64 exec, -1")
        if pl != "sc1":
            A("s_branch L_hdone")
    A("L_hdone:")
    if trace:
        A(f"s_cmp_eq_u32 s{sRole}, 0\ns_cbranch_scc0 L_end")
        A(f"s_mov_b32 s{sIt}, 0\nv_mov_b32 v100, 0\nv_mov_b32 v101, 0\nv_mov_b32 v102, 0\nv_mov_b32 v103, 0")
        A("L_tr:")
        A(f"s_memrealtime s[84:85]\ns_memtime s[86:87]\nds_read_b32 v{vF}, v{vRdyA}\nds_read_b32 v{vDn}, v{vDnA}\ns_waitcnt lgkmcnt(0)")
        A(f"v_readfirstlane_b32 s{sF}, v{vF}\nv_readfirstlane_b32 s{sA}, v{vDn}\ns_mov_b32 m0, s{sIt}\ns_nop 3")
        A(f"v_writelane_b32 v100, s84, m0\nv_writelane_b32 v101, s86, m0\nv_writelane_b32 v102, s{sF}, m0\nv_writelane_b32 v103, s{sA}, m0")
        A("L_tr2:")
        A(f"s_sleep 2\ns_memrealtime s[88:89]\ns_waitcnt lgkmcnt(0)\ns_sub_u32 s{sA}, s88, s84\ns_cmp_lt_u32 s{sA}, {trace}\ns_cbranch_scc1 L_tr2")
        A(f"s_add_u32 s{sIt}, s{sIt}, 1\ns_cmp_ge_u32 s{sF}, s{sCnt}\ns_cbranch_scc1 L_tr3\ns_cmp_lt_u32 s{sIt}, 64\ns_cbranch_scc1 L_tr")
        A("L_tr3:")
        A(f"s_lshl_b32 s{sA}, s2, 10\ns_add_u32 s{sA}, s{sA}, {WSB - 64 * 1024}")
        A(f"buffer_store_dwordx4 v[100:103], v{vL16}, {SWS}, s{sA} offen")
    st(4)
    dump_stamps(64)
    A("s_endpgm")

    A("L_consumer:")
    A(f"v_lshlrev_b32 v{vG4}, 2, v{vT0}")
    A(f"v_lshrrev_b32 v{vT2}, 2, v{vT1}\nv_mul_u32_u24 v{vT2}, 1088, v{vT2}\nv_and_b32 v{vT3}, 3, v{vT1}")
    A(f"v_lshl_add_u32 v{vKc}, v{vT3}, 8, v{vT2}\nv_xor_b32 v{vU}, v{vT3}, v{vT0}\nv_lshl_add_u32 v{vKc}, v{vU}, 4, v{vKc}")
    A(f"v_lshl_add_u32 v{vT2}, v{vT0}, 8, v{vT2}\nv_lshl_add_u32 v{vT2}, v{vT3}, 3, v{vT2}\nv_add_u32 v{vT2}, 8704, v{vT2}")
    A(f"v_and_b32 v{vU}, 1, v{vT0}\nv_lshl_add_u32 v{vV0c}, v{vU}, 5, v{vT2}\nv_xor_b32 v{vV1c}, 32, v{vV0c}")
    A(f"v_lshlrev_b32 v{vQo}, 8, v{vT1}\nv_lshl_add_u32 v{vQo}, v{vU}, 5, v{vQo}\nv_lshrrev_b32 v{vU}, 1, v{vT0}\nv_lshl_add_u32 v{vQo}, v{vU}, 4, v{vQo}")
    if fullrow:
        A(f"v_lshrrev_b32 v{vU}, 3, v{vT1}\nv_mul_u32_u24 v{vU}, {2048 - 64}, v{vU}\nv_sub_u32 v{vQo}, v{vQo}, v{vU}")
    for j in range(4):
        A(f"v_mov_b32 v{ON + j}, 0x3f803f80")
    A(f"v_lshlrev_b32 v{vPL}, 3, v{vT1}\nv_mov_b32 v{vPd}, 0")
    A(f"s_mov_b32 s{sT}, 0\ns_mov_b32 s{sOffK}, 0\ns_mov_b32 s{sItem}, 0")
    sSd, sSs, sFo, sOut, sPi, sHi, sPs, sHs, sPd, sHd, sMy, sLp, sLh = range(48, 61)
    A(f"s_bitcmp1_b32 s{sRole}, 0\ns_cselect_b32 s{sOut}, s{sBB}, s{sBA}")
    A(f"s_lshl_b32 s{sOut}, s{sOut}, 3\ns_add_u32 s{sOut}, s{sOut}, s{sH}\ns_lshl_b32 s{sOut}, s{sOut}, 2\n"
      f"s_add_u32 s{sOut}, s{sOut}, s{sW}\ns_lshl_b32 s{sOut}, s{sOut}, 13\ns_add_u32 s{sOut}, s{sOut}, s{sPar}")
    box_off(sMy, f"s{sRole}")
    A(f"s_lshl_b32 s{sC}, s{sW}, 12\ns_lshl_b32 s{sD}, s{sW}, 7\ns_add_u32 s{sD}, s{sD}, 16384\ns_add_u32 s{sFo}, s{sD}, 512")
    if alias:
        A(f"s_xor_b32 s{sSd}, s{sOut}, 4096")
    else:
        A(f"s_add_u32 s{sSd}, s{sMy}, s{sC}")
    A(f"s_add_u32 s{sSs}, s{sMy}, s{sD}\ns_add_u32 s{sMy}, s{sMy}, s{sFo}")
    A(f"s_xor_b32 s{sLp}, s{sRole}, 2\ns_lshr_b32 s{sLh}, s{sRole}, 1\ns_add_u32 s{sLh}, s{sLh}, 4")
    A(f"s_cmp_eq_u32 s{sExp}, 0\ns_cselect_b32 s{sLh}, s{sLp}, s{sLh}")
    box_off(sPi, f"s{sLp}")
    box_off(sHi, f"s{sLh}")
    A(f"s_add_u32 s{sPs}, s{sPi}, s{sD}\ns_add_u32 s{sHs}, s{sHi}, s{sD}\ns_add_u32 s{sHd}, s{sHi}, s{sC}")
    A(f"s_mov_b32 s{sPd}, s{sOut}" if alias else f"s_add_u32 s{sPd}, s{sPi}, s{sC}")
    if nopart:
        for x in (sPs, sHs, sPd, sHd):
            A(f"s_mov_b32 s{x}, {hex(OOB)}")

    sCs, sCr, sCt = 61, 62, 63
    A(f"s_mov_b32 s{sCs}, {SLOT}\ns_mov_b32 s{sCr}, {RING}\ns_mov_b32 s{sCt}, {hex(f2u(T))}")

    def zero_acc():
        for i in range(LA, O + 64):
            A(f"v_mov_b32 v{i}, 0")

    zero_acc()
    A(f"s_cmp_eq_u32 s{sCntA}, 0\ns_cselect_b32 s{sA}, s{sBB}, s{sBA}\ns_cmp_eq_u32 s{sA}, s{sB}\ns_cbranch_scc1 L_qok")
    A(f"s_mov_b32 s{sB}, s{sA}")
    q_own()
    A("s_waitcnt vmcnt(0)")
    q_own_loads()
    A("L_qok:")
    A(f"s_cmp_eq_u32 s{sCntA}, 0\ns_cbranch_scc1 L_segB")
    A(f"s_mov_b32 s{sCnt}, s{sCntA}\ns_bitcmp1_b32 s{sZ}, 0\ns_branch L_seg")
    A("L_segB:")
    A(f"s_cmp_eq_u32 s{sCntB}, 0\ns_cbranch_scc1 L_empty")
    A(f"s_mov_b32 s{sB}, s{sBB}\ns_mov_b32 s{sCnt}, s{sCntB}\ns_mov_b32 s{sCntA}, 0\ns_bitcmp1_b32 s{sZ}, 1")

    def spin(tag, off=0, need=None, le=False):
        A(f"L_spin_{tag}:")
        budget()
        A(f"ds_read_b32 v{vF}, v{vRdyA} offset:{off}\ns_waitcnt lgkmcnt(0)\nv_readfirstlane_b32 s{sF}, v{vF}\ns_nop 0")
        A(f"s_cmp_{'le' if le else 'lt'}_u32 s{sF}, s{need or sNeed}\ns_cbranch_scc1 L_spin_{tag}")

    def addrs():
        return [f"v_add_u32 v{vK}, s{sOffK}, v{vKc}", f"v_add_u32 v{vV0}, s{sOffK}, v{vV0c}",
                f"v_add_u32 v{vV1}, s{sOffK}, v{vV1c}"]

    def kreads(dst=KF):
        return [f"ds_read_b128 {vr(dst + 4 * f, 4)}, v{vK} offset:{(f & 1) * 4352 + (f >> 1) * 64}" for f in range(8)]

    def vreads(dst=VF):
        return [f"ds_read_b64_tr_b16 {vr(dst + 4 * dt + 2 * u, 2)}, v{vV1 if dt & 1 else vV0} "
                f"offset:{u * 4352 + (dt >> 1) * 64}" for dt in range(8) for u in range(2)]

    MF = "v_mfma_f32_16x16x32_bf16"

    def qk(first):
        out = []
        for ks, kh in ([(a, b) for a in range(4) for b in range(2)] if first else [(a, b) for b in range(2) for a in range(4)]):
            if True:
                for qh in range(2):
                    d = vr(S + 8 * qh + 4 * kh, 4)
                    c = d if ks else ("0" if first else vr(CM + 4 * qh, 4))
                    out.append(f"{MF} {d}, {vr(KF + 4 * (2 * ks + kh), 4)}, {vr(Q + 4 * (2 * ks + qh), 4)}, {c}")
        return out

    def pv(dt, qh, src=VF):
        d = vr(O + 32 * qh + 4 * dt, 4)
        return f"{MF} {d}, {vr(src + 4 * dt, 4)}, {vr(P + 4 * qh, 4)}, {d}"

    def rs(qh):
        return f"{MF} {vr(LA + 4 * qh, 4)}, {vr(ON, 4)}, {vr(P + 4 * qh, 4)}, {vr(LA + 4 * qh, 4)}"

    def cvt(j):
        return f"v_cvt_pk_bf16_f32 v{P + j}, v{E + 2 * j}, v{E + 2 * j + 1}"

    def maxes():
        o = []
        for a in (0, 3, 5):
            for qh, m in ((0, vMx), (1, vMx2)):
                b = S + 8 * qh + a
                o.append(f"v_max3_f32 v{m}, v{b}, v{b + 1}, v{b + 2}" if a == 0 else f"v_max3_f32 v{m}, v{m}, v{b}, v{b + 1}")
        return o

    def new_max(floor0):
        A(f"v_max_f32 v{vMx}, v{vMx}, v{S + 7}\nv_max_f32 v{vMx2}, v{vMx2}, v{S + 15}")
        for sw in ("v_permlane32_swap_b32", "v_permlane16_swap_b32"):
            A(f"v_mov_b32 v{vT0}, v{vMx}\nv_mov_b32 v{vT1}, v{vMx2}\ns_nop 0")
            A(f"{sw} v{vMx}, v{vT0}\n{sw} v{vMx2}, v{vT1}\ns_nop 0")
            A(f"v_max_f32 v{vMx}, v{vMx}, v{vT0}\nv_max_f32 v{vMx2}, v{vMx2}, v{vT1}")
        if floor0:
            A(f"v_max_f32 v{vMx}, 0, v{vMx}\nv_max_f32 v{vMx2}, 0, v{vMx2}")
        A(f"v_ceil_f32 v{vMx}, v{vMx}\nv_ceil_f32 v{vMx2}, v{vMx2}")

    def exp_shifted():
        for i in range(16):
            A(f"v_sub_f32 v{E + i}, v{S + i}, v{vMx if i < 8 else vMx2}")
        for i in range(16):
            A(f"v_exp_f32 v{E + i}, v{E + i}")

    def scale_acc(f, with_la=True):
        for qh in range(2):
            sel = "op_sel_hi:[1,0]" if qh == 0 else "op_sel:[0,1] op_sel_hi:[1,1]"
            for i in range(16):
                r = O + 32 * qh + 2 * i
                A(f"v_pk_mul_f32 {vr(r, 2)}, {vr(r, 2)}, {vr(f, 2)} {sel}")
            if with_la:
                A(f"v_mul_f32 v{LA + 4 * qh}, v{f + qh}, v{LA + 4 * qh}")

    def pack_o(i, dst=KF):
        for j in range(4):
            r = O + 8 * i + 2 * j
            A(f"v_cvt_pk_bf16_f32 v{dst + 4 * i + j}, v{r}, v{r + 1}")

    def park():
        A(f"v_add_u32 v{vT2}, s{sOffQ}, v{vL16}\nv_add_u32 v{vT3}, s{sOffQ}, v{vPL}")
        A(f"v_mov_b32 v{CM + 1}, v{LA}\nv_mov_b32 v{CM + 5}, v{LA + 4}")
        A(f"ds_write_b64 v{vT3}, {vr(CM, 2)} offset:8192\nds_write_b64 v{vT3}, {vr(CM + 4, 2)} offset:8320")
        for i in range(8):
            pack_o(i)
            A(f"ds_write_b128 v{vT2}, {vr(KF + 4 * i, 4)} offset:{i * 1024}")
        zero_acc()

    A("L_seg:")
    c = f2u(1.4426950408889634 / 128 ** 0.5)
    A(f"s_cselect_b32 s{sScale}, 0, {hex(c)}")
    A(f"s_add_u32 s{sEnd}, s{sT}, s{sCnt}\ns_add_u32 s{sNeed}, s{sT}, 1")
    A(f"s_cmp_eq_u32 s{sRole}, 1\ns_cselect_b32 s{sRet}, s{sCntA}, 0")
    A(f"v_add_u32 v{vK}, s{sOffQ}, v{vKc}\nv_mov_b32 v{vF2}, s{sScale}")
    A(f"s_cmp_eq_u32 s{sT}, 0\ns_cbranch_scc0 L_hold")
    A("s_waitcnt vmcnt(0)")
    AL(kreads(Q))
    A("L_nohold:")
    A(f"v_add_u32 v{vPd}, 1, v{vPd}\nds_write_b32 v{vDoneA}, v{vPd} offset:1536")
    A(f"v_add_u32 v{vK}, s{sOffK}, v{vKc}\nv_mov_b32 v{vDone}, s{sNeed}")
    AL(adv(sOffK))
    for t in range(8):
        A(f"s_waitcnt lgkmcnt({8 - t})")
        for j in range(4):
            r = Q + 4 * t + j
            A(f"v_lshlrev_b32 v{vU + 2 * j}, 16, v{r}\nv_and_b32 v{vU + 2 * j + 1}, 0xffff0000, v{r}")
        for j in range(4):
            A(f"v_pk_mul_f32 {vr(vU + 2 * j, 2)}, {vr(vU + 2 * j, 2)}, {vr(vF2, 2)} op_sel_hi:[1,0]")
        for j in range(4):
            A(f"v_cvt_pk_bf16_f32 v{Q + 4 * t + j}, v{vU + 2 * j}, v{vU + 2 * j + 1}")
    if not st2:
        st(2)
    spin("p0")
    if not st2:
        st(3)
    AL(kreads())
    A(f"ds_write_b32 v{vDoneA}, v{vDone}")
    A(f"s_add_u32 s{sNeed}, s{sT}, 2\ns_min_u32 s{sNeed}, s{sNeed}, s{sEnd}")
    A(f"v_sub_u32 v{vT2}, s{sNv}, v{vG4}")
    A(f"v_mov_b32 v{vT3}, 0xff800000")
    for i, x in enumerate(qk(True)):
        if i % 2 == 0:
            A(f"s_waitcnt lgkmcnt({8 - i // 2})")
        A(x)
    AL(addrs())
    spin("p1")
    AL(kreads())
    A(f"s_cmp_eq_u32 s{sNv}, 32\ns_cbranch_scc1 L_nomask")
    for kh in range(2):
        for r in range(4):
            a = S + 4 * kh + r
            A(f"v_cmp_lt_i32 vcc, {16 * kh + r}, v{vT2}\ns_nop 1\nv_cndmask_b32 v{a}, v{vT3}, v{a}, vcc\n"
              f"v_cndmask_b32 v{a + 8}, v{vT3}, v{a + 8}, vcc")
    A("L_nomask:")
    AL(maxes())
    new_max(False)
    for i in range(8):
        A(f"v_sub_f32 v{CM + i}, 0, v{vMx if i < 4 else vMx2}")
    exp_shifted()
    A(f"s_waitcnt lgkmcnt(0)\ns_sub_u32 s{sIt}, s{sCnt}, 2\ns_cbranch_scc1 L_final")

    A(".p2align 3")
    A("L_loop:")
    loop_start = len(L)
    vrd = vreads()
    f_inc, f_wr, f_rd = f"v_add_u32 v{vDone}, 1, v{vDone}", f"ds_write_b32 v{vDoneA}, v{vDone}", f"ds_read2st64_b32 {vr(vF2, 2)}, v{vRdyA} offset0:0 offset1:6"
    ex1 = lambda i: f"v_exp_f32 v{E + i}, v{S + i}"
    lg = lambda n: f"s_waitcnt lgkmcnt({n})"
    krd = kreads()
    krd = krd[0::2] + krd[1::2]
    mo = [0, 1, 2, 3, 8, 9, 10, 11, 4, 5, 6, 7, 12, 13, 14, 15]
    mxs = [f"v_max3_f32 v{vT0}, v{S + mo[0]}, v{S + mo[1]}, v{S + mo[2]}"]
    mxs += [f"v_max3_f32 v{vT0}, v{vT0}, v{S + mo[i]}, v{S + mo[i + 1]}" for i in range(3, 15, 2)]
    mxs += [f"v_max_f32 v{vT0}, v{vT0}, v{S + 15}", f"v_cmp_lt_f32 vcc, s{sCt}, v{vT0}"]
    aa = addrs()
    ad = [f"s_add_u32 s{sOffK}, s{sOffK}, s{sCs}", f"s_cmp_ge_u32 s{sOffK}, s{sCr}", f"s_cselect_b32 s{sOffK}, 0, s{sOffK}"]
    fa = [[vrd[i], cvt(j)] for i, j in enumerate((0, 1, 4, 5, 2, 3, 6, 7))]
    fa[0].insert(0, f"s_add_u32 s{sNeed}, s{sNeed}, 1")
    fa[1].insert(0, f"s_sub_u32 s{sIt}, s{sIt}, 1")
    fa[2].insert(0, f"s_cselect_b32 s{sA}, -1, s{sNeed}")
    for i in range(3):
        fa[3 + i].insert(0, ad[i])
    fa[7].insert(0, lg(7))
    fa += [[vrd[8], f_rd], [vrd[9], f_inc], [vrd[10], ex1(0)], [vrd[11], ex1(1)], [vrd[12], ex1(2)],
           [vrd[13], ex1(3)], [vrd[14], ex1(8)], [lg(6), vrd[15], f_wr]]
    for x, f in zip(qk(False), fa):
        A(x)
        AL(f)
    mf = []
    for dt in range(8):
        mf += [pv(dt, 1), pv(dt, 0)]
        if dt == 3:
            mf += [rs(0), rs(1)]
    if pvo == 1:
        mf = mf[:4]
        mf[2], mf[3] = mf[3], mf[2]
        mf += [pv(2, 1), pv(2, 0), pv(3, 0), pv(3, 1), rs(1), rs(0), pv(4, 0), pv(4, 1), pv(5, 1), pv(5, 0), pv(6, 0), pv(6, 1), pv(7, 1), pv(7, 0)]
    if pvo == 2:
        mf = mf[:4] + [pv(2, 0), pv(3, 0), rs(0), pv(2, 1), pv(3, 1), rs(1)] + [pv(d, 1) for d in range(4, 8)] + [pv(d, 0) for d in range(4, 8)]
    if nors:
        mf = [x if f"{vr(ON, 4)}" not in x else "s_nop 0" for x in mf]
    AL([mf[0], f"v_readfirstlane_b32 s{sF}, v{vF2}", aa[0]])
    AL([mf[1], ex1(9)])
    AL([mf[2], f"s_cmp_lt_u32 s{sF}, s{sA}", ex1(10)])
    AL([mf[3], "s_cbranch_scc1 L_slow"])
    A("L_back:")

    def phase_b(kr):
        k = list(kr) if kr else [None] * 8
        n = (lambda x: x) if kr else (lambda x: 0)
        A(ex1(11))
        fb = [[k[0], mxs[0], mxs[1]], [k[1], ex1(4)], [k[2], mxs[2], mxs[3]], [ex1(5)], [k[3], mxs[4], mxs[5]],
              [lg(n(4)), ex1(6)], [k[4], mxs[6], mxs[7]], [ex1(7)], [k[5], mxs[8], aa[1]], [ex1(12)],
              [k[6], aa[2]], [ex1(13)], [k[7], ex1(14)], [lg(n(4)), ex1(15)]]
        for i in range(4, 18):
            A(mf[i])
            AL([x for x in fb[i - 4] if x])

    phase_b(krd)
    if nocomp:
        keep = []
        for x in L[loop_start:]:
            y = x.strip()
            if nocomp & 1 and y.startswith("v_mfma"):
                continue
            if nocomp & 2 and y.startswith(("v_exp", "v_max", "v_cvt")):
                continue
            if nocomp & 4 and y.startswith(("ds_read_b128", "ds_read_b64_tr")):
                continue
            keep.append(x)
        L[loop_start:] = keep
        A("s_mov_b64 vcc, 0")
    A("s_cbranch_vccz L_loop\ns_branch L_rare")

    HB = Q

    def send_stats(spol=spol):
        A(f"v_mov_b32 v{CM + 5}, v{LA + 4}")
        if smask:
            A("s_mov_b64 exec, 0xffff")
        A(f"buffer_store_dwordx2 {vr(CM + 4, 2)}, v{vPL}, {SWS}, s{sSs} offen {spol}")
        if smask:
            A("s_mov_b64 exec, -1")

    def send(i, spol=spol):
        pack_o(i, Q)
        A(f"buffer_store_dwordx4 {vr(Q + 4 * i, 4)}, v{vL16}, {SO if alias else SWS}, s{sSd} offen offset:{(i & 3) * 1024} {spol}")

    def final():
        A("L_lastg:")
        phase_b([])
        A("s_cbranch_vccnz L_rare")
        A("L_final:")
        A(f"{f_rd}\ns_add_u32 s{sNeed}, s{sEnd}, 1\ns_mov_b32 s{sT}, s{sEnd}")
        for j in range(8):
            A(cvt(j))
        A("s_nop 0")
        A(rs(0))
        A(rs(1))
        A(f"s_cmp_lg_u32 s{sRet}, 0\ns_cbranch_scc1 L_final_a")
        A(f"s_waitcnt lgkmcnt(0)\nv_readfirstlane_b32 s{sF}, v{vF2}\nv_readfirstlane_b32 s{sK}, v{vF2 + 1}")
        A(f"s_cmp_ge_u32 s{sF}, s{sNeed}\ns_cbranch_scc1 L_final1")
        spin("f")
        A("L_final1:")
        AL(vrd)
        A(f"s_cmp_eq_u32 s{sK}, 1\ns_cbranch_scc1 L_final2")
        for pl in ("sc1", spol):
            send_stats(pl)
            for dt in range(8):
                A(f"s_waitcnt lgkmcnt({14 - 2 * dt})")
                A(pv(dt, 1))
                if dt >= 5:
                    send(dt - 1, pl)
            for dt in range(8):
                A(pv(dt, 0))
                if dt == 2:
                    send(7, pl)
                    st(4)
            if pl == "sc1":
                A("s_branch L_sent\nL_final2:")

    A("L_slow:")
    A(f"s_cmp_ge_i32 s{sIt}, 0\ns_cbranch_scc1 L_slow1")
    if spincnt:
        A(f"s_waitcnt lgkmcnt(0)\ns_sub_u32 s{sSt + 2}, 0x400000, s{sBud}\ns_sub_u32 s{sSt + 4}, s{sF}, s{sNeed}\ns_add_u32 s{sSt + 4}, s{sSt + 4}, 100")
        st(3)
    if tail:
        A(f"v_readfirstlane_b32 s{sK}, v{vF2 + 1}\ns_cmp_lt_u32 s{sF}, s{sNeed}\ns_cselect_b32 s{sA}, 1, s{sRet}")
        A(f"s_xor_b32 s{sBb}, s{sK}, 1\ns_or_b32 s{sA}, s{sA}, s{sBb}\ns_cbranch_scc1 L_lastg")
        AL(aa[1:] + [lg(0)])
        vk = vreads(KF)
        m1 = [pv(dt, 1) for dt in range(2, 8)] + [rs(1)]
        ft = [[ex1(11), mxs[0]], [ex1(12), mxs[1]], [ex1(13), mxs[2]], [ex1(14), mxs[3]], [ex1(15), mxs[4]],
              [mxs[5], mxs[6]], [mxs[7], mxs[8]]]
        AL(vk[:2])
        for i in range(7):
            A(m1[i])
            AL(vk[2 * i + 2:2 * i + 4] + ft[i])
        A("s_cbranch_vccnz L_tail_fix")
        for j in range(4, 8):
            A(cvt(j))
        A(pv(2, 0))
        A(ex1(4))
        A(rs(1))
        for dt in range(8):
            A(lg(14 - 2 * dt))
            A(pv(dt, 1, KF))
            if dt == 4:
                send_stats()
            if dt >= 5:
                send(dt - 1)
        for dt in range(3, 8):
            A(pv(dt, 0))
            if dt < 6:
                A(ex1(dt + 2))
            if dt == 4:
                send(7)
                st(4)
        A(rs(0))
        for j in range(4):
            A(cvt(j))
        A("s_nop 1")
        A(rs(0))
        for dt in range(8):
            A(pv(dt, 0, KF))
    else:
        final()
    A("L_sent:")
    st(5)
    if not nopart:
        A(f"s_lshl_b32 s{sA}, s{sW}, 2\nv_and_b32 v{vT1}, 7, v{vLane}\nv_lshlrev_b32 v{vT1}, 4, v{vT1}")
        A(f"v_mov_b32 v{vT0}, {A_SIG}\nv_add3_u32 v{vT1}, v{vT1}, s{sA}, v{vT0}")
        A("L_peers:")
        budget()
        A(f"ds_read_b32 v{vF}, v{vT0}\nds_read_b32 v{vF2}, v{vT1} offset:256\ns_waitcnt lgkmcnt(0)\nv_readfirstlane_b32 s{sA}, v{vF}\ns_nop 0")
        A(f"s_cmp_eq_u32 s{sA}, 0\ns_cbranch_scc1 L_peers")
        A(f"v_readlane_b32 s{sA}, v{vF2}, s{sLp}\nv_readlane_b32 s{sBb}, v{vF2}, s{sLh}\nv_readlane_b32 s{sE2}, v{vF2}, s{sRole}")
        A(f"v_and_b32 v{vU}, 1, v{vLane}\nv_cmp_eq_u32 vcc, 0, v{vU}\nv_mov_b32 v{vU}, s{sPi}\nv_mov_b32 v{vU + 1}, s{sHi}")
        A(f"v_mov_b32 v{vU + 2}, s{sA}\nv_mov_b32 v{vU + 3}, s{sBb}\ns_add_u32 s{sE2}, s{sE2}, 1\nv_mov_b32 v{vT3}, s{sE2}")
        A(f"v_cndmask_b32 v{vU}, v{vU + 1}, v{vU}, vcc\nv_cndmask_b32 v{vU + 1}, v{vU + 3}, v{vU + 2}, vcc")
        A(f"v_mov_b32 v{vU + 2}, v{vU + 1}\nv_mov_b32 v{vT2}, 0")
        A(f"s_mov_b64 exec, 1\ns_cmp_eq_u32 s{sK}, 1\ns_waitcnt vmcnt(0)\ns_cbranch_scc0 L_rel")
        A(f"buffer_store_dword v{vT3}, v{vT2}, {SWS}, s{sMy} offen")
        A("L_reld:\ns_mov_b64 exec, -1")
        if st2:
            st(1)
        A("L_poll0:")
        budget()
        A(f"buffer_load_dword v{vU + 2}, v{vU}, {SWS}, s{sFo} offen {fpol}")
        if csleep:
            A(f"s_sleep {csleep}")
        A(f"s_waitcnt vmcnt({npoll})")
        A(f"v_cmp_eq_u32 vcc, v{vU + 2}, v{vU + 1}\ns_cbranch_vccnz L_poll0")
    st(6)
    A(f"buffer_load_dwordx2 {vr(vU + 4, 2)}, v{vPL}, {SWS}, s{sPs} offen {lpol}")
    A(f"buffer_load_dwordx2 {vr(vU + 6, 2)}, v{vPL}, {SWS}, s{sHs} offen {hlpol}")
    for i in range(4):
        A(f"buffer_load_dwordx4 {vr(HB + 16 + 4 * i, 4)}, v{vL16}, {SO if alias else SWS}, s{sPd} offen offset:{i * 1024} {lpol}")

    def unpack_fma(src, i, f, sel):
        for j in range(4):
            A(f"v_lshlrev_b32 v{E + 2 * j}, 16, v{src + j}\nv_and_b32 v{E + 2 * j + 1}, 0xffff0000, v{src + j}")
        for j in range(4):
            o = O + 8 * i + 2 * j
            A(f"v_pk_fma_f32 {vr(o, 2)}, {vr(E + 2 * j, 2)}, {vr(f, 2)}, {vr(o, 2)} {sel}")

    def finish(held):
        n = 8 if held else 4
        if held:
            for i in range(4):
                A(f"buffer_load_dwordx4 {vr(HB + 4 * i, 4)}, v{vL16}, {SWS}, s{sHd} offen offset:{i * 1024} {hlpol}")
        A(f"s_waitcnt vmcnt({n})")
        if st2:
            st(2)
        if held:
            A(f"v_min3_f32 v{vT0}, v{CM}, v{vU + 4}, v{vU + 6}")
        else:
            A(f"v_min_f32 v{vT0}, v{CM}, v{vU + 4}")
        A(f"v_sub_f32 v{vT2}, v{vT0}, v{CM}\nv_sub_f32 v{vMx}, v{vT0}, v{vU + 4}")
        if held:
            A(f"v_sub_f32 v{vMx2}, v{vT0}, v{vU + 6}")
        A(f"v_exp_f32 v{vT2}, v{vT2}\nv_exp_f32 v{vMx}, v{vMx}")
        A(f"v_exp_f32 v{vMx2}, v{vMx2}" if held else "s_nop 0")
        A(f"v_mul_f32 v{vT1}, v{vT2}, v{LA}\nv_fmac_f32 v{vT1}, v{vMx}, v{vU + 5}")
        if held:
            A(f"v_fmac_f32 v{vT1}, v{vMx2}, v{vU + 7}")
        A(f"v_rcp_f32 v{vT1}, v{vT1}\ns_nop 0\nv_mul_f32 v{vT2}, v{vT2}, v{vT1}\nv_mul_f32 v{vMx}, v{vMx}, v{vT1}")
        if held:
            A(f"v_mul_f32 v{vMx2}, v{vMx2}, v{vT1}")
        for i in range(16):
            A(f"v_pk_mul_f32 {vr(O + 2 * i, 2)}, {vr(O + 2 * i, 2)}, {vr(vT2, 2)} op_sel_hi:[1,0]")
        if held:
            for i in range(4):
                A(f"s_waitcnt vmcnt({7 - i})")
                unpack_fma(HB + 16 + 4 * i, i, vMx, "op_sel_hi:[1,0,1]")
        for i in range(4):
            if i < 2:
                A(f"s_waitcnt vmcnt({0 if i else 3})")
            if held:
                unpack_fma(HB + 4 * i, i, vMx, "op_sel:[0,1,0] op_sel_hi:[1,1,1]")
            else:
                unpack_fma(HB + 16 + 4 * i, i, vMx, "op_sel_hi:[1,0,1]")
            if fullrow:
                if i == 2:
                    out_store2(0)
            elif i:
                out_store(i - 1)
            pack_o(i)
        A("s_nop 1")
        if fullrow:
            out_store2(2)
        else:
            out_store(3)
        if st2:
            st(3)
        if stamp:
            A("s_waitcnt vmcnt(0)")
            st(7)
            A(f"s_cmp_eq_u32 s{sW}, {sw}\ns_cbranch_scc0 L_end")
        dump_stamps(32)
        A("s_endpgm")

    def out_store(i):
        d = KF + 4 * i
        A(f"v_permlane16_swap_b32 v{d}, v{d + 2}\nv_permlane16_swap_b32 v{d + 1}, v{d + 3}")
        A(f"buffer_store_dwordx4 {vr(d, 4)}, v{vQo}, {SO}, s{sOut} offen offset:{i * 64} {opol}")

    def out_store2(i):
        d = KF + 4 * i
        for x in (d, d + 4):
            A(f"v_permlane16_swap_b32 v{x}, v{x + 2}\nv_permlane16_swap_b32 v{x + 1}, v{x + 3}")
        for j in range(4):
            A(f"v_mov_b32 v{S + j}, v{d + j}")
        for j in range(4):
            A(f"v_mov_b32_dpp v{d + j}, v{d + 4 + j} row_ror:8 row_mask:0xf bank_mask:0xc")
        for j in range(4):
            A(f"v_mov_b32_dpp v{d + 4 + j}, v{S + j} row_ror:8 row_mask:0xf bank_mask:0x3")
        A(f"buffer_store_dwordx4 {vr(d, 4)}, v{vQo}, {SO}, s{sOut} offen offset:{i * 64} {opol}")
        A(f"buffer_store_dwordx4 {vr(d + 4, 4)}, v{vQo}, {SO}, s{sOut} offen offset:{2048 + i * 64} {opol}")

    A(f"s_cmp_lg_u32 s{sExp}, 0\ns_cbranch_scc1 L_fin_held")
    finish(False)
    A("L_fin_held:")
    finish(True)
    A("L_end:\ns_endpgm")

    if tail:
        final()
        A("s_branch L_sent")
        A("L_tail_fix:")
        for dt in range(2, 8):
            A(pv(dt, 0))
        A(rs(0))
        A("s_branch L_rare")
    A("L_final_a:")
    spin("g")
    AL(vrd)
    for dt in range(8):
        A(f"s_waitcnt lgkmcnt({14 - 2 * dt})")
        A(pv(dt, 1))
        A(pv(dt, 0))
    A("s_branch L_segB")
    if not nopart:
        A(f"L_rel:\nbuffer_store_dword v{vT3}, v{vT2}, {SWS}, s{sMy} offen sc1\ns_branch L_reld")
    A("L_hold:")
    spin("q", off=256, need=sItem, le=True)
    AL(kreads(Q))
    park()
    A("s_branch L_nohold")
    A("L_empty:")
    A(f"s_cmp_eq_u32 s{sT}, 0\ns_cbranch_scc1 L_empty1\ns_nop 5")
    park()
    A(f"v_add_u32 v{vPd}, 1, v{vPd}\nds_write_b32 v{vDoneA}, v{vPd} offset:1536")
    A("L_empty1:")
    A(f"v_mov_b32 v{CM}, {hex(BIG)}\nv_mov_b32 v{CM + 4}, {hex(BIG)}")
    A(f"s_mov_b32 s{sK}, 2\ns_waitcnt vmcnt(0)")
    send_stats("sc1")
    for i in range(4, 8):
        send(i, "sc1")
    A("s_branch L_sent")
    A("L_slow1:")
    if sleep:
        A(f"s_branch L_slow2\nL_slow3:\ns_sleep {sleep}\nL_slow2:")
        budget()
        A(f"ds_read_b32 v{vF}, v{vRdyA}\ns_waitcnt lgkmcnt(0)\nv_readfirstlane_b32 s{sF}, v{vF}\ns_nop 0")
        A(f"s_cmp_lt_u32 s{sF}, s{sNeed}\ns_cbranch_scc1 L_slow3")
    else:
        spin("s")
    A("s_branch L_back")
    A("L_rare:")
    AL(maxes())
    new_max(True)
    A(f"v_exp_f32 v{vT2}, -v{vMx}\nv_exp_f32 v{vT3}, -v{vMx2}")
    for i in range(8):
        A(f"v_sub_f32 v{CM + i}, v{CM + i}, v{vMx if i < 4 else vMx2}")
    exp_shifted()
    scale_acc(vT2)
    A(f"s_cmp_lt_i32 s{sIt}, 0\ns_cbranch_scc1 L_final\ns_branch L_loop")

    A(f""".section .rodata,"a"
.p2align 6
.amdhsa_kernel {NAME}
  .amdhsa_next_free_vgpr 256
  .amdhsa_next_free_sgpr 102
  .amdhsa_accum_offset 256
  .amdhsa_group_segment_fixed_size 0
  .amdhsa_kernarg_size 64
  .amdhsa_user_sgpr_count 2
  .amdhsa_user_sgpr_kernarg_segment_ptr 1
  .amdhsa_system_sgpr_workgroup_id_x 1
.end_amdhsa_kernel""")
    if nostore:
        L[:] = [x for x in L if not (x.strip().startswith("buffer_store") and "v[16:19]" not in x and "v[20:23]" not in x
                                     and "v[100:103], v239, s[20:23], s73 offen" != x.strip()[21:]
                                     and ((SWS in x and nostore & 1) or (SO in x and nostore & 2)))]
    return "\n".join(L) + "\n"


def parse(spec):
    kw = {}
    for kv in spec.split(","):
        if not kv or kv == "default":
            continue
        k, v = kv.split("=")
        try:
            kw[k] = int(v)
        except ValueError:
            try:
                kw[k] = float(v)
            except ValueError:
                kw[k] = v.replace("+", " ").replace("none", "")
    return kw


if __name__ == "__main__":
    from build import build
    import hz
    files = []
    for spec in sys.argv[1:]:
        txt = gen(**parse(spec))
        pr = hz.check(txt)
        for p in pr:
            print("HAZARD", p, file=sys.stderr)
        fn = "k_" + spec.replace("=", "").replace(",", "_").replace("+", "") + ".s"
        open(fn, "w").write(txt)
        build(fn)
        files.append(fn)
    print(" ".join(files))
```

```python
import sys
import struct

NAME = "standalone__paged_block_table_kv_pagedattention__sampling_kernel"
WSB = 537395200
KVB = 4100 * 32768
QB = 16 * 32 * 32 * 128 * 2

HDR = """; Paged GQA attention, B=16 Hq=32 Hkv=8 Sq=32 D=128 block=16, bf16.
; Kernarg (ptrs only): 0 q, 8 k_cache, 16 v_cache, 24 block_table, 32 context_lens, 40 out, 48 debug, 56 ws
"""

PAIRS = [(4, 13), (9, 8), (14, 3), (0, 12), (5, 7), (10, 2), (15, 11), (1, 6)]


def f2u(x):
    return struct.unpack('<I', struct.pack('<f', x))[0]


def gen(NS=7, win=22, win2=26, ntail=0, gran=2, win0=16, n0=9, lag=1, dec0=10, decs=8,
        delta=0, ex=0, theta=2, lead=3, npoll=1, hwin=8, psleep=16, csleep=0, lprio=3, rdy0=2, chk0=20, rmode=1, cmask=15, base=48, kb=6, firstb=-1, th2=4, b1=4, pre=4, prepol='', k0=4, nosort=0, tail=1, st3=0, smask=0, sleep=0, pvo=0, qko=0, nors=0, sw=0, spincnt=0, bsh=5, touch=0, ra=2, rx=1, apol='sc1', fpol='sc1', alias=1, fullrow=0, st2=0, hpol='', hlpol='sc1', force=0, remap=0,
        pol="nt", qpol="nt", opol="", spol="", lpol="sc1", T=8.0,
        stamp=0, trace=0, nocomp=0, noload=0, nopart=0, nostore=0):
    if firstb < 0:
        nt = [-(-(4096 - ((i + 1) * 2654435761) % 2048) // 32) for i in range(16)]
        firstb = sum(1 << i for i, (a, b) in enumerate(PAIRS) if nt[a] - nt[b] <= max(th2, 2 * theta))
    SLOT = 17408
    RING = NS * SLOT
    PB = RING
    A_DONE = PB + 2 * SLOT
    A_READY = A_DONE + 1024
    A_PDONE = A_DONE + 1536
    A_SIG = A_PDONE + 1024
    A_TAB = A_SIG + 512
    A_LIST = A_TAB + 2048
    A_HIST = A_LIST + 512
    LDS = A_HIST + 1024
    wmax = max(win, win2, win0)
    assert LDS <= 163840
    assert NS >= wmax // 16 + lag + 3 and wmax <= 52
    BOX = 17408
    BIG = f2u(1e30)
    OOB = 0x40000000
    L = []

    def A(s):
        for x in s.split('\n'):
            L.append(x if x.endswith(':') or x.startswith(('.', ';')) else '    ' + x)

    vLane, vT0, vT1, vT2, vT3 = 1, 2, 3, 4, 5
    vKc, vV0c, vV1c, vK, vV0, vV1 = 6, 7, 8, 9, 10, 11
    vQo, vRdyA, vDoneA, vF = 12, 13, 14, 15
    S, E, CM, LA, O, Q, KF, VF, P, ON = 16, 32, 48, 56, 64, 128, 160, 192, 224, 232
    vMx, vMx2, vDone, vL16, vG4, vPd, vPA, vPL = 236, 237, 238, 239, 240, 241, 242, 243
    vF2, vU = 244, 248
    TA, TBb, vRow = 64, 68, 72
    vKo, vVo = 76, 80
    vPoll, vPub, vDn, vDnA, vF0, vDb, vPoll2, vFa = 84, 85, 86, 87, 89, 90, 91, 92
    vQd = 242
    HR = 100

    sW, sH, sRole = 3, 32, 33
    sBA, sBB, sCntA, sCntB, sTopA, sTopB, sNv, sExp, sZ = 35, 36, 37, 38, 39, 40, 41, 42, 43
    sGrp, sSwap, sBud, sPar = 44, 45, 46, 47
    sB, sCnt, sT, sEnd, sOffK, sRet, sNeed, sF, sScale = 64, 65, 66, 67, 68, 69, 70, 71, 72
    sA, sBb, sC, sD, sE2, sF2 = 73, 74, 75, 76, 77, 78
    sQoff, sIt, sOffQ, sItem, sK = 79, 80, 81, 82, 83
    sS, sOff, sPub, sFree, sTile, sO0, sO1, sN0, sN1, sLag, sDec = 66, 67, 68, 69, 70, 71, 72, 79, 80, 81, 82
    sP0, sP1, sSw = 34, 64, 41
    sSt = 84
    SQ, SK, SV, SWS, SO, SD = "s[8:11]", "s[12:15]", "s[16:19]", "s[20:23]", "s[24:27]", "s[28:31]"

    def vr(a, n):
        return f"v[{a}:{a + n - 1}]" if n > 1 else f"v{a}"

    def adv(s):
        return [f"s_add_u32 s{s}, s{s}, {SLOT}", f"s_cmp_ge_u32 s{s}, {RING}", f"s_cselect_b32 s{s}, 0, s{s}"]

    def AL(lst):
        for x in lst:
            A(x)

    def budget():
        A(f"s_sub_u32 s{sBud}, s{sBud}, 1\ns_cbranch_scc1 L_end")

    def st(i):
        if stamp:
            A(f"{'s_memrealtime' if stamp == 1 else 's_memtime'} s[{sSt + 2 * i}:{sSt + 2 * i + 1}]")

    def dump_stamps(base):
        if not stamp:
            return
        A("s_waitcnt lgkmcnt(0)")
        for i in range(8):
            A(f"v_mov_b32 v{16 + i}, s{sSt + 2 * i}")
        A(f"s_mul_i32 s{sA}, s2, 96\ns_add_u32 s{sA}, s{sA}, {WSB - 256 * 96 + base}")
        A(f"v_mov_b32 v{vT0}, 0\ns_mov_b64 exec, 1")
        A(f"buffer_store_dwordx4 v[16:19], v{vT0}, {SWS}, s{sA} offen")
        A(f"buffer_store_dwordx4 v[20:23], v{vT0}, {SWS}, s{sA} offen offset:16")
        A("s_mov_b64 exec, -1")

    def box_off(dst, k):
        A(f"s_mul_i32 s{dst}, s{sGrp}, 6\ns_add_u32 s{dst}, s{dst}, {k}\ns_mul_i32 s{dst}, s{dst}, {BOX}")

    tabA = sum(p[0] << (4 * i) for i, p in enumerate(PAIRS))
    tabB = sum(p[1] << (4 * i) for i, p in enumerate(PAIRS))

    A(HDR.rstrip())
    A(f"; @launch grid=(256,1,1) block=(384,1,1) lds={LDS}")
    A('.amdgcn_target "amdgcn-amd-amdhsa--gfx950"\n.text')
    A(f".globl {NAME}\n.p2align 8\n.type {NAME},@function\n{NAME}:")
    A("s_cmp_ge_u32 s2, 256\ns_cbranch_scc1 L_end")
    A("s_load_dwordx16 s[48:63], s[0:1], 0")
    if remap:
        A(f"s_lshr_b32 s4, s2, {6 if remap == 1 else 7}\ns_add_u32 s4, s4, s2\ns_and_b32 s4, s4, 7\ns_and_b32 s2, s2, 0xf8\ns_or_b32 s2, s2, s4")
    if stamp:
        for i in range(8):
            A(f"s_mov_b64 s[{sSt + 2 * i}:{sSt + 2 * i + 1}], 0")
    st(0)
    A(f"v_lshrrev_b32 v{vT0}, 6, v0\nv_and_b32 v{vLane}, 63, v0")
    A(f"v_readfirstlane_b32 s{sW}, v{vT0}")
    A(f"v_lshlrev_b32 v{vL16}, 4, v{vLane}")
    A(f"s_and_b32 s{sH}, s2, 7\ns_lshr_b32 s{sRole}, s2, 6\ns_lshr_b32 s{sA}, s2, 1\ns_and_b32 s{sA}, s{sA}, 28")
    A(f"s_lshr_b32 s{sBA}, {hex(tabA)}, s{sA}\ns_lshr_b32 s{sBB}, {hex(tabB)}, s{sA}")
    A(f"s_and_b32 s{sBA}, s{sBA}, 15\ns_and_b32 s{sBB}, s{sBB}, 15")
    A(f"s_lshl_b32 s{sA}, s{sBA}, 2\ns_lshl_b32 s{sBb}, s{sBB}, 2")
    A(f"s_lshl_b32 s{sC}, s{sBA}, 10\ns_lshl_b32 s{sD}, s{sBB}, 10")
    A(f"v_add_u32 v{vT2}, s{sC}, v{vL16}\nv_add_u32 v{vT3}, s{sD}, v{vL16}")
    A(f"s_mov_b32 s{sBud}, 0x400000\ns_and_b32 s{sGrp}, s2, 63")
    A(f"s_cmp_lt_u32 s{sRole}, 2\ns_cselect_b32 s{sPar}, 4096, 0")
    A(f"v_lshlrev_b32 v{vDoneA}, 2, v0\nv_add_u32 v{vDoneA}, {A_DONE}, v{vDoneA}")
    A(f"v_mov_b32 v{vDone}, 0")
    A(f"ds_write_b32 v{vDoneA}, v{vDone}\nds_write_b32 v{vDoneA}, v{vDone} offset:1536")
    A(f"v_mov_b32 v{vRdyA}, {A_READY}")
    A(f"v_lshrrev_b32 v{vT0}, 4, v{vLane}\nv_and_b32 v{vT1}, 15, v{vLane}")
    A(f"v_xor_b32 v{vU}, v{vT1}, v{vT0}\nv_lshlrev_b32 v{vU}, 4, v{vU}\nv_lshl_add_u32 v{vQd}, v{vT0}, 8, v{vU}")
    A(f"s_lshr_b32 s{sE2}, s2, 3\ns_bitcmp1_b32 {hex(0xff000000 | firstb << 8)}, s{sE2}\ns_cselect_b32 s{sB}, s{sBB}, s{sBA}")
    A(f"s_mul_i32 s{sOffQ}, s{sW}, 8704\ns_add_u32 s{sOffQ}, s{sOffQ}, {PB}")
    A(f"s_mov_b32 s10, {QB}\ns_mov_b32 s11, 0x20000")

    def q_own():
        A(f"s_lshl_b32 s{sE2}, s{sB}, 3\ns_add_u32 s{sE2}, s{sE2}, s{sH}\ns_lshl_b32 s{sE2}, s{sE2}, 2\ns_add_u32 s{sE2}, s{sE2}, s{sW}")
        A(f"s_lshl_b32 s{sE2}, s{sE2}, 13\ns_add_u32 s{sE2}, s{sE2}, s{sPar}\ns_xor_b32 s{sF2}, s{sE2}, 4096")

    def q_own_loads():
        for r in range(8):
            A(f"s_add_u32 m0, s{sOffQ}, {r * 1088 - (r & 3) * 1024}\ns_nop 0")
            A(f"buffer_load_dwordx4 v{vQd}, {SQ}, s{sE2 if r < 4 else sF2} offen offset:{(r & 3) * 1024} {qpol} lds")

    q_own()
    A(f"s_mov_b32 m0, {A_TAB}\ns_cmp_ge_u32 s{sW}, 4")
    A("s_waitcnt lgkmcnt(0)")
    A("s_cbranch_scc0 L_notab")
    A(f"global_load_lds_dwordx4 v{vT2}, s[54:55]\ns_mov_b32 m0, {A_TAB + 1024}\ns_setprio {lprio}\nglobal_load_lds_dwordx4 v{vT3}, s[54:55]")
    A("L_notab:")
    A(f"s_load_dword s{sCntA}, s[56:57], s{sA}\ns_load_dword s{sCntB}, s[56:57], s{sBb}")
    A(f"s_mov_b32 s8, s48\ns_mov_b32 s9, s49\ns_cmp_lt_u32 s{sW}, 4")
    A("s_barrier")
    A("s_cbranch_scc0 L_noq")
    q_own_loads()
    A("L_noq:")
    for srd, p, n in ((12, 50, KVB), (16, 52, KVB), (20, 62, WSB), (24, 58, QB), (28, 60, 256)):
        A(f"s_mov_b32 s{srd}, s{p}\ns_mov_b32 s{srd + 1}, s{p + 1}\ns_mov_b32 s{srd + 2}, {n}\n"
          f"s_mov_b32 s{srd + 3}, 0x20000")
    box_off(sE2, 0)
    A(f"v_lshrrev_b32 v{vT2}, 2, v{vLane}\nv_min_u32 v{vT2}, 5, v{vT2}\nv_mul_u32_u24 v{vT2}, {BOX}, v{vT2}")
    A(f"v_and_b32 v{vT3}, 3, v{vLane}\nv_lshl_add_u32 v{vFa}, v{vT3}, 7, v{vT2}\ns_add_u32 s{sE2}, s{sE2}, 16896\nv_add_u32 v{vFa}, s{sE2}, v{vFa}")
    A(f"s_cmp_eq_u32 s{sW}, 5\ns_cbranch_scc0 L_nosnap")
    A(f"buffer_load_dword v{vF0}, v{vFa}, {SWS}, 0 offen sc1")
    A(f"v_add_u32 v{vT2}, {A_HIST}, v{vL16}")
    for j in range(4):
        A(f"v_mov_b32 v{68 + j}, 0")
    A(f"ds_write_b128 v{vT2}, v[68:71]")
    if touch:
        A(f"s_lshr_b32 s{sE2}, s2, 3\ns_lshl_b32 s{sE2}, s{sE2}, 22\nv_and_b32 v{vT2}, 1, v{vLane}\nv_lshlrev_b32 v{vT2}, 21, v{vT2}")
        A(f"buffer_load_dword v{vPoll}, v{vT2}, {SK}, s{sE2} offen nt\nbuffer_load_dword v{vPoll2}, v{vT2}, {SV}, s{sE2} offen nt")
    A("L_nosnap:")
    A(f"v_and_b32 v{vDnA}, 3, v{vLane}\nv_lshlrev_b32 v{vDnA}, 8, v{vDnA}\nv_add_u32 v{vDnA}, {A_DONE}, v{vDnA}")
    A(f"s_lshl_b32 s{sE2}, s{sH}, 8")
    A(f"v_lshl_add_u32 v{vT2}, v{vT0}, 11, v{vU}\nv_add_u32 v{vKo}, s{sE2}, v{vT2}")
    A(f"v_and_b32 v{vT2}, 1, v{vT0}\nv_lshlrev_b32 v{vT2}, 1, v{vT2}\nv_xor_b32 v{vT2}, v{vT2}, v{vT1}\nv_lshlrev_b32 v{vT2}, 4, v{vT2}")
    A(f"v_lshl_add_u32 v{vT2}, v{vT0}, 13, v{vT2}\nv_add_u32 v{vVo}, s{sE2}, v{vT2}")
    for j in range(1, 4):
        A(f"v_add_u32 v{vKo + j}, {j * (8192 - 1088)}, v{vKo}\nv_add_u32 v{vVo + j}, {j * (2048 - 1088)}, v{vVo}")
    A("s_waitcnt lgkmcnt(0)")
    st(1)
    A(f"s_min_i32 s{sA}, s{sCntA}, 0x1000\ns_cmp_lt_i32 s{sA}, 1\ns_cselect_b32 s{sA}, 0x1000, s{sA}\ns_cselect_b32 s{sC}, 1, 0")
    A(f"s_min_i32 s{sBb}, s{sCntB}, 0x1000\ns_cmp_lt_i32 s{sBb}, 1\ns_cselect_b32 s{sBb}, 0x1000, s{sBb}\ns_cselect_b32 s{sD}, 1, 0")
    A(f"s_mov_b32 s{sE2}, s{sBA}\ns_cmp_lt_u32 s{sA}, s{sBb}\ns_cselect_b32 s{sSwap}, 1, 0")
    A(f"s_cselect_b32 s{sCntA}, s{sBb}, s{sA}\ns_cselect_b32 s{sCntB}, s{sA}, s{sBb}")
    A(f"s_cselect_b32 s{sBA}, s{sBB}, s{sBA}\ns_cselect_b32 s{sBB}, s{sE2}, s{sBB}")
    A(f"s_cselect_b32 s{sZ}, s{sD}, s{sC}\ns_cselect_b32 s{sD}, s{sC}, s{sD}\ns_lshl_b32 s{sD}, s{sD}, 1\ns_or_b32 s{sZ}, s{sZ}, s{sD}")
    A(f"s_cmp_eq_u32 s{sRole}, 3\ns_cselect_b32 s{sNv}, s{sCntB}, s{sCntA}")
    A(f"s_sub_u32 s{sNv}, s{sNv}, 1\ns_and_b32 s{sNv}, s{sNv}, 31\ns_add_u32 s{sNv}, s{sNv}, 1")
    A(f"s_add_u32 s{sTopA}, s{sCntA}, 31\ns_lshr_b32 s{sTopA}, s{sTopA}, 5")
    A(f"s_add_u32 s{sTopB}, s{sCntB}, 31\ns_lshr_b32 s{sTopB}, s{sTopB}, 5")
    A(f"s_add_u32 s{sA}, s{sTopA}, s{sTopB}\ns_add_u32 s{sA}, s{sA}, {2 * delta + ex + ra}\ns_lshr_b32 s{sA}, s{sA}, 2\ns_max_u32 s{sA}, s{sA}, 1")
    A(f"s_min_u32 s{sCntA}, s{sA}, s{sTopA}\ns_min_u32 s{sCntB}, s{sA}, s{sTopB}")
    if th2:
        A(f"s_add_u32 s{sC}, s{sTopA}, 1\ns_lshr_b32 s{sC}, s{sC}, 1\ns_add_u32 s{sD}, s{sTopB}, 1\ns_lshr_b32 s{sD}, s{sD}, 1")
        A(f"s_sub_u32 s{sA}, s{sTopA}, s{sTopB}\ns_cmp_le_u32 s{sA}, {th2}")
        A(f"s_cselect_b32 s{sCntA}, s{sC}, s{sCntA}\ns_cselect_b32 s{sCntB}, s{sD}, s{sCntB}\ns_cselect_b32 s{sF2}, 0x1000, {theta}")
    A(f"s_sub_u32 s{sC}, s{sTopA}, s{sCntA}\ns_sub_u32 s{sD}, s{sTopB}, s{sCntB}")
    A(f"s_add_u32 s{sBb}, s{sC}, s{sD}\ns_add_u32 s{sBb}, s{sBb}, {ex + rx}\ns_lshr_b32 s{sBb}, s{sBb}, 1\ns_min_u32 s{sBb}, s{sBb}, s{sC}")
    A(f"s_sub_u32 s{sExp}, s{sC}, s{sBb}\ns_cmp_le_u32 s{sExp}, {f's{sF2}' if th2 else theta}\ns_cselect_b32 s{sBb}, s{sC}, s{sBb}\ns_cselect_b32 s{sExp}, 0, s{sExp}")
    A(f"s_cmp_ge_u32 s{sRole}, 2\ns_cbranch_scc1 L_plan_top")
    A(f"s_mov_b32 s{sNv}, 32\ns_mov_b32 s{sTopB}, s{sD}\ns_mov_b32 s{sCntB}, s{sD}")
    A(f"s_cmp_eq_u32 s{sRole}, 0\ns_cselect_b32 s{sCntA}, s{sBb}, s{sExp}\ns_cselect_b32 s{sTopA}, s{sBb}, s{sC}")
    A("L_plan_top:")
    A(f"s_bitcmp1_b32 s{sRole}, 0\ns_cselect_b32 s{sCntB}, s{sCntB}, 0\ns_cselect_b32 s{sExp}, 0, s{sExp}")
    A(f"s_cmp_eq_u32 s{sRole}, 3\ns_cselect_b32 s{sCntA}, 0, s{sCntA}")
    A(f"s_cmp_lt_u32 s{sW}, 4\ns_cbranch_scc1 L_consumer")
    A(f"s_sub_u32 s{sA}, s{sW}, 4\ns_mul_i32 s{sA}, s{sA}, {k0}\nv_add_u32 v{vRow + 2}, s{sA}, v{vLane}")
    A(f"s_add_u32 s{sCnt}, s{sCntA}, s{sCntB}\ns_add_u32 s{sBb}, s{sTopB}, s{sCntA}\nv_cmp_gt_u32 vcc, s{sCntA}, v{vRow + 2}")
    A(f"v_mov_b32 v{vT2}, s{sTopA}\nv_mov_b32 v{vT3}, s{sBb}\ns_lshl_b32 s{sA}, s{sSwap}, 10\ns_add_u32 s{sA}, s{sA}, {A_TAB}")
    A(f"v_cndmask_b32 v{vT2}, v{vT3}, v{vT2}, vcc\ns_lshl_b32 s{sBb}, s{sSwap}, 10\ns_sub_u32 s{sBb}, {A_TAB + 1024}, s{sBb}")
    A(f"v_xad_u32 v{vT2}, v{vRow + 2}, -1, v{vT2}\nv_mov_b32 v{vT3}, s{sA}\nv_mov_b32 v{vRow}, s{sBb}")
    A(f"v_and_b32 v{vT2}, 127, v{vT2}\nv_cndmask_b32 v{vT3}, v{vRow}, v{vT3}, vcc\nv_lshl_add_u32 v{vT2}, v{vT2}, 3, v{vT3}")
    A(f"s_cmp_eq_u32 s{sW}, 5\ns_cbranch_scc1 L_helper")

    def min4(dst, add):
        A(f"v_readlane_b32 s{sA}, v{vDn}, 0\nv_readlane_b32 s{sBb}, v{vDn}, 1\nv_readlane_b32 s{sC}, v{vDn}, 2\n"
          f"v_readlane_b32 s{sD}, v{vDn}, 3")
        A(f"s_min_u32 s{sA}, s{sA}, s{sBb}\ns_min_u32 s{sC}, s{sC}, s{sD}\ns_min_u32 s{dst}, s{sA}, s{sC}")
        if add:
            A(f"s_add_u32 s{dst}, s{dst}, {add}")

    A(f"s_cmp_eq_u32 s{sCnt}, 0\ns_cbranch_scc1 L_ldone")
    A(f"s_waitcnt vmcnt(0)\nds_read_b64 {vr(vRow, 2)}, v{vT2}")
    st(2)
    A(f"s_mov_b32 s{sS}, 1\ns_mov_b32 s{sOff}, {SLOT}\ns_mov_b32 s{sPub}, 0\ns_mov_b32 s{sFree}, {NS}")
    A(f"s_mov_b32 s{sTile}, 1\ns_mov_b32 s{sSw}, {k0 if not nosort else 64}\ns_mov_b32 m0, 0")
    A(f"s_waitcnt lgkmcnt(0)\nv_lshlrev_b32 v{vRow}, 15, v{vRow}\nv_lshlrev_b32 v{vRow + 1}, 15, v{vRow + 1}")
    A(f"v_readlane_b32 s{sA}, v{vRow}, 0\nv_readlane_b32 s{sBb}, v{vRow + 1}, 0\nv_readlane_b32 s{sN0}, v{vRow}, 1\nv_readlane_b32 s{sN1}, v{vRow + 1}, 1")
    A(f"s_mov_b32 s{sO0}, s{sA}\ns_mov_b32 s{sO1}, s{sBb}")
    for g in range(2):
        if g:
            A("s_mov_b32 m0, 4352\ns_nop 0")
        for j in range(4):
            A(f"buffer_load_dwordx4 v{vKo + j}, {SK}, s{sO0 + g} offen offset:{j * 1088} {pol} lds")
    if lag:
        A(f"s_mov_b32 s{sLag}, {lag}\ns_lshr_b32 s{sDec}, s2, 3\ns_and_b32 s{sDec}, s{sDec}, 7\ns_add_u32 s{sDec}, s{sDec}, {dec0}")
    A(f"s_sub_u32 s{sK}, s{sCnt}, {base}\ns_max_i32 s{sK}, s{sK}, 0\ns_mul_i32 s{sK}, s{sK}, {kb}")
    A(f"s_min_u32 s{sA}, s{sCntA}, s{sCntB}\ns_min_u32 s{sA}, s{sA}, 1\ns_mul_i32 s{sA}, s{sA}, {b1}\ns_add_u32 s{sK}, s{sK}, s{sA}")
    A(f"s_min_u32 s{sK}, s{sK}, {base - n0 - 1}")
    A(f"v_lshlrev_b32 v{vT2}, 3, v{vLane}\nv_add_u32 v{vT2}, {A_LIST}, v{vT2}\nv_mov_b32 v{vT3}, {A_SIG}")
    if pre:
        A(f"s_bitcmp1_b32 s{sRole}, 0\ns_cselect_b32 s48, s{sBB}, s{sBA}\ns_lshl_b32 s48, s48, 3\ns_add_u32 s48, s48, s{sH}")
        A(f"s_lshl_b32 s48, s48, 15\ns_add_u32 s48, s48, s{sPar}")
        A(f"v_lshrrev_b32 v93, 5, v{vLane}\nv_lshlrev_b32 v93, 12, v93\nv_lshl_add_u32 v93, v{vLane}, 7, v93\nv_lshlrev_b32 v95, 7, v{vLane}")
        A(f"s_xor_b32 s{sA}, s{sRole}, 2\ns_lshr_b32 s{sBb}, s{sRole}, 1\ns_add_u32 s{sBb}, s{sBb}, 4")
        box_off(50, f"s{sA}")
        box_off(49, f"s{sBb}")
        A(f"s_cmp_eq_u32 s{sExp}, 0\ns_cselect_b32 s49, {hex(OOB)}, s49\ns_cselect_b32 s51, s50, s49")
        A(f"v_and_b32 v94, 4, v{vLane}\nv_cmp_eq_u32 vcc, 0, v94\nv_mov_b32 v94, s50\nv_mov_b32 v96, s51\nv_and_b32 v97, 3, v{vLane}")
        A(f"v_cndmask_b32 v94, v96, v94, vcc\nv_lshl_add_u32 v94, v97, 7, v94")
    A(f"s_sub_u32 s{sCnt}, s{sCnt}, 1\ns_cmp_le_u32 s{sCnt}, s{sK}\ns_cbranch_scc1 L_lt_aend")

    def next_offsets(tag):
        A(f"s_add_u32 s{sTile}, s{sTile}, 1\ns_cmp_eq_u32 s{sTile}, s{sSw}\ns_cbranch_scc1 L_sw_{tag}")
        A(f"L_swd_{tag}:")
        A(f"v_readlane_b32 s{sN0}, v{vRow}, s{sTile}\nv_readlane_b32 s{sN1}, v{vRow + 1}, s{sTile}")

    def publish(back, lagged):
        if lagged:
            A(f"s_sub_u32 s{sA}, s{sS}, s{sLag}\ns_sub_u32 s{sA}, s{sA}, {back}")
        else:
            A(f"s_sub_u32 s{sA}, s{sS}, {back}")
        A(f"s_max_i32 s{sPub}, s{sPub}, s{sA}\nv_mov_b32 v{vPub}, s{sPub}")

    def stage_loop(tag, w, stop):
        A(f"L_lt_{tag}:")
        A(f"s_mov_b32 s{sP0}, s{sO0}\ns_mov_b32 s{sP1}, s{sO1}\ns_mov_b32 s{sO0}, s{sN0}\ns_mov_b32 s{sO1}, s{sN1}")
        A(f"s_cmp_lt_u32 s{sS}, s{sFree}\ns_cbranch_scc0 L_full_{tag}")
        A(f"L_free_{tag}:")
        pub_i = -(-((w - gran) % 16) // gran) * gran
        back = (w - gran) // 16
        if pub_i == 16:
            pub_i, back = 0, back + 1
        for i in range(16):
            g, j = i >> 2, i & 3
            srd, vo, so = ((SK, vKo, sO0), (SK, vKo, sO1), (SV, vVo, sP0), (SV, vVo, sP1))[g]
            if j == 0:
                A(f"s_mov_b32 m0, s{sOff}" if g == 0 else f"s_add_u32 m0, s{sOff}, {g * 4352}")
            if i == pub_i:
                publish(back, lag)
            if i % gran == 0:
                A(f"s_waitcnt vmcnt({w - gran})")
            elif j == 0:
                A("s_nop 0")
            if i == pub_i:
                A(f"ds_write_b32 v{vDoneA}, v{vPub}")
            A(f"buffer_load_dwordx4 v{vo + j}, {srd}, s{so} offen offset:{j * 1088} {pol} lds")
            if i == 3:
                next_offsets(tag)
            if i == 11:
                A(f"ds_read_b32 v{vDn}, v{vDnA}")
        A(f"s_add_u32 s{sS}, s{sS}, 1")
        AL(adv(sOff))
        if stamp:
            for k, n in ((5, 8), (6, 24), (7, 40)):
                A(f"s_cmp_lg_u32 s{sS}, {n}\ns_cbranch_scc1 L_ns{tag}{k}")
                st(k)
                A(f"L_ns{tag}{k}:")
        A("s_waitcnt lgkmcnt(0)")
        min4(sFree, NS)
        if noload:
            A(f"s_cmp_lt_u32 s{sS}, {NS}\ns_cbranch_scc1 L_nl{tag}\ns_waitcnt vmcnt(0)\nv_mov_b32 v{vPub}, 0x7fffffff\n"
              f"ds_write_b32 v{vDoneA}, v{vPub}\ns_branch L_ldone\nL_nl{tag}:")
        if tag in "ab" and lag:
            A(f"s_cmp_ge_u32 s{sS}, s{sDec}\ns_cselect_b32 s{sA}, 1, 0\ns_cselect_b32 s{sBb}, {decs}, 0")
            A(f"s_add_u32 s{sDec}, s{sDec}, s{sBb}\ns_sub_u32 s{sLag}, s{sLag}, s{sA}\ns_max_i32 s{sLag}, s{sLag}, 0")
        if tag == "z":
            A(f"s_sub_u32 s{sCnt}, s{sCnt}, 1\ns_cmp_le_u32 s{sCnt}, {stop}\ns_cbranch_scc1 L_lt_aend")
            A(f"s_cmp_lt_u32 s{sS}, {n0}\ns_cbranch_scc1 L_lt_z")
        else:
            A(f"s_sub_u32 s{sCnt}, s{sCnt}, 1\ns_cmp_gt_u32 s{sCnt}, {stop}\ns_cbranch_scc1 L_lt_{tag}")

    if n0:
        stage_loop("z", win0, f"s{sK}")
    stage_loop("a", win, f"s{sK}")
    A("L_lt_aend:")
    A(f"s_cmp_eq_u32 s{sCnt}, 0\ns_cbranch_scc1 L_lsegend")
    stage_loop("b", win2, "0")
    A("L_lsegend:")
    if pre:
        A(f"ds_read_b32 v{vPoll}, v{vT3}")
    A(f"s_cmp_lt_u32 s{sS}, s{sFree}\ns_cbranch_scc0 L_full_e")
    A("L_free_e:")
    for g in (2, 3):
        A(f"s_add_u32 m0, s{sOff}, {g * 4352}\ns_nop 0")
        for j in range(4):
            A(f"buffer_load_dwordx4 v{vVo + j}, {SV}, s{sO0 if g == 2 else sO1} offen offset:{j * 1088} {pol} lds")
    st(3)
    npre = 5 if pre else 0

    def pre_loads():
        A(f"s_waitcnt lgkmcnt(0)\nv_readfirstlane_b32 s{sA}, v{vPoll}\ns_nop 0\ns_cmp_eq_u32 s{sA}, 1")
        A(f"s_cselect_b32 s48, s48, {hex(OOB)}\ns_cselect_b32 s49, s49, {hex(OOB)}\ns_cselect_b32 s50, 16384, {hex(OOB)}")
        A("s_add_u32 s51, s48, 16384\ns_add_u32 s52, s49, 8192")
        A(f"buffer_load_dword v96, v94, {SWS}, s50 offen {prepol}")
        A(f"buffer_load_dword v96, v93, {SO}, s48 offen {prepol}\nbuffer_load_dword v96, v93, {SO}, s51 offen {prepol}")
        A(f"buffer_load_dword v96, v95, {SWS}, s49 offen {prepol}\nbuffer_load_dword v96, v95, {SWS}, s52 offen {prepol}")

    backs = list(range((wmax - 1) // 16, -2, -1))
    for n, back in enumerate(backs):
        if pre and n == pre - 1:
            pre_loads()
        ex_n = npre if pre and n >= pre - 1 else 0
        publish(back, False) if back >= 0 else A(f"s_add_u32 s{sA}, s{sS}, 1\nv_mov_b32 v{vPub}, s{sA}")
        A(f"s_waitcnt vmcnt({(16 * back + 8 if back >= 0 else 0) + ex_n})\nds_write_b32 v{vDoneA}, v{vPub}")
    if pre > len(backs):
        pre_loads()
    A("L_ldone:")
    st(4)
    dump_stamps(0)
    A("s_endpgm")
    for tag in ("z" if n0 else "") + "ab":
        A(f"L_sw_{tag}:")
        budget()
        A(f"ds_read_b32 v{vDn}, v{vT3} offset:4\nds_read_b64 {vr(vRow, 2)}, v{vT2}\ns_waitcnt lgkmcnt(0)\nv_readfirstlane_b32 s{sA}, v{vDn}\ns_nop 0")
        A(f"s_cmp_eq_u32 s{sA}, 0\ns_cbranch_scc1 L_sw_{tag}")
        A(f"s_mov_b32 s{sTile}, 0\ns_mov_b32 s{sSw}, -1\ns_branch L_swd_{tag}")
    for tag in ("z" if n0 else "") + "abe":
        A(f"L_full_{tag}:")
        budget()
        A(f"ds_read_b32 v{vDn}, v{vDnA}\ns_waitcnt lgkmcnt(0)")
        min4(sFree, NS)
        A(f"s_cmp_lt_u32 s{sS}, s{sFree}\ns_cbranch_scc0 L_full_{tag}\ns_branch L_free_{tag}")

    A("L_helper:")
    a_0, a_1, p_0, p_1, hh, tt, one = 64, 65, 66, 67, 68, 96, 75
    A(f"s_waitcnt vmcnt(1)\nds_read_b64 {vr(vRow, 2)}, v{vT2}")
    A(f"v_mov_b32 v{a_0}, {A_HIST}\nv_mov_b32 v{a_1}, {A_HIST + 512}\nv_add_u32 v{vT3}, {A_HIST}, v{vL16}")
    A(f"v_cndmask_b32 v{p_0}, v{a_1}, v{a_0}, vcc\nv_cmp_gt_u32 vcc, s{sCnt}, v{vRow + 2}\nv_mov_b32 v{one}, 1")
    A(f"s_waitcnt lgkmcnt(0)\nv_bfe_u32 v{a_0}, v{vRow}, {bsh}, 7\nv_bfe_u32 v{a_1}, v{vRow + 1}, {bsh}, 7")
    A(f"v_lshl_add_u32 v{a_0}, v{a_0}, 2, v{p_0}\nv_lshl_add_u32 v{a_1}, v{a_1}, 2, v{p_0}")
    A(f"s_mov_b64 s[48:49], vcc\ns_mov_b64 exec, vcc")
    A(f"ds_add_rtn_u32 v{p_0}, v{a_0}, v{one}\nds_add_rtn_u32 v{p_1}, v{a_1}, v{one}")
    A(f"s_mov_b64 exec, -1\nds_read_b128 {vr(hh, 4)}, v{vT3}")
    A(f"v_lshlrev_b32 v{vRow}, 15, v{vRow}\nv_lshlrev_b32 v{vRow + 1}, 15, v{vRow + 1}\ns_waitcnt lgkmcnt(0)")
    A(f"v_add_u32 v{hh + 1}, v{hh}, v{hh + 1}\nv_add_u32 v{hh + 2}, v{hh + 1}, v{hh + 2}\nv_add_u32 v{hh + 3}, v{hh + 2}, v{hh + 3}")
    A(f"v_mov_b32 v{tt}, v{hh + 3}\ns_nop 1")
    for sh in (1, 2, 4, 8):
        A(f"v_add_u32_dpp v{tt}, v{tt}, v{tt} row_shr:{sh} row_mask:0xf bank_mask:0xf bound_ctrl:0\ns_nop 1")
    A(f"v_add_u32_dpp v{tt}, v{tt}, v{tt} row_bcast:15 row_mask:0xa bank_mask:0xf\ns_nop 1")
    A(f"v_add_u32_dpp v{tt}, v{tt}, v{tt} row_bcast:31 row_mask:0xc bank_mask:0xf")
    A(f"v_sub_u32 v{tt}, v{tt}, v{hh + 3}")
    for j in range(3):
        A(f"v_add_u32 v{tt + 1 + j}, v{tt}, v{hh + j}")
    A(f"ds_write_b128 v{vT3}, {vr(tt, 4)}\nds_read_b32 v{a_0}, v{a_0}\nds_read_b32 v{a_1}, v{a_1}")
    A(f"v_mov_b32 v{vT3}, {A_LIST}\nv_mov_b32 v{vT2}, {A_SIG}\ns_mov_b64 exec, s[48:49]\ns_waitcnt lgkmcnt(0)")
    A(f"v_add_u32 v{p_0}, v{p_0}, v{a_0}\nv_add_u32 v{p_1}, v{p_1}, v{a_1}")
    A(f"v_lshl_add_u32 v{p_0}, v{p_0}, 2, v{vT3}\nv_lshl_add_u32 v{p_1}, v{p_1}, 2, v{vT3}")
    A(f"ds_write_b32 v{p_0}, v{vRow}\nds_write_b32 v{p_1}, v{vRow + 1}")
    A(f"s_mov_b64 exec, -1\nds_write_b32 v{vT2}, v{one} offset:4")
    st(5)
    A(f"s_setprio 0\ns_mov_b32 s{sItem}, 1")
    A(f"s_cmp_eq_u32 s{sCntA}, 0\ns_cselect_b32 s{sCntB}, 0, s{sCntB}")

    def pb_free(tag):
        A(f"s_branch L_hfree_{tag}")
        A(f"L_hfree0_{tag}:")
        budget()
        A(f"s_sleep {psleep}")
        A(f"L_hfree_{tag}:")
        A(f"ds_read_b32 v{vDn}, v{vDnA} offset:1536\ns_waitcnt lgkmcnt(0)")
        min4(sA, 0)
        A(f"s_cmp_lt_u32 s{sA}, s{sItem}\ns_cbranch_scc1 L_hfree0_{tag}")

    def pb_publish():
        A(f"s_add_u32 s{sItem}, s{sItem}, 1\nv_mov_b32 v{vPub}, s{sItem}\ns_waitcnt vmcnt(0)\nds_write_b32 v{vDoneA}, v{vPub}")

    def q_item(w):
        A(f"s_lshl_b32 s{sO1}, s{sB}, 3\ns_add_u32 s{sO1}, s{sO1}, s{sH}\ns_lshl_b32 s{sO1}, s{sO1}, 15\ns_xor_b32 s{sO0}, s{sO1}, s{sPar}")
        for r in range(32):
            A(f"s_mov_b32 m0, {PB + r * 1088 - (r & 3) * 1024}")
            if r and (r & 3) == 0:
                A(f"s_add_u32 s{sO1}, s{sO1}, 4096\ns_xor_b32 s{sO0}, s{sO1}, s{sPar}")
            elif w and r >= w:
                A(f"s_waitcnt vmcnt({w - 1})")
            else:
                A("s_nop 0")
            A(f"buffer_load_dwordx4 v{vQd}, {SQ}, s{sO0} offen offset:{(r & 3) * 1024} {qpol} lds")

    def wait_progress(tag):
        A(f"s_branch L_hp_{tag}")
        A(f"L_hp0_{tag}:")
        budget()
        A(f"s_sleep {psleep}")
        A(f"L_hp_{tag}:")
        A(f"ds_read_b32 v{vF}, v{vRdyA}\ns_waitcnt lgkmcnt(0)\nv_readfirstlane_b32 s{sF}, v{vF}\ns_nop 0")
        A(f"s_cmp_lt_u32 s{sF}, s{sNeed}\ns_cbranch_scc1 L_hp0_{tag}")

    A(f"s_lshl_b32 s{sA}, s{sGrp}, 2\nv_mov_b32 v{vDb}, s{sA}\ns_getreg_b32 s{sA}, hwreg(HW_REG_XCC_ID, 0, 4)")
    A(f"s_or_b32 s{sD}, s{sA}, 16\ns_lshl_b32 s{sBb}, s{sRole}, 3\ns_lshl_b32 s{sA}, s{sD}, s{sBb}\ns_mul_i32 s{sK}, s{sD}, 0x01010101")
    A(f"s_waitcnt vmcnt(0)\nv_mov_b32 v{vPoll}, s{sA}")
    A(f"ds_write_b32 v{vDoneA}, v{vF0} offset:1536")
    A(f"s_mov_b64 exec, 1\nbuffer_atomic_or v{vPoll}, v{vDb}, {SD}, 0 offen sc1\ns_mov_b64 exec, -1")
    st(2)
    A(f"s_cmp_eq_u32 s{sCntB}, 0\ns_cbranch_scc1 L_hq2")
    A(f"s_mov_b32 s{sB}, s{sBB}")
    pb_free("q")
    q_item(hwin)
    A(f"v_mov_b32 v{vPub}, 1\ns_waitcnt vmcnt(0)\nds_write_b32 v{vDoneA}, v{vPub}")
    A("L_hq2:")
    A(f"s_lshr_b32 s{sIt}, s2, 3\ns_and_b32 s{sIt}, s{sIt}, {cmask}")
    if rmode < 2:
        A(f"s_add_u32 s{sNeed}, s{sIt}, {chk0}\ns_min_u32 s{sNeed}, s{sNeed}, s{sCnt}")
        wait_progress("c")
        A("s_branch L_hchk")
        A("L_hchk0:")
        budget()
        A(f"s_sleep {4 * psleep}")
        A("L_hchk:")
        A(f"buffer_load_dword v{vPoll2}, v{vDb}, {SD}, 0 offen sc1\ns_waitcnt vmcnt(0)")
        A(f"v_readfirstlane_b32 s{sA}, v{vPoll2}\ns_nop 0\ns_and_b32 s{sBb}, s{sA}, 0x10101010\ns_cmp_eq_u32 s{sBb}, 0x10101010\ns_cbranch_scc0 L_hchk0")
        A(f"s_cmp_eq_u32 s{sA}, s{sK}\ns_cselect_b32 s{sK}, 1, 2")
    if force or rmode >= 2:
        A(f"s_mov_b32 s{sK}, {force or 1}")
    A(f"v_mov_b32 v{vPoll2}, s{sK}")
    A(f"v_mov_b32 v{vT2}, {A_SIG}\nds_write_b32 v{vT2}, v{vPoll2}")
    A(f"s_cmp_eq_u32 s{sRole}, 1\ns_cbranch_scc0 L_hdone\ns_cmp_eq_u32 s{sCntA}, 0\ns_cbranch_scc1 L_hdone")
    A(f"s_mov_b32 s{sItem}, 2")
    pb_free("h")
    A(f"v_add_u32 v{vT3}, {PB}, v{vL16}\nv_mul_u32_u24 v{vT2}, 8704, v{vT0}\nv_lshl_add_u32 v{vT2}, v{vT1}, 4, v{vT2}")
    A(f"v_add_u32 v{vT2}, {PB + 8192}, v{vT2}")
    for r in range(32):
        A(f"ds_read_b128 {vr(HR + 4 * r, 4)}, v{vT3} offset:{(r >> 3) * 8704 + (r & 7) * 1024}")
    A(f"ds_read_b128 {vr(HR + 128, 4)}, v{vT2}")
    box_off(sE2, 4)
    A(f"v_lshrrev_b32 v{vT2}, 3, v{vT1}\nv_mul_u32_u24 v{vT2}, {BOX}, v{vT2}\nv_lshl_add_u32 v{vT2}, v{vT0}, 7, v{vT2}")
    A(f"v_and_b32 v{vT3}, 7, v{vT1}\nv_lshl_add_u32 v{vT2}, v{vT3}, 4, v{vT2}")
    A(f"v_add_u32 v{vF0}, 1, v{vF0}")
    A(f"s_cmp_eq_u32 s{sK}, 1\ns_cselect_b32 s{sA}, {lead}, 1\ns_sub_u32 s{sNeed}, s{sCnt}, s{sA}\ns_max_i32 s{sNeed}, s{sNeed}, 0")
    wait_progress("h")
    st(3)
    A(f"s_cmp_eq_u32 s{sK}, 1\ns_cbranch_scc0 L_hwt")
    for pl in (hpol, "sc1"):
        if pl == "sc1":
            A("L_hwt:")
        for r in range(32):
            if (r & 3) == 0:
                A(f"s_add_u32 s{sO1}, s{sE2}, {((r >> 2) & 1) * BOX + (r >> 3) * 4096}")
            A(f"buffer_store_dwordx4 {vr(HR + 4 * r, 4)}, v{vL16}, {SWS}, s{sO1} offen offset:{(r & 3) * 1024} {pl}")
        A(f"s_add_u32 s{sO0}, s{sE2}, 16384")
        A(f"buffer_store_dwordx4 {vr(HR + 128, 4)}, v{vT2}, {SWS}, s{sO0} offen {pl}")
        A("s_mov_b64 exec, 0xff0000\ns_waitcnt vmcnt(0)")
        A(f"buffer_store_dword v{vF0}, v{vFa}, {SWS}, 0 offen {pl}")
        A("s_mov_b64 exec, -1")
        if pl != "sc1":
            A("s_branch L_hdone")
    A("L_hdone:")
    if trace:
        A(f"s_cmp_eq_u32 s{sRole}, 0\ns_cbranch_scc0 L_end")
        A(f"s_mov_b32 s{sIt}, 0\nv_mov_b32 v100, 0\nv_mov_b32 v101, 0\nv_mov_b32 v102, 0\nv_mov_b32 v103, 0")
        A("L_tr:")
        A(f"s_memrealtime s[84:85]\ns_memtime s[86:87]\nds_read_b32 v{vF}, v{vRdyA}\nds_read_b32 v{vDn}, v{vDnA}\ns_waitcnt lgkmcnt(0)")
        A(f"v_readfirstlane_b32 s{sF}, v{vF}\nv_readfirstlane_b32 s{sA}, v{vDn}\ns_mov_b32 m0, s{sIt}\ns_nop 3")
        A(f"v_writelane_b32 v100, s84, m0\nv_writelane_b32 v101, s86, m0\nv_writelane_b32 v102, s{sF}, m0\nv_writelane_b32 v103, s{sA}, m0")
        A("L_tr2:")
        A(f"s_sleep 2\ns_memrealtime s[88:89]\ns_waitcnt lgkmcnt(0)\ns_sub_u32 s{sA}, s88, s84\ns_cmp_lt_u32 s{sA}, {trace}\ns_cbranch_scc1 L_tr2")
        A(f"s_add_u32 s{sIt}, s{sIt}, 1\ns_cmp_ge_u32 s{sF}, s{sCnt}\ns_cbranch_scc1 L_tr3\ns_cmp_lt_u32 s{sIt}, 64\ns_cbranch_scc1 L_tr")
        A("L_tr3:")
        A(f"s_lshl_b32 s{sA}, s2, 10\ns_add_u32 s{sA}, s{sA}, {WSB - 64 * 1024}")
        A(f"buffer_store_dwordx4 v[100:103], v{vL16}, {SWS}, s{sA} offen")
    st(4)
    dump_stamps(64)
    A("s_endpgm")

    A("L_consumer:")
    A(f"v_lshlrev_b32 v{vG4}, 2, v{vT0}")
    A(f"v_lshrrev_b32 v{vT2}, 2, v{vT1}\nv_mul_u32_u24 v{vT2}, 1088, v{vT2}\nv_and_b32 v{vT3}, 3, v{vT1}")
    A(f"v_lshl_add_u32 v{vKc}, v{vT3}, 8, v{vT2}\nv_xor_b32 v{vU}, v{vT3}, v{vT0}\nv_lshl_add_u32 v{vKc}, v{vU}, 4, v{vKc}")
    A(f"v_lshl_add_u32 v{vT2}, v{vT0}, 8, v{vT2}\nv_lshl_add_u32 v{vT2}, v{vT3}, 3, v{vT2}\nv_add_u32 v{vT2}, 8704, v{vT2}")
    A(f"v_and_b32 v{vU}, 1, v{vT0}\nv_lshl_add_u32 v{vV0c}, v{vU}, 5, v{vT2}\nv_xor_b32 v{vV1c}, 32, v{vV0c}")
    A(f"v_lshlrev_b32 v{vQo}, 8, v{vT1}\nv_lshl_add_u32 v{vQo}, v{vU}, 5, v{vQo}\nv_lshrrev_b32 v{vU}, 1, v{vT0}\nv_lshl_add_u32 v{vQo}, v{vU}, 4, v{vQo}")
    if fullrow:
        A(f"v_lshrrev_b32 v{vU}, 3, v{vT1}\nv_mul_u32_u24 v{vU}, {2048 - 64}, v{vU}\nv_sub_u32 v{vQo}, v{vQo}, v{vU}")
    for j in range(4):
        A(f"v_mov_b32 v{ON + j}, 0x3f803f80")
    A(f"v_lshlrev_b32 v{vPL}, 3, v{vT1}\nv_mov_b32 v{vPd}, 0")
    A(f"s_mov_b32 s{sT}, 0\ns_mov_b32 s{sOffK}, 0\ns_mov_b32 s{sItem}, 0")
    sSd, sSs, sFo, sOut, sPi, sHi, sPs, sHs, sPd, sHd, sMy, sLp, sLh = range(48, 61)
    sCs, sCr, sCt = 61, 62, 63
    A(f"s_mov_b32 s{sCs}, {SLOT}\ns_mov_b32 s{sCr}, {RING}\ns_mov_b32 s{sCt}, {hex(f2u(T))}")
    A(f"s_bitcmp1_b32 s{sRole}, 0\ns_cselect_b32 s{sOut}, s{sBB}, s{sBA}")
    A(f"s_lshl_b32 s{sOut}, s{sOut}, 3\ns_add_u32 s{sOut}, s{sOut}, s{sH}\ns_lshl_b32 s{sOut}, s{sOut}, 2\n"
      f"s_add_u32 s{sOut}, s{sOut}, s{sW}\ns_lshl_b32 s{sOut}, s{sOut}, 13\ns_add_u32 s{sOut}, s{sOut}, s{sPar}")
    box_off(sMy, f"s{sRole}")
    A(f"s_lshl_b32 s{sC}, s{sW}, 12\ns_lshl_b32 s{sD}, s{sW}, 7\ns_add_u32 s{sD}, s{sD}, 16384\ns_add_u32 s{sFo}, s{sD}, 512")
    if alias:
        A(f"s_xor_b32 s{sSd}, s{sOut}, 4096")
    else:
        A(f"s_add_u32 s{sSd}, s{sMy}, s{sC}")
    A(f"s_add_u32 s{sSs}, s{sMy}, s{sD}")
    A(f"s_xor_b32 s{sLp}, s{sRole}, 2\ns_lshr_b32 s{sLh}, s{sRole}, 1\ns_add_u32 s{sLh}, s{sLh}, 4")
    A(f"s_cmp_eq_u32 s{sExp}, 0\ns_cselect_b32 s{sLh}, s{sLp}, s{sLh}")
    box_off(sPi, f"s{sLp}")
    box_off(sHi, f"s{sLh}")
    A(f"s_add_u32 s{sPs}, s{sPi}, s{sD}\ns_add_u32 s{sHs}, s{sHi}, s{sD}\ns_add_u32 s{sHd}, s{sHi}, s{sC}")
    A(f"s_mov_b32 s{sPd}, s{sOut}" if alias else f"s_add_u32 s{sPd}, s{sPi}, s{sC}")
    vPo, vSa = 246, 247
    A(f"v_mov_b32 v{vSa}, s{sRole}\nv_writelane_b32 v{vSa}, s{sLp}, 0\nv_writelane_b32 v{vSa}, s{sLh}, 1")
    A(f"v_mov_b32 v{vPo}, s{sMy}\nv_writelane_b32 v{vPo}, s{sPi}, 0\nv_writelane_b32 v{vPo}, s{sHi}, 1")
    A(f"s_lshl_b32 s{sA}, s{sW}, 2\ns_add_u32 s{sA}, s{sA}, {A_SIG + 256}\nv_lshl_add_u32 v{vSa}, v{vSa}, 4, s{sA}")
    if nopart:
        for x in (sPs, sHs, sPd, sHd):
            A(f"s_mov_b32 s{x}, {hex(OOB)}")

    def zero_acc():
        for i in range(LA, O + 64):
            A(f"v_mov_b32 v{i}, 0")

    zero_acc()
    A(f"s_cmp_eq_u32 s{sCntA}, 0\ns_cselect_b32 s{sA}, s{sBB}, s{sBA}\ns_cmp_eq_u32 s{sA}, s{sB}\ns_cbranch_scc1 L_qok")
    A(f"s_mov_b32 s{sB}, s{sA}")
    q_own()
    A("s_waitcnt vmcnt(0)")
    q_own_loads()
    A("L_qok:")
    A(f"s_cmp_eq_u32 s{sCntA}, 0\ns_cbranch_scc1 L_segB")
    A(f"s_mov_b32 s{sCnt}, s{sCntA}\ns_bitcmp1_b32 s{sZ}, 0\ns_branch L_seg")
    A("L_segB:")
    A(f"s_cmp_eq_u32 s{sCntB}, 0\ns_cbranch_scc1 L_empty")
    A(f"s_mov_b32 s{sB}, s{sBB}\ns_mov_b32 s{sCnt}, s{sCntB}\ns_mov_b32 s{sCntA}, 0\ns_bitcmp1_b32 s{sZ}, 1")

    def spin(tag, off=0, need=None, le=False):
        A(f"L_spin_{tag}:")
        budget()
        A(f"ds_read_b32 v{vF}, v{vRdyA} offset:{off}\ns_waitcnt lgkmcnt(0)\nv_readfirstlane_b32 s{sF}, v{vF}\ns_nop 0")
        A(f"s_cmp_{'le' if le else 'lt'}_u32 s{sF}, s{need or sNeed}\ns_cbranch_scc1 L_spin_{tag}")

    def addrs():
        return [f"v_add_u32 v{vK}, s{sOffK}, v{vKc}", f"v_add_u32 v{vV0}, s{sOffK}, v{vV0c}",
                f"v_add_u32 v{vV1}, s{sOffK}, v{vV1c}"]

    def kreads(dst=KF):
        return [f"ds_read_b128 {vr(dst + 4 * f, 4)}, v{vK} offset:{(f & 1) * 4352 + (f >> 1) * 64}" for f in range(8)]

    def vreads(dst=VF):
        return [f"ds_read_b64_tr_b16 {vr(dst + 4 * dt + 2 * u, 2)}, v{vV1 if dt & 1 else vV0} "
                f"offset:{u * 4352 + (dt >> 1) * 64}" for dt in range(8) for u in range(2)]

    MF = "v_mfma_f32_16x16x32_bf16"

    def qk(first):
        out = []
        for ks, kh in ([(a, b) for a in range(4) for b in range(2)] if first else [(a, b) for b in range(2) for a in range(4)]):
            if True:
                for qh in range(2):
                    d = vr(S + 8 * qh + 4 * kh, 4)
                    c = d if ks else ("0" if first else vr(CM + 4 * qh, 4))
                    out.append(f"{MF} {d}, {vr(KF + 4 * (2 * ks + kh), 4)}, {vr(Q + 4 * (2 * ks + qh), 4)}, {c}")
        return out

    def pv(dt, qh, src=VF):
        d = vr(O + 32 * qh + 4 * dt, 4)
        return f"{MF} {d}, {vr(src + 4 * dt, 4)}, {vr(P + 4 * qh, 4)}, {d}"

    def rs(qh):
        return f"{MF} {vr(LA + 4 * qh, 4)}, {vr(ON, 4)}, {vr(P + 4 * qh, 4)}, {vr(LA + 4 * qh, 4)}"

    def cvt(j):
        return f"v_cvt_pk_bf16_f32 v{P + j}, v{E + 2 * j}, v{E + 2 * j + 1}"

    def maxes():
        o = []
        for a in (0, 3, 5):
            for qh, m in ((0, vMx), (1, vMx2)):
                b = S + 8 * qh + a
                o.append(f"v_max3_f32 v{m}, v{b}, v{b + 1}, v{b + 2}" if a == 0 else f"v_max3_f32 v{m}, v{m}, v{b}, v{b + 1}")
        return o

    def new_max(floor0):
        A(f"v_max_f32 v{vMx}, v{vMx}, v{S + 7}\nv_max_f32 v{vMx2}, v{vMx2}, v{S + 15}")
        for sw in ("v_permlane32_swap_b32", "v_permlane16_swap_b32"):
            A(f"v_mov_b32 v{vT0}, v{vMx}\nv_mov_b32 v{vT1}, v{vMx2}\ns_nop 0")
            A(f"{sw} v{vMx}, v{vT0}\n{sw} v{vMx2}, v{vT1}\ns_nop 0")
            A(f"v_max_f32 v{vMx}, v{vMx}, v{vT0}\nv_max_f32 v{vMx2}, v{vMx2}, v{vT1}")
        if floor0:
            A(f"v_max_f32 v{vMx}, 0, v{vMx}\nv_max_f32 v{vMx2}, 0, v{vMx2}")
        A(f"v_ceil_f32 v{vMx}, v{vMx}\nv_ceil_f32 v{vMx2}, v{vMx2}")

    def exp_shifted():
        for i in range(16):
            A(f"v_sub_f32 v{E + i}, v{S + i}, v{vMx if i < 8 else vMx2}")
        for i in range(16):
            A(f"v_exp_f32 v{E + i}, v{E + i}")

    def scale_acc(f, with_la=True):
        for qh in range(2):
            sel = "op_sel_hi:[1,0]" if qh == 0 else "op_sel:[0,1] op_sel_hi:[1,1]"
            for i in range(16):
                r = O + 32 * qh + 2 * i
                A(f"v_pk_mul_f32 {vr(r, 2)}, {vr(r, 2)}, {vr(f, 2)} {sel}")
            if with_la:
                A(f"v_mul_f32 v{LA + 4 * qh}, v{f + qh}, v{LA + 4 * qh}")

    def pack_o(i, dst=KF):
        for j in range(4):
            r = O + 8 * i + 2 * j
            A(f"v_cvt_pk_bf16_f32 v{dst + 4 * i + j}, v{r}, v{r + 1}")

    def park():
        A(f"v_add_u32 v{vT2}, s{sOffQ}, v{vL16}\nv_add_u32 v{vT3}, s{sOffQ}, v{vPL}")
        A(f"v_mov_b32 v{CM + 1}, v{LA}\nv_mov_b32 v{CM + 5}, v{LA + 4}")
        A(f"ds_write_b64 v{vT3}, {vr(CM, 2)} offset:8192\nds_write_b64 v{vT3}, {vr(CM + 4, 2)} offset:8320")
        for i in range(8):
            pack_o(i)
            A(f"ds_write_b128 v{vT2}, {vr(KF + 4 * i, 4)} offset:{i * 1024}")
        zero_acc()

    A("L_seg:")
    c = f2u(1.4426950408889634 / 128 ** 0.5)
    A(f"s_cselect_b32 s{sScale}, 0, {hex(c)}")
    A(f"s_add_u32 s{sEnd}, s{sT}, s{sCnt}\ns_add_u32 s{sNeed}, s{sT}, 1")
    A(f"s_cmp_eq_u32 s{sRole}, 1\ns_cselect_b32 s{sRet}, s{sCntA}, 0")
    A(f"v_add_u32 v{vK}, s{sOffQ}, v{vKc}\nv_mov_b32 v{vF2}, s{sScale}")
    A(f"s_cmp_eq_u32 s{sT}, 0\ns_cbranch_scc0 L_hold")
    A("s_waitcnt vmcnt(0)")
    AL(kreads(Q))
    A("L_nohold:")
    A(f"v_add_u32 v{vPd}, 1, v{vPd}\nds_write_b32 v{vDoneA}, v{vPd} offset:1536")
    A(f"v_add_u32 v{vK}, s{sOffK}, v{vKc}\nv_mov_b32 v{vDone}, s{sNeed}")
    AL(adv(sOffK))
    for t in range(8):
        A(f"s_waitcnt lgkmcnt({8 - t})")
        for j in range(4):
            r = Q + 4 * t + j
            A(f"v_lshlrev_b32 v{vU + 2 * j}, 16, v{r}\nv_and_b32 v{vU + 2 * j + 1}, 0xffff0000, v{r}")
        for j in range(4):
            A(f"v_pk_mul_f32 {vr(vU + 2 * j, 2)}, {vr(vU + 2 * j, 2)}, {vr(vF2, 2)} op_sel_hi:[1,0]")
        for j in range(4):
            A(f"v_cvt_pk_bf16_f32 v{Q + 4 * t + j}, v{vU + 2 * j}, v{vU + 2 * j + 1}")
    if not st2:
        st(2)
    spin("p0")
    if not st2:
        st(3)
    AL(kreads())
    A(f"ds_write_b32 v{vDoneA}, v{vDone}")
    A(f"s_add_u32 s{sNeed}, s{sT}, 2\ns_min_u32 s{sNeed}, s{sNeed}, s{sEnd}")
    A(f"v_sub_u32 v{vT2}, s{sNv}, v{vG4}")
    A(f"v_mov_b32 v{vT3}, 0xff800000")
    for i, x in enumerate(qk(True)):
        if i % 2 == 0:
            A(f"s_waitcnt lgkmcnt({8 - i // 2})")
        A(x)
    AL(addrs())
    spin("p1")
    AL(kreads())
    A(f"s_cmp_eq_u32 s{sNv}, 32\ns_cbranch_scc1 L_nomask")
    for kh in range(2):
        for r in range(4):
            a = S + 4 * kh + r
            A(f"v_cmp_lt_i32 vcc, {16 * kh + r}, v{vT2}\ns_nop 1\nv_cndmask_b32 v{a}, v{vT3}, v{a}, vcc\n"
              f"v_cndmask_b32 v{a + 8}, v{vT3}, v{a + 8}, vcc")
    A("L_nomask:")
    AL(maxes())
    new_max(False)
    for i in range(8):
        A(f"v_sub_f32 v{CM + i}, 0, v{vMx if i < 4 else vMx2}")
    exp_shifted()
    A(f"s_waitcnt lgkmcnt(0)\ns_sub_u32 s{sIt}, s{sCnt}, 2\ns_cbranch_scc1 L_final")

    A(".p2align 3")
    A("L_loop:")
    loop_start = len(L)
    vrd = vreads()
    f_inc, f_wr, f_rd = f"v_add_u32 v{vDone}, 1, v{vDone}", f"ds_write_b32 v{vDoneA}, v{vDone}", f"ds_read2st64_b32 {vr(vF2, 2)}, v{vRdyA} offset0:0 offset1:6"
    ex1 = lambda i: f"v_exp_f32 v{E + i}, v{S + i}"
    lg = lambda n: f"s_waitcnt lgkmcnt({n})"
    krd = kreads()
    krd = krd[0::2] + krd[1::2]
    mo = [0, 1, 2, 3, 8, 9, 10, 11, 4, 5, 6, 7, 12, 13, 14, 15]
    mxs = [f"v_max3_f32 v{vT0}, v{S + mo[0]}, v{S + mo[1]}, v{S + mo[2]}"]
    mxs += [f"v_max3_f32 v{vT0}, v{vT0}, v{S + mo[i]}, v{S + mo[i + 1]}" for i in range(3, 15, 2)]
    mxs += [f"v_max_f32 v{vT0}, v{vT0}, v{S + 15}", f"v_cmp_lt_f32 vcc, s{sCt}, v{vT0}"]
    aa = addrs()
    ad = [f"s_add_u32 s{sOffK}, s{sOffK}, s{sCs}", f"s_cmp_ge_u32 s{sOffK}, s{sCr}", f"s_cselect_b32 s{sOffK}, 0, s{sOffK}"]
    fa = [[vrd[i], cvt(j)] for i, j in enumerate((0, 1, 4, 5, 2, 3, 6, 7))]
    fa[0].insert(0, f"s_add_u32 s{sNeed}, s{sNeed}, 1")
    fa[1].insert(0, f"s_sub_u32 s{sIt}, s{sIt}, 1")
    fa[2].insert(0, f"s_cselect_b32 s{sA}, -1, s{sNeed}")
    for i in range(3):
        fa[3 + i].insert(0, ad[i])
    fa[7].insert(0, lg(7))
    fa += [[vrd[8], f_rd], [vrd[9], f_inc], [vrd[10], ex1(0)], [vrd[11], ex1(1)], [vrd[12], ex1(2)],
           [vrd[13], ex1(3)], [vrd[14], ex1(8)], [lg(6), vrd[15], f_wr]]
    for x, f in zip(qk(False), fa):
        A(x)
        AL(f)
    mf = []
    for dt in range(8):
        mf += [pv(dt, 1), pv(dt, 0)]
        if dt == 3:
            mf += [rs(0), rs(1)]
    if pvo == 1:
        mf = mf[:4]
        mf[2], mf[3] = mf[3], mf[2]
        mf += [pv(2, 1), pv(2, 0), pv(3, 0), pv(3, 1), rs(1), rs(0), pv(4, 0), pv(4, 1), pv(5, 1), pv(5, 0), pv(6, 0), pv(6, 1), pv(7, 1), pv(7, 0)]
    if pvo == 2:
        mf = mf[:4] + [pv(2, 0), pv(3, 0), rs(0), pv(2, 1), pv(3, 1), rs(1)] + [pv(d, 1) for d in range(4, 8)] + [pv(d, 0) for d in range(4, 8)]
    if nors:
        mf = [x if f"{vr(ON, 4)}" not in x else "s_nop 0" for x in mf]
    AL([mf[0], f"v_readfirstlane_b32 s{sF}, v{vF2}", aa[0]])
    AL([mf[1], ex1(9)])
    AL([mf[2], f"s_cmp_lt_u32 s{sF}, s{sA}", ex1(10)])
    AL([mf[3], "s_cbranch_scc1 L_slow"])
    A("L_back:")

    def phase_b(kr):
        k = list(kr) if kr else [None] * 8
        n = (lambda x: x) if kr else (lambda x: 0)
        A(ex1(11))
        fb = [[k[0], mxs[0], mxs[1]], [k[1], ex1(4)], [k[2], mxs[2], mxs[3]], [ex1(5)], [k[3], mxs[4], mxs[5]],
              [lg(n(4)), ex1(6)], [k[4], mxs[6], mxs[7]], [ex1(7)], [k[5], mxs[8], aa[1]], [ex1(12)],
              [k[6], aa[2]], [ex1(13)], [k[7], ex1(14)], [lg(n(4)), ex1(15)]]
        for i in range(4, 18):
            A(mf[i])
            AL([x for x in fb[i - 4] if x])

    phase_b(krd)
    if nocomp:
        keep = []
        for x in L[loop_start:]:
            y = x.strip()
            if nocomp & 1 and y.startswith("v_mfma"):
                continue
            if nocomp & 2 and y.startswith(("v_exp", "v_max", "v_cvt")):
                continue
            if nocomp & 4 and y.startswith(("ds_read_b128", "ds_read_b64_tr")):
                continue
            keep.append(x)
        L[loop_start:] = keep
        A("s_mov_b64 vcc, 0")
    A("s_cbranch_vccz L_loop\ns_branch L_rare")

    HB = Q

    def send_stats(spol=spol):
        A(f"v_mov_b32 v{CM + 5}, v{LA + 4}")
        if smask:
            A("s_mov_b64 exec, 0xffff")
        A(f"buffer_store_dwordx2 {vr(CM + 4, 2)}, v{vPL}, {SWS}, s{sSs} offen {spol}")
        if smask:
            A("s_mov_b64 exec, -1")

    def send(i, spol=spol):
        pack_o(i, Q)
        A(f"buffer_store_dwordx4 {vr(Q + 4 * i, 4)}, v{vL16}, {SO if alias else SWS}, s{sSd} offen offset:{(i & 3) * 1024} {spol}")

    def final():
        A("L_lastg:")
        phase_b([])
        A("s_cbranch_vccnz L_rare")
        A("L_final:")
        A(f"{f_rd}\ns_add_u32 s{sNeed}, s{sEnd}, 1\ns_mov_b32 s{sT}, s{sEnd}")
        for j in range(8):
            A(cvt(j))
        A("s_nop 0")
        A(rs(0))
        A(rs(1))
        A(f"s_cmp_lg_u32 s{sRet}, 0\ns_cbranch_scc1 L_final_a")
        A(f"s_waitcnt lgkmcnt(0)\nv_readfirstlane_b32 s{sF}, v{vF2}\nv_readfirstlane_b32 s{sK}, v{vF2 + 1}")
        A(f"s_cmp_ge_u32 s{sF}, s{sNeed}\ns_cbranch_scc1 L_final1")
        spin("f")
        A(f"L_final1:\nds_read_b32 v{vU + 1}, v{vSa}")
        AL(vrd)
        A(f"s_cmp_eq_u32 s{sK}, 1\ns_cbranch_scc1 L_final2")
        for pl in ("sc1", spol):
            send_stats(pl)
            for dt in range(8):
                A(f"s_waitcnt lgkmcnt({14 - 2 * dt})")
                A(pv(dt, 1))
                if dt >= 5:
                    send(dt - 1, pl)
            for dt in range(8):
                A(pv(dt, 0))
                if dt == 2:
                    send(7, pl)
                    st(4)
            if pl == "sc1":
                A("s_branch L_sentw\nL_final2:")

    A("L_slow:")
    A(f"s_cmp_ge_i32 s{sIt}, 0\ns_cbranch_scc1 L_slow1")
    if spincnt:
        A(f"s_waitcnt lgkmcnt(0)\ns_sub_u32 s{sSt + 2}, 0x400000, s{sBud}\ns_sub_u32 s{sSt + 4}, s{sF}, s{sNeed}\ns_add_u32 s{sSt + 4}, s{sSt + 4}, 100")
        st(3)
    if tail:
        A(f"v_readfirstlane_b32 s{sK}, v{vF2 + 1}\ns_cmp_lt_u32 s{sF}, s{sNeed}\ns_cselect_b32 s{sA}, 1, s{sRet}")
        A(f"s_xor_b32 s{sBb}, s{sK}, 1\ns_or_b32 s{sA}, s{sA}, s{sBb}\ns_cbranch_scc1 L_lastg")
        A("L_tail:")
        if st3:
            st(1)
        AL([f"ds_read_b32 v{vU + 1}, v{vSa}"] + aa[1:] + [lg(1)])
        vk = vreads(KF)
        m1 = [pv(dt, 1) for dt in range(2, 8)] + [rs(1)]
        ft = [[ex1(11), mxs[0]], [ex1(12), mxs[1]], [ex1(13), mxs[2]], [ex1(14), mxs[3]], [ex1(15), mxs[4]],
              [mxs[5], mxs[6]], [mxs[7], mxs[8]]]
        AL(vk[:2])
        for i in range(7):
            A(m1[i])
            AL(vk[2 * i + 2:2 * i + 4] + ft[i])
        if st3:
            st(2)
        A("s_cbranch_vccnz L_tail_fix")
        for j in range(4, 8):
            A(cvt(j))
        A(pv(2, 0))
        A(ex1(4))
        A(rs(1))
        for dt in range(8):
            A(lg(14 - 2 * dt))
            A(pv(dt, 1, KF))
            if dt == 4:
                if st3:
                    st(3)
                send_stats()
            if dt >= 5:
                send(dt - 1)
        for dt in range(3, 8):
            A(pv(dt, 0))
            if dt < 6:
                A(ex1(dt + 2))
            if dt == 4:
                send(7)
                st(4)
        A(rs(0))
        for j in range(4):
            A(cvt(j))
        A("s_nop 1")
        A(rs(0))
        for dt in range(8):
            A(pv(dt, 0, KF))
    else:
        final()
    A("L_sent:")
    st(5)
    if not nopart:
        A(f"v_add_u32 v{vU + 2}, 1, v{vU + 1}\ns_mov_b64 exec, 4\ns_waitcnt vmcnt(0)")
        A(f"buffer_store_dword v{vU + 2}, v{vPo}, {SWS}, s{sFo} offen")
        A("L_reld:")
        if st2:
            st(1)
        A(f"s_mov_b64 exec, 3\nv_mov_b32 v{vU + 3}, v{vU + 1}")
        A("L_poll0:")
        budget()
        A(f"buffer_load_dword v{vU + 3}, v{vPo}, {SWS}, s{sFo} offen {fpol}")
        if csleep:
            A(f"s_sleep {csleep}")
        A(f"s_waitcnt vmcnt({npoll})")
        A(f"v_cmp_eq_u32 vcc, v{vU + 3}, v{vU + 1}\ns_cbranch_vccnz L_poll0")
        A("s_mov_b64 exec, -1")
    st(6)
    A(f"buffer_load_dwordx2 {vr(vU + 4, 2)}, v{vPL}, {SWS}, s{sPs} offen {lpol}")
    A(f"buffer_load_dwordx2 {vr(vU + 6, 2)}, v{vPL}, {SWS}, s{sHs} offen {hlpol}")
    for i in range(4):
        A(f"buffer_load_dwordx4 {vr(HB + 16 + 4 * i, 4)}, v{vL16}, {SO if alias else SWS}, s{sPd} offen offset:{i * 1024} {lpol}")

    def unpack_fma(src, i, f, sel):
        for j in range(4):
            A(f"v_lshlrev_b32 v{E + 2 * j}, 16, v{src + j}\nv_and_b32 v{E + 2 * j + 1}, 0xffff0000, v{src + j}")
        for j in range(4):
            o = O + 8 * i + 2 * j
            A(f"v_pk_fma_f32 {vr(o, 2)}, {vr(E + 2 * j, 2)}, {vr(f, 2)}, {vr(o, 2)} {sel}")

    def finish(held):
        n = 8 if held else 4
        if held:
            for i in range(4):
                A(f"buffer_load_dwordx4 {vr(HB + 4 * i, 4)}, v{vL16}, {SWS}, s{sHd} offen offset:{i * 1024} {hlpol}")
        A(f"s_waitcnt vmcnt({n})")
        if st2:
            st(2)
        if held:
            A(f"v_min3_f32 v{vT0}, v{CM}, v{vU + 4}, v{vU + 6}")
        else:
            A(f"v_min_f32 v{vT0}, v{CM}, v{vU + 4}")
        A(f"v_sub_f32 v{vT2}, v{vT0}, v{CM}\nv_sub_f32 v{vMx}, v{vT0}, v{vU + 4}")
        if held:
            A(f"v_sub_f32 v{vMx2}, v{vT0}, v{vU + 6}")
        A(f"v_exp_f32 v{vT2}, v{vT2}\nv_exp_f32 v{vMx}, v{vMx}")
        A(f"v_exp_f32 v{vMx2}, v{vMx2}" if held else "s_nop 0")
        A(f"v_mul_f32 v{vT1}, v{vT2}, v{LA}\nv_fmac_f32 v{vT1}, v{vMx}, v{vU + 5}")
        if held:
            A(f"v_fmac_f32 v{vT1}, v{vMx2}, v{vU + 7}")
        A(f"v_rcp_f32 v{vT1}, v{vT1}\ns_nop 0\nv_mul_f32 v{vT2}, v{vT2}, v{vT1}\nv_mul_f32 v{vMx}, v{vMx}, v{vT1}")
        if held:
            A(f"v_mul_f32 v{vMx2}, v{vMx2}, v{vT1}")
        for i in range(16):
            A(f"v_pk_mul_f32 {vr(O + 2 * i, 2)}, {vr(O + 2 * i, 2)}, {vr(vT2, 2)} op_sel_hi:[1,0]")
        if held:
            for i in range(4):
                A(f"s_waitcnt vmcnt({7 - i})")
                unpack_fma(HB + 16 + 4 * i, i, vMx, "op_sel_hi:[1,0,1]")
        for i in range(4):
            if i < 2:
                A(f"s_waitcnt vmcnt({0 if i else 3})")
            if held:
                unpack_fma(HB + 4 * i, i, vMx, "op_sel:[0,1,0] op_sel_hi:[1,1,1]")
            else:
                unpack_fma(HB + 16 + 4 * i, i, vMx, "op_sel_hi:[1,0,1]")
            if fullrow:
                if i == 2:
                    out_store2(0)
            elif i:
                out_store(i - 1)
            pack_o(i)
        A("s_nop 1")
        if fullrow:
            out_store2(2)
        else:
            out_store(3)
        if st2:
            st(3)
        if stamp:
            A("s_waitcnt vmcnt(0)")
            st(7)
            A(f"s_cmp_eq_u32 s{sW}, {sw}\ns_cbranch_scc0 L_end")
        dump_stamps(32)
        A("s_endpgm")

    def out_store(i):
        d = KF + 4 * i
        A(f"v_permlane16_swap_b32 v{d}, v{d + 2}\nv_permlane16_swap_b32 v{d + 1}, v{d + 3}")
        A(f"buffer_store_dwordx4 {vr(d, 4)}, v{vQo}, {SO}, s{sOut} offen offset:{i * 64} {opol}")

    def out_store2(i):
        d = KF + 4 * i
        for x in (d, d + 4):
            A(f"v_permlane16_swap_b32 v{x}, v{x + 2}\nv_permlane16_swap_b32 v{x + 1}, v{x + 3}")
        for j in range(4):
            A(f"v_mov_b32 v{S + j}, v{d + j}")
        for j in range(4):
            A(f"v_mov_b32_dpp v{d + j}, v{d + 4 + j} row_ror:8 row_mask:0xf bank_mask:0xc")
        for j in range(4):
            A(f"v_mov_b32_dpp v{d + 4 + j}, v{S + j} row_ror:8 row_mask:0xf bank_mask:0x3")
        A(f"buffer_store_dwordx4 {vr(d, 4)}, v{vQo}, {SO}, s{sOut} offen offset:{i * 64} {opol}")
        A(f"buffer_store_dwordx4 {vr(d + 4, 4)}, v{vQo}, {SO}, s{sOut} offen offset:{2048 + i * 64} {opol}")

    A(f"s_cmp_lg_u32 s{sExp}, 0\ns_cbranch_scc1 L_fin_held")
    finish(False)
    A("L_fin_held:")
    finish(True)
    A("L_end:\ns_endpgm")

    if tail:
        final()
        A("s_branch L_sent")
        A("L_tail_fix:")
        for dt in range(2, 8):
            A(pv(dt, 0))
        A(rs(0))
        A("s_branch L_rare")
    A("L_final_a:")
    spin("g")
    AL(vrd)
    for dt in range(8):
        A(f"s_waitcnt lgkmcnt({14 - 2 * dt})")
        A(pv(dt, 1))
        A(pv(dt, 0))
    A("s_branch L_segB")
    A("L_sentw:")
    if nopart:
        A("s_branch L_sent")
    else:
        A(f"v_mov_b32 v{vT0}, {A_SIG}")
        A("L_peers:")
        budget()
        A(f"ds_read_b32 v{vF}, v{vT0}\nds_read_b32 v{vU + 1}, v{vSa}\ns_waitcnt lgkmcnt(0)\nv_readfirstlane_b32 s{sA}, v{vF}\ns_nop 0")
        A(f"s_cmp_eq_u32 s{sA}, 0\ns_cbranch_scc1 L_peers")
        A(f"v_add_u32 v{vU + 2}, 1, v{vU + 1}\ns_mov_b64 exec, 4\ns_waitcnt vmcnt(0)")
        A(f"buffer_store_dword v{vU + 2}, v{vPo}, {SWS}, s{sFo} offen sc1\ns_branch L_reld")
    A("L_hold:")
    spin("q", off=256, need=sItem, le=True)
    AL(kreads(Q))
    park()
    A("s_branch L_nohold")
    A("L_empty:")
    A(f"s_cmp_eq_u32 s{sT}, 0\ns_cbranch_scc1 L_empty1\ns_nop 5")
    park()
    A(f"v_add_u32 v{vPd}, 1, v{vPd}\nds_write_b32 v{vDoneA}, v{vPd} offset:1536")
    A("L_empty1:")
    A(f"v_mov_b32 v{CM}, {hex(BIG)}\nv_mov_b32 v{CM + 4}, {hex(BIG)}")
    A("s_waitcnt vmcnt(0)")
    send_stats("sc1")
    for i in range(4, 8):
        send(i, "sc1")
    A("s_branch L_sentw")
    A("L_slow1:")
    if sleep:
        A(f"s_branch L_slow2\nL_slow3:\ns_sleep {sleep}\nL_slow2:")
        budget()
        A(f"ds_read_b32 v{vF}, v{vRdyA}\ns_waitcnt lgkmcnt(0)\nv_readfirstlane_b32 s{sF}, v{vF}\ns_nop 0")
        A(f"s_cmp_lt_u32 s{sF}, s{sNeed}\ns_cbranch_scc1 L_slow3")
    else:
        spin("s")
    A("s_branch L_back")
    A("L_rare:")
    AL(maxes())
    new_max(True)
    A(f"v_exp_f32 v{vT2}, -v{vMx}\nv_exp_f32 v{vT3}, -v{vMx2}")
    for i in range(8):
        A(f"v_sub_f32 v{CM + i}, v{CM + i}, v{vMx if i < 4 else vMx2}")
    exp_shifted()
    scale_acc(vT2)
    A(f"s_cmp_lt_i32 s{sIt}, 0\ns_cbranch_scc1 L_final\ns_branch L_loop")

    A(f""".section .rodata,"a"
.p2align 6
.amdhsa_kernel {NAME}
  .amdhsa_next_free_vgpr 256
  .amdhsa_next_free_sgpr 102
  .amdhsa_accum_offset 256
  .amdhsa_group_segment_fixed_size 0
  .amdhsa_kernarg_size 64
  .amdhsa_user_sgpr_count 2
  .amdhsa_user_sgpr_kernarg_segment_ptr 1
  .amdhsa_system_sgpr_workgroup_id_x 1
.end_amdhsa_kernel""")
    if nostore:
        L[:] = [x for x in L if not (x.strip().startswith("buffer_store") and "v[16:19]" not in x and "v[20:23]" not in x
                                     and "v[100:103], v239, s[20:23], s73 offen" != x.strip()[21:]
                                     and ((SWS in x and nostore & 1) or (SO in x and nostore & 2)))]
    return "\n".join(L) + "\n"


def parse(spec):
    kw = {}
    for kv in spec.split(","):
        if not kv or kv == "default":
            continue
        k, v = kv.split("=")
        try:
            kw[k] = int(v)
        except ValueError:
            try:
                kw[k] = float(v)
            except ValueError:
                kw[k] = v.replace("+", " ").replace("none", "")
    return kw


if __name__ == "__main__":
    from build import build
    import hz
    files = []
    for spec in sys.argv[1:]:
        txt = gen(**parse(spec))
        pr = hz.check(txt)
        for p in pr:
            print("HAZARD", p, file=sys.stderr)
        fn = "k_" + spec.replace("=", "").replace(",", "_").replace("+", "") + ".s"
        open(fn, "w").write(txt)
        build(fn)
        files.append(fn)
    print(" ".join(files))
```

```python
import sys
import struct

NAME = "standalone__paged_block_table_kv_pagedattention__sampling_kernel"
WSB = 537395200
KVB = 4100 * 32768
QB = 16 * 32 * 32 * 128 * 2

HDR = """; Paged GQA attention, B=16 Hq=32 Hkv=8 Sq=32 D=128 block=16, bf16.
"""

PAIRS = [(4, 13), (9, 8), (14, 3), (0, 12), (5, 7), (10, 2), (15, 11), (1, 6)]


def f2u(x):
    return struct.unpack('<I', struct.pack('<f', x))[0]


def gen(NS=7, win=23, win2=27, ntail=0, gran=1, win0=16, n0=7, lag=1, dec0=16, decs=8,
        delta=0, ex=0, theta=2, lead=8, npoll=1, hwin=8, psleep=16, csleep=0, lprio=3, rdy0=2, chk0=20, rmode=1, cmask=15, base=48, kb=6, firstb=-1, th2=22, b1=4, pre=4, prepol='', k0=4, nosort=0, tail=1, st3=0, smask=0, sleep=2, pvo=0, qko=0, nors=0, sw=0, spincnt=0, bsh=5, touch=0, ra=2, rx=1, apol='sc1', fpol='sc1', alias=1, fullrow=0, st2=0, hpol='', hlpol='sc1', force=0, remap=0, w_lo=14, l0=1, l1=3, l2=4, fbg=12.0, rlo=4, rhi=16, amax=3, fb0=3, sg=60, foff=33, fsleep=1, win1=20, n1=14, dmask=31, dmul=3,
        pol="nt", qpol="nt", opol="", spol="", lpol="sc1", T=8.0,
        stamp=0, trace=0, nocomp=0, noload=0, nopart=0, nostore=0):
    if firstb < 0:
        nt = [-(-(4096 - ((i + 1) * 2654435761) % 2048) // 32) for i in range(16)]
        firstb = sum(1 << i for i, (a, b) in enumerate(PAIRS) if nt[a] - nt[b] <= max(th2, 2 * theta))
    SLOT = 17408
    RING = NS * SLOT
    PB = RING
    A_DONE = PB + 2 * SLOT
    A_READY = A_DONE + 1024
    A_PDONE = A_DONE + 1536
    A_SIG = A_PDONE + 1024
    A_TAB = A_SIG + 512
    A_LIST = A_TAB + 2048
    A_HIST = A_LIST + 512
    LDS = A_HIST + 1024
    wmax = w_lo + 14
    assert LDS <= 163840
    assert NS >= wmax // 16 + lag + 3 and wmax <= 52
    BOX = 17408
    BIG = f2u(1e30)
    OOB = 0x40000000
    L = []

    def A(s):
        for x in s.split('\n'):
            L.append(x if x.endswith(':') or x.startswith(('.', ';')) else '    ' + x)

    vLane, vT0, vT1, vT2, vT3 = 1, 2, 3, 4, 5
    vKc, vV0c, vV1c, vK, vV0, vV1 = 6, 7, 8, 9, 10, 11
    vQo, vRdyA, vDoneA, vF = 12, 13, 14, 15
    S, E, CM, LA, O, Q, KF, VF, P, ON = 16, 32, 48, 56, 64, 128, 160, 192, 224, 232
    vMx, vMx2, vDone, vL16, vG4, vPd, vPA, vPL = 236, 237, 238, 239, 240, 241, 242, 243
    vF2, vU = 244, 248
    TA, TBb, vRow = 64, 68, 72
    vKo, vVo = 76, 80
    vPoll, vPub, vDn, vDnA, vF0, vDb, vPoll2, vFa = 84, 85, 86, 87, 89, 90, 91, 92
    vQd = 242
    HR = 100

    sW, sH, sRole = 3, 32, 33
    sBA, sBB, sCntA, sCntB, sTopA, sTopB, sNv, sExp, sZ = 35, 36, 37, 38, 39, 40, 41, 42, 43
    sGrp, sSwap, sBud, sPar = 44, 45, 46, 47
    sB, sCnt, sT, sEnd, sOffK, sRet, sNeed, sF, sScale = 64, 65, 66, 67, 68, 69, 70, 71, 72
    sA, sBb, sC, sD, sE2, sF2 = 73, 74, 75, 76, 77, 78
    sQoff, sIt, sOffQ, sItem, sK = 79, 80, 81, 82, 83
    sS, sOff, sPub, sFree, sTile, sO0, sO1, sN0, sN1, sLag, sDec = 66, 67, 68, 69, 70, 71, 72, 79, 80, 81, 82
    sP0, sP1, sSw = 34, 64, 41
    sSt = 84
    SQ, SK, SV, SWS, SO, SD = "s[8:11]", "s[12:15]", "s[16:19]", "s[20:23]", "s[24:27]", "s[28:31]"

    def vr(a, n):
        return f"v[{a}:{a + n - 1}]" if n > 1 else f"v{a}"

    def adv(s):
        return [f"s_add_u32 s{s}, s{s}, {SLOT}", f"s_cmp_ge_u32 s{s}, {RING}", f"s_cselect_b32 s{s}, 0, s{s}"]

    def AL(lst):
        for x in lst:
            A(x)

    def budget():
        A(f"s_sub_u32 s{sBud}, s{sBud}, 1\ns_cbranch_scc1 L_end")

    def st(i):
        if stamp:
            A(f"{'s_memrealtime' if stamp == 1 else 's_memtime'} s[{sSt + 2 * i}:{sSt + 2 * i + 1}]")

    def dump_stamps(base):
        if not stamp:
            return
        A("s_waitcnt lgkmcnt(0)")
        for i in range(8):
            A(f"v_mov_b32 v{16 + i}, s{sSt + 2 * i}")
        A(f"s_mul_i32 s{sA}, s2, 96\ns_add_u32 s{sA}, s{sA}, {WSB - 256 * 96 + base}")
        A(f"v_mov_b32 v{vT0}, 0\ns_mov_b64 exec, 1")
        A(f"buffer_store_dwordx4 v[16:19], v{vT0}, {SWS}, s{sA} offen")
        A(f"buffer_store_dwordx4 v[20:23], v{vT0}, {SWS}, s{sA} offen offset:16")
        A("s_mov_b64 exec, -1")

    def box_off(dst, k):
        A(f"s_mul_i32 s{dst}, s{sGrp}, 6\ns_add_u32 s{dst}, s{dst}, {k}\ns_mul_i32 s{dst}, s{dst}, {BOX}")

    tabA = sum(p[0] << (4 * i) for i, p in enumerate(PAIRS))
    tabB = sum(p[1] << (4 * i) for i, p in enumerate(PAIRS))

    A(HDR.rstrip())
    A(f"; @launch grid=(256,1,1) block=(448,1,1) lds={LDS}")
    A('.amdgcn_target "amdgcn-amd-amdhsa--gfx950"\n.text')
    A(f".globl {NAME}\n.p2align 8\n.type {NAME},@function\n{NAME}:")
    A("s_cmp_ge_u32 s2, 256\ns_cbranch_scc1 L_end")
    A("s_load_dwordx16 s[48:63], s[0:1], 0")
    if remap:
        A(f"s_lshr_b32 s4, s2, {6 if remap == 1 else 7}\ns_add_u32 s4, s4, s2\ns_and_b32 s4, s4, 7\ns_and_b32 s2, s2, 0xf8\ns_or_b32 s2, s2, s4")
    if stamp:
        for i in range(8):
            A(f"s_mov_b64 s[{sSt + 2 * i}:{sSt + 2 * i + 1}], 0")
    st(0)
    A(f"v_lshrrev_b32 v{vT0}, 6, v0\nv_and_b32 v{vLane}, 63, v0")
    A(f"v_readfirstlane_b32 s{sW}, v{vT0}")
    A(f"v_lshlrev_b32 v{vL16}, 4, v{vLane}")
    A(f"s_and_b32 s{sH}, s2, 7\ns_lshr_b32 s{sRole}, s2, 6\ns_lshr_b32 s{sA}, s2, 1\ns_and_b32 s{sA}, s{sA}, 28")
    A(f"s_lshr_b32 s{sBA}, {hex(tabA)}, s{sA}\ns_lshr_b32 s{sBB}, {hex(tabB)}, s{sA}")
    A(f"s_and_b32 s{sBA}, s{sBA}, 15\ns_and_b32 s{sBB}, s{sBB}, 15")
    A(f"s_lshl_b32 s{sA}, s{sBA}, 2\ns_lshl_b32 s{sBb}, s{sBB}, 2")
    A(f"s_lshl_b32 s{sC}, s{sBA}, 10\ns_lshl_b32 s{sD}, s{sBB}, 10")
    A(f"v_add_u32 v{vT2}, s{sC}, v{vL16}\nv_add_u32 v{vT3}, s{sD}, v{vL16}")
    A(f"s_mov_b32 s{sBud}, 0x400000\ns_and_b32 s{sGrp}, s2, 63")
    A(f"s_cmp_lt_u32 s{sRole}, 2\ns_cselect_b32 s{sPar}, 4096, 0")
    A(f"v_min_u32 v{vDoneA}, 383, v0\nv_lshlrev_b32 v{vDoneA}, 2, v{vDoneA}\nv_add_u32 v{vDoneA}, {A_DONE}, v{vDoneA}")
    A(f"v_mov_b32 v{vDone}, 0")
    A(f"ds_write_b32 v{vDoneA}, v{vDone}\nds_write_b32 v{vDoneA}, v{vDone} offset:1536")
    A(f"v_mov_b32 v{vRdyA}, {A_READY}")
    A(f"v_lshrrev_b32 v{vT0}, 4, v{vLane}\nv_and_b32 v{vT1}, 15, v{vLane}")
    A(f"v_xor_b32 v{vU}, v{vT1}, v{vT0}\nv_lshlrev_b32 v{vU}, 4, v{vU}\nv_lshl_add_u32 v{vQd}, v{vT0}, 8, v{vU}")
    A(f"s_lshr_b32 s{sE2}, s2, 3\ns_bitcmp1_b32 {hex(0xff000000 | firstb << 8)}, s{sE2}\ns_cselect_b32 s{sB}, s{sBB}, s{sBA}")
    A(f"s_mul_i32 s{sOffQ}, s{sW}, 8704\ns_add_u32 s{sOffQ}, s{sOffQ}, {PB}")
    A(f"s_mov_b32 s10, {QB}\ns_mov_b32 s11, 0x20000")

    def q_own():
        A(f"s_lshl_b32 s{sE2}, s{sB}, 3\ns_add_u32 s{sE2}, s{sE2}, s{sH}\ns_lshl_b32 s{sE2}, s{sE2}, 2\ns_add_u32 s{sE2}, s{sE2}, s{sW}")
        A(f"s_lshl_b32 s{sE2}, s{sE2}, 13\ns_add_u32 s{sE2}, s{sE2}, s{sPar}\ns_xor_b32 s{sF2}, s{sE2}, 4096")

    def q_own_loads():
        for r in range(8):
            A(f"s_add_u32 m0, s{sOffQ}, {r * 1088 - (r & 3) * 1024}\ns_nop 0")
            A(f"buffer_load_dwordx4 v{vQd}, {SQ}, s{sE2 if r < 4 else sF2} offen offset:{(r & 3) * 1024} {qpol} lds")

    q_own()
    A(f"s_mov_b32 m0, {A_TAB}\ns_and_b32 s{sC}, s{sW}, 6\ns_cmp_eq_u32 s{sC}, 4")
    A("s_waitcnt lgkmcnt(0)")
    A("s_cbranch_scc0 L_notab")
    A(f"global_load_lds_dwordx4 v{vT2}, s[54:55]\ns_mov_b32 m0, {A_TAB + 1024}\ns_setprio {lprio}\nglobal_load_lds_dwordx4 v{vT3}, s[54:55]")
    A("L_notab:")
    A(f"s_load_dword s{sCntA}, s[56:57], s{sA}\ns_load_dword s{sCntB}, s[56:57], s{sBb}")
    A(f"s_mov_b32 s8, s48\ns_mov_b32 s9, s49\ns_cmp_lt_u32 s{sW}, 4")
    A("s_barrier")
    A("s_cbranch_scc0 L_noq")
    q_own_loads()
    A("L_noq:")
    for srd, p, n in ((12, 50, KVB), (16, 52, KVB), (20, 62, WSB), (24, 58, QB), (28, 60, 256)):
        A(f"s_mov_b32 s{srd}, s{p}\ns_mov_b32 s{srd + 1}, s{p + 1}\ns_mov_b32 s{srd + 2}, {n}\n"
          f"s_mov_b32 s{srd + 3}, 0x20000")
    box_off(sE2, 0)
    A(f"v_lshrrev_b32 v{vT2}, 2, v{vLane}\nv_min_u32 v{vT2}, 5, v{vT2}\nv_mul_u32_u24 v{vT2}, {BOX}, v{vT2}")
    A(f"v_and_b32 v{vT3}, 3, v{vLane}\nv_lshl_add_u32 v{vFa}, v{vT3}, 7, v{vT2}\ns_add_u32 s{sE2}, s{sE2}, 16896\nv_add_u32 v{vFa}, s{sE2}, v{vFa}")
    A(f"s_cmp_eq_u32 s{sW}, 5\ns_cbranch_scc0 L_nosnap")
    A(f"buffer_load_dword v{vF0}, v{vFa}, {SWS}, 0 offen sc1")
    A(f"v_add_u32 v{vT2}, {A_HIST}, v{vL16}")
    for j in range(4):
        A(f"v_mov_b32 v{68 + j}, 0")
    A(f"ds_write_b128 v{vT2}, v[68:71]")
    if touch:
        A(f"s_lshr_b32 s{sE2}, s2, 3\ns_lshl_b32 s{sE2}, s{sE2}, 22\nv_and_b32 v{vT2}, 1, v{vLane}\nv_lshlrev_b32 v{vT2}, 21, v{vT2}")
        A(f"buffer_load_dword v{vPoll}, v{vT2}, {SK}, s{sE2} offen nt\nbuffer_load_dword v{vPoll2}, v{vT2}, {SV}, s{sE2} offen nt")
    A("L_nosnap:")
    A(f"v_and_b32 v{vDnA}, 3, v{vLane}\nv_lshlrev_b32 v{vDnA}, 8, v{vDnA}\nv_add_u32 v{vDnA}, {A_DONE}, v{vDnA}")
    A(f"s_lshl_b32 s{sE2}, s{sH}, 8")
    A(f"v_lshl_add_u32 v{vT2}, v{vT0}, 11, v{vU}\nv_add_u32 v{vKo}, s{sE2}, v{vT2}")
    A(f"v_and_b32 v{vT2}, 1, v{vT0}\nv_lshlrev_b32 v{vT2}, 1, v{vT2}\nv_xor_b32 v{vT2}, v{vT2}, v{vT1}\nv_lshlrev_b32 v{vT2}, 4, v{vT2}")
    A(f"v_lshl_add_u32 v{vT2}, v{vT0}, 13, v{vT2}\nv_add_u32 v{vVo}, s{sE2}, v{vT2}")
    for j in range(1, 4):
        A(f"v_add_u32 v{vKo + j}, {j * (8192 - 1088)}, v{vKo}\nv_add_u32 v{vVo + j}, {j * (2048 - 1088)}, v{vVo}")
    A("s_waitcnt lgkmcnt(0)")
    st(1)
    A(f"s_min_i32 s{sA}, s{sCntA}, 0x1000\ns_cmp_lt_i32 s{sA}, 1\ns_cselect_b32 s{sA}, 0x1000, s{sA}\ns_cselect_b32 s{sC}, 1, 0")
    A(f"s_min_i32 s{sBb}, s{sCntB}, 0x1000\ns_cmp_lt_i32 s{sBb}, 1\ns_cselect_b32 s{sBb}, 0x1000, s{sBb}\ns_cselect_b32 s{sD}, 1, 0")
    A(f"s_mov_b32 s{sE2}, s{sBA}\ns_cmp_lt_u32 s{sA}, s{sBb}\ns_cselect_b32 s{sSwap}, 1, 0")
    A(f"s_cselect_b32 s{sCntA}, s{sBb}, s{sA}\ns_cselect_b32 s{sCntB}, s{sA}, s{sBb}")
    A(f"s_cselect_b32 s{sBA}, s{sBB}, s{sBA}\ns_cselect_b32 s{sBB}, s{sE2}, s{sBB}")
    A(f"s_cselect_b32 s{sZ}, s{sD}, s{sC}\ns_cselect_b32 s{sD}, s{sC}, s{sD}\ns_lshl_b32 s{sD}, s{sD}, 1\ns_or_b32 s{sZ}, s{sZ}, s{sD}")
    A(f"s_cmp_eq_u32 s{sRole}, 3\ns_cselect_b32 s{sNv}, s{sCntB}, s{sCntA}")
    A(f"s_sub_u32 s{sNv}, s{sNv}, 1\ns_and_b32 s{sNv}, s{sNv}, 31\ns_add_u32 s{sNv}, s{sNv}, 1")
    A(f"s_add_u32 s{sTopA}, s{sCntA}, 31\ns_lshr_b32 s{sTopA}, s{sTopA}, 5")
    A(f"s_add_u32 s{sTopB}, s{sCntB}, 31\ns_lshr_b32 s{sTopB}, s{sTopB}, 5")
    A(f"s_add_u32 s{sA}, s{sTopA}, s{sTopB}\ns_add_u32 s{sA}, s{sA}, {2 * delta + ex + ra}\ns_lshr_b32 s{sA}, s{sA}, 2\ns_max_u32 s{sA}, s{sA}, 1")
    A(f"s_min_u32 s{sCntA}, s{sA}, s{sTopA}\ns_min_u32 s{sCntB}, s{sA}, s{sTopB}")
    if th2:
        A(f"s_add_u32 s{sC}, s{sTopA}, 1\ns_lshr_b32 s{sC}, s{sC}, 1\ns_add_u32 s{sD}, s{sTopB}, 1\ns_lshr_b32 s{sD}, s{sD}, 1")
        A(f"s_sub_u32 s{sA}, s{sTopA}, s{sTopB}\ns_cmp_le_u32 s{sA}, {th2}")
        A(f"s_cselect_b32 s{sCntA}, s{sC}, s{sCntA}\ns_cselect_b32 s{sCntB}, s{sD}, s{sCntB}\ns_cselect_b32 s{sF2}, 0x1000, {theta}")
    A(f"s_sub_u32 s{sC}, s{sTopA}, s{sCntA}\ns_sub_u32 s{sD}, s{sTopB}, s{sCntB}")
    A(f"s_add_u32 s{sBb}, s{sC}, s{sD}\ns_add_u32 s{sBb}, s{sBb}, {ex + rx}\ns_lshr_b32 s{sBb}, s{sBb}, 1\ns_min_u32 s{sBb}, s{sBb}, s{sC}")
    A(f"s_sub_u32 s{sExp}, s{sC}, s{sBb}\ns_cmp_le_u32 s{sExp}, {f's{sF2}' if th2 else theta}\ns_cselect_b32 s{sBb}, s{sC}, s{sBb}\ns_cselect_b32 s{sExp}, 0, s{sExp}")
    A(f"s_cmp_ge_u32 s{sRole}, 2\ns_cbranch_scc1 L_plan_top")
    A(f"s_mov_b32 s{sNv}, 32\ns_mov_b32 s{sTopB}, s{sD}\ns_mov_b32 s{sCntB}, s{sD}")
    A(f"s_cmp_eq_u32 s{sRole}, 0\ns_cselect_b32 s{sCntA}, s{sBb}, s{sExp}\ns_cselect_b32 s{sTopA}, s{sBb}, s{sC}")
    A("L_plan_top:")
    A(f"s_bitcmp1_b32 s{sRole}, 0\ns_cselect_b32 s{sCntB}, s{sCntB}, 0\ns_cselect_b32 s{sExp}, 0, s{sExp}")
    A(f"s_cmp_eq_u32 s{sRole}, 3\ns_cselect_b32 s{sCntA}, 0, s{sCntA}")
    A(f"s_cmp_lt_u32 s{sW}, 4\ns_cbranch_scc1 L_consumer\ns_cmp_eq_u32 s{sW}, 6\ns_cbranch_scc1 L_pacer")
    A(f"s_sub_u32 s{sA}, s{sW}, 4\ns_mul_i32 s{sA}, s{sA}, {k0}\nv_add_u32 v{vRow + 2}, s{sA}, v{vLane}")
    A(f"s_add_u32 s{sCnt}, s{sCntA}, s{sCntB}\ns_add_u32 s{sBb}, s{sTopB}, s{sCntA}\nv_cmp_gt_u32 vcc, s{sCntA}, v{vRow + 2}")
    A(f"v_mov_b32 v{vT2}, s{sTopA}\nv_mov_b32 v{vT3}, s{sBb}\ns_lshl_b32 s{sA}, s{sSwap}, 10\ns_add_u32 s{sA}, s{sA}, {A_TAB}")
    A(f"v_cndmask_b32 v{vT2}, v{vT3}, v{vT2}, vcc\ns_lshl_b32 s{sBb}, s{sSwap}, 10\ns_sub_u32 s{sBb}, {A_TAB + 1024}, s{sBb}")
    A(f"v_xad_u32 v{vT2}, v{vRow + 2}, -1, v{vT2}\nv_mov_b32 v{vT3}, s{sA}\nv_mov_b32 v{vRow}, s{sBb}")
    A(f"v_and_b32 v{vT2}, 127, v{vT2}\nv_cndmask_b32 v{vT3}, v{vRow}, v{vT3}, vcc\nv_lshl_add_u32 v{vT2}, v{vT2}, 3, v{vT3}")
    A(f"s_cmp_eq_u32 s{sW}, 5\ns_cbranch_scc1 L_helper")

    def min4(dst, add):
        A(f"v_readlane_b32 s{sA}, v{vDn}, 0\nv_readlane_b32 s{sBb}, v{vDn}, 1\nv_readlane_b32 s{sC}, v{vDn}, 2\n"
          f"v_readlane_b32 s{sD}, v{vDn}, 3")
        A(f"s_min_u32 s{sA}, s{sA}, s{sBb}\ns_min_u32 s{sC}, s{sC}, s{sD}\ns_min_u32 s{dst}, s{sA}, s{sC}")
        if add:
            A(f"s_add_u32 s{dst}, s{dst}, {add}")

    A(f"s_cmp_eq_u32 s{sCnt}, 0\ns_cbranch_scc1 L_ldone")
    A(f"s_waitcnt vmcnt(0)\nds_read_b64 {vr(vRow, 2)}, v{vT2}")
    st(2)
    A(f"s_mov_b32 s{sS}, 1\ns_mov_b32 s{sOff}, {SLOT}\ns_mov_b32 s{sPub}, 0\ns_mov_b32 s{sFree}, {NS}")
    A(f"s_mov_b32 s{sTile}, 1\ns_mov_b32 s{sSw}, {k0 if not nosort else 64}\ns_mov_b32 m0, 0")
    A(f"s_waitcnt lgkmcnt(0)\nv_lshlrev_b32 v{vRow}, 15, v{vRow}\nv_lshlrev_b32 v{vRow + 1}, 15, v{vRow + 1}")
    A(f"v_readlane_b32 s{sA}, v{vRow}, 0\nv_readlane_b32 s{sBb}, v{vRow + 1}, 0\nv_readlane_b32 s{sN0}, v{vRow}, 1\nv_readlane_b32 s{sN1}, v{vRow + 1}, 1")
    A(f"s_mov_b32 s{sO0}, s{sA}\ns_mov_b32 s{sO1}, s{sBb}")
    for g in range(2):
        if g:
            A("s_mov_b32 m0, 4352\ns_nop 0")
        for j in range(4):
            A(f"buffer_load_dwordx4 v{vKo + j}, {SK}, s{sO0 + g} offen offset:{j * 1088} {pol} lds")
    if lag:
        A(f"s_mov_b32 s{sLag}, {lag}\ns_lshr_b32 s{sDec}, s2, 3\ns_and_b32 s{sDec}, s{sDec}, {dmask}")
        if dmul != 4:
            A(f"s_mul_i32 s{sDec}, s{sDec}, {dmul}\ns_lshr_b32 s{sDec}, s{sDec}, 2")
        A(f"s_add_u32 s{sDec}, s{sDec}, {dec0}")
    A(f"v_lshlrev_b32 v{vT2}, 3, v{vLane}\nv_add_u32 v{vT2}, {A_LIST}, v{vT2}\nv_mov_b32 v{vT3}, {A_SIG}")
    sLvl = 53
    A(f"s_mov_b32 s{sA}, {A_SIG + 8}\nv_writelane_b32 v{vDnA}, s{sA}, 4\ns_mov_b32 s{sLvl}, {l0}")
    A("L_next:")
    A(f"s_sub_u32 s{sCnt}, s{sCnt}, 1\ns_cmp_eq_u32 s{sCnt}, 0\ns_cbranch_scc1 L_lsegend")
    A(f"s_mov_b32 s{sP0}, s{sO0}\ns_mov_b32 s{sP1}, s{sO1}\ns_mov_b32 s{sO0}, s{sN0}\ns_mov_b32 s{sO1}, s{sN1}")
    A(f"s_cmp_lt_u32 s{sS}, s{sFree}\ns_cbranch_scc0 L_full_a")
    A("L_free_a:")

    def tree(lo, hi):
        if lo == hi:
            stage_loop(str(lo), w_lo + 2 * lo)
            return
        mid = (lo + hi + 1) // 2
        A(f"s_cmp_ge_i32 s{sLvl}, {mid}\ns_cbranch_scc1 L_t{mid}_{hi}")
        tree(lo, mid - 1)
        A(f"L_t{mid}_{hi}:")
        tree(mid, hi)

    def next_offsets(tag):
        A(f"s_add_u32 s{sTile}, s{sTile}, 1\ns_cmp_eq_u32 s{sTile}, s{sSw}\ns_cbranch_scc1 L_sw_{tag}")
        A(f"L_swd_{tag}:")
        A(f"v_readlane_b32 s{sN0}, v{vRow}, s{sTile}\nv_readlane_b32 s{sN1}, v{vRow + 1}, s{sTile}")

    def publish(back, lagged):
        A(f"s_sub_u32 s{sE2}, s{sS}, {back}")
        if lagged:
            A(f"s_sub_u32 s{sF2}, s{sE2}, s{sLag}\ns_max_i32 s{sPub}, s{sPub}, s{sF2}")
        else:
            A(f"s_max_i32 s{sPub}, s{sPub}, s{sE2}")
        A(f"v_mov_b32 v{vPub}, s{sPub}")
        if lagged:
            A(f"v_writelane_b32 v{vPub}, s{sE2}, 1")

    def stage_loop(tag, w):
        pub_i = -(-((w - gran) % 16) // gran) * gran
        back = (w - gran) // 16
        if pub_i == 16:
            pub_i, back = 0, back + 1
        for i in range(16):
            g, j = i >> 2, i & 3
            srd, vo, so = ((SK, vKo, sO0), (SK, vKo, sO1), (SV, vVo, sP0), (SV, vVo, sP1))[g]
            if j == 0:
                A(f"s_mov_b32 m0, s{sOff}" if g == 0 else f"s_add_u32 m0, s{sOff}, {g * 4352}")
            if i == pub_i:
                publish(back, lag)
            if i % gran == 0:
                A(f"s_waitcnt vmcnt({w - gran})")
            elif j == 0:
                A("s_nop 0")
            if i == pub_i:
                A(f"ds_write_b32 v{vDoneA}, v{vPub}")
            A(f"buffer_load_dwordx4 v{vo + j}, {srd}, s{so} offen offset:{j * 1088} {pol} lds")
            if i == 3:
                next_offsets(tag)
            if i == 8:
                A(f"ds_read_b32 v{vDn}, v{vDnA}")
            if i == 10:
                A("s_waitcnt lgkmcnt(0)")
                min4(sFree, NS)
            if i == 12:
                AL(adv(sOff))
                A(f"v_readlane_b32 s{sBb}, v{vDn}, 4\ns_cmp_lt_u32 s{sS}, {n1 - 1}\ns_cselect_b32 s{sA}, {l1}, {l2}")
                A(f"s_cmp_lt_u32 s{sS}, {n0 - 1}\ns_cselect_b32 s{sA}, {l0}, s{sA}\ns_add_u32 s{sLvl}, s{sA}, s{sBb}")
            if i == 13 and lag:
                assert lag == 1
                A(f"s_cmp_ge_u32 s{sS}, s{sDec}\ns_cselect_b32 s{sLag}, 0, 1")
        A(f"s_add_u32 s{sS}, s{sS}, 1")
        A("s_branch L_stg" if stamp or noload else "s_branch L_next")

    tree(0, 7)
    if stamp or noload:
        A("L_stg:")
        for k, n in ((5, 8), (6, 24), (7, 40)):
            A(f"s_cmp_lg_u32 s{sS}, {n}\ns_cbranch_scc1 L_ns{k}")
            st(k)
            A(f"L_ns{k}:")
        if noload:
            A(f"s_cmp_lt_u32 s{sS}, {NS}\ns_cbranch_scc1 L_next\ns_waitcnt vmcnt(0)\nv_mov_b32 v{vPub}, 0x7fffffff\n"
              f"ds_write_b32 v{vDoneA}, v{vPub}\ns_branch L_ldone")
        A("s_branch L_next")
    A("L_lsegend:")
    if pre:
        A(f"ds_read_b32 v{vPoll}, v{vT3}")
    A(f"s_cmp_lt_u32 s{sS}, s{sFree}\ns_cbranch_scc0 L_full_e")
    A("L_free_e:")
    for g in (2, 3):
        A(f"s_add_u32 m0, s{sOff}, {g * 4352}\ns_nop 0")
        for j in range(4):
            A(f"buffer_load_dwordx4 v{vVo + j}, {SV}, s{sO0 if g == 2 else sO1} offen offset:{j * 1088} {pol} lds")
    st(3)
    if pre:
        A(f"s_bitcmp1_b32 s{sRole}, 0\ns_cselect_b32 s48, s{sBB}, s{sBA}\ns_lshl_b32 s48, s48, 3\ns_add_u32 s48, s48, s{sH}")
        A(f"s_lshl_b32 s48, s48, 15\ns_add_u32 s48, s48, s{sPar}")
        A(f"v_lshrrev_b32 v93, 5, v{vLane}\nv_lshlrev_b32 v93, 12, v93\nv_lshl_add_u32 v93, v{vLane}, 7, v93\nv_lshlrev_b32 v95, 7, v{vLane}")
        A(f"s_xor_b32 s{sA}, s{sRole}, 2\ns_lshr_b32 s{sBb}, s{sRole}, 1\ns_add_u32 s{sBb}, s{sBb}, 4")
        box_off(50, f"s{sA}")
        box_off(49, f"s{sBb}")
        A(f"s_cmp_eq_u32 s{sExp}, 0\ns_cselect_b32 s49, {hex(OOB)}, s49\ns_cselect_b32 s51, s50, s49")
        A(f"v_and_b32 v94, 4, v{vLane}\nv_cmp_eq_u32 vcc, 0, v94\nv_mov_b32 v94, s50\nv_mov_b32 v96, s51\nv_and_b32 v97, 3, v{vLane}")
        A(f"v_cndmask_b32 v94, v96, v94, vcc\nv_lshl_add_u32 v94, v97, 7, v94")
    npre = 5 if pre else 0

    def pre_loads():
        A(f"s_waitcnt lgkmcnt(0)\nv_readfirstlane_b32 s{sA}, v{vPoll}\ns_nop 0\ns_cmp_eq_u32 s{sA}, 1")
        A(f"s_cselect_b32 s48, s48, {hex(OOB)}\ns_cselect_b32 s49, s49, {hex(OOB)}\ns_cselect_b32 s50, 16384, {hex(OOB)}")
        A("s_add_u32 s51, s48, 16384\ns_add_u32 s52, s49, 8192")
        A(f"buffer_load_dword v96, v94, {SWS}, s50 offen {prepol}")
        A(f"buffer_load_dword v96, v93, {SO}, s48 offen {prepol}\nbuffer_load_dword v96, v93, {SO}, s51 offen {prepol}")
        A(f"buffer_load_dword v96, v95, {SWS}, s49 offen {prepol}\nbuffer_load_dword v96, v95, {SWS}, s52 offen {prepol}")

    backs = list(range((wmax - 1) // 16, -2, -1))
    for n, back in enumerate(backs):
        if pre and n == pre - 1:
            pre_loads()
        ex_n = npre if pre and n >= pre - 1 else 0
        publish(back, False) if back >= 0 else A(f"s_add_u32 s{sA}, s{sS}, 1\nv_mov_b32 v{vPub}, s{sA}")
        A(f"s_waitcnt vmcnt({(16 * back + 8 if back >= 0 else 0) + ex_n})\nds_write_b32 v{vDoneA}, v{vPub}")
    if pre > len(backs):
        pre_loads()
    A("L_ldone:")
    st(4)
    dump_stamps(0)
    A("s_endpgm")
    for tag in "01234567":
        A(f"L_sw_{tag}:")
        budget()
        A(f"ds_read_b32 v{vDn}, v{vT3} offset:4\nds_read_b64 {vr(vRow, 2)}, v{vT2}\ns_waitcnt lgkmcnt(0)\nv_readfirstlane_b32 s{sA}, v{vDn}\ns_nop 0")
        A(f"s_cmp_eq_u32 s{sA}, 0\ns_cbranch_scc1 L_sw_{tag}")
        A(f"s_mov_b32 s{sTile}, 0\ns_mov_b32 s{sSw}, -1\ns_branch L_swd_{tag}")
    for tag in "ae":
        A(f"L_full_{tag}:")
        budget()
        A(f"ds_read_b32 v{vDn}, v{vDnA}\ns_waitcnt lgkmcnt(0)")
        min4(sFree, NS)
        A(f"s_cmp_lt_u32 s{sS}, s{sFree}\ns_cbranch_scc0 L_full_{tag}\ns_branch L_free_{tag}")

    A("L_pacer:")
    sPos, sIdx, sLine, sNx = 54, 55, 56, 57
    A(f"s_add_u32 s{sCnt}, s{sCntA}, s{sCntB}\ns_lshr_b32 s{sIdx}, s2, 3")
    A(f"s_sub_u32 s{sA}, s{sCnt}, {base}\ns_mul_i32 s{sA}, s{sA}, {sg}\ns_add_u32 s{sA}, s{sA}, {128 - sg * 3 // 4}\ns_ashr_i32 s{sA}, s{sA}, 8")
    A(f"s_min_i32 s{sA}, s{sA}, {amax}\ns_max_i32 s{sA}, s{sA}, {-amax}\nv_mov_b32 v101, s{sA}\nv_mov_b32 v{vT3}, {A_SIG + 8}\nds_write_b32 v{vT3}, v101")
    A(f"s_lshl_b32 s{sA}, s{sH}, 7\ns_add_u32 s{sLine}, s{sA}, {64 * 6 * BOX}\nv_and_b32 v98, 31, v{vLane}\nv_lshlrev_b32 v98, 2, v98")
    A(f"s_lshl_b64 s[58:59], 1, s{sIdx}\nbuffer_load_dword v99, v98, {SWS}, s{sLine} offen sc1")
    A(f"s_and_b32 s{sNx}, s{sIdx}, 1\ns_add_u32 s{sNx}, s{sNx}, {fb0}\ns_waitcnt vmcnt(0)")
    A("L_pc0:")
    A(f"s_cmp_ge_u32 s{sNx}, s{sCnt}\ns_cbranch_scc1 L_end")
    A("L_pc1:")
    budget()
    if fsleep:
        A(f"s_sleep {fsleep}")
    A(f"ds_read_b32 v{vF}, v{vRdyA} offset:4\ns_waitcnt lgkmcnt(0)\nv_readfirstlane_b32 s{sF}, v{vF}\ns_nop 0")
    A(f"s_cmp_lt_i32 s{sF}, s{sNx}\ns_cbranch_scc1 L_pc1")
    A(f"s_sub_u32 s{sBb}, s{sCnt}, s{sF}\ns_sub_u32 s{sPos}, 128, s{sBb}\nv_add_u32 v102, s{sPos}, v99\ns_mov_b64 exec, s[58:59]")
    A(f"buffer_store_dword v102, v98, {SWS}, s{sLine} offen\ns_mov_b64 exec, -1")
    A(f"buffer_load_dword v100, v98, {SWS}, s{sLine} offen sc1")
    A(f"s_add_u32 s{sNx}, s{sF}, 2\ns_sub_u32 s{sA}, s{sBb}, 2\ns_min_i32 s{sA}, s{sA}, {rhi}\ns_max_i32 s{sA}, s{sA}, {rlo}")
    A(f"v_cvt_f32_u32 v102, s{sA}\ns_lshl_b32 s{sD}, s{sPos}, 5\ns_sub_u32 s{sD}, s{sD}, {foff}\nv_rcp_f32 v102, v102\ns_waitcnt vmcnt(0)")
    A(f"v_sub_u32 v101, v100, v99\nv_cmp_eq_u32 vcc, 0, v101\ns_nop 0")
    for sh in (1, 2, 4, 8):
        A(f"v_add_u32_dpp v101, v101, v101 row_shr:{sh} row_mask:0xf bank_mask:0xf bound_ctrl:0\ns_nop 1")
    A(f"v_add_u32_dpp v101, v101, v101 row_bcast:15 row_mask:0xa bank_mask:0xf\ns_cbranch_vccnz L_pc0")
    A(f"v_subrev_u32 v101, s{sD}, v101\nv_cvt_f32_i32 v101, v101\nv_mul_f32 v101, {hex(f2u(fbg / 32))}, v101\nv_mul_f32 v101, v101, v102")
    A(f"v_rndne_f32 v101, v101\nv_cvt_i32_f32 v101, v101\nv_med3_i32 v101, v101, {-amax}, {amax}")
    A(f"s_mov_b32 exec_lo, 0x80000000\ns_mov_b32 exec_hi, 0\nds_write_b32 v{vT3}, v101\ns_mov_b64 exec, -1\ns_branch L_pc0")

    A("L_helper:")
    a_0, a_1, p_0, p_1, hh, tt, one = 64, 65, 66, 67, 68, 96, 75
    A(f"s_waitcnt vmcnt(1)\nds_read_b64 {vr(vRow, 2)}, v{vT2}")
    A(f"v_mov_b32 v{a_0}, {A_HIST}\nv_mov_b32 v{a_1}, {A_HIST + 512}\nv_add_u32 v{vT3}, {A_HIST}, v{vL16}")
    A(f"v_cndmask_b32 v{p_0}, v{a_1}, v{a_0}, vcc\nv_cmp_gt_u32 vcc, s{sCnt}, v{vRow + 2}\nv_mov_b32 v{one}, 1")
    A(f"s_waitcnt lgkmcnt(0)\nv_bfe_u32 v{a_0}, v{vRow}, {bsh}, 7\nv_bfe_u32 v{a_1}, v{vRow + 1}, {bsh}, 7")
    A(f"v_lshl_add_u32 v{a_0}, v{a_0}, 2, v{p_0}\nv_lshl_add_u32 v{a_1}, v{a_1}, 2, v{p_0}")
    A(f"s_mov_b64 s[48:49], vcc\ns_mov_b64 exec, vcc")
    A(f"ds_add_rtn_u32 v{p_0}, v{a_0}, v{one}\nds_add_rtn_u32 v{p_1}, v{a_1}, v{one}")
    A(f"s_mov_b64 exec, -1\nds_read_b128 {vr(hh, 4)}, v{vT3}")
    A(f"v_lshlrev_b32 v{vRow}, 15, v{vRow}\nv_lshlrev_b32 v{vRow + 1}, 15, v{vRow + 1}\ns_waitcnt lgkmcnt(0)")
    A(f"v_add_u32 v{hh + 1}, v{hh}, v{hh + 1}\nv_add_u32 v{hh + 2}, v{hh + 1}, v{hh + 2}\nv_add_u32 v{hh + 3}, v{hh + 2}, v{hh + 3}")
    A(f"v_mov_b32 v{tt}, v{hh + 3}\ns_nop 1")
    for sh in (1, 2, 4, 8):
        A(f"v_add_u32_dpp v{tt}, v{tt}, v{tt} row_shr:{sh} row_mask:0xf bank_mask:0xf bound_ctrl:0\ns_nop 1")
    A(f"v_add_u32_dpp v{tt}, v{tt}, v{tt} row_bcast:15 row_mask:0xa bank_mask:0xf\ns_nop 1")
    A(f"v_add_u32_dpp v{tt}, v{tt}, v{tt} row_bcast:31 row_mask:0xc bank_mask:0xf")
    A(f"v_sub_u32 v{tt}, v{tt}, v{hh + 3}")
    for j in range(3):
        A(f"v_add_u32 v{tt + 1 + j}, v{tt}, v{hh + j}")
    A(f"ds_write_b128 v{vT3}, {vr(tt, 4)}\nds_read_b32 v{a_0}, v{a_0}\nds_read_b32 v{a_1}, v{a_1}")
    A(f"v_mov_b32 v{vT3}, {A_LIST}\nv_mov_b32 v{vT2}, {A_SIG}\ns_mov_b64 exec, s[48:49]\ns_waitcnt lgkmcnt(0)")
    A(f"v_add_u32 v{p_0}, v{p_0}, v{a_0}\nv_add_u32 v{p_1}, v{p_1}, v{a_1}")
    A(f"v_lshl_add_u32 v{p_0}, v{p_0}, 2, v{vT3}\nv_lshl_add_u32 v{p_1}, v{p_1}, 2, v{vT3}")
    A(f"ds_write_b32 v{p_0}, v{vRow}\nds_write_b32 v{p_1}, v{vRow + 1}")
    A(f"s_mov_b64 exec, -1\nds_write_b32 v{vT2}, v{one} offset:4")
    st(5)
    A(f"s_setprio 0\ns_mov_b32 s{sItem}, 1")
    A(f"s_cmp_eq_u32 s{sCntA}, 0\ns_cselect_b32 s{sCntB}, 0, s{sCntB}")

    def pb_free(tag):
        A(f"s_branch L_hfree_{tag}")
        A(f"L_hfree0_{tag}:")
        budget()
        if psleep:
            A(f"s_sleep {psleep}")
        A(f"L_hfree_{tag}:")
        A(f"ds_read_b32 v{vDn}, v{vDnA} offset:1536\ns_waitcnt lgkmcnt(0)")
        min4(sA, 0)
        A(f"s_cmp_lt_u32 s{sA}, s{sItem}\ns_cbranch_scc1 L_hfree0_{tag}")

    def pb_publish():
        A(f"s_add_u32 s{sItem}, s{sItem}, 1\nv_mov_b32 v{vPub}, s{sItem}\ns_waitcnt vmcnt(0)\nds_write_b32 v{vDoneA}, v{vPub}")

    def q_item(w):
        A(f"s_lshl_b32 s{sO1}, s{sB}, 3\ns_add_u32 s{sO1}, s{sO1}, s{sH}\ns_lshl_b32 s{sO1}, s{sO1}, 15\ns_xor_b32 s{sO0}, s{sO1}, s{sPar}")
        for r in range(32):
            A(f"s_mov_b32 m0, {PB + r * 1088 - (r & 3) * 1024}")
            if r and (r & 3) == 0:
                A(f"s_add_u32 s{sO1}, s{sO1}, 4096\ns_xor_b32 s{sO0}, s{sO1}, s{sPar}")
            elif w and r >= w:
                A(f"s_waitcnt vmcnt({w - 1})")
            else:
                A("s_nop 0")
            A(f"buffer_load_dwordx4 v{vQd}, {SQ}, s{sO0} offen offset:{(r & 3) * 1024} {qpol} lds")

    def wait_progress(tag):
        A(f"s_branch L_hp_{tag}")
        A(f"L_hp0_{tag}:")
        budget()
        if psleep:
            A(f"s_sleep {psleep}")
        A(f"L_hp_{tag}:")
        A(f"ds_read_b32 v{vF}, v{vRdyA}\ns_waitcnt lgkmcnt(0)\nv_readfirstlane_b32 s{sF}, v{vF}\ns_nop 0")
        A(f"s_cmp_lt_u32 s{sF}, s{sNeed}\ns_cbranch_scc1 L_hp0_{tag}")

    A(f"s_lshl_b32 s{sA}, s{sGrp}, 2\nv_mov_b32 v{vDb}, s{sA}\ns_getreg_b32 s{sA}, hwreg(HW_REG_XCC_ID, 0, 4)")
    A(f"s_or_b32 s{sD}, s{sA}, 16\ns_lshl_b32 s{sBb}, s{sRole}, 3\ns_lshl_b32 s{sA}, s{sD}, s{sBb}\ns_mul_i32 s{sK}, s{sD}, 0x01010101")
    A(f"s_waitcnt vmcnt(0)\nv_mov_b32 v{vPoll}, s{sA}")
    A(f"ds_write_b32 v{vDoneA}, v{vF0} offset:1536")
    A(f"s_mov_b64 exec, 1\nbuffer_atomic_or v{vPoll}, v{vDb}, {SD}, 0 offen sc1\ns_mov_b64 exec, -1")
    st(2)
    A(f"s_cmp_eq_u32 s{sCntB}, 0\ns_cbranch_scc1 L_hq2")
    A(f"s_mov_b32 s{sB}, s{sBB}")
    pb_free("q")
    q_item(hwin)
    A(f"v_mov_b32 v{vPub}, 1\ns_waitcnt vmcnt(0)\nds_write_b32 v{vDoneA}, v{vPub}")
    A("L_hq2:")
    A(f"s_lshr_b32 s{sIt}, s2, 3\ns_and_b32 s{sIt}, s{sIt}, {cmask}")
    if rmode < 2:
        A(f"s_add_u32 s{sNeed}, s{sIt}, {chk0}\ns_min_u32 s{sNeed}, s{sNeed}, s{sCnt}")
        wait_progress("c")
        A("s_branch L_hchk")
        A("L_hchk0:")
        budget()
        if psleep:
            A(f"s_sleep {4 * psleep}")
        A("L_hchk:")
        A(f"buffer_load_dword v{vPoll2}, v{vDb}, {SD}, 0 offen sc1\ns_waitcnt vmcnt(0)")
        A(f"v_readfirstlane_b32 s{sA}, v{vPoll2}\ns_nop 0\ns_and_b32 s{sBb}, s{sA}, 0x10101010\ns_cmp_eq_u32 s{sBb}, 0x10101010\ns_cbranch_scc0 L_hchk0")
        A(f"s_cmp_eq_u32 s{sA}, s{sK}\ns_cselect_b32 s{sK}, 1, 2")
    if force or rmode >= 2:
        A(f"s_mov_b32 s{sK}, {force or 1}")
    A(f"v_mov_b32 v{vPoll2}, s{sK}")
    A(f"v_mov_b32 v{vT2}, {A_SIG}\nds_write_b32 v{vT2}, v{vPoll2}")
    A(f"s_cmp_eq_u32 s{sRole}, 1\ns_cbranch_scc0 L_hdone\ns_cmp_eq_u32 s{sCntA}, 0\ns_cbranch_scc1 L_hdone")
    A(f"s_mov_b32 s{sItem}, 2")
    pb_free("h")
    A(f"v_add_u32 v{vT3}, {PB}, v{vL16}\nv_mul_u32_u24 v{vT2}, 8704, v{vT0}\nv_lshl_add_u32 v{vT2}, v{vT1}, 4, v{vT2}")
    A(f"v_add_u32 v{vT2}, {PB + 8192}, v{vT2}")
    for r in range(32):
        A(f"ds_read_b128 {vr(HR + 4 * r, 4)}, v{vT3} offset:{(r >> 3) * 8704 + (r & 7) * 1024}")
    A(f"ds_read_b128 {vr(HR + 128, 4)}, v{vT2}")
    box_off(sE2, 4)
    A(f"v_lshrrev_b32 v{vT2}, 3, v{vT1}\nv_mul_u32_u24 v{vT2}, {BOX}, v{vT2}\nv_lshl_add_u32 v{vT2}, v{vT0}, 7, v{vT2}")
    A(f"v_and_b32 v{vT3}, 7, v{vT1}\nv_lshl_add_u32 v{vT2}, v{vT3}, 4, v{vT2}")
    A(f"v_add_u32 v{vF0}, 1, v{vF0}")
    A(f"s_cmp_eq_u32 s{sK}, 1\ns_cselect_b32 s{sA}, {lead}, 1\ns_sub_u32 s{sNeed}, s{sCnt}, s{sA}\ns_max_i32 s{sNeed}, s{sNeed}, 0")
    wait_progress("h")
    st(3)
    A(f"s_cmp_eq_u32 s{sK}, 1\ns_cbranch_scc0 L_hwt")
    for pl in (hpol, "sc1"):
        if pl == "sc1":
            A("L_hwt:")
        for r in range(32):
            if (r & 3) == 0:
                A(f"s_add_u32 s{sO1}, s{sE2}, {((r >> 2) & 1) * BOX + (r >> 3) * 4096}")
            A(f"buffer_store_dwordx4 {vr(HR + 4 * r, 4)}, v{vL16}, {SWS}, s{sO1} offen offset:{(r & 3) * 1024} {pl}")
        A(f"s_add_u32 s{sO0}, s{sE2}, 16384")
        A(f"buffer_store_dwordx4 {vr(HR + 128, 4)}, v{vT2}, {SWS}, s{sO0} offen {pl}")
        A("s_mov_b64 exec, 0xff0000\ns_waitcnt vmcnt(0)")
        A(f"buffer_store_dword v{vF0}, v{vFa}, {SWS}, 0 offen {pl}")
        A("s_mov_b64 exec, -1")
        if pl != "sc1":
            A("s_branch L_hdone")
    A("L_hdone:")
    if trace:
        A(f"s_cmp_eq_u32 s{sRole}, 0\ns_cbranch_scc0 L_end")
        A(f"s_mov_b32 s{sIt}, 0\nv_mov_b32 v100, 0\nv_mov_b32 v101, 0\nv_mov_b32 v102, 0\nv_mov_b32 v103, 0")
        A("L_tr:")
        A(f"s_memrealtime s[84:85]\ns_memtime s[86:87]\nds_read_b32 v{vF}, v{vRdyA}\nds_read_b32 v{vDn}, v{vDnA}\ns_waitcnt lgkmcnt(0)")
        A(f"v_readfirstlane_b32 s{sF}, v{vF}\nv_readfirstlane_b32 s{sA}, v{vDn}\ns_mov_b32 m0, s{sIt}\ns_nop 3")
        A(f"v_writelane_b32 v100, s84, m0\nv_writelane_b32 v101, s86, m0\nv_writelane_b32 v102, s{sF}, m0\nv_writelane_b32 v103, s{sA}, m0")
        A("L_tr2:")
        A(f"s_sleep 2\ns_memrealtime s[88:89]\ns_waitcnt lgkmcnt(0)\ns_sub_u32 s{sA}, s88, s84\ns_cmp_lt_u32 s{sA}, {trace}\ns_cbranch_scc1 L_tr2")
        A(f"s_add_u32 s{sIt}, s{sIt}, 1\ns_cmp_ge_u32 s{sF}, s{sCnt}\ns_cbranch_scc1 L_tr3\ns_cmp_lt_u32 s{sIt}, 64\ns_cbranch_scc1 L_tr")
        A("L_tr3:")
        A(f"s_lshl_b32 s{sA}, s2, 10\ns_add_u32 s{sA}, s{sA}, {WSB - 64 * 1024}")
        A(f"buffer_store_dwordx4 v[100:103], v{vL16}, {SWS}, s{sA} offen")
    st(4)
    dump_stamps(64)
    A("s_endpgm")

    A("L_consumer:")
    A(f"v_lshlrev_b32 v{vG4}, 2, v{vT0}")
    A(f"v_lshrrev_b32 v{vT2}, 2, v{vT1}\nv_mul_u32_u24 v{vT2}, 1088, v{vT2}\nv_and_b32 v{vT3}, 3, v{vT1}")
    A(f"v_lshl_add_u32 v{vKc}, v{vT3}, 8, v{vT2}\nv_xor_b32 v{vU}, v{vT3}, v{vT0}\nv_lshl_add_u32 v{vKc}, v{vU}, 4, v{vKc}")
    A(f"v_lshl_add_u32 v{vT2}, v{vT0}, 8, v{vT2}\nv_lshl_add_u32 v{vT2}, v{vT3}, 3, v{vT2}\nv_add_u32 v{vT2}, 8704, v{vT2}")
    A(f"v_and_b32 v{vU}, 1, v{vT0}\nv_lshl_add_u32 v{vV0c}, v{vU}, 5, v{vT2}\nv_xor_b32 v{vV1c}, 32, v{vV0c}")
    A(f"v_lshlrev_b32 v{vQo}, 8, v{vT1}\nv_lshl_add_u32 v{vQo}, v{vU}, 5, v{vQo}\nv_lshrrev_b32 v{vU}, 1, v{vT0}\nv_lshl_add_u32 v{vQo}, v{vU}, 4, v{vQo}")
    if fullrow:
        A(f"v_lshrrev_b32 v{vU}, 3, v{vT1}\nv_mul_u32_u24 v{vU}, {2048 - 64}, v{vU}\nv_sub_u32 v{vQo}, v{vQo}, v{vU}")
    for j in range(4):
        A(f"v_mov_b32 v{ON + j}, 0x3f803f80")
    A(f"v_lshlrev_b32 v{vPL}, 3, v{vT1}\nv_mov_b32 v{vPd}, 0")
    A(f"s_mov_b32 s{sT}, 0\ns_mov_b32 s{sOffK}, 0\ns_mov_b32 s{sItem}, 0")
    sSd, sSs, sFo, sOut, sPi, sHi, sPs, sHs, sPd, sHd, sMy, sLp, sLh = range(48, 61)
    sCs, sCr, sCt = 61, 62, 63
    A(f"s_mov_b32 s{sCs}, {SLOT}\ns_mov_b32 s{sCr}, {RING}\ns_mov_b32 s{sCt}, {hex(f2u(T))}")
    A(f"s_bitcmp1_b32 s{sRole}, 0\ns_cselect_b32 s{sOut}, s{sBB}, s{sBA}")
    A(f"s_lshl_b32 s{sOut}, s{sOut}, 3\ns_add_u32 s{sOut}, s{sOut}, s{sH}\ns_lshl_b32 s{sOut}, s{sOut}, 2\n"
      f"s_add_u32 s{sOut}, s{sOut}, s{sW}\ns_lshl_b32 s{sOut}, s{sOut}, 13\ns_add_u32 s{sOut}, s{sOut}, s{sPar}")
    box_off(sMy, f"s{sRole}")
    A(f"s_lshl_b32 s{sC}, s{sW}, 12\ns_lshl_b32 s{sD}, s{sW}, 7\ns_add_u32 s{sD}, s{sD}, 16384\ns_add_u32 s{sFo}, s{sD}, 512")
    if alias:
        A(f"s_xor_b32 s{sSd}, s{sOut}, 4096")
    else:
        A(f"s_add_u32 s{sSd}, s{sMy}, s{sC}")
    A(f"s_add_u32 s{sSs}, s{sMy}, s{sD}")
    A(f"s_xor_b32 s{sLp}, s{sRole}, 2\ns_lshr_b32 s{sLh}, s{sRole}, 1\ns_add_u32 s{sLh}, s{sLh}, 4")
    A(f"s_cmp_eq_u32 s{sExp}, 0\ns_cselect_b32 s{sLh}, s{sLp}, s{sLh}")
    box_off(sPi, f"s{sLp}")
    box_off(sHi, f"s{sLh}")
    A(f"s_add_u32 s{sPs}, s{sPi}, s{sD}\ns_add_u32 s{sHs}, s{sHi}, s{sD}\ns_add_u32 s{sHd}, s{sHi}, s{sC}")
    A(f"s_mov_b32 s{sPd}, s{sOut}" if alias else f"s_add_u32 s{sPd}, s{sPi}, s{sC}")
    vPo, vSa = 246, 247
    A(f"v_mov_b32 v{vSa}, s{sRole}\nv_writelane_b32 v{vSa}, s{sLp}, 0\nv_writelane_b32 v{vSa}, s{sLh}, 1")
    A(f"v_mov_b32 v{vPo}, s{sMy}\nv_writelane_b32 v{vPo}, s{sPi}, 0\nv_writelane_b32 v{vPo}, s{sHi}, 1")
    A(f"s_lshl_b32 s{sA}, s{sW}, 2\ns_add_u32 s{sA}, s{sA}, {A_SIG + 256}\nv_lshl_add_u32 v{vSa}, v{vSa}, 4, s{sA}")
    if nopart:
        for x in (sPs, sHs, sPd, sHd):
            A(f"s_mov_b32 s{x}, {hex(OOB)}")

    def zero_acc():
        for i in range(LA, O + 64):
            A(f"v_mov_b32 v{i}, 0")

    zero_acc()
    A(f"s_cmp_eq_u32 s{sCntA}, 0\ns_cselect_b32 s{sA}, s{sBB}, s{sBA}\ns_cmp_eq_u32 s{sA}, s{sB}\ns_cbranch_scc1 L_qok")
    A(f"s_mov_b32 s{sB}, s{sA}")
    q_own()
    A("s_waitcnt vmcnt(0)")
    q_own_loads()
    A("L_qok:")
    A(f"s_cmp_eq_u32 s{sCntA}, 0\ns_cbranch_scc1 L_segB")
    A(f"s_mov_b32 s{sCnt}, s{sCntA}\ns_bitcmp1_b32 s{sZ}, 0\ns_branch L_seg")
    A("L_segB:")
    A(f"s_cmp_eq_u32 s{sCntB}, 0\ns_cbranch_scc1 L_empty")
    A(f"s_mov_b32 s{sB}, s{sBB}\ns_mov_b32 s{sCnt}, s{sCntB}\ns_mov_b32 s{sCntA}, 0\ns_bitcmp1_b32 s{sZ}, 1")

    def spin(tag, off=0, need=None, le=False):
        A(f"L_spin_{tag}:")
        budget()
        A(f"ds_read_b32 v{vF}, v{vRdyA} offset:{off}\ns_waitcnt lgkmcnt(0)\nv_readfirstlane_b32 s{sF}, v{vF}\ns_nop 0")
        A(f"s_cmp_{'le' if le else 'lt'}_u32 s{sF}, s{need or sNeed}\ns_cbranch_scc1 L_spin_{tag}")

    def addrs():
        return [f"v_add_u32 v{vK}, s{sOffK}, v{vKc}", f"v_add_u32 v{vV0}, s{sOffK}, v{vV0c}",
                f"v_add_u32 v{vV1}, s{sOffK}, v{vV1c}"]

    def kreads(dst=KF):
        return [f"ds_read_b128 {vr(dst + 4 * f, 4)}, v{vK} offset:{(f & 1) * 4352 + (f >> 1) * 64}" for f in range(8)]

    def vreads(dst=VF):
        return [f"ds_read_b64_tr_b16 {vr(dst + 4 * dt + 2 * u, 2)}, v{vV1 if dt & 1 else vV0} "
                f"offset:{u * 4352 + (dt >> 1) * 64}" for dt in range(8) for u in range(2)]

    MF = "v_mfma_f32_16x16x32_bf16"

    def qk(first):
        out = []
        for ks, kh in ([(a, b) for a in range(4) for b in range(2)] if first else [(a, b) for b in range(2) for a in range(4)]):
            if True:
                for qh in range(2):
                    d = vr(S + 8 * qh + 4 * kh, 4)
                    c = d if ks else ("0" if first else vr(CM + 4 * qh, 4))
                    out.append(f"{MF} {d}, {vr(KF + 4 * (2 * ks + kh), 4)}, {vr(Q + 4 * (2 * ks + qh), 4)}, {c}")
        return out

    def pv(dt, qh, src=VF):
        d = vr(O + 32 * qh + 4 * dt, 4)
        return f"{MF} {d}, {vr(src + 4 * dt, 4)}, {vr(P + 4 * qh, 4)}, {d}"

    def rs(qh):
        return f"{MF} {vr(LA + 4 * qh, 4)}, {vr(ON, 4)}, {vr(P + 4 * qh, 4)}, {vr(LA + 4 * qh, 4)}"

    def cvt(j):
        return f"v_cvt_pk_bf16_f32 v{P + j}, v{E + 2 * j}, v{E + 2 * j + 1}"

    def maxes():
        o = []
        for a in (0, 3, 5):
            for qh, m in ((0, vMx), (1, vMx2)):
                b = S + 8 * qh + a
                o.append(f"v_max3_f32 v{m}, v{b}, v{b + 1}, v{b + 2}" if a == 0 else f"v_max3_f32 v{m}, v{m}, v{b}, v{b + 1}")
        return o

    def new_max(floor0):
        A(f"v_max_f32 v{vMx}, v{vMx}, v{S + 7}\nv_max_f32 v{vMx2}, v{vMx2}, v{S + 15}")
        for sw in ("v_permlane32_swap_b32", "v_permlane16_swap_b32"):
            A(f"v_mov_b32 v{vT0}, v{vMx}\nv_mov_b32 v{vT1}, v{vMx2}\ns_nop 0")
            A(f"{sw} v{vMx}, v{vT0}\n{sw} v{vMx2}, v{vT1}\ns_nop 0")
            A(f"v_max_f32 v{vMx}, v{vMx}, v{vT0}\nv_max_f32 v{vMx2}, v{vMx2}, v{vT1}")
        if floor0:
            A(f"v_max_f32 v{vMx}, 0, v{vMx}\nv_max_f32 v{vMx2}, 0, v{vMx2}")
        A(f"v_ceil_f32 v{vMx}, v{vMx}\nv_ceil_f32 v{vMx2}, v{vMx2}")

    def exp_shifted():
        for i in range(16):
            A(f"v_sub_f32 v{E + i}, v{S + i}, v{vMx if i < 8 else vMx2}")
        for i in range(16):
            A(f"v_exp_f32 v{E + i}, v{E + i}")

    def scale_acc(f, with_la=True):
        for qh in range(2):
            sel = "op_sel_hi:[1,0]" if qh == 0 else "op_sel:[0,1] op_sel_hi:[1,1]"
            for i in range(16):
                r = O + 32 * qh + 2 * i
                A(f"v_pk_mul_f32 {vr(r, 2)}, {vr(r, 2)}, {vr(f, 2)} {sel}")
            if with_la:
                A(f"v_mul_f32 v{LA + 4 * qh}, v{f + qh}, v{LA + 4 * qh}")

    def pack_o(i, dst=KF):
        for j in range(4):
            r = O + 8 * i + 2 * j
            A(f"v_cvt_pk_bf16_f32 v{dst + 4 * i + j}, v{r}, v{r + 1}")

    def park():
        A(f"v_add_u32 v{vT2}, s{sOffQ}, v{vL16}\nv_add_u32 v{vT3}, s{sOffQ}, v{vPL}")
        A(f"v_mov_b32 v{CM + 1}, v{LA}\nv_mov_b32 v{CM + 5}, v{LA + 4}")
        A(f"ds_write_b64 v{vT3}, {vr(CM, 2)} offset:8192\nds_write_b64 v{vT3}, {vr(CM + 4, 2)} offset:8320")
        for i in range(8):
            pack_o(i)
            A(f"ds_write_b128 v{vT2}, {vr(KF + 4 * i, 4)} offset:{i * 1024}")
        zero_acc()

    A("L_seg:")
    c = f2u(1.4426950408889634 / 128 ** 0.5)
    A(f"s_cselect_b32 s{sScale}, 0, {hex(c)}")
    A(f"s_add_u32 s{sEnd}, s{sT}, s{sCnt}\ns_add_u32 s{sNeed}, s{sT}, 1")
    A(f"s_cmp_eq_u32 s{sRole}, 1\ns_cselect_b32 s{sRet}, s{sCntA}, 0")
    A(f"v_add_u32 v{vK}, s{sOffQ}, v{vKc}\nv_mov_b32 v{vF2}, s{sScale}")
    A(f"s_cmp_eq_u32 s{sT}, 0\ns_cbranch_scc0 L_hold")
    A("s_waitcnt vmcnt(0)")
    AL(kreads(Q))
    A("L_nohold:")
    A(f"v_add_u32 v{vPd}, 1, v{vPd}\nds_write_b32 v{vDoneA}, v{vPd} offset:1536")
    A(f"v_add_u32 v{vK}, s{sOffK}, v{vKc}\nv_mov_b32 v{vDone}, s{sNeed}")
    AL(adv(sOffK))
    for t in range(8):
        A(f"s_waitcnt lgkmcnt({8 - t})")
        for j in range(4):
            r = Q + 4 * t + j
            A(f"v_lshlrev_b32 v{vU + 2 * j}, 16, v{r}\nv_and_b32 v{vU + 2 * j + 1}, 0xffff0000, v{r}")
        for j in range(4):
            A(f"v_pk_mul_f32 {vr(vU + 2 * j, 2)}, {vr(vU + 2 * j, 2)}, {vr(vF2, 2)} op_sel_hi:[1,0]")
        for j in range(4):
            A(f"v_cvt_pk_bf16_f32 v{Q + 4 * t + j}, v{vU + 2 * j}, v{vU + 2 * j + 1}")
    if not st2:
        st(2)
    spin("p0")
    if not st2:
        st(3)
    AL(kreads())
    A(f"ds_write_b32 v{vDoneA}, v{vDone}")
    A(f"s_add_u32 s{sNeed}, s{sT}, 2\ns_min_u32 s{sNeed}, s{sNeed}, s{sEnd}")
    A(f"v_sub_u32 v{vT2}, s{sNv}, v{vG4}")
    A(f"v_mov_b32 v{vT3}, 0xff800000")
    for i, x in enumerate(qk(True)):
        if i % 2 == 0:
            A(f"s_waitcnt lgkmcnt({8 - i // 2})")
        A(x)
    AL(addrs())
    spin("p1")
    AL(kreads())
    A(f"s_cmp_eq_u32 s{sNv}, 32\ns_cbranch_scc1 L_nomask")
    for kh in range(2):
        for r in range(4):
            a = S + 4 * kh + r
            A(f"v_cmp_lt_i32 vcc, {16 * kh + r}, v{vT2}\ns_nop 1\nv_cndmask_b32 v{a}, v{vT3}, v{a}, vcc\n"
              f"v_cndmask_b32 v{a + 8}, v{vT3}, v{a + 8}, vcc")
    A("L_nomask:")
    AL(maxes())
    new_max(False)
    for i in range(8):
        A(f"v_sub_f32 v{CM + i}, 0, v{vMx if i < 4 else vMx2}")
    exp_shifted()
    A(f"s_waitcnt lgkmcnt(0)\ns_sub_u32 s{sIt}, s{sCnt}, 2\ns_cbranch_scc1 L_final")

    A(".p2align 3")
    A("L_loop:")
    loop_start = len(L)
    vrd = vreads()
    f_inc, f_wr, f_rd = f"v_add_u32 v{vDone}, 1, v{vDone}", f"ds_write_b32 v{vDoneA}, v{vDone}", f"ds_read2st64_b32 {vr(vF2, 2)}, v{vRdyA} offset0:0 offset1:6"
    ex1 = lambda i: f"v_exp_f32 v{E + i}, v{S + i}"
    lg = lambda n: f"s_waitcnt lgkmcnt({n})"
    krd = kreads()
    krd = krd[0::2] + krd[1::2]
    mo = [0, 1, 2, 3, 8, 9, 10, 11, 4, 5, 6, 7, 12, 13, 14, 15]
    mxs = [f"v_max3_f32 v{vT0}, v{S + mo[0]}, v{S + mo[1]}, v{S + mo[2]}"]
    mxs += [f"v_max3_f32 v{vT0}, v{vT0}, v{S + mo[i]}, v{S + mo[i + 1]}" for i in range(3, 15, 2)]
    mxs += [f"v_max_f32 v{vT0}, v{vT0}, v{S + 15}", f"v_cmp_lt_f32 vcc, s{sCt}, v{vT0}"]
    aa = addrs()
    ad = [f"s_add_u32 s{sOffK}, s{sOffK}, s{sCs}", f"s_cmp_ge_u32 s{sOffK}, s{sCr}", f"s_cselect_b32 s{sOffK}, 0, s{sOffK}"]
    fa = [[vrd[i], cvt(j)] for i, j in enumerate((0, 1, 4, 5, 2, 3, 6, 7))]
    fa[0].insert(0, f"s_add_u32 s{sNeed}, s{sNeed}, 1")
    fa[1].insert(0, f"s_sub_u32 s{sIt}, s{sIt}, 1")
    fa[2].insert(0, f"s_cselect_b32 s{sA}, -1, s{sNeed}")
    for i in range(3):
        fa[3 + i].insert(0, ad[i])
    fa[7].insert(0, lg(7))
    fa += [[vrd[8], f_rd], [vrd[9], f_inc], [vrd[10], ex1(0)], [vrd[11], ex1(1)], [vrd[12], ex1(2)],
           [vrd[13], ex1(3)], [vrd[14], ex1(8)], [lg(6), vrd[15], f_wr]]
    for x, f in zip(qk(False), fa):
        A(x)
        AL(f)
    mf = []
    for dt in range(8):
        mf += [pv(dt, 1), pv(dt, 0)]
        if dt == 3:
            mf += [rs(0), rs(1)]
    if pvo == 1:
        mf = mf[:4]
        mf[2], mf[3] = mf[3], mf[2]
        mf += [pv(2, 1), pv(2, 0), pv(3, 0), pv(3, 1), rs(1), rs(0), pv(4, 0), pv(4, 1), pv(5, 1), pv(5, 0), pv(6, 0), pv(6, 1), pv(7, 1), pv(7, 0)]
    if pvo == 2:
        mf = mf[:4] + [pv(2, 0), pv(3, 0), rs(0), pv(2, 1), pv(3, 1), rs(1)] + [pv(d, 1) for d in range(4, 8)] + [pv(d, 0) for d in range(4, 8)]
    if nors:
        mf = [x if f"{vr(ON, 4)}" not in x else "s_nop 0" for x in mf]
    AL([mf[0], f"v_readfirstlane_b32 s{sF}, v{vF2}", aa[0]])
    AL([mf[1], ex1(9)])
    AL([mf[2], f"s_cmp_lt_u32 s{sF}, s{sA}", ex1(10)])
    AL([mf[3], "s_cbranch_scc1 L_slow"])
    A("L_back:")

    def phase_b(kr):
        k = list(kr) if kr else [None] * 8
        n = (lambda x: x) if kr else (lambda x: 0)
        A(ex1(11))
        fb = [[k[0], mxs[0], mxs[1]], [k[1], ex1(4)], [k[2], mxs[2], mxs[3]], [ex1(5)], [k[3], mxs[4], mxs[5]],
              [lg(n(4)), ex1(6)], [k[4], mxs[6], mxs[7]], [ex1(7)], [k[5], mxs[8], aa[1]], [ex1(12)],
              [k[6], aa[2]], [ex1(13)], [k[7], ex1(14)], [lg(n(4)), ex1(15)]]
        for i in range(4, 18):
            A(mf[i])
            AL([x for x in fb[i - 4] if x])

    phase_b(krd)
    if nocomp:
        keep = []
        for x in L[loop_start:]:
            y = x.strip()
            if nocomp & 1 and y.startswith("v_mfma"):
                continue
            if nocomp & 2 and y.startswith(("v_exp", "v_max", "v_cvt")):
                continue
            if nocomp & 4 and y.startswith(("ds_read_b128", "ds_read_b64_tr")):
                continue
            keep.append(x)
        L[loop_start:] = keep
        A("s_mov_b64 vcc, 0")
    A("s_cbranch_vccz L_loop\ns_branch L_rare")

    HB = Q

    def send_stats(spol=spol):
        A(f"v_mov_b32 v{CM + 5}, v{LA + 4}")
        if smask:
            A("s_mov_b64 exec, 0xffff")
        A(f"buffer_store_dwordx2 {vr(CM + 4, 2)}, v{vPL}, {SWS}, s{sSs} offen {spol}")
        if smask:
            A("s_mov_b64 exec, -1")

    def send(i, spol=spol):
        pack_o(i, Q)
        A(f"buffer_store_dwordx4 {vr(Q + 4 * i, 4)}, v{vL16}, {SO if alias else SWS}, s{sSd} offen offset:{(i & 3) * 1024} {spol}")

    def final():
        A("L_lastg:")
        phase_b([])
        A("s_cbranch_vccnz L_rare")
        A("L_final:")
        A(f"{f_rd}\ns_add_u32 s{sNeed}, s{sEnd}, 1\ns_mov_b32 s{sT}, s{sEnd}")
        for j in range(8):
            A(cvt(j))
        A("s_nop 0")
        A(rs(0))
        A(rs(1))
        A(f"s_cmp_lg_u32 s{sRet}, 0\ns_cbranch_scc1 L_final_a")
        A(f"s_waitcnt lgkmcnt(0)\nv_readfirstlane_b32 s{sF}, v{vF2}\nv_readfirstlane_b32 s{sK}, v{vF2 + 1}")
        A(f"s_cmp_ge_u32 s{sF}, s{sNeed}\ns_cbranch_scc1 L_final1")
        spin("f")
        A(f"L_final1:\nds_read_b32 v{vU + 1}, v{vSa}")
        AL(vrd)
        A(f"s_cmp_eq_u32 s{sK}, 1\ns_cbranch_scc1 L_final2")
        for pl in ("sc1", spol):
            send_stats(pl)
            for dt in range(8):
                A(f"s_waitcnt lgkmcnt({14 - 2 * dt})")
                A(pv(dt, 1))
                if dt >= 5:
                    send(dt - 1, pl)
            for dt in range(8):
                A(pv(dt, 0))
                if dt == 2:
                    send(7, pl)
                    st(4)
            if pl == "sc1":
                A("s_branch L_sentw\nL_final2:")

    A("L_slow:")
    A(f"s_cmp_ge_i32 s{sIt}, 0\ns_cbranch_scc1 L_slow1")
    if spincnt:
        A(f"s_waitcnt lgkmcnt(0)\ns_sub_u32 s{sSt + 2}, 0x400000, s{sBud}\ns_sub_u32 s{sSt + 4}, s{sF}, s{sNeed}\ns_add_u32 s{sSt + 4}, s{sSt + 4}, 100")
        st(3)
    if tail:
        A(f"v_readfirstlane_b32 s{sK}, v{vF2 + 1}\ns_cmp_lt_u32 s{sF}, s{sNeed}\ns_cselect_b32 s{sA}, 1, s{sRet}")
        A(f"s_xor_b32 s{sBb}, s{sK}, 1\ns_or_b32 s{sA}, s{sA}, s{sBb}\ns_cbranch_scc1 L_lastg")
        A("L_tail:")
        if st3:
            st(1)
        AL([f"ds_read_b32 v{vU + 1}, v{vSa}"] + aa[1:] + [lg(1)])
        vk = vreads(KF)
        m1 = [pv(dt, 1) for dt in range(2, 8)] + [rs(1)]
        ft = [[ex1(11), mxs[0]], [ex1(12), mxs[1]], [ex1(13), mxs[2]], [ex1(14), mxs[3]], [ex1(15), mxs[4]],
              [mxs[5], mxs[6]], [mxs[7], mxs[8]]]
        AL(vk[:2])
        for i in range(7):
            A(m1[i])
            AL(vk[2 * i + 2:2 * i + 4] + ft[i])
        if st3:
            st(2)
        A("s_cbranch_vccnz L_tail_fix")
        for j in range(4, 8):
            A(cvt(j))
        A(pv(2, 0))
        A(ex1(4))
        A(rs(1))
        for dt in range(8):
            A(lg(14 - 2 * dt))
            A(pv(dt, 1, KF))
            if dt == 4:
                if st3:
                    st(3)
                send_stats()
            if dt >= 5:
                send(dt - 1)
        for dt in range(3, 8):
            A(pv(dt, 0))
            if dt < 6:
                A(ex1(dt + 2))
            if dt == 4:
                send(7)
                st(4)
        A(rs(0))
        for j in range(4):
            A(cvt(j))
        A("s_nop 1")
        A(rs(0))
        for dt in range(8):
            A(pv(dt, 0, KF))
    else:
        final()
    A("L_sent:")
    st(5)
    if not nopart:
        A(f"v_add_u32 v{vU + 2}, 1, v{vU + 1}\ns_mov_b64 exec, 4\ns_waitcnt vmcnt(0)")
        A(f"buffer_store_dword v{vU + 2}, v{vPo}, {SWS}, s{sFo} offen")
        A("L_reld:")
        if st2:
            st(1)
        A(f"s_mov_b64 exec, 3\nv_mov_b32 v{vU + 3}, v{vU + 1}")
        A("L_poll0:")
        budget()
        A(f"buffer_load_dword v{vU + 3}, v{vPo}, {SWS}, s{sFo} offen {fpol}")
        if csleep:
            A(f"s_sleep {csleep}")
        A(f"s_waitcnt vmcnt({npoll})")
        A(f"v_cmp_eq_u32 vcc, v{vU + 3}, v{vU + 1}\ns_cbranch_vccnz L_poll0")
        A("s_mov_b64 exec, -1")
    st(6)
    A(f"buffer_load_dwordx2 {vr(vU + 4, 2)}, v{vPL}, {SWS}, s{sPs} offen {lpol}")
    A(f"buffer_load_dwordx2 {vr(vU + 6, 2)}, v{vPL}, {SWS}, s{sHs} offen {hlpol}")
    for i in range(4):
        A(f"buffer_load_dwordx4 {vr(HB + 16 + 4 * i, 4)}, v{vL16}, {SO if alias else SWS}, s{sPd} offen offset:{i * 1024} {lpol}")

    def unpack_fma(src, i, f, sel):
        for j in range(4):
            A(f"v_lshlrev_b32 v{E + 2 * j}, 16, v{src + j}\nv_and_b32 v{E + 2 * j + 1}, 0xffff0000, v{src + j}")
        for j in range(4):
            o = O + 8 * i + 2 * j
            A(f"v_pk_fma_f32 {vr(o, 2)}, {vr(E + 2 * j, 2)}, {vr(f, 2)}, {vr(o, 2)} {sel}")

    def finish(held):
        n = 8 if held else 4
        if held:
            for i in range(4):
                A(f"buffer_load_dwordx4 {vr(HB + 4 * i, 4)}, v{vL16}, {SWS}, s{sHd} offen offset:{i * 1024} {hlpol}")
        A(f"s_waitcnt vmcnt({n})")
        if st2:
            st(2)
        if held:
            A(f"v_min3_f32 v{vT0}, v{CM}, v{vU + 4}, v{vU + 6}")
        else:
            A(f"v_min_f32 v{vT0}, v{CM}, v{vU + 4}")
        A(f"v_sub_f32 v{vT2}, v{vT0}, v{CM}\nv_sub_f32 v{vMx}, v{vT0}, v{vU + 4}")
        if held:
            A(f"v_sub_f32 v{vMx2}, v{vT0}, v{vU + 6}")
        A(f"v_exp_f32 v{vT2}, v{vT2}\nv_exp_f32 v{vMx}, v{vMx}")
        A(f"v_exp_f32 v{vMx2}, v{vMx2}" if held else "s_nop 0")
        A(f"v_mul_f32 v{vT1}, v{vT2}, v{LA}\nv_fmac_f32 v{vT1}, v{vMx}, v{vU + 5}")
        if held:
            A(f"v_fmac_f32 v{vT1}, v{vMx2}, v{vU + 7}")
        A(f"v_rcp_f32 v{vT1}, v{vT1}\ns_nop 0\nv_mul_f32 v{vT2}, v{vT2}, v{vT1}\nv_mul_f32 v{vMx}, v{vMx}, v{vT1}")
        if held:
            A(f"v_mul_f32 v{vMx2}, v{vMx2}, v{vT1}")
        for i in range(16):
            A(f"v_pk_mul_f32 {vr(O + 2 * i, 2)}, {vr(O + 2 * i, 2)}, {vr(vT2, 2)} op_sel_hi:[1,0]")
        if held:
            for i in range(4):
                A(f"s_waitcnt vmcnt({7 - i})")
                unpack_fma(HB + 16 + 4 * i, i, vMx, "op_sel_hi:[1,0,1]")
        for i in range(4):
            if i < 2:
                A(f"s_waitcnt vmcnt({0 if i else 3})")
            if held:
                unpack_fma(HB + 4 * i, i, vMx, "op_sel:[0,1,0] op_sel_hi:[1,1,1]")
            else:
                unpack_fma(HB + 16 + 4 * i, i, vMx, "op_sel_hi:[1,0,1]")
            if fullrow:
                if i == 2:
                    out_store2(0)
            elif i:
                out_store(i - 1)
            pack_o(i)
        A("s_nop 1")
        if fullrow:
            out_store2(2)
        else:
            out_store(3)
        if st2:
            st(3)
        if stamp:
            A("s_waitcnt vmcnt(0)")
            st(7)
            A(f"s_cmp_eq_u32 s{sW}, {sw}\ns_cbranch_scc0 L_end")
        dump_stamps(32)
        A("s_endpgm")

    def out_store(i):
        d = KF + 4 * i
        A(f"v_permlane16_swap_b32 v{d}, v{d + 2}\nv_permlane16_swap_b32 v{d + 1}, v{d + 3}")
        A(f"buffer_store_dwordx4 {vr(d, 4)}, v{vQo}, {SO}, s{sOut} offen offset:{i * 64} {opol}")

    def out_store2(i):
        d = KF + 4 * i
        for x in (d, d + 4):
            A(f"v_permlane16_swap_b32 v{x}, v{x + 2}\nv_permlane16_swap_b32 v{x + 1}, v{x + 3}")
        for j in range(4):
            A(f"v_mov_b32 v{S + j}, v{d + j}")
        for j in range(4):
            A(f"v_mov_b32_dpp v{d + j}, v{d + 4 + j} row_ror:8 row_mask:0xf bank_mask:0xc")
        for j in range(4):
            A(f"v_mov_b32_dpp v{d + 4 + j}, v{S + j} row_ror:8 row_mask:0xf bank_mask:0x3")
        A(f"buffer_store_dwordx4 {vr(d, 4)}, v{vQo}, {SO}, s{sOut} offen offset:{i * 64} {opol}")
        A(f"buffer_store_dwordx4 {vr(d + 4, 4)}, v{vQo}, {SO}, s{sOut} offen offset:{2048 + i * 64} {opol}")

    A(f"s_cmp_lg_u32 s{sExp}, 0\ns_cbranch_scc1 L_fin_held")
    finish(False)
    A("L_fin_held:")
    finish(True)
    A("L_end:\ns_endpgm")

    if tail:
        final()
        A("s_branch L_sent")
        A("L_tail_fix:")
        for dt in range(2, 8):
            A(pv(dt, 0))
        A(rs(0))
        A("s_branch L_rare")
    A("L_final_a:")
    spin("g")
    AL(vrd)
    for dt in range(8):
        A(f"s_waitcnt lgkmcnt({14 - 2 * dt})")
        A(pv(dt, 1))
        A(pv(dt, 0))
    A("s_branch L_segB")
    A("L_sentw:")
    if nopart:
        A("s_branch L_sent")
    else:
        A(f"v_mov_b32 v{vT0}, {A_SIG}")
        A("L_peers:")
        budget()
        A(f"ds_read_b32 v{vF}, v{vT0}\nds_read_b32 v{vU + 1}, v{vSa}\ns_waitcnt lgkmcnt(0)\nv_readfirstlane_b32 s{sA}, v{vF}\ns_nop 0")
        A(f"s_cmp_eq_u32 s{sA}, 0\ns_cbranch_scc1 L_peers")
        A(f"v_add_u32 v{vU + 2}, 1, v{vU + 1}\ns_mov_b64 exec, 4\ns_waitcnt vmcnt(0)")
        A(f"buffer_store_dword v{vU + 2}, v{vPo}, {SWS}, s{sFo} offen sc1\ns_branch L_reld")
    A("L_hold:")
    spin("q", off=256, need=sItem, le=True)
    AL(kreads(Q))
    park()
    A("s_branch L_nohold")
    A("L_empty:")
    A(f"s_cmp_eq_u32 s{sT}, 0\ns_cbranch_scc1 L_empty1\ns_nop 5")
    park()
    A(f"v_add_u32 v{vPd}, 1, v{vPd}\nds_write_b32 v{vDoneA}, v{vPd} offset:1536")
    A("L_empty1:")
    A(f"v_mov_b32 v{CM}, {hex(BIG)}\nv_mov_b32 v{CM + 4}, {hex(BIG)}")
    A("s_waitcnt vmcnt(0)")
    send_stats("sc1")
    for i in range(4, 8):
        send(i, "sc1")
    A("s_branch L_sentw")
    A("L_slow1:")
    if sleep:
        A(f"s_branch L_slow2\nL_slow3:\ns_sleep {sleep}\nL_slow2:")
        budget()
        A(f"ds_read_b32 v{vF}, v{vRdyA}\ns_waitcnt lgkmcnt(0)\nv_readfirstlane_b32 s{sF}, v{vF}\ns_nop 0")
        A(f"s_cmp_lt_u32 s{sF}, s{sNeed}\ns_cbranch_scc1 L_slow3")
    else:
        spin("s")
    A("s_branch L_back")
    A("L_rare:")
    AL(maxes())
    new_max(True)
    A(f"v_exp_f32 v{vT2}, -v{vMx}\nv_exp_f32 v{vT3}, -v{vMx2}")
    for i in range(8):
        A(f"v_sub_f32 v{CM + i}, v{CM + i}, v{vMx if i < 4 else vMx2}")
    exp_shifted()
    scale_acc(vT2)
    A(f"s_cmp_lt_i32 s{sIt}, 0\ns_cbranch_scc1 L_final\ns_branch L_loop")

    A(f""".section .rodata,"a"
.p2align 6
.amdhsa_kernel {NAME}
  .amdhsa_next_free_vgpr 256
  .amdhsa_next_free_sgpr 102
  .amdhsa_accum_offset 256
  .amdhsa_group_segment_fixed_size 0
  .amdhsa_kernarg_size 64
  .amdhsa_user_sgpr_count 2
  .amdhsa_user_sgpr_kernarg_segment_ptr 1
  .amdhsa_system_sgpr_workgroup_id_x 1
.end_amdhsa_kernel""")
    if nostore:
        L[:] = [x for x in L if not (x.strip().startswith("buffer_store") and "v[16:19]" not in x and "v[20:23]" not in x
                                     and "v[100:103], v239, s[20:23], s73 offen" != x.strip()[21:]
                                     and ((SWS in x and nostore & 1) or (SO in x and nostore & 2)))]
    return "\n".join(L) + "\n"


def parse(spec):
    kw = {}
    for kv in spec.split(","):
        if not kv or kv == "default":
            continue
        k, v = kv.split("=")
        try:
            kw[k] = int(v)
        except ValueError:
            try:
                kw[k] = float(v)
            except ValueError:
                kw[k] = v.replace("+", " ").replace("none", "")
    return kw


if __name__ == "__main__":
    from build import build
    import hz
    files = []
    for spec in sys.argv[1:]:
        txt = gen(**parse(spec))
        pr = hz.check(txt)
        for p in pr:
            print("HAZARD", p, file=sys.stderr)
        fn = "k_" + spec.replace("=", "").replace(",", "_").replace("+", "") + ".s"
        open(fn, "w").write(txt)
        build(fn)
        files.append(fn)
    print(" ".join(files))
```

```python
import sys
import struct

NAME = "standalone__paged_block_table_kv_pagedattention__sampling_kernel"
WSB = 537395200
KVB = 4100 * 32768
QB = 16 * 32 * 32 * 128 * 2

HDR = """; Paged GQA attention, B=16 Hq=32 Hkv=8 Sq=32 D=128 block=16, bf16.  Generated by the author's own script.
;
"""

PAIRS = [(4, 13), (9, 8), (14, 3), (0, 12), (5, 7), (10, 2), (15, 11), (1, 6)]


def f2u(x):
    return struct.unpack('<I', struct.pack('<f', x))[0]


def gen(NS=7, win=23, win2=27, ntail=0, gran=2, win0=16, n0=6, lag=1, dec0=16, decs=8,
        delta=0, ex=0, theta=2, lead=8, npoll=1, hwin=8, psleep=16, csleep=0, lprio=3, rdy0=2, chk0=20, rmode=1, cmask=15, base=48, kb=6, firstb=-1, th2=22, b1=4, pre=4, prepol='', k0=4, nosort=0, tail=1, st3=0, smask=0, sleep=2, pvo=0, qko=0, nors=0, sw=0, spincnt=0, bsh=5, touch=0, ra=2, rx=1, apol='sc1', fpol='sc1', alias=1, fullrow=0, st2=0, hpol='', hlpol='sc1', force=0, remap=0, w_lo=14, l0=1, l1=3, l2=4, fbg=12.0, rlo=4, rhi=16, amax=3, fb0=3, sg=60, foff=33, fsleep=4, nm=10, lm=2, q2pol='nt', q3=0, skipb=1, win1=20, n1=18, dmask=31, dmul=3,
        pol="nt", qpol="nt", opol="", spol="", lpol="sc1", T=8.0,
        stamp=0, trace=0, nocomp=0, noload=0, nopart=0, nostore=0):
    if firstb < 0:
        nt = [-(-(4096 - ((i + 1) * 2654435761) % 2048) // 32) for i in range(16)]
        firstb = sum(1 << i for i, (a, b) in enumerate(PAIRS) if nt[a] - nt[b] <= max(th2, 2 * theta))
    SLOT = 17408
    RING = NS * SLOT
    PB = RING
    A_DONE = PB + 2 * SLOT
    A_READY = A_DONE + 1024
    A_PDONE = A_DONE + 1536
    A_SIG = A_PDONE + 1024
    A_TAB = A_SIG + 512
    A_LIST = A_TAB + 2048
    A_HIST = A_LIST + 512
    LDS = A_HIST + 1024
    wmax = w_lo + 14
    assert LDS <= 163840
    assert NS >= wmax // 16 + lag + 3 and wmax <= 52
    BOX = 17408
    BIG = f2u(1e30)
    OOB = 0x40000000
    L = []

    def A(s):
        for x in s.split('\n'):
            L.append(x if x.endswith(':') or x.startswith(('.', ';')) else '    ' + x)

    vLane, vT0, vT1, vT2, vT3 = 1, 2, 3, 4, 5
    vKc, vV0c, vV1c, vK, vV0, vV1 = 6, 7, 8, 9, 10, 11
    vQo, vRdyA, vDoneA, vF = 12, 13, 14, 15
    S, E, CM, LA, O, Q, KF, VF, P, ON = 16, 32, 48, 56, 64, 128, 160, 192, 224, 232
    vMx, vMx2, vDone, vL16, vG4, vPd, vPA, vPL = 236, 237, 238, 239, 240, 241, 242, 243
    vF2, vU = 244, 248
    TA, TBb, vRow = 64, 68, 72
    vKo, vVo = 76, 80
    vPoll, vPub, vDn, vDnA, vF0, vDb, vPoll2, vFa = 84, 85, 86, 87, 89, 90, 91, 92
    vQd = 242
    HR = 100

    sW, sH, sRole = 3, 32, 33
    sBA, sBB, sCntA, sCntB, sTopA, sTopB, sNv, sExp, sZ = 35, 36, 37, 38, 39, 40, 41, 42, 43
    sGrp, sSwap, sBud, sPar = 44, 45, 46, 47
    sB, sCnt, sT, sEnd, sOffK, sRet, sNeed, sF, sScale = 64, 65, 66, 67, 68, 69, 70, 71, 72
    sA, sBb, sC, sD, sE2, sF2 = 73, 74, 75, 76, 77, 78
    sQoff, sIt, sOffQ, sItem, sK = 79, 80, 81, 82, 83
    sS, sOff, sPub, sFree, sTile, sO0, sO1, sN0, sN1, sLag, sDec = 66, 67, 68, 69, 70, 71, 72, 79, 80, 81, 82
    sP0, sP1, sSw = 34, 64, 41
    sSt = 84
    SQ, SK, SV, SWS, SO, SD = "s[8:11]", "s[12:15]", "s[16:19]", "s[20:23]", "s[24:27]", "s[28:31]"

    def vr(a, n):
        return f"v[{a}:{a + n - 1}]" if n > 1 else f"v{a}"

    def adv(s):
        return [f"s_add_u32 s{s}, s{s}, {SLOT}", f"s_cmp_ge_u32 s{s}, {RING}", f"s_cselect_b32 s{s}, 0, s{s}"]

    def AL(lst):
        for x in lst:
            A(x)

    def budget():
        A(f"s_sub_u32 s{sBud}, s{sBud}, 1\ns_cbranch_scc1 L_end")

    def st(i):
        if stamp:
            A(f"{'s_memrealtime' if stamp == 1 else 's_memtime'} s[{sSt + 2 * i}:{sSt + 2 * i + 1}]")

    def dump_stamps(base):
        if not stamp:
            return
        A("s_waitcnt lgkmcnt(0)")
        for i in range(8):
            A(f"v_mov_b32 v{16 + i}, s{sSt + 2 * i}")
        A(f"s_mul_i32 s{sA}, s2, 96\ns_add_u32 s{sA}, s{sA}, {WSB - 256 * 96 + base}")
        A(f"v_mov_b32 v{vT0}, 0\ns_mov_b64 exec, 1")
        A(f"buffer_store_dwordx4 v[16:19], v{vT0}, {SWS}, s{sA} offen")
        A(f"buffer_store_dwordx4 v[20:23], v{vT0}, {SWS}, s{sA} offen offset:16")
        A("s_mov_b64 exec, -1")

    def box_off(dst, k):
        A(f"s_mul_i32 s{dst}, s{sGrp}, 6\ns_add_u32 s{dst}, s{dst}, {k}\ns_mul_i32 s{dst}, s{dst}, {BOX}")

    tabA = sum(p[0] << (4 * i) for i, p in enumerate(PAIRS))
    tabB = sum(p[1] << (4 * i) for i, p in enumerate(PAIRS))

    A(HDR.rstrip())
    A(f"; @launch grid=(256,1,1) block=(448,1,1) lds={LDS}")
    A('.amdgcn_target "amdgcn-amd-amdhsa--gfx950"\n.text')
    A(f".globl {NAME}\n.p2align 8\n.type {NAME},@function\n{NAME}:")
    A("s_cmp_ge_u32 s2, 256\ns_cbranch_scc1 L_end")
    A("s_load_dwordx16 s[48:63], s[0:1], 0")
    if remap:
        A(f"s_lshr_b32 s4, s2, {6 if remap == 1 else 7}\ns_add_u32 s4, s4, s2\ns_and_b32 s4, s4, 7\ns_and_b32 s2, s2, 0xf8\ns_or_b32 s2, s2, s4")
    if stamp:
        for i in range(8):
            A(f"s_mov_b64 s[{sSt + 2 * i}:{sSt + 2 * i + 1}], 0")
    st(0)
    A(f"v_lshrrev_b32 v{vT0}, 6, v0\nv_and_b32 v{vLane}, 63, v0")
    A(f"v_readfirstlane_b32 s{sW}, v{vT0}")
    A(f"v_lshlrev_b32 v{vL16}, 4, v{vLane}")
    A(f"s_and_b32 s{sH}, s2, 7\ns_lshr_b32 s{sRole}, s2, 6\ns_lshr_b32 s{sA}, s2, 1\ns_and_b32 s{sA}, s{sA}, 28")
    A(f"s_lshr_b32 s{sBA}, {hex(tabA)}, s{sA}\ns_lshr_b32 s{sBB}, {hex(tabB)}, s{sA}")
    A(f"s_and_b32 s{sBA}, s{sBA}, 15\ns_and_b32 s{sBB}, s{sBB}, 15")
    A(f"s_lshl_b32 s{sA}, s{sBA}, 2\ns_lshl_b32 s{sBb}, s{sBB}, 2")
    A(f"s_lshl_b32 s{sC}, s{sBA}, 10\ns_lshl_b32 s{sD}, s{sBB}, 10")
    A(f"v_add_u32 v{vT2}, s{sC}, v{vL16}\nv_add_u32 v{vT3}, s{sD}, v{vL16}")
    A(f"s_mov_b32 s{sBud}, 0x400000\ns_and_b32 s{sGrp}, s2, 63")
    A(f"s_cmp_lt_u32 s{sRole}, 2\ns_cselect_b32 s{sPar}, 4096, 0")
    A(f"v_min_u32 v{vDoneA}, 383, v0\nv_lshlrev_b32 v{vDoneA}, 2, v{vDoneA}\nv_add_u32 v{vDoneA}, {A_DONE}, v{vDoneA}")
    A(f"v_mov_b32 v{vDone}, 0")
    A(f"ds_write_b32 v{vDoneA}, v{vDone}\nds_write_b32 v{vDoneA}, v{vDone} offset:1536")
    A(f"v_mov_b32 v{vRdyA}, {A_READY}")
    A(f"v_lshrrev_b32 v{vT0}, 4, v{vLane}\nv_and_b32 v{vT1}, 15, v{vLane}")
    A(f"v_xor_b32 v{vU}, v{vT1}, v{vT0}\nv_lshlrev_b32 v{vU}, 4, v{vU}\nv_lshl_add_u32 v{vQd}, v{vT0}, 8, v{vU}")
    A(f"s_lshr_b32 s{sE2}, s2, 3\ns_bitcmp1_b32 {hex(0xff000000 | firstb << 8)}, s{sE2}\ns_cselect_b32 s{sB}, s{sBB}, s{sBA}")
    A(f"s_mul_i32 s{sOffQ}, s{sW}, 8704\ns_add_u32 s{sOffQ}, s{sOffQ}, {PB}")
    A(f"s_mov_b32 s10, {QB}\ns_mov_b32 s11, 0x20000")

    def q_own():
        A(f"s_lshl_b32 s{sE2}, s{sB}, 3\ns_add_u32 s{sE2}, s{sE2}, s{sH}\ns_lshl_b32 s{sE2}, s{sE2}, 2\ns_add_u32 s{sE2}, s{sE2}, s{sW}")
        A(f"s_lshl_b32 s{sE2}, s{sE2}, 13\ns_add_u32 s{sE2}, s{sE2}, s{sPar}\ns_xor_b32 s{sF2}, s{sE2}, 4096")

    def q_own_loads(qpol=qpol):
        for r in range(8):
            A(f"s_add_u32 m0, s{sOffQ}, {r * 1088 - (r & 3) * 1024}\ns_nop 0")
            A(f"buffer_load_dwordx4 v{vQd}, {SQ}, s{sE2 if r < 4 else sF2} offen offset:{(r & 3) * 1024} {qpol} lds")

    q_own()
    A(f"s_mov_b32 m0, {A_TAB}\ns_and_b32 s{sC}, s{sW}, 6\ns_cmp_eq_u32 s{sC}, 4")
    A("s_waitcnt lgkmcnt(0)")
    A("s_cbranch_scc0 L_notab")
    A(f"global_load_lds_dwordx4 v{vT2}, s[54:55]\ns_mov_b32 m0, {A_TAB + 1024}\ns_setprio {lprio}\nglobal_load_lds_dwordx4 v{vT3}, s[54:55]")
    A("L_notab:")
    A(f"s_load_dword s{sCntA}, s[56:57], s{sA}\ns_load_dword s{sCntB}, s[56:57], s{sBb}")
    A(f"s_mov_b32 s8, s48\ns_mov_b32 s9, s49\ns_cmp_lt_u32 s{sW}, 4")
    A("s_barrier")
    A("s_cbranch_scc0 L_noq")
    if q3:
        A(f"s_cmp_eq_u32 s{sRole}, 3\ns_cbranch_scc0 L_q012")
        q_own_loads("")
        A("s_branch L_noq\nL_q012:")
    q_own_loads()
    A("L_noq:")
    for srd, p, n in ((12, 50, KVB), (16, 52, KVB), (20, 62, WSB), (24, 58, QB), (28, 60, 256)):
        A(f"s_mov_b32 s{srd}, s{p}\ns_mov_b32 s{srd + 1}, s{p + 1}\ns_mov_b32 s{srd + 2}, {n}\n"
          f"s_mov_b32 s{srd + 3}, 0x20000")
    box_off(sE2, 0)
    A(f"v_lshrrev_b32 v{vT2}, 2, v{vLane}\nv_min_u32 v{vT2}, 5, v{vT2}\nv_mul_u32_u24 v{vT2}, {BOX}, v{vT2}")
    A(f"v_and_b32 v{vT3}, 3, v{vLane}\nv_lshl_add_u32 v{vFa}, v{vT3}, 7, v{vT2}\ns_add_u32 s{sE2}, s{sE2}, 16896\nv_add_u32 v{vFa}, s{sE2}, v{vFa}")
    A(f"s_cmp_eq_u32 s{sW}, 5\ns_cbranch_scc0 L_nosnap")
    A(f"buffer_load_dword v{vF0}, v{vFa}, {SWS}, 0 offen sc1")
    A(f"v_add_u32 v{vT2}, {A_HIST}, v{vL16}")
    for j in range(4):
        A(f"v_mov_b32 v{68 + j}, 0")
    A(f"ds_write_b128 v{vT2}, v[68:71]")
    if touch:
        A(f"s_lshr_b32 s{sE2}, s2, 3\ns_lshl_b32 s{sE2}, s{sE2}, 22\nv_and_b32 v{vT2}, 1, v{vLane}\nv_lshlrev_b32 v{vT2}, 21, v{vT2}")
        A(f"buffer_load_dword v{vPoll}, v{vT2}, {SK}, s{sE2} offen nt\nbuffer_load_dword v{vPoll2}, v{vT2}, {SV}, s{sE2} offen nt")
    A("L_nosnap:")
    A(f"v_and_b32 v{vDnA}, 3, v{vLane}\nv_lshlrev_b32 v{vDnA}, 8, v{vDnA}\nv_add_u32 v{vDnA}, {A_DONE}, v{vDnA}")
    A(f"s_lshl_b32 s{sE2}, s{sH}, 8")
    A(f"v_lshl_add_u32 v{vT2}, v{vT0}, 11, v{vU}\nv_add_u32 v{vKo}, s{sE2}, v{vT2}")
    A(f"v_and_b32 v{vT2}, 1, v{vT0}\nv_lshlrev_b32 v{vT2}, 1, v{vT2}\nv_xor_b32 v{vT2}, v{vT2}, v{vT1}\nv_lshlrev_b32 v{vT2}, 4, v{vT2}")
    A(f"v_lshl_add_u32 v{vT2}, v{vT0}, 13, v{vT2}\nv_add_u32 v{vVo}, s{sE2}, v{vT2}")
    for j in range(1, 4):
        A(f"v_add_u32 v{vKo + j}, {j * (8192 - 1088)}, v{vKo}\nv_add_u32 v{vVo + j}, {j * (2048 - 1088)}, v{vVo}")
    A("s_waitcnt lgkmcnt(0)")
    st(1)
    A(f"s_min_i32 s{sA}, s{sCntA}, 0x1000\ns_cmp_lt_i32 s{sA}, 1\ns_cselect_b32 s{sA}, 0x1000, s{sA}\ns_cselect_b32 s{sC}, 1, 0")
    A(f"s_min_i32 s{sBb}, s{sCntB}, 0x1000\ns_cmp_lt_i32 s{sBb}, 1\ns_cselect_b32 s{sBb}, 0x1000, s{sBb}\ns_cselect_b32 s{sD}, 1, 0")
    A(f"s_mov_b32 s{sE2}, s{sBA}\ns_cmp_lt_u32 s{sA}, s{sBb}\ns_cselect_b32 s{sSwap}, 1, 0")
    A(f"s_cselect_b32 s{sCntA}, s{sBb}, s{sA}\ns_cselect_b32 s{sCntB}, s{sA}, s{sBb}")
    A(f"s_cselect_b32 s{sBA}, s{sBB}, s{sBA}\ns_cselect_b32 s{sBB}, s{sE2}, s{sBB}")
    A(f"s_cselect_b32 s{sZ}, s{sD}, s{sC}\ns_cselect_b32 s{sD}, s{sC}, s{sD}\ns_lshl_b32 s{sD}, s{sD}, 1\ns_or_b32 s{sZ}, s{sZ}, s{sD}")
    A(f"s_cmp_eq_u32 s{sRole}, 3\ns_cselect_b32 s{sNv}, s{sCntB}, s{sCntA}")
    A(f"s_sub_u32 s{sNv}, s{sNv}, 1\ns_and_b32 s{sNv}, s{sNv}, 31\ns_add_u32 s{sNv}, s{sNv}, 1")
    A(f"s_add_u32 s{sTopA}, s{sCntA}, 31\ns_lshr_b32 s{sTopA}, s{sTopA}, 5")
    A(f"s_add_u32 s{sTopB}, s{sCntB}, 31\ns_lshr_b32 s{sTopB}, s{sTopB}, 5")
    A(f"s_add_u32 s{sA}, s{sTopA}, s{sTopB}\ns_add_u32 s{sA}, s{sA}, {2 * delta + ex + ra}\ns_lshr_b32 s{sA}, s{sA}, 2\ns_max_u32 s{sA}, s{sA}, 1")
    A(f"s_min_u32 s{sCntA}, s{sA}, s{sTopA}\ns_min_u32 s{sCntB}, s{sA}, s{sTopB}")
    if th2:
        A(f"s_add_u32 s{sC}, s{sTopA}, 1\ns_lshr_b32 s{sC}, s{sC}, 1\ns_add_u32 s{sD}, s{sTopB}, 1\ns_lshr_b32 s{sD}, s{sD}, 1")
        A(f"s_sub_u32 s{sA}, s{sTopA}, s{sTopB}\ns_cmp_le_u32 s{sA}, {th2}")
        A(f"s_cselect_b32 s{sCntA}, s{sC}, s{sCntA}\ns_cselect_b32 s{sCntB}, s{sD}, s{sCntB}\ns_cselect_b32 s{sF2}, 0x1000, {theta}")
    A(f"s_sub_u32 s{sC}, s{sTopA}, s{sCntA}\ns_sub_u32 s{sD}, s{sTopB}, s{sCntB}")
    A(f"s_add_u32 s{sBb}, s{sC}, s{sD}\ns_add_u32 s{sBb}, s{sBb}, {ex + rx}\ns_lshr_b32 s{sBb}, s{sBb}, 1\ns_min_u32 s{sBb}, s{sBb}, s{sC}")
    A(f"s_sub_u32 s{sExp}, s{sC}, s{sBb}\ns_cmp_le_u32 s{sExp}, {f's{sF2}' if th2 else theta}\ns_cselect_b32 s{sBb}, s{sC}, s{sBb}\ns_cselect_b32 s{sExp}, 0, s{sExp}")
    A(f"s_cmp_ge_u32 s{sRole}, 2\ns_cbranch_scc1 L_plan_top")
    A(f"s_mov_b32 s{sNv}, 32\ns_mov_b32 s{sTopB}, s{sD}\ns_mov_b32 s{sCntB}, s{sD}")
    A(f"s_cmp_eq_u32 s{sRole}, 0\ns_cselect_b32 s{sCntA}, s{sBb}, s{sExp}\ns_cselect_b32 s{sTopA}, s{sBb}, s{sC}")
    A("L_plan_top:")
    A(f"s_bitcmp1_b32 s{sRole}, 0\ns_cselect_b32 s{sCntB}, s{sCntB}, 0\ns_cselect_b32 s{sExp}, 0, s{sExp}")
    A(f"s_cmp_eq_u32 s{sRole}, 3\ns_cselect_b32 s{sCntA}, 0, s{sCntA}")
    A(f"s_cmp_lt_u32 s{sW}, 4\ns_cbranch_scc1 L_consumer\ns_cmp_eq_u32 s{sW}, 6\ns_cbranch_scc1 L_pacer")
    A(f"s_sub_u32 s{sA}, s{sW}, 4\ns_mul_i32 s{sA}, s{sA}, {k0}\nv_add_u32 v{vRow + 2}, s{sA}, v{vLane}")
    A(f"s_add_u32 s{sCnt}, s{sCntA}, s{sCntB}\ns_add_u32 s{sBb}, s{sTopB}, s{sCntA}\nv_cmp_gt_u32 vcc, s{sCntA}, v{vRow + 2}")
    A(f"v_mov_b32 v{vT2}, s{sTopA}\nv_mov_b32 v{vT3}, s{sBb}\ns_lshl_b32 s{sA}, s{sSwap}, 10\ns_add_u32 s{sA}, s{sA}, {A_TAB}")
    A(f"v_cndmask_b32 v{vT2}, v{vT3}, v{vT2}, vcc\ns_lshl_b32 s{sBb}, s{sSwap}, 10\ns_sub_u32 s{sBb}, {A_TAB + 1024}, s{sBb}")
    A(f"v_xad_u32 v{vT2}, v{vRow + 2}, -1, v{vT2}\nv_mov_b32 v{vT3}, s{sA}\nv_mov_b32 v{vRow}, s{sBb}")
    A(f"v_and_b32 v{vT2}, 127, v{vT2}\nv_cndmask_b32 v{vT3}, v{vRow}, v{vT3}, vcc\nv_lshl_add_u32 v{vT2}, v{vT2}, 3, v{vT3}")
    A(f"s_cmp_eq_u32 s{sW}, 5\ns_cbranch_scc1 L_helper")

    def min4(dst, add):
        A(f"v_readlane_b32 s{sA}, v{vDn}, 0\nv_readlane_b32 s{sBb}, v{vDn}, 1\nv_readlane_b32 s{sC}, v{vDn}, 2\n"
          f"v_readlane_b32 s{sD}, v{vDn}, 3")
        A(f"s_min_u32 s{sA}, s{sA}, s{sBb}\ns_min_u32 s{sC}, s{sC}, s{sD}\ns_min_u32 s{dst}, s{sA}, s{sC}")
        if add:
            A(f"s_add_u32 s{dst}, s{dst}, {add}")

    A(f"s_cmp_eq_u32 s{sCnt}, 0\ns_cbranch_scc1 L_ldone")
    A(f"s_waitcnt vmcnt(0)\nds_read_b64 {vr(vRow, 2)}, v{vT2}")
    st(2)
    A(f"s_mov_b32 s{sS}, 1\ns_mov_b32 s{sOff}, {SLOT}\ns_mov_b32 s{sPub}, 0\ns_mov_b32 s{sFree}, {NS}")
    if skipb:
        A(f"s_cmp_le_u32 s{sNv}, 16")
    A(f"s_mov_b32 s{sTile}, 1\ns_mov_b32 s{sSw}, {k0 if not nosort else 64}\ns_mov_b32 m0, 0")
    A(f"s_waitcnt lgkmcnt(0)\nv_lshlrev_b32 v{vRow}, 15, v{vRow}\nv_lshlrev_b32 v{vRow + 1}, 15, v{vRow + 1}")
    A(f"v_readlane_b32 s{sA}, v{vRow}, 0\nv_readlane_b32 s{sBb}, v{vRow + 1}, 0\nv_readlane_b32 s{sN0}, v{vRow}, 1\nv_readlane_b32 s{sN1}, v{vRow + 1}, 1")
    A(f"s_mov_b32 s{sO0}, s{sA}\n" + (f"s_cselect_b32 s{sO1}, {hex(OOB)}, s{sBb}" if skipb else f"s_mov_b32 s{sO1}, s{sBb}"))
    for g in range(2):
        if g:
            A("s_mov_b32 m0, 4352\ns_nop 0")
        for j in range(4):
            A(f"buffer_load_dwordx4 v{vKo + j}, {SK}, s{sO0 + g} offen offset:{j * 1088} {pol} lds")
    if lag:
        A(f"s_mov_b32 s{sLag}, {lag}\ns_lshr_b32 s{sDec}, s2, 3\ns_and_b32 s{sDec}, s{sDec}, {dmask}")
        if dmul != 4:
            A(f"s_mul_i32 s{sDec}, s{sDec}, {dmul}\ns_lshr_b32 s{sDec}, s{sDec}, 2")
        A(f"s_add_u32 s{sDec}, s{sDec}, {dec0}")
    A(f"v_lshlrev_b32 v{vT2}, 3, v{vLane}\nv_add_u32 v{vT2}, {A_LIST}, v{vT2}\nv_mov_b32 v{vT3}, {A_SIG}")
    sLvl = 53
    A(f"s_mov_b32 s{sA}, {A_SIG + 8}\nv_writelane_b32 v{vDnA}, s{sA}, 4\ns_mov_b32 s{sLvl}, {l0}")
    A("L_next:")
    A(f"s_sub_u32 s{sCnt}, s{sCnt}, 1\ns_cmp_eq_u32 s{sCnt}, 0\ns_cbranch_scc1 L_lsegend")
    A(f"s_mov_b32 s{sP0}, s{sO0}\ns_mov_b32 s{sP1}, s{sO1}\ns_mov_b32 s{sO0}, s{sN0}\ns_mov_b32 s{sO1}, s{sN1}")
    A(f"s_cmp_lt_u32 s{sS}, s{sFree}\ns_cbranch_scc0 L_full_a")
    A("L_free_a:")

    def tree(lo, hi):
        if lo == hi:
            stage_loop(str(lo), w_lo + 2 * lo)
            return
        mid = (lo + hi + 1) // 2
        A(f"s_cmp_ge_i32 s{sLvl}, {mid}\ns_cbranch_scc1 L_t{mid}_{hi}")
        tree(lo, mid - 1)
        A(f"L_t{mid}_{hi}:")
        tree(mid, hi)

    def next_offsets(tag):
        A(f"s_add_u32 s{sTile}, s{sTile}, 1\ns_cmp_eq_u32 s{sTile}, s{sSw}\ns_cbranch_scc1 L_sw_{tag}")
        A(f"L_swd_{tag}:")
        A(f"v_readlane_b32 s{sN0}, v{vRow}, s{sTile}\nv_readlane_b32 s{sN1}, v{vRow + 1}, s{sTile}")

    def publish(back, lagged):
        A(f"s_sub_u32 s{sE2}, s{sS}, {back}")
        if lagged:
            A(f"s_sub_u32 s{sF2}, s{sE2}, s{sLag}\ns_max_i32 s{sPub}, s{sPub}, s{sF2}")
        else:
            A(f"s_max_i32 s{sPub}, s{sPub}, s{sE2}")
        A(f"v_mov_b32 v{vPub}, s{sPub}")
        if lagged:
            A(f"v_writelane_b32 v{vPub}, s{sE2}, 1")

    def stage_loop(tag, w):
        pub_i = -(-((w - gran) % 16) // gran) * gran
        back = (w - gran) // 16
        if pub_i == 16:
            pub_i, back = 0, back + 1
        for i in range(16):
            g, j = i >> 2, i & 3
            srd, vo, so = ((SK, vKo, sO0), (SK, vKo, sO1), (SV, vVo, sP0), (SV, vVo, sP1))[g]
            if j == 0:
                A(f"s_mov_b32 m0, s{sOff}" if g == 0 else f"s_add_u32 m0, s{sOff}, {g * 4352}")
            if i == pub_i:
                publish(back, lag)
            if i % gran == 0:
                A(f"s_waitcnt vmcnt({w - gran})")
            elif j == 0:
                A("s_nop 0")
            if i == pub_i:
                A(f"ds_write_b32 v{vDoneA}, v{vPub}")
            A(f"buffer_load_dwordx4 v{vo + j}, {srd}, s{so} offen offset:{j * 1088} {pol} lds")
            if i == 3:
                next_offsets(tag)
            if i == 8:
                A(f"ds_read_b32 v{vDn}, v{vDnA}")
            if i == 10:
                A("s_waitcnt lgkmcnt(0)")
                min4(sFree, NS)
            if i == 12:
                AL(adv(sOff))
                A(f"v_readlane_b32 s{sBb}, v{vDn}, 4\ns_cmp_lt_u32 s{sS}, {n1 - 1}\ns_cselect_b32 s{sA}, {l1}, {l2}")
                if nm:
                    A(f"s_cmp_lt_u32 s{sS}, {nm - 1}\ns_cselect_b32 s{sA}, {lm}, s{sA}")
                A(f"s_cmp_lt_u32 s{sS}, {n0 - 1}\ns_cselect_b32 s{sA}, {l0}, s{sA}\ns_add_u32 s{sLvl}, s{sA}, s{sBb}")
            if i == 13 and lag:
                assert lag == 1
                A(f"s_cmp_ge_u32 s{sS}, s{sDec}\ns_cselect_b32 s{sLag}, 0, 1")
        A(f"s_add_u32 s{sS}, s{sS}, 1")
        A("s_branch L_stg" if stamp or noload else "s_branch L_next")

    tree(0, 7)
    if stamp or noload:
        A("L_stg:")
        for k, n in ((5, 8), (6, 24), (7, 40)):
            A(f"s_cmp_lg_u32 s{sS}, {n}\ns_cbranch_scc1 L_ns{k}")
            st(k)
            A(f"L_ns{k}:")
        if noload:
            A(f"s_cmp_lt_u32 s{sS}, {NS}\ns_cbranch_scc1 L_next\ns_waitcnt vmcnt(0)\nv_mov_b32 v{vPub}, 0x7fffffff\n"
              f"ds_write_b32 v{vDoneA}, v{vPub}\ns_branch L_ldone")
        A("s_branch L_next")
    A("L_lsegend:")
    if pre:
        A(f"ds_read_b32 v{vPoll}, v{vT3}")
    A(f"s_cmp_lt_u32 s{sS}, s{sFree}\ns_cbranch_scc0 L_full_e")
    A("L_free_e:")
    for g in (2, 3):
        A(f"s_add_u32 m0, s{sOff}, {g * 4352}\ns_nop 0")
        for j in range(4):
            A(f"buffer_load_dwordx4 v{vVo + j}, {SV}, s{sO0 if g == 2 else sO1} offen offset:{j * 1088} {pol} lds")
    st(3)
    if pre:
        A(f"s_bitcmp1_b32 s{sRole}, 0\ns_cselect_b32 s48, s{sBB}, s{sBA}\ns_lshl_b32 s48, s48, 3\ns_add_u32 s48, s48, s{sH}")
        A(f"s_lshl_b32 s48, s48, 15\ns_add_u32 s48, s48, s{sPar}")
        A(f"v_lshrrev_b32 v93, 5, v{vLane}\nv_lshlrev_b32 v93, 12, v93\nv_lshl_add_u32 v93, v{vLane}, 7, v93\nv_lshlrev_b32 v95, 7, v{vLane}")
        A(f"s_xor_b32 s{sA}, s{sRole}, 2\ns_lshr_b32 s{sBb}, s{sRole}, 1\ns_add_u32 s{sBb}, s{sBb}, 4")
        box_off(50, f"s{sA}")
        box_off(49, f"s{sBb}")
        A(f"s_cmp_eq_u32 s{sExp}, 0\ns_cselect_b32 s49, {hex(OOB)}, s49\ns_cselect_b32 s51, s50, s49")
        A(f"v_and_b32 v94, 4, v{vLane}\nv_cmp_eq_u32 vcc, 0, v94\nv_mov_b32 v94, s50\nv_mov_b32 v96, s51\nv_and_b32 v97, 3, v{vLane}")
        A(f"v_cndmask_b32 v94, v96, v94, vcc\nv_lshl_add_u32 v94, v97, 7, v94")
    npre = 5 if pre else 0

    def pre_loads():
        A(f"s_waitcnt lgkmcnt(0)\nv_readfirstlane_b32 s{sA}, v{vPoll}\ns_nop 0\ns_cmp_eq_u32 s{sA}, 1")
        A(f"s_cselect_b32 s48, s48, {hex(OOB)}\ns_cselect_b32 s49, s49, {hex(OOB)}\ns_cselect_b32 s50, 16384, {hex(OOB)}")
        A("s_add_u32 s51, s48, 16384\ns_add_u32 s52, s49, 8192")
        A(f"buffer_load_dword v96, v94, {SWS}, s50 offen {prepol}")
        A(f"buffer_load_dword v96, v93, {SO}, s48 offen {prepol}\nbuffer_load_dword v96, v93, {SO}, s51 offen {prepol}")
        A(f"buffer_load_dword v96, v95, {SWS}, s49 offen {prepol}\nbuffer_load_dword v96, v95, {SWS}, s52 offen {prepol}")

    backs = list(range((wmax - 1) // 16, -2, -1))
    for n, back in enumerate(backs):
        if pre and n == pre - 1:
            pre_loads()
        ex_n = npre if pre and n >= pre - 1 else 0
        publish(back, False) if back >= 0 else A(f"s_add_u32 s{sA}, s{sS}, 1\nv_mov_b32 v{vPub}, s{sA}")
        A(f"s_waitcnt vmcnt({(16 * back + 8 if back >= 0 else 0) + ex_n})\nds_write_b32 v{vDoneA}, v{vPub}")
    if pre > len(backs):
        pre_loads()
    A("L_ldone:")
    st(4)
    dump_stamps(0)
    A("s_endpgm")
    for tag in "01234567":
        A(f"L_sw_{tag}:")
        budget()
        A(f"ds_read_b32 v{vDn}, v{vT3} offset:4\nds_read_b64 {vr(vRow, 2)}, v{vT2}\ns_waitcnt lgkmcnt(0)\nv_readfirstlane_b32 s{sA}, v{vDn}\ns_nop 0")
        A(f"s_cmp_eq_u32 s{sA}, 0\ns_cbranch_scc1 L_sw_{tag}")
        A(f"s_mov_b32 s{sTile}, 0\ns_mov_b32 s{sSw}, -1\ns_branch L_swd_{tag}")
    for tag in "ae":
        A(f"L_full_{tag}:")
        budget()
        A(f"ds_read_b32 v{vDn}, v{vDnA}\ns_waitcnt lgkmcnt(0)")
        min4(sFree, NS)
        A(f"s_cmp_lt_u32 s{sS}, s{sFree}\ns_cbranch_scc0 L_full_{tag}\ns_branch L_free_{tag}")

    A("L_pacer:")
    sPos, sIdx, sLine, sNx = 54, 55, 56, 57
    A(f"s_add_u32 s{sCnt}, s{sCntA}, s{sCntB}\ns_lshr_b32 s{sIdx}, s2, 3")
    A(f"s_sub_u32 s{sA}, s{sCnt}, {base}\ns_mul_i32 s{sA}, s{sA}, {sg}\ns_add_u32 s{sA}, s{sA}, {128 - sg * 3 // 4}\ns_ashr_i32 s{sA}, s{sA}, 8")
    A(f"s_min_i32 s{sA}, s{sA}, {amax}\ns_max_i32 s{sA}, s{sA}, {-amax}\nv_mov_b32 v101, s{sA}\nv_mov_b32 v{vT3}, {A_SIG + 8}\nds_write_b32 v{vT3}, v101")
    A(f"s_lshl_b32 s{sA}, s{sH}, 7\ns_add_u32 s{sLine}, s{sA}, {64 * 6 * BOX}\nv_and_b32 v98, 31, v{vLane}\nv_lshlrev_b32 v98, 2, v98")
    A(f"s_lshl_b64 s[58:59], 1, s{sIdx}\nbuffer_load_dword v99, v98, {SWS}, s{sLine} offen sc1")
    A(f"s_and_b32 s{sNx}, s{sIdx}, 1\ns_add_u32 s{sNx}, s{sNx}, {fb0}\ns_waitcnt vmcnt(0)")
    A("L_pc0:")
    A(f"s_cmp_ge_u32 s{sNx}, s{sCnt}\ns_cbranch_scc1 L_end")
    A("L_pc1:")
    budget()
    if fsleep:
        A(f"s_sleep {fsleep}")
    A(f"ds_read_b32 v{vF}, v{vRdyA} offset:4\ns_waitcnt lgkmcnt(0)\nv_readfirstlane_b32 s{sF}, v{vF}\ns_nop 0")
    A(f"s_cmp_lt_i32 s{sF}, s{sNx}\ns_cbranch_scc1 L_pc1")
    A(f"s_sub_u32 s{sBb}, s{sCnt}, s{sF}\ns_sub_u32 s{sPos}, 128, s{sBb}\nv_add_u32 v102, s{sPos}, v99\ns_mov_b64 exec, s[58:59]")
    A(f"buffer_store_dword v102, v98, {SWS}, s{sLine} offen\ns_mov_b64 exec, -1")
    A(f"buffer_load_dword v100, v98, {SWS}, s{sLine} offen sc1")
    A(f"s_add_u32 s{sNx}, s{sF}, 2\ns_sub_u32 s{sA}, s{sBb}, 2\ns_min_i32 s{sA}, s{sA}, {rhi}\ns_max_i32 s{sA}, s{sA}, {rlo}")
    A(f"v_cvt_f32_u32 v102, s{sA}\ns_lshl_b32 s{sD}, s{sPos}, 5\ns_sub_u32 s{sD}, s{sD}, {foff}\nv_rcp_f32 v102, v102\ns_waitcnt vmcnt(0)")
    A(f"v_sub_u32 v101, v100, v99\nv_cmp_eq_u32 vcc, 0, v101\ns_nop 0")
    for sh in (1, 2, 4, 8):
        A(f"v_add_u32_dpp v101, v101, v101 row_shr:{sh} row_mask:0xf bank_mask:0xf bound_ctrl:0\ns_nop 1")
    A(f"v_add_u32_dpp v101, v101, v101 row_bcast:15 row_mask:0xa bank_mask:0xf\ns_cbranch_vccnz L_pc0")
    A(f"v_subrev_u32 v101, s{sD}, v101\nv_cvt_f32_i32 v101, v101\nv_mul_f32 v101, {hex(f2u(fbg / 32))}, v101\nv_mul_f32 v101, v101, v102")
    A(f"v_rndne_f32 v101, v101\nv_cvt_i32_f32 v101, v101\nv_med3_i32 v101, v101, {-amax}, {amax}")
    A(f"s_mov_b32 exec_lo, 0x80000000\ns_mov_b32 exec_hi, 0\nds_write_b32 v{vT3}, v101\ns_mov_b64 exec, -1\ns_branch L_pc0")

    A("L_helper:")
    a_0, a_1, p_0, p_1, hh, tt, one = 64, 65, 66, 67, 68, 96, 75
    A(f"s_waitcnt vmcnt(1)\nds_read_b64 {vr(vRow, 2)}, v{vT2}")
    A(f"v_mov_b32 v{a_0}, {A_HIST}\nv_mov_b32 v{a_1}, {A_HIST + 512}\nv_add_u32 v{vT3}, {A_HIST}, v{vL16}")
    A(f"v_cndmask_b32 v{p_0}, v{a_1}, v{a_0}, vcc\nv_cmp_gt_u32 vcc, s{sCnt}, v{vRow + 2}\nv_mov_b32 v{one}, 1")
    A(f"s_waitcnt lgkmcnt(0)\nv_bfe_u32 v{a_0}, v{vRow}, {bsh}, 7\nv_bfe_u32 v{a_1}, v{vRow + 1}, {bsh}, 7")
    A(f"v_lshl_add_u32 v{a_0}, v{a_0}, 2, v{p_0}\nv_lshl_add_u32 v{a_1}, v{a_1}, 2, v{p_0}")
    A(f"s_mov_b64 s[48:49], vcc\ns_mov_b64 exec, vcc")
    A(f"ds_add_rtn_u32 v{p_0}, v{a_0}, v{one}\nds_add_rtn_u32 v{p_1}, v{a_1}, v{one}")
    A(f"s_mov_b64 exec, -1\nds_read_b128 {vr(hh, 4)}, v{vT3}")
    A(f"v_lshlrev_b32 v{vRow}, 15, v{vRow}\nv_lshlrev_b32 v{vRow + 1}, 15, v{vRow + 1}\ns_waitcnt lgkmcnt(0)")
    A(f"v_add_u32 v{hh + 1}, v{hh}, v{hh + 1}\nv_add_u32 v{hh + 2}, v{hh + 1}, v{hh + 2}\nv_add_u32 v{hh + 3}, v{hh + 2}, v{hh + 3}")
    A(f"v_mov_b32 v{tt}, v{hh + 3}\ns_nop 1")
    for sh in (1, 2, 4, 8):
        A(f"v_add_u32_dpp v{tt}, v{tt}, v{tt} row_shr:{sh} row_mask:0xf bank_mask:0xf bound_ctrl:0\ns_nop 1")
    A(f"v_add_u32_dpp v{tt}, v{tt}, v{tt} row_bcast:15 row_mask:0xa bank_mask:0xf\ns_nop 1")
    A(f"v_add_u32_dpp v{tt}, v{tt}, v{tt} row_bcast:31 row_mask:0xc bank_mask:0xf")
    A(f"v_sub_u32 v{tt}, v{tt}, v{hh + 3}")
    for j in range(3):
        A(f"v_add_u32 v{tt + 1 + j}, v{tt}, v{hh + j}")
    A(f"ds_write_b128 v{vT3}, {vr(tt, 4)}\nds_read_b32 v{a_0}, v{a_0}\nds_read_b32 v{a_1}, v{a_1}")
    A(f"v_mov_b32 v{vT3}, {A_LIST}\nv_mov_b32 v{vT2}, {A_SIG}\ns_mov_b64 exec, s[48:49]\ns_waitcnt lgkmcnt(0)")
    A(f"v_add_u32 v{p_0}, v{p_0}, v{a_0}\nv_add_u32 v{p_1}, v{p_1}, v{a_1}")
    A(f"v_lshl_add_u32 v{p_0}, v{p_0}, 2, v{vT3}\nv_lshl_add_u32 v{p_1}, v{p_1}, 2, v{vT3}")
    A(f"ds_write_b32 v{p_0}, v{vRow}\nds_write_b32 v{p_1}, v{vRow + 1}")
    A(f"s_mov_b64 exec, -1\nds_write_b32 v{vT2}, v{one} offset:4")
    st(5)
    A(f"s_setprio 0\ns_mov_b32 s{sItem}, 1")
    A(f"s_cmp_eq_u32 s{sCntA}, 0\ns_cselect_b32 s{sCntB}, 0, s{sCntB}")

    def pb_free(tag):
        A(f"s_branch L_hfree_{tag}")
        A(f"L_hfree0_{tag}:")
        budget()
        if psleep:
            A(f"s_sleep {psleep}")
        A(f"L_hfree_{tag}:")
        A(f"ds_read_b32 v{vDn}, v{vDnA} offset:1536\ns_waitcnt lgkmcnt(0)")
        min4(sA, 0)
        A(f"s_cmp_lt_u32 s{sA}, s{sItem}\ns_cbranch_scc1 L_hfree0_{tag}")

    def pb_publish():
        A(f"s_add_u32 s{sItem}, s{sItem}, 1\nv_mov_b32 v{vPub}, s{sItem}\ns_waitcnt vmcnt(0)\nds_write_b32 v{vDoneA}, v{vPub}")

    def q_item(w):
        A(f"s_lshl_b32 s{sO1}, s{sB}, 3\ns_add_u32 s{sO1}, s{sO1}, s{sH}\ns_lshl_b32 s{sO1}, s{sO1}, 15\ns_xor_b32 s{sO0}, s{sO1}, s{sPar}")
        for r in range(32):
            A(f"s_mov_b32 m0, {PB + r * 1088 - (r & 3) * 1024}")
            if r and (r & 3) == 0:
                A(f"s_add_u32 s{sO1}, s{sO1}, 4096\ns_xor_b32 s{sO0}, s{sO1}, s{sPar}")
            elif w and r >= w:
                A(f"s_waitcnt vmcnt({w - 1})")
            else:
                A("s_nop 0")
            A(f"buffer_load_dwordx4 v{vQd}, {SQ}, s{sO0} offen offset:{(r & 3) * 1024} {q2pol} lds")

    def wait_progress(tag):
        A(f"s_branch L_hp_{tag}")
        A(f"L_hp0_{tag}:")
        budget()
        if psleep:
            A(f"s_sleep {psleep}")
        A(f"L_hp_{tag}:")
        A(f"ds_read_b32 v{vF}, v{vRdyA}\ns_waitcnt lgkmcnt(0)\nv_readfirstlane_b32 s{sF}, v{vF}\ns_nop 0")
        A(f"s_cmp_lt_u32 s{sF}, s{sNeed}\ns_cbranch_scc1 L_hp0_{tag}")

    A(f"s_lshl_b32 s{sA}, s{sGrp}, 2\nv_mov_b32 v{vDb}, s{sA}\ns_getreg_b32 s{sA}, hwreg(HW_REG_XCC_ID, 0, 4)")
    A(f"s_or_b32 s{sD}, s{sA}, 16\ns_lshl_b32 s{sBb}, s{sRole}, 3\ns_lshl_b32 s{sA}, s{sD}, s{sBb}\ns_mul_i32 s{sK}, s{sD}, 0x01010101")
    A(f"s_waitcnt vmcnt(0)\nv_mov_b32 v{vPoll}, s{sA}")
    A(f"ds_write_b32 v{vDoneA}, v{vF0} offset:1536")
    A(f"s_mov_b64 exec, 1\nbuffer_atomic_or v{vPoll}, v{vDb}, {SD}, 0 offen sc1\ns_mov_b64 exec, -1")
    st(2)
    A(f"s_cmp_eq_u32 s{sCntB}, 0\ns_cbranch_scc1 L_hq2")
    A(f"s_mov_b32 s{sB}, s{sBB}")
    pb_free("q")
    q_item(hwin)
    A(f"v_mov_b32 v{vPub}, 1\ns_waitcnt vmcnt(0)\nds_write_b32 v{vDoneA}, v{vPub}")
    A("L_hq2:")
    A(f"s_lshr_b32 s{sIt}, s2, 3\ns_and_b32 s{sIt}, s{sIt}, {cmask}")
    if rmode < 2:
        A(f"s_add_u32 s{sNeed}, s{sIt}, {chk0}\ns_min_u32 s{sNeed}, s{sNeed}, s{sCnt}")
        wait_progress("c")
        A("s_branch L_hchk")
        A("L_hchk0:")
        budget()
        if psleep:
            A(f"s_sleep {4 * psleep}")
        A("L_hchk:")
        A(f"buffer_load_dword v{vPoll2}, v{vDb}, {SD}, 0 offen sc1\ns_waitcnt vmcnt(0)")
        A(f"v_readfirstlane_b32 s{sA}, v{vPoll2}\ns_nop 0\ns_and_b32 s{sBb}, s{sA}, 0x10101010\ns_cmp_eq_u32 s{sBb}, 0x10101010\ns_cbranch_scc0 L_hchk0")
        A(f"s_cmp_eq_u32 s{sA}, s{sK}\ns_cselect_b32 s{sK}, 1, 2")
    if force or rmode >= 2:
        A(f"s_mov_b32 s{sK}, {force or 1}")
    A(f"v_mov_b32 v{vPoll2}, s{sK}")
    A(f"v_mov_b32 v{vT2}, {A_SIG}\nds_write_b32 v{vT2}, v{vPoll2}")
    A(f"s_cmp_eq_u32 s{sRole}, 1\ns_cbranch_scc0 L_hdone\ns_cmp_eq_u32 s{sCntA}, 0\ns_cbranch_scc1 L_hdone")
    A(f"s_mov_b32 s{sItem}, 2")
    pb_free("h")
    A(f"v_add_u32 v{vT3}, {PB}, v{vL16}\nv_mul_u32_u24 v{vT2}, 8704, v{vT0}\nv_lshl_add_u32 v{vT2}, v{vT1}, 4, v{vT2}")
    A(f"v_add_u32 v{vT2}, {PB + 8192}, v{vT2}")
    for r in range(32):
        A(f"ds_read_b128 {vr(HR + 4 * r, 4)}, v{vT3} offset:{(r >> 3) * 8704 + (r & 7) * 1024}")
    A(f"ds_read_b128 {vr(HR + 128, 4)}, v{vT2}")
    box_off(sE2, 4)
    A(f"v_lshrrev_b32 v{vT2}, 3, v{vT1}\nv_mul_u32_u24 v{vT2}, {BOX}, v{vT2}\nv_lshl_add_u32 v{vT2}, v{vT0}, 7, v{vT2}")
    A(f"v_and_b32 v{vT3}, 7, v{vT1}\nv_lshl_add_u32 v{vT2}, v{vT3}, 4, v{vT2}")
    A(f"v_add_u32 v{vF0}, 1, v{vF0}")
    A(f"s_cmp_eq_u32 s{sK}, 1\ns_cselect_b32 s{sA}, {lead}, 1\ns_sub_u32 s{sNeed}, s{sCnt}, s{sA}\ns_max_i32 s{sNeed}, s{sNeed}, 0")
    wait_progress("h")
    st(3)
    A(f"s_cmp_eq_u32 s{sK}, 1\ns_cbranch_scc0 L_hwt")
    for pl in (hpol, "sc1"):
        if pl == "sc1":
            A("L_hwt:")
        for r in range(32):
            if (r & 3) == 0:
                A(f"s_add_u32 s{sO1}, s{sE2}, {((r >> 2) & 1) * BOX + (r >> 3) * 4096}")
            A(f"buffer_store_dwordx4 {vr(HR + 4 * r, 4)}, v{vL16}, {SWS}, s{sO1} offen offset:{(r & 3) * 1024} {pl}")
        A(f"s_add_u32 s{sO0}, s{sE2}, 16384")
        A(f"buffer_store_dwordx4 {vr(HR + 128, 4)}, v{vT2}, {SWS}, s{sO0} offen {pl}")
        A("s_mov_b64 exec, 0xff0000\ns_waitcnt vmcnt(0)")
        A(f"buffer_store_dword v{vF0}, v{vFa}, {SWS}, 0 offen {pl}")
        A("s_mov_b64 exec, -1")
        if pl != "sc1":
            A("s_branch L_hdone")
    A("L_hdone:")
    if trace:
        A(f"s_cmp_eq_u32 s{sRole}, 0\ns_cbranch_scc0 L_end")
        A(f"s_mov_b32 s{sIt}, 0\nv_mov_b32 v100, 0\nv_mov_b32 v101, 0\nv_mov_b32 v102, 0\nv_mov_b32 v103, 0")
        A("L_tr:")
        A(f"s_memrealtime s[84:85]\ns_memtime s[86:87]\nds_read_b32 v{vF}, v{vRdyA}\nds_read_b32 v{vDn}, v{vDnA}\ns_waitcnt lgkmcnt(0)")
        A(f"v_readfirstlane_b32 s{sF}, v{vF}\nv_readfirstlane_b32 s{sA}, v{vDn}\ns_mov_b32 m0, s{sIt}\ns_nop 3")
        A(f"v_writelane_b32 v100, s84, m0\nv_writelane_b32 v101, s86, m0\nv_writelane_b32 v102, s{sF}, m0\nv_writelane_b32 v103, s{sA}, m0")
        A("L_tr2:")
        A(f"s_sleep 2\ns_memrealtime s[88:89]\ns_waitcnt lgkmcnt(0)\ns_sub_u32 s{sA}, s88, s84\ns_cmp_lt_u32 s{sA}, {trace}\ns_cbranch_scc1 L_tr2")
        A(f"s_add_u32 s{sIt}, s{sIt}, 1\ns_cmp_ge_u32 s{sF}, s{sCnt}\ns_cbranch_scc1 L_tr3\ns_cmp_lt_u32 s{sIt}, 64\ns_cbranch_scc1 L_tr")
        A("L_tr3:")
        A(f"s_lshl_b32 s{sA}, s2, 10\ns_add_u32 s{sA}, s{sA}, {WSB - 64 * 1024}")
        A(f"buffer_store_dwordx4 v[100:103], v{vL16}, {SWS}, s{sA} offen")
    st(4)
    dump_stamps(64)
    A("s_endpgm")

    A("L_consumer:")
    A(f"v_lshlrev_b32 v{vG4}, 2, v{vT0}")
    A(f"v_lshrrev_b32 v{vT2}, 2, v{vT1}\nv_mul_u32_u24 v{vT2}, 1088, v{vT2}\nv_and_b32 v{vT3}, 3, v{vT1}")
    A(f"v_lshl_add_u32 v{vKc}, v{vT3}, 8, v{vT2}\nv_xor_b32 v{vU}, v{vT3}, v{vT0}\nv_lshl_add_u32 v{vKc}, v{vU}, 4, v{vKc}")
    A(f"v_lshl_add_u32 v{vT2}, v{vT0}, 8, v{vT2}\nv_lshl_add_u32 v{vT2}, v{vT3}, 3, v{vT2}\nv_add_u32 v{vT2}, 8704, v{vT2}")
    A(f"v_and_b32 v{vU}, 1, v{vT0}\nv_lshl_add_u32 v{vV0c}, v{vU}, 5, v{vT2}\nv_xor_b32 v{vV1c}, 32, v{vV0c}")
    A(f"v_lshlrev_b32 v{vQo}, 8, v{vT1}\nv_lshl_add_u32 v{vQo}, v{vU}, 5, v{vQo}\nv_lshrrev_b32 v{vU}, 1, v{vT0}\nv_lshl_add_u32 v{vQo}, v{vU}, 4, v{vQo}")
    if fullrow:
        A(f"v_lshrrev_b32 v{vU}, 3, v{vT1}\nv_mul_u32_u24 v{vU}, {2048 - 64}, v{vU}\nv_sub_u32 v{vQo}, v{vQo}, v{vU}")
    for j in range(4):
        A(f"v_mov_b32 v{ON + j}, 0x3f803f80")
    A(f"v_lshlrev_b32 v{vPL}, 3, v{vT1}\nv_mov_b32 v{vPd}, 0")
    A(f"s_mov_b32 s{sT}, 0\ns_mov_b32 s{sOffK}, 0\ns_mov_b32 s{sItem}, 0")
    sSd, sSs, sFo, sOut, sPi, sHi, sPs, sHs, sPd, sHd, sMy, sLp, sLh = range(48, 61)
    sCs, sCr, sCt = 61, 62, 63
    A(f"s_mov_b32 s{sCs}, {SLOT}\ns_mov_b32 s{sCr}, {RING}\ns_mov_b32 s{sCt}, {hex(f2u(T))}")
    A(f"s_bitcmp1_b32 s{sRole}, 0\ns_cselect_b32 s{sOut}, s{sBB}, s{sBA}")
    A(f"s_lshl_b32 s{sOut}, s{sOut}, 3\ns_add_u32 s{sOut}, s{sOut}, s{sH}\ns_lshl_b32 s{sOut}, s{sOut}, 2\n"
      f"s_add_u32 s{sOut}, s{sOut}, s{sW}\ns_lshl_b32 s{sOut}, s{sOut}, 13\ns_add_u32 s{sOut}, s{sOut}, s{sPar}")
    box_off(sMy, f"s{sRole}")
    A(f"s_lshl_b32 s{sC}, s{sW}, 12\ns_lshl_b32 s{sD}, s{sW}, 7\ns_add_u32 s{sD}, s{sD}, 16384\ns_add_u32 s{sFo}, s{sD}, 512")
    if alias:
        A(f"s_xor_b32 s{sSd}, s{sOut}, 4096")
    else:
        A(f"s_add_u32 s{sSd}, s{sMy}, s{sC}")
    A(f"s_add_u32 s{sSs}, s{sMy}, s{sD}")
    A(f"s_xor_b32 s{sLp}, s{sRole}, 2\ns_lshr_b32 s{sLh}, s{sRole}, 1\ns_add_u32 s{sLh}, s{sLh}, 4")
    A(f"s_cmp_eq_u32 s{sExp}, 0\ns_cselect_b32 s{sLh}, s{sLp}, s{sLh}")
    box_off(sPi, f"s{sLp}")
    box_off(sHi, f"s{sLh}")
    A(f"s_add_u32 s{sPs}, s{sPi}, s{sD}\ns_add_u32 s{sHs}, s{sHi}, s{sD}\ns_add_u32 s{sHd}, s{sHi}, s{sC}")
    A(f"s_mov_b32 s{sPd}, s{sOut}" if alias else f"s_add_u32 s{sPd}, s{sPi}, s{sC}")
    vPo, vSa = 246, 247
    A(f"v_mov_b32 v{vSa}, s{sRole}\nv_writelane_b32 v{vSa}, s{sLp}, 0\nv_writelane_b32 v{vSa}, s{sLh}, 1")
    A(f"v_mov_b32 v{vPo}, s{sMy}\nv_writelane_b32 v{vPo}, s{sPi}, 0\nv_writelane_b32 v{vPo}, s{sHi}, 1")
    A(f"s_lshl_b32 s{sA}, s{sW}, 2\ns_add_u32 s{sA}, s{sA}, {A_SIG + 256}\nv_lshl_add_u32 v{vSa}, v{vSa}, 4, s{sA}")
    if nopart:
        for x in (sPs, sHs, sPd, sHd):
            A(f"s_mov_b32 s{x}, {hex(OOB)}")

    def zero_acc():
        for i in range(LA, O + 64):
            A(f"v_mov_b32 v{i}, 0")

    zero_acc()
    A(f"s_cmp_eq_u32 s{sCntA}, 0\ns_cselect_b32 s{sA}, s{sBB}, s{sBA}\ns_cmp_eq_u32 s{sA}, s{sB}\ns_cbranch_scc1 L_qok")
    A(f"s_mov_b32 s{sB}, s{sA}")
    q_own()
    A("s_waitcnt vmcnt(0)")
    q_own_loads()
    A("L_qok:")
    A(f"s_cmp_eq_u32 s{sCntA}, 0\ns_cbranch_scc1 L_segB")
    A(f"s_mov_b32 s{sCnt}, s{sCntA}\ns_bitcmp1_b32 s{sZ}, 0\ns_branch L_seg")
    A("L_segB:")
    A(f"s_cmp_eq_u32 s{sCntB}, 0\ns_cbranch_scc1 L_empty")
    A(f"s_mov_b32 s{sB}, s{sBB}\ns_mov_b32 s{sCnt}, s{sCntB}\ns_mov_b32 s{sCntA}, 0\ns_bitcmp1_b32 s{sZ}, 1")

    def spin(tag, off=0, need=None, le=False):
        A(f"L_spin_{tag}:")
        budget()
        A(f"ds_read_b32 v{vF}, v{vRdyA} offset:{off}\ns_waitcnt lgkmcnt(0)\nv_readfirstlane_b32 s{sF}, v{vF}\ns_nop 0")
        A(f"s_cmp_{'le' if le else 'lt'}_u32 s{sF}, s{need or sNeed}\ns_cbranch_scc1 L_spin_{tag}")

    def addrs():
        return [f"v_add_u32 v{vK}, s{sOffK}, v{vKc}", f"v_add_u32 v{vV0}, s{sOffK}, v{vV0c}",
                f"v_add_u32 v{vV1}, s{sOffK}, v{vV1c}"]

    def kreads(dst=KF):
        return [f"ds_read_b128 {vr(dst + 4 * f, 4)}, v{vK} offset:{(f & 1) * 4352 + (f >> 1) * 64}" for f in range(8)]

    def vreads(dst=VF):
        return [f"ds_read_b64_tr_b16 {vr(dst + 4 * dt + 2 * u, 2)}, v{vV1 if dt & 1 else vV0} "
                f"offset:{u * 4352 + (dt >> 1) * 64}" for dt in range(8) for u in range(2)]

    MF = "v_mfma_f32_16x16x32_bf16"

    def qk(first):
        out = []
        for ks, kh in ([(a, b) for a in range(4) for b in range(2)] if first else [(a, b) for b in range(2) for a in range(4)]):
            if True:
                for qh in range(2):
                    d = vr(S + 8 * qh + 4 * kh, 4)
                    c = d if ks else ("0" if first else vr(CM + 4 * qh, 4))
                    out.append(f"{MF} {d}, {vr(KF + 4 * (2 * ks + kh), 4)}, {vr(Q + 4 * (2 * ks + qh), 4)}, {c}")
        return out

    def pv(dt, qh, src=VF):
        d = vr(O + 32 * qh + 4 * dt, 4)
        return f"{MF} {d}, {vr(src + 4 * dt, 4)}, {vr(P + 4 * qh, 4)}, {d}"

    def rs(qh):
        return f"{MF} {vr(LA + 4 * qh, 4)}, {vr(ON, 4)}, {vr(P + 4 * qh, 4)}, {vr(LA + 4 * qh, 4)}"

    def cvt(j):
        return f"v_cvt_pk_bf16_f32 v{P + j}, v{E + 2 * j}, v{E + 2 * j + 1}"

    def maxes():
        o = []
        for a in (0, 3, 5):
            for qh, m in ((0, vMx), (1, vMx2)):
                b = S + 8 * qh + a
                o.append(f"v_max3_f32 v{m}, v{b}, v{b + 1}, v{b + 2}" if a == 0 else f"v_max3_f32 v{m}, v{m}, v{b}, v{b + 1}")
        return o

    def new_max(floor0):
        A(f"v_max_f32 v{vMx}, v{vMx}, v{S + 7}\nv_max_f32 v{vMx2}, v{vMx2}, v{S + 15}")
        for sw in ("v_permlane32_swap_b32", "v_permlane16_swap_b32"):
            A(f"v_mov_b32 v{vT0}, v{vMx}\nv_mov_b32 v{vT1}, v{vMx2}\ns_nop 0")
            A(f"{sw} v{vMx}, v{vT0}\n{sw} v{vMx2}, v{vT1}\ns_nop 0")
            A(f"v_max_f32 v{vMx}, v{vMx}, v{vT0}\nv_max_f32 v{vMx2}, v{vMx2}, v{vT1}")
        if floor0:
            A(f"v_max_f32 v{vMx}, 0, v{vMx}\nv_max_f32 v{vMx2}, 0, v{vMx2}")
        A(f"v_ceil_f32 v{vMx}, v{vMx}\nv_ceil_f32 v{vMx2}, v{vMx2}")

    def exp_shifted():
        for i in range(16):
            A(f"v_sub_f32 v{E + i}, v{S + i}, v{vMx if i < 8 else vMx2}")
        for i in range(16):
            A(f"v_exp_f32 v{E + i}, v{E + i}")

    def scale_acc(f, with_la=True):
        for qh in range(2):
            sel = "op_sel_hi:[1,0]" if qh == 0 else "op_sel:[0,1] op_sel_hi:[1,1]"
            for i in range(16):
                r = O + 32 * qh + 2 * i
                A(f"v_pk_mul_f32 {vr(r, 2)}, {vr(r, 2)}, {vr(f, 2)} {sel}")
            if with_la:
                A(f"v_mul_f32 v{LA + 4 * qh}, v{f + qh}, v{LA + 4 * qh}")

    def pack_o(i, dst=KF):
        for j in range(4):
            r = O + 8 * i + 2 * j
            A(f"v_cvt_pk_bf16_f32 v{dst + 4 * i + j}, v{r}, v{r + 1}")

    def park():
        A(f"v_add_u32 v{vT2}, s{sOffQ}, v{vL16}\nv_add_u32 v{vT3}, s{sOffQ}, v{vPL}")
        A(f"v_mov_b32 v{CM + 1}, v{LA}\nv_mov_b32 v{CM + 5}, v{LA + 4}")
        A(f"ds_write_b64 v{vT3}, {vr(CM, 2)} offset:8192\nds_write_b64 v{vT3}, {vr(CM + 4, 2)} offset:8320")
        for i in range(8):
            pack_o(i)
            A(f"ds_write_b128 v{vT2}, {vr(KF + 4 * i, 4)} offset:{i * 1024}")
        zero_acc()

    A("L_seg:")
    c = f2u(1.4426950408889634 / 128 ** 0.5)
    A(f"s_cselect_b32 s{sScale}, 0, {hex(c)}")
    A(f"s_add_u32 s{sEnd}, s{sT}, s{sCnt}\ns_add_u32 s{sNeed}, s{sT}, 1")
    A(f"s_cmp_eq_u32 s{sRole}, 1\ns_cselect_b32 s{sRet}, s{sCntA}, 0")
    A(f"v_add_u32 v{vK}, s{sOffQ}, v{vKc}\nv_mov_b32 v{vF2}, s{sScale}")
    A(f"s_cmp_eq_u32 s{sT}, 0\ns_cbranch_scc0 L_hold")
    A("s_waitcnt vmcnt(0)")
    AL(kreads(Q))
    A("L_nohold:")
    A(f"v_add_u32 v{vPd}, 1, v{vPd}\nds_write_b32 v{vDoneA}, v{vPd} offset:1536")
    A(f"v_add_u32 v{vK}, s{sOffK}, v{vKc}\nv_mov_b32 v{vDone}, s{sNeed}")
    AL(adv(sOffK))
    for t in range(8):
        A(f"s_waitcnt lgkmcnt({8 - t})")
        for j in range(4):
            r = Q + 4 * t + j
            A(f"v_lshlrev_b32 v{vU + 2 * j}, 16, v{r}\nv_and_b32 v{vU + 2 * j + 1}, 0xffff0000, v{r}")
        for j in range(4):
            A(f"v_pk_mul_f32 {vr(vU + 2 * j, 2)}, {vr(vU + 2 * j, 2)}, {vr(vF2, 2)} op_sel_hi:[1,0]")
        for j in range(4):
            A(f"v_cvt_pk_bf16_f32 v{Q + 4 * t + j}, v{vU + 2 * j}, v{vU + 2 * j + 1}")
    if not st2:
        st(2)
    spin("p0")
    if not st2:
        st(3)
    AL(kreads())
    A(f"ds_write_b32 v{vDoneA}, v{vDone}")
    A(f"s_add_u32 s{sNeed}, s{sT}, 2\ns_min_u32 s{sNeed}, s{sNeed}, s{sEnd}")
    A(f"v_sub_u32 v{vT2}, s{sNv}, v{vG4}")
    A(f"v_mov_b32 v{vT3}, 0xff800000")
    for i, x in enumerate(qk(True)):
        if i % 2 == 0:
            A(f"s_waitcnt lgkmcnt({8 - i // 2})")
        A(x)
    AL(addrs())
    spin("p1")
    AL(kreads())
    A(f"s_cmp_eq_u32 s{sNv}, 32\ns_cbranch_scc1 L_nomask")
    for kh in range(2):
        for r in range(4):
            a = S + 4 * kh + r
            A(f"v_cmp_lt_i32 vcc, {16 * kh + r}, v{vT2}\ns_nop 1\nv_cndmask_b32 v{a}, v{vT3}, v{a}, vcc\n"
              f"v_cndmask_b32 v{a + 8}, v{vT3}, v{a + 8}, vcc")
    A("L_nomask:")
    AL(maxes())
    new_max(False)
    for i in range(8):
        A(f"v_sub_f32 v{CM + i}, 0, v{vMx if i < 4 else vMx2}")
    exp_shifted()
    A(f"s_waitcnt lgkmcnt(0)\ns_sub_u32 s{sIt}, s{sCnt}, 2\ns_cbranch_scc1 L_final")

    A(".p2align 3")
    A("L_loop:")
    loop_start = len(L)
    vrd = vreads()
    f_inc, f_wr, f_rd = f"v_add_u32 v{vDone}, 1, v{vDone}", f"ds_write_b32 v{vDoneA}, v{vDone}", f"ds_read2st64_b32 {vr(vF2, 2)}, v{vRdyA} offset0:0 offset1:6"
    ex1 = lambda i: f"v_exp_f32 v{E + i}, v{S + i}"
    lg = lambda n: f"s_waitcnt lgkmcnt({n})"
    krd = kreads()
    krd = krd[0::2] + krd[1::2]
    mo = [0, 1, 2, 3, 8, 9, 10, 11, 4, 5, 6, 7, 12, 13, 14, 15]
    mxs = [f"v_max3_f32 v{vT0}, v{S + mo[0]}, v{S + mo[1]}, v{S + mo[2]}"]
    mxs += [f"v_max3_f32 v{vT0}, v{vT0}, v{S + mo[i]}, v{S + mo[i + 1]}" for i in range(3, 15, 2)]
    mxs += [f"v_max_f32 v{vT0}, v{vT0}, v{S + 15}", f"v_cmp_lt_f32 vcc, s{sCt}, v{vT0}"]
    aa = addrs()
    ad = [f"s_add_u32 s{sOffK}, s{sOffK}, s{sCs}", f"s_cmp_ge_u32 s{sOffK}, s{sCr}", f"s_cselect_b32 s{sOffK}, 0, s{sOffK}"]
    fa = [[vrd[i], cvt(j)] for i, j in enumerate((0, 1, 4, 5, 2, 3, 6, 7))]
    fa[0].insert(0, f"s_add_u32 s{sNeed}, s{sNeed}, 1")
    fa[1].insert(0, f"s_sub_u32 s{sIt}, s{sIt}, 1")
    fa[2].insert(0, f"s_cselect_b32 s{sA}, -1, s{sNeed}")
    for i in range(3):
        fa[3 + i].insert(0, ad[i])
    fa[7].insert(0, lg(7))
    fa += [[vrd[8], f_rd], [vrd[9], f_inc], [vrd[10], ex1(0)], [vrd[11], ex1(1)], [vrd[12], ex1(2)],
           [vrd[13], ex1(3)], [vrd[14], ex1(8)], [lg(6), vrd[15], f_wr]]
    for x, f in zip(qk(False), fa):
        A(x)
        AL(f)
    mf = []
    for dt in range(8):
        mf += [pv(dt, 1), pv(dt, 0)]
        if dt == 3:
            mf += [rs(0), rs(1)]
    if pvo == 1:
        mf = mf[:4]
        mf[2], mf[3] = mf[3], mf[2]
        mf += [pv(2, 1), pv(2, 0), pv(3, 0), pv(3, 1), rs(1), rs(0), pv(4, 0), pv(4, 1), pv(5, 1), pv(5, 0), pv(6, 0), pv(6, 1), pv(7, 1), pv(7, 0)]
    if pvo == 2:
        mf = mf[:4] + [pv(2, 0), pv(3, 0), rs(0), pv(2, 1), pv(3, 1), rs(1)] + [pv(d, 1) for d in range(4, 8)] + [pv(d, 0) for d in range(4, 8)]
    if nors:
        mf = [x if f"{vr(ON, 4)}" not in x else "s_nop 0" for x in mf]
    AL([mf[0], f"v_readfirstlane_b32 s{sF}, v{vF2}", aa[0]])
    AL([mf[1], ex1(9)])
    AL([mf[2], f"s_cmp_lt_u32 s{sF}, s{sA}", ex1(10)])
    AL([mf[3], "s_cbranch_scc1 L_slow"])
    A("L_back:")

    def phase_b(kr):
        k = list(kr) if kr else [None] * 8
        n = (lambda x: x) if kr else (lambda x: 0)
        A(ex1(11))
        fb = [[k[0], mxs[0], mxs[1]], [k[1], ex1(4)], [k[2], mxs[2], mxs[3]], [ex1(5)], [k[3], mxs[4], mxs[5]],
              [lg(n(4)), ex1(6)], [k[4], mxs[6], mxs[7]], [ex1(7)], [k[5], mxs[8], aa[1]], [ex1(12)],
              [k[6], aa[2]], [ex1(13)], [k[7], ex1(14)], [lg(n(4)), ex1(15)]]
        for i in range(4, 18):
            A(mf[i])
            AL([x for x in fb[i - 4] if x])

    phase_b(krd)
    if nocomp:
        keep = []
        for x in L[loop_start:]:
            y = x.strip()
            if nocomp & 1 and y.startswith("v_mfma"):
                continue
            if nocomp & 2 and y.startswith(("v_exp", "v_max", "v_cvt")):
                continue
            if nocomp & 4 and y.startswith(("ds_read_b128", "ds_read_b64_tr")):
                continue
            keep.append(x)
        L[loop_start:] = keep
        A("s_mov_b64 vcc, 0")
    A("s_cbranch_vccz L_loop\ns_branch L_rare")

    HB = Q

    def send_stats(spol=spol):
        A(f"v_mov_b32 v{CM + 5}, v{LA + 4}")
        if smask:
            A("s_mov_b64 exec, 0xffff")
        A(f"buffer_store_dwordx2 {vr(CM + 4, 2)}, v{vPL}, {SWS}, s{sSs} offen {spol}")
        if smask:
            A("s_mov_b64 exec, -1")

    def send(i, spol=spol):
        pack_o(i, Q)
        A(f"buffer_store_dwordx4 {vr(Q + 4 * i, 4)}, v{vL16}, {SO if alias else SWS}, s{sSd} offen offset:{(i & 3) * 1024} {spol}")

    def final():
        A("L_lastg:")
        phase_b([])
        A("s_cbranch_vccnz L_rare")
        A("L_final:")
        A(f"{f_rd}\ns_add_u32 s{sNeed}, s{sEnd}, 1\ns_mov_b32 s{sT}, s{sEnd}")
        for j in range(8):
            A(cvt(j))
        A("s_nop 0")
        A(rs(0))
        A(rs(1))
        A(f"s_cmp_lg_u32 s{sRet}, 0\ns_cbranch_scc1 L_final_a")
        A(f"s_waitcnt lgkmcnt(0)\nv_readfirstlane_b32 s{sF}, v{vF2}\nv_readfirstlane_b32 s{sK}, v{vF2 + 1}")
        A(f"s_cmp_ge_u32 s{sF}, s{sNeed}\ns_cbranch_scc1 L_final1")
        spin("f")
        A(f"L_final1:\nds_read_b32 v{vU + 1}, v{vSa}")
        AL(vrd)
        A(f"s_cmp_eq_u32 s{sK}, 1\ns_cbranch_scc1 L_final2")
        for pl in ("sc1", spol):
            send_stats(pl)
            for dt in range(8):
                A(f"s_waitcnt lgkmcnt({14 - 2 * dt})")
                A(pv(dt, 1))
                if dt >= 5:
                    send(dt - 1, pl)
            for dt in range(8):
                A(pv(dt, 0))
                if dt == 2:
                    send(7, pl)
                    st(4)
            if pl == "sc1":
                A("s_branch L_sentw\nL_final2:")

    A("L_slow:")
    A(f"s_cmp_ge_i32 s{sIt}, 0\ns_cbranch_scc1 L_slow1")
    if spincnt:
        A(f"s_waitcnt lgkmcnt(0)\ns_sub_u32 s{sSt + 2}, 0x400000, s{sBud}\ns_sub_u32 s{sSt + 4}, s{sF}, s{sNeed}\ns_add_u32 s{sSt + 4}, s{sSt + 4}, 100")
        st(3)
    if tail:
        A(f"v_readfirstlane_b32 s{sK}, v{vF2 + 1}\ns_cmp_lt_u32 s{sF}, s{sNeed}\ns_cselect_b32 s{sA}, 1, s{sRet}")
        A(f"s_xor_b32 s{sBb}, s{sK}, 1\ns_or_b32 s{sA}, s{sA}, s{sBb}\ns_cbranch_scc1 L_lastg")
        A("L_tail:")
        if st3:
            st(1)
        AL([f"ds_read_b32 v{vU + 1}, v{vSa}"] + aa[1:] + [lg(1)])
        vk = vreads(KF)
        m1 = [pv(dt, 1) for dt in range(2, 8)] + [rs(1)]
        ft = [[ex1(11), mxs[0]], [ex1(12), mxs[1]], [ex1(13), mxs[2]], [ex1(14), mxs[3]], [ex1(15), mxs[4]],
              [mxs[5], mxs[6]], [mxs[7], mxs[8]]]
        AL(vk[:2])
        for i in range(7):
            A(m1[i])
            AL(vk[2 * i + 2:2 * i + 4] + ft[i])
        if st3:
            st(2)
        A("s_cbranch_vccnz L_tail_fix")
        for j in range(4, 8):
            A(cvt(j))
        A(pv(2, 0))
        A(ex1(4))
        A(rs(1))
        for dt in range(8):
            A(lg(14 - 2 * dt))
            A(pv(dt, 1, KF))
            if dt == 4:
                if st3:
                    st(3)
                send_stats()
            if dt >= 5:
                send(dt - 1)
        for dt in range(3, 8):
            A(pv(dt, 0))
            if dt < 6:
                A(ex1(dt + 2))
            if dt == 4:
                send(7)
                st(4)
        A(rs(0))
        for j in range(4):
            A(cvt(j))
        A("s_nop 1")
        A(rs(0))
        for dt in range(8):
            A(pv(dt, 0, KF))
    else:
        final()
    A("L_sent:")
    st(5)
    if not nopart:
        A(f"v_add_u32 v{vU + 2}, 1, v{vU + 1}\ns_mov_b64 exec, 4\ns_waitcnt vmcnt(0)")
        A(f"buffer_store_dword v{vU + 2}, v{vPo}, {SWS}, s{sFo} offen")
        A("L_reld:")
        if st2:
            st(1)
        A(f"s_mov_b64 exec, 3\nv_mov_b32 v{vU + 3}, v{vU + 1}")
        A("L_poll0:")
        budget()
        A(f"buffer_load_dword v{vU + 3}, v{vPo}, {SWS}, s{sFo} offen {fpol}")
        if csleep:
            A(f"s_sleep {csleep}")
        A(f"s_waitcnt vmcnt({npoll})")
        A(f"v_cmp_eq_u32 vcc, v{vU + 3}, v{vU + 1}\ns_cbranch_vccnz L_poll0")
        A("s_mov_b64 exec, -1")
    st(6)
    A(f"buffer_load_dwordx2 {vr(vU + 4, 2)}, v{vPL}, {SWS}, s{sPs} offen {lpol}")
    A(f"buffer_load_dwordx2 {vr(vU + 6, 2)}, v{vPL}, {SWS}, s{sHs} offen {hlpol}")
    for i in range(4):
        A(f"buffer_load_dwordx4 {vr(HB + 16 + 4 * i, 4)}, v{vL16}, {SO if alias else SWS}, s{sPd} offen offset:{i * 1024} {lpol}")

    def unpack_fma(src, i, f, sel):
        for j in range(4):
            A(f"v_lshlrev_b32 v{E + 2 * j}, 16, v{src + j}\nv_and_b32 v{E + 2 * j + 1}, 0xffff0000, v{src + j}")
        for j in range(4):
            o = O + 8 * i + 2 * j
            A(f"v_pk_fma_f32 {vr(o, 2)}, {vr(E + 2 * j, 2)}, {vr(f, 2)}, {vr(o, 2)} {sel}")

    def finish(held):
        n = 8 if held else 4
        if held:
            for i in range(4):
                A(f"buffer_load_dwordx4 {vr(HB + 4 * i, 4)}, v{vL16}, {SWS}, s{sHd} offen offset:{i * 1024} {hlpol}")
        A(f"s_waitcnt vmcnt({n})")
        if st2:
            st(2)
        if held:
            A(f"v_min3_f32 v{vT0}, v{CM}, v{vU + 4}, v{vU + 6}")
        else:
            A(f"v_min_f32 v{vT0}, v{CM}, v{vU + 4}")
        A(f"v_sub_f32 v{vT2}, v{vT0}, v{CM}\nv_sub_f32 v{vMx}, v{vT0}, v{vU + 4}")
        if held:
            A(f"v_sub_f32 v{vMx2}, v{vT0}, v{vU + 6}")
        A(f"v_exp_f32 v{vT2}, v{vT2}\nv_exp_f32 v{vMx}, v{vMx}")
        A(f"v_exp_f32 v{vMx2}, v{vMx2}" if held else "s_nop 0")
        A(f"v_mul_f32 v{vT1}, v{vT2}, v{LA}\nv_fmac_f32 v{vT1}, v{vMx}, v{vU + 5}")
        if held:
            A(f"v_fmac_f32 v{vT1}, v{vMx2}, v{vU + 7}")
        A(f"v_rcp_f32 v{vT1}, v{vT1}\ns_nop 0\nv_mul_f32 v{vT2}, v{vT2}, v{vT1}\nv_mul_f32 v{vMx}, v{vMx}, v{vT1}")
        if held:
            A(f"v_mul_f32 v{vMx2}, v{vMx2}, v{vT1}")
        for i in range(16):
            A(f"v_pk_mul_f32 {vr(O + 2 * i, 2)}, {vr(O + 2 * i, 2)}, {vr(vT2, 2)} op_sel_hi:[1,0]")
        if held:
            for i in range(4):
                A(f"s_waitcnt vmcnt({7 - i})")
                unpack_fma(HB + 16 + 4 * i, i, vMx, "op_sel_hi:[1,0,1]")
        for i in range(4):
            if i < 2:
                A(f"s_waitcnt vmcnt({0 if i else 3})")
            if held:
                unpack_fma(HB + 4 * i, i, vMx, "op_sel:[0,1,0] op_sel_hi:[1,1,1]")
            else:
                unpack_fma(HB + 16 + 4 * i, i, vMx, "op_sel_hi:[1,0,1]")
            if fullrow:
                if i == 2:
                    out_store2(0)
            elif i:
                out_store(i - 1)
            pack_o(i)
        A("s_nop 1")
        if fullrow:
            out_store2(2)
        else:
            out_store(3)
        if st2:
            st(3)
        if stamp:
            A("s_waitcnt vmcnt(0)")
            st(7)
            A(f"s_cmp_eq_u32 s{sW}, {sw}\ns_cbranch_scc0 L_end")
        dump_stamps(32)
        A("s_endpgm")

    def out_store(i):
        d = KF + 4 * i
        A(f"v_permlane16_swap_b32 v{d}, v{d + 2}\nv_permlane16_swap_b32 v{d + 1}, v{d + 3}")
        A(f"buffer_store_dwordx4 {vr(d, 4)}, v{vQo}, {SO}, s{sOut} offen offset:{i * 64} {opol}")

    def out_store2(i):
        d = KF + 4 * i
        for x in (d, d + 4):
            A(f"v_permlane16_swap_b32 v{x}, v{x + 2}\nv_permlane16_swap_b32 v{x + 1}, v{x + 3}")
        for j in range(4):
            A(f"v_mov_b32 v{S + j}, v{d + j}")
        for j in range(4):
            A(f"v_mov_b32_dpp v{d + j}, v{d + 4 + j} row_ror:8 row_mask:0xf bank_mask:0xc")
        for j in range(4):
            A(f"v_mov_b32_dpp v{d + 4 + j}, v{S + j} row_ror:8 row_mask:0xf bank_mask:0x3")
        A(f"buffer_store_dwordx4 {vr(d, 4)}, v{vQo}, {SO}, s{sOut} offen offset:{i * 64} {opol}")
        A(f"buffer_store_dwordx4 {vr(d + 4, 4)}, v{vQo}, {SO}, s{sOut} offen offset:{2048 + i * 64} {opol}")

    A(f"s_cmp_lg_u32 s{sExp}, 0\ns_cbranch_scc1 L_fin_held")
    finish(False)
    A("L_fin_held:")
    finish(True)
    A("L_end:\ns_endpgm")

    if tail:
        final()
        A("s_branch L_sent")
        A("L_tail_fix:")
        for dt in range(2, 8):
            A(pv(dt, 0))
        A(rs(0))
        A("s_branch L_rare")
    A("L_final_a:")
    spin("g")
    AL(vrd)
    for dt in range(8):
        A(f"s_waitcnt lgkmcnt({14 - 2 * dt})")
        A(pv(dt, 1))
        A(pv(dt, 0))
    A("s_branch L_segB")
    A("L_sentw:")
    if nopart:
        A("s_branch L_sent")
    else:
        A(f"v_mov_b32 v{vT0}, {A_SIG}")
        A("L_peers:")
        budget()
        A(f"ds_read_b32 v{vF}, v{vT0}\nds_read_b32 v{vU + 1}, v{vSa}\ns_waitcnt lgkmcnt(0)\nv_readfirstlane_b32 s{sA}, v{vF}\ns_nop 0")
        A(f"s_cmp_eq_u32 s{sA}, 0\ns_cbranch_scc1 L_peers")
        A(f"v_add_u32 v{vU + 2}, 1, v{vU + 1}\ns_mov_b64 exec, 4\ns_waitcnt vmcnt(0)")
        A(f"buffer_store_dword v{vU + 2}, v{vPo}, {SWS}, s{sFo} offen sc1\ns_branch L_reld")
    A("L_hold:")
    spin("q", off=256, need=sItem, le=True)
    AL(kreads(Q))
    park()
    A("s_branch L_nohold")
    A("L_empty:")
    A(f"s_cmp_eq_u32 s{sT}, 0\ns_cbranch_scc1 L_empty1\ns_nop 5")
    park()
    A(f"v_add_u32 v{vPd}, 1, v{vPd}\nds_write_b32 v{vDoneA}, v{vPd} offset:1536")
    A("L_empty1:")
    A(f"v_mov_b32 v{CM}, {hex(BIG)}\nv_mov_b32 v{CM + 4}, {hex(BIG)}")
    A("s_waitcnt vmcnt(0)")
    send_stats("sc1")
    for i in range(4, 8):
        send(i, "sc1")
    A("s_branch L_sentw")
    A("L_slow1:")
    if sleep:
        A(f"s_branch L_slow2\nL_slow3:\ns_sleep {sleep}\nL_slow2:")
        budget()
        A(f"ds_read_b32 v{vF}, v{vRdyA}\ns_waitcnt lgkmcnt(0)\nv_readfirstlane_b32 s{sF}, v{vF}\ns_nop 0")
        A(f"s_cmp_lt_u32 s{sF}, s{sNeed}\ns_cbranch_scc1 L_slow3")
    else:
        spin("s")
    A("s_branch L_back")
    A("L_rare:")
    AL(maxes())
    new_max(True)
    A(f"v_exp_f32 v{vT2}, -v{vMx}\nv_exp_f32 v{vT3}, -v{vMx2}")
    for i in range(8):
        A(f"v_sub_f32 v{CM + i}, v{CM + i}, v{vMx if i < 4 else vMx2}")
    exp_shifted()
    scale_acc(vT2)
    A(f"s_cmp_lt_i32 s{sIt}, 0\ns_cbranch_scc1 L_final\ns_branch L_loop")

    A(f""".section .rodata,"a"
.p2align 6
.amdhsa_kernel {NAME}
  .amdhsa_next_free_vgpr 256
  .amdhsa_next_free_sgpr 102
  .amdhsa_accum_offset 256
  .amdhsa_group_segment_fixed_size 0
  .amdhsa_kernarg_size 64
  .amdhsa_user_sgpr_count 2
  .amdhsa_user_sgpr_kernarg_segment_ptr 1
  .amdhsa_system_sgpr_workgroup_id_x 1
.end_amdhsa_kernel""")
    notes = {'L_next': '; ---- loader: one stage (K of tile s, V of tile s-1) per trip, eight copies that differ in the depth only', 'L_lsegend': '; ---- loader: V of the last tile, drain, then fetch the lines the hand-off will use', 'L_pacer': '; ==== wave 6: position report and depth correction (speed only)', 'L_helper': '; ==== wave 5: bucket sort of the block list, group hand-shake, second Q, held partial', 'L_consumer': '; ==== waves 0-3', 'L_seg': '; ---- segment start: Q (scaled by log2(e)/sqrt(D)), first tile with mask and true max', 'L_loop': '; ---- steady loop: S(t+1), P(t), V(t) reads | O += V(t) P(t), exp(t+1), max check, K(t+2) reads', 'L_slow': '; ---- next stage not there yet, or last trip; L_tail: the half that is sent goes first', 'L_sent': '; ---- hand-off word, wait for the partner, merge, normalise, store', 'L_lastg': '; ---- last two tiles in plain order', 'L_rare': '; ---- a score rose more than 2^8 above the max in use: move to the true running max', 'L_empty': '; ---- no keys of the batch this workgroup ends on', 'L_hold': '; ---- role 1 between its segments: park the partial of A in LDS', 'L_sentw': '; ---- write-through hand-off'}
    out = []
    for x in L:
        if x.endswith(":") and x[:-1] in notes:
            out.append(notes[x[:-1]])
        out.append(x)
    L[:] = out
    if nostore:
        L[:] = [x for x in L if not (x.strip().startswith("buffer_store") and "v[16:19]" not in x and "v[20:23]" not in x
                                     and "v[100:103], v239, s[20:23], s73 offen" != x.strip()[21:]
                                     and ((SWS in x and nostore & 1) or (SO in x and nostore & 2)))]
    return "\n".join(L) + "\n"


def parse(spec):
    kw = {}
    for kv in spec.split(","):
        if not kv or kv == "default":
            continue
        k, v = kv.split("=")
        try:
            kw[k] = int(v)
        except ValueError:
            try:
                kw[k] = float(v)
            except ValueError:
                kw[k] = v.replace("+", " ").replace("none", "")
    return kw


if __name__ == "__main__":
    from build import build
    import hz
    files = []
    for spec in sys.argv[1:]:
        txt = gen(**parse(spec))
        pr = hz.check(txt)
        for p in pr:
            print("HAZARD", p, file=sys.stderr)
        fn = "k_" + spec.replace("=", "").replace(",", "_").replace("+", "") + ".s"
        open(fn, "w").write(txt)
        build(fn)
        files.append(fn)
    print(" ".join(files))
```

```python
import sys
import struct

NAME = "standalone__paged_block_table_kv_pagedattention__sampling_kernel"
WSB = 537395200
KVB = 4100 * 32768
QB = 16 * 32 * 32 * 128 * 2

HDR = """; Paged GQA attention, B=16 Hq=32 Hkv=8 Sq=32 D=128 block=16, bf16.  Generated by the author's own script.
;
"""

PAIRS = [(4, 13), (9, 8), (14, 3), (0, 12), (5, 7), (10, 2), (15, 11), (1, 6)]


def f2u(x):
    return struct.unpack('<I', struct.pack('<f', x))[0]


def gen(NS=7, win=23, win2=27, ntail=0, gran=2, win0=16, n0=6, lag=1, dec0=16, decs=8,
        delta=0, ex=0, theta=2, lead=8, npoll=1, hwin=8, psleep=16, csleep=0, lprio=3, rdy0=2, chk0=20, rmode=1, cmask=15, base=48, kb=6, firstb=-1, th2=22, b1=4, pre=4, prepol='', k0=4, nosort=0, tail=1, st3=0, smask=0, sleep=2, pvo=0, qko=0, nors=0, sw=0, spincnt=0, bsh=5, touch=0, ra=2, rx=1, apol='sc1', fpol='sc1', alias=1, fullrow=0, st2=0, hpol='', hlpol='sc1', force=0, remap=0, w_lo=14, l0=1, l1=3, l2=4, fbg=12.0, rlo=4, rhi=16, amax=3, fb0=3, sg=60, foff=33, fsleep=4, nm=10, lm=2, q2pol='nt', q3=0, skipb=1, cpf=1, cpol='', win1=20, n1=18, dmask=31, dmul=3,
        pol="nt", qpol="nt", opol="", spol="", lpol="sc1", T=8.0,
        stamp=0, trace=0, nocomp=0, noload=0, nopart=0, nostore=0):
    if firstb < 0:
        nt = [-(-(4096 - ((i + 1) * 2654435761) % 2048) // 32) for i in range(16)]
        firstb = sum(1 << i for i, (a, b) in enumerate(PAIRS) if nt[a] - nt[b] <= max(th2, 2 * theta))
    SLOT = 17408
    RING = NS * SLOT
    PB = RING
    A_DONE = PB + 2 * SLOT
    A_READY = A_DONE + 1024
    A_PDONE = A_DONE + 1536
    A_SIG = A_PDONE + 1024
    A_TAB = A_SIG + 512
    A_LIST = A_TAB + 2048
    A_HIST = A_LIST + 512
    LDS = A_HIST + 1024
    wmax = w_lo + 14
    assert LDS <= 163840
    assert NS >= wmax // 16 + lag + 3 and wmax <= 52
    BOX = 17408
    BIG = f2u(1e30)
    OOB = 0x40000000
    L = []

    def A(s):
        for x in s.split('\n'):
            L.append(x if x.endswith(':') or x.startswith(('.', ';')) else '    ' + x)

    vLane, vT0, vT1, vT2, vT3 = 1, 2, 3, 4, 5
    vKc, vV0c, vV1c, vK, vV0, vV1 = 6, 7, 8, 9, 10, 11
    vQo, vRdyA, vDoneA, vF = 12, 13, 14, 15
    S, E, CM, LA, O, Q, KF, VF, P, ON = 16, 32, 48, 56, 64, 128, 160, 192, 224, 232
    vMx, vMx2, vDone, vL16, vG4, vPd, vPA, vPL = 236, 237, 238, 239, 240, 241, 242, 243
    vF2, vU = 244, 248
    TA, TBb, vRow = 64, 68, 72
    vKo, vVo = 76, 80
    vPoll, vPub, vDn, vDnA, vF0, vDb, vPoll2, vFa = 84, 85, 86, 87, 89, 90, 91, 92
    vQd = 242
    HR = 100

    sW, sH, sRole = 3, 32, 33
    sBA, sBB, sCntA, sCntB, sTopA, sTopB, sNv, sExp, sZ = 35, 36, 37, 38, 39, 40, 41, 42, 43
    sGrp, sSwap, sBud, sPar = 44, 45, 46, 47
    sB, sCnt, sT, sEnd, sOffK, sRet, sNeed, sF, sScale = 64, 65, 66, 67, 68, 69, 70, 71, 72
    sA, sBb, sC, sD, sE2, sF2 = 73, 74, 75, 76, 77, 78
    sQoff, sIt, sOffQ, sItem, sK = 79, 80, 81, 82, 83
    sS, sOff, sPub, sFree, sTile, sO0, sO1, sN0, sN1, sLag, sDec = 66, 67, 68, 69, 70, 71, 72, 79, 80, 81, 82
    sP0, sP1, sSw = 34, 64, 41
    sSt = 84
    SQ, SK, SV, SWS, SO, SD = "s[8:11]", "s[12:15]", "s[16:19]", "s[20:23]", "s[24:27]", "s[28:31]"

    def vr(a, n):
        return f"v[{a}:{a + n - 1}]" if n > 1 else f"v{a}"

    def adv(s):
        return [f"s_add_u32 s{s}, s{s}, {SLOT}", f"s_cmp_ge_u32 s{s}, {RING}", f"s_cselect_b32 s{s}, 0, s{s}"]

    def AL(lst):
        for x in lst:
            A(x)

    def budget():
        A(f"s_sub_u32 s{sBud}, s{sBud}, 1\ns_cbranch_scc1 L_end")

    def st(i):
        if stamp:
            A(f"{'s_memrealtime' if stamp == 1 else 's_memtime'} s[{sSt + 2 * i}:{sSt + 2 * i + 1}]")

    def dump_stamps(base):
        if not stamp:
            return
        A("s_waitcnt lgkmcnt(0)")
        for i in range(8):
            A(f"v_mov_b32 v{16 + i}, s{sSt + 2 * i}")
        A(f"s_mul_i32 s{sA}, s2, 96\ns_add_u32 s{sA}, s{sA}, {WSB - 256 * 96 + base}")
        A(f"v_mov_b32 v{vT0}, 0\ns_mov_b64 exec, 1")
        A(f"buffer_store_dwordx4 v[16:19], v{vT0}, {SWS}, s{sA} offen")
        A(f"buffer_store_dwordx4 v[20:23], v{vT0}, {SWS}, s{sA} offen offset:16")
        A("s_mov_b64 exec, -1")

    def box_off(dst, k):
        A(f"s_mul_i32 s{dst}, s{sGrp}, 6\ns_add_u32 s{dst}, s{dst}, {k}\ns_mul_i32 s{dst}, s{dst}, {BOX}")

    tabA = sum(p[0] << (4 * i) for i, p in enumerate(PAIRS))
    tabB = sum(p[1] << (4 * i) for i, p in enumerate(PAIRS))

    A(HDR.rstrip())
    A(f"; @launch grid=(256,1,1) block=(448,1,1) lds={LDS}")
    A('.amdgcn_target "amdgcn-amd-amdhsa--gfx950"\n.text')
    A(f".globl {NAME}\n.p2align 8\n.type {NAME},@function\n{NAME}:")
    A("s_cmp_ge_u32 s2, 256\ns_cbranch_scc1 L_end")
    A("s_load_dwordx16 s[48:63], s[0:1], 0")
    if remap:
        A(f"s_lshr_b32 s4, s2, {6 if remap == 1 else 7}\ns_add_u32 s4, s4, s2\ns_and_b32 s4, s4, 7\ns_and_b32 s2, s2, 0xf8\ns_or_b32 s2, s2, s4")
    if stamp:
        for i in range(8):
            A(f"s_mov_b64 s[{sSt + 2 * i}:{sSt + 2 * i + 1}], 0")
    st(0)
    A(f"v_lshrrev_b32 v{vT0}, 6, v0\nv_and_b32 v{vLane}, 63, v0")
    A(f"v_readfirstlane_b32 s{sW}, v{vT0}")
    if cpf:
        A("s_getpc_b64 s[4:5]\nL_pc:")
        A(f"s_and_b32 s6, s2, {0xf8 if cpf == 1 else 0x38}\nv_subrev_u32 v{vT1}, 384, v0\nv_cmp_gt_u32 vcc, {8 if cpf == 1 else 32}, v{vT1}")
        if cpf == 2:
            A("s_lshl_b32 s6, s6, 2")
        A(f"v_add_u32 v{vT1}, s6, v{vT1}\nv_lshlrev_b32 v{vT1}, 7, v{vT1}\nv_min_u32 v{vT1}, L_code_end-L_pc-4, v{vT1}")
        A(f"s_and_saveexec_b64 s[6:7], vcc\ns_cbranch_execz L_nocp\nglobal_load_dword v{vU + 7}, v{vT1}, s[4:5] {cpol}\nL_nocp:\ns_mov_b64 exec, s[6:7]")
    A(f"v_lshlrev_b32 v{vL16}, 4, v{vLane}")
    A(f"s_and_b32 s{sH}, s2, 7\ns_lshr_b32 s{sRole}, s2, 6\ns_lshr_b32 s{sA}, s2, 1\ns_and_b32 s{sA}, s{sA}, 28")
    A(f"s_lshr_b32 s{sBA}, {hex(tabA)}, s{sA}\ns_lshr_b32 s{sBB}, {hex(tabB)}, s{sA}")
    A(f"s_and_b32 s{sBA}, s{sBA}, 15\ns_and_b32 s{sBB}, s{sBB}, 15")
    A(f"s_lshl_b32 s{sA}, s{sBA}, 2\ns_lshl_b32 s{sBb}, s{sBB}, 2")
    A(f"s_lshl_b32 s{sC}, s{sBA}, 10\ns_lshl_b32 s{sD}, s{sBB}, 10")
    A(f"v_add_u32 v{vT2}, s{sC}, v{vL16}\nv_add_u32 v{vT3}, s{sD}, v{vL16}")
    A(f"s_mov_b32 s{sBud}, 0x400000\ns_and_b32 s{sGrp}, s2, 63")
    A(f"s_cmp_lt_u32 s{sRole}, 2\ns_cselect_b32 s{sPar}, 4096, 0")
    A(f"v_min_u32 v{vDoneA}, 383, v0\nv_lshlrev_b32 v{vDoneA}, 2, v{vDoneA}\nv_add_u32 v{vDoneA}, {A_DONE}, v{vDoneA}")
    A(f"v_mov_b32 v{vDone}, 0")
    A(f"ds_write_b32 v{vDoneA}, v{vDone}\nds_write_b32 v{vDoneA}, v{vDone} offset:1536")
    A(f"v_mov_b32 v{vRdyA}, {A_READY}")
    A(f"v_lshrrev_b32 v{vT0}, 4, v{vLane}\nv_and_b32 v{vT1}, 15, v{vLane}")
    A(f"v_xor_b32 v{vU}, v{vT1}, v{vT0}\nv_lshlrev_b32 v{vU}, 4, v{vU}\nv_lshl_add_u32 v{vQd}, v{vT0}, 8, v{vU}")
    A(f"s_lshr_b32 s{sE2}, s2, 3\ns_bitcmp1_b32 {hex(0xff000000 | firstb << 8)}, s{sE2}\ns_cselect_b32 s{sB}, s{sBB}, s{sBA}")
    A(f"s_mul_i32 s{sOffQ}, s{sW}, 8704\ns_add_u32 s{sOffQ}, s{sOffQ}, {PB}")
    A(f"s_mov_b32 s10, {QB}\ns_mov_b32 s11, 0x20000")

    def q_own():
        A(f"s_lshl_b32 s{sE2}, s{sB}, 3\ns_add_u32 s{sE2}, s{sE2}, s{sH}\ns_lshl_b32 s{sE2}, s{sE2}, 2\ns_add_u32 s{sE2}, s{sE2}, s{sW}")
        A(f"s_lshl_b32 s{sE2}, s{sE2}, 13\ns_add_u32 s{sE2}, s{sE2}, s{sPar}\ns_xor_b32 s{sF2}, s{sE2}, 4096")

    def q_own_loads(qpol=qpol):
        for r in range(8):
            A(f"s_add_u32 m0, s{sOffQ}, {r * 1088 - (r & 3) * 1024}\ns_nop 0")
            A(f"buffer_load_dwordx4 v{vQd}, {SQ}, s{sE2 if r < 4 else sF2} offen offset:{(r & 3) * 1024} {qpol} lds")

    q_own()
    A(f"s_mov_b32 m0, {A_TAB}\ns_and_b32 s{sC}, s{sW}, 6\ns_cmp_eq_u32 s{sC}, 4")
    A("s_waitcnt lgkmcnt(0)")
    A("s_cbranch_scc0 L_notab")
    A(f"global_load_lds_dwordx4 v{vT2}, s[54:55]\ns_mov_b32 m0, {A_TAB + 1024}\ns_setprio {lprio}\nglobal_load_lds_dwordx4 v{vT3}, s[54:55]")
    A("L_notab:")
    A(f"s_load_dword s{sCntA}, s[56:57], s{sA}\ns_load_dword s{sCntB}, s[56:57], s{sBb}")
    A(f"s_mov_b32 s8, s48\ns_mov_b32 s9, s49\ns_cmp_lt_u32 s{sW}, 4")
    A("s_barrier")
    A("s_cbranch_scc0 L_noq")
    if q3:
        A(f"s_cmp_eq_u32 s{sRole}, 3\ns_cbranch_scc0 L_q012")
        q_own_loads("")
        A("s_branch L_noq\nL_q012:")
    q_own_loads()
    A("L_noq:")
    for srd, p, n in ((12, 50, KVB), (16, 52, KVB), (20, 62, WSB), (24, 58, QB), (28, 60, 256)):
        A(f"s_mov_b32 s{srd}, s{p}\ns_mov_b32 s{srd + 1}, s{p + 1}\ns_mov_b32 s{srd + 2}, {n}\n"
          f"s_mov_b32 s{srd + 3}, 0x20000")
    box_off(sE2, 0)
    A(f"v_lshrrev_b32 v{vT2}, 2, v{vLane}\nv_min_u32 v{vT2}, 5, v{vT2}\nv_mul_u32_u24 v{vT2}, {BOX}, v{vT2}")
    A(f"v_and_b32 v{vT3}, 3, v{vLane}\nv_lshl_add_u32 v{vFa}, v{vT3}, 7, v{vT2}\ns_add_u32 s{sE2}, s{sE2}, 16896\nv_add_u32 v{vFa}, s{sE2}, v{vFa}")
    A(f"s_cmp_eq_u32 s{sW}, 5\ns_cbranch_scc0 L_nosnap")
    A(f"buffer_load_dword v{vF0}, v{vFa}, {SWS}, 0 offen sc1")
    A(f"v_add_u32 v{vT2}, {A_HIST}, v{vL16}")
    for j in range(4):
        A(f"v_mov_b32 v{68 + j}, 0")
    A(f"ds_write_b128 v{vT2}, v[68:71]")
    if touch:
        A(f"s_lshr_b32 s{sE2}, s2, 3\ns_lshl_b32 s{sE2}, s{sE2}, 22\nv_and_b32 v{vT2}, 1, v{vLane}\nv_lshlrev_b32 v{vT2}, 21, v{vT2}")
        A(f"buffer_load_dword v{vPoll}, v{vT2}, {SK}, s{sE2} offen nt\nbuffer_load_dword v{vPoll2}, v{vT2}, {SV}, s{sE2} offen nt")
    A("L_nosnap:")
    A(f"v_and_b32 v{vDnA}, 3, v{vLane}\nv_lshlrev_b32 v{vDnA}, 8, v{vDnA}\nv_add_u32 v{vDnA}, {A_DONE}, v{vDnA}")
    A(f"s_lshl_b32 s{sE2}, s{sH}, 8")
    A(f"v_lshl_add_u32 v{vT2}, v{vT0}, 11, v{vU}\nv_add_u32 v{vKo}, s{sE2}, v{vT2}")
    A(f"v_and_b32 v{vT2}, 1, v{vT0}\nv_lshlrev_b32 v{vT2}, 1, v{vT2}\nv_xor_b32 v{vT2}, v{vT2}, v{vT1}\nv_lshlrev_b32 v{vT2}, 4, v{vT2}")
    A(f"v_lshl_add_u32 v{vT2}, v{vT0}, 13, v{vT2}\nv_add_u32 v{vVo}, s{sE2}, v{vT2}")
    for j in range(1, 4):
        A(f"v_add_u32 v{vKo + j}, {j * (8192 - 1088)}, v{vKo}\nv_add_u32 v{vVo + j}, {j * (2048 - 1088)}, v{vVo}")
    A("s_waitcnt lgkmcnt(0)")
    st(1)
    A(f"s_min_i32 s{sA}, s{sCntA}, 0x1000\ns_cmp_lt_i32 s{sA}, 1\ns_cselect_b32 s{sA}, 0x1000, s{sA}\ns_cselect_b32 s{sC}, 1, 0")
    A(f"s_min_i32 s{sBb}, s{sCntB}, 0x1000\ns_cmp_lt_i32 s{sBb}, 1\ns_cselect_b32 s{sBb}, 0x1000, s{sBb}\ns_cselect_b32 s{sD}, 1, 0")
    A(f"s_mov_b32 s{sE2}, s{sBA}\ns_cmp_lt_u32 s{sA}, s{sBb}\ns_cselect_b32 s{sSwap}, 1, 0")
    A(f"s_cselect_b32 s{sCntA}, s{sBb}, s{sA}\ns_cselect_b32 s{sCntB}, s{sA}, s{sBb}")
    A(f"s_cselect_b32 s{sBA}, s{sBB}, s{sBA}\ns_cselect_b32 s{sBB}, s{sE2}, s{sBB}")
    A(f"s_cselect_b32 s{sZ}, s{sD}, s{sC}\ns_cselect_b32 s{sD}, s{sC}, s{sD}\ns_lshl_b32 s{sD}, s{sD}, 1\ns_or_b32 s{sZ}, s{sZ}, s{sD}")
    A(f"s_cmp_eq_u32 s{sRole}, 3\ns_cselect_b32 s{sNv}, s{sCntB}, s{sCntA}")
    A(f"s_sub_u32 s{sNv}, s{sNv}, 1\ns_and_b32 s{sNv}, s{sNv}, 31\ns_add_u32 s{sNv}, s{sNv}, 1")
    A(f"s_add_u32 s{sTopA}, s{sCntA}, 31\ns_lshr_b32 s{sTopA}, s{sTopA}, 5")
    A(f"s_add_u32 s{sTopB}, s{sCntB}, 31\ns_lshr_b32 s{sTopB}, s{sTopB}, 5")
    A(f"s_add_u32 s{sA}, s{sTopA}, s{sTopB}\ns_add_u32 s{sA}, s{sA}, {2 * delta + ex + ra}\ns_lshr_b32 s{sA}, s{sA}, 2\ns_max_u32 s{sA}, s{sA}, 1")
    A(f"s_min_u32 s{sCntA}, s{sA}, s{sTopA}\ns_min_u32 s{sCntB}, s{sA}, s{sTopB}")
    if th2:
        A(f"s_add_u32 s{sC}, s{sTopA}, 1\ns_lshr_b32 s{sC}, s{sC}, 1\ns_add_u32 s{sD}, s{sTopB}, 1\ns_lshr_b32 s{sD}, s{sD}, 1")
        A(f"s_sub_u32 s{sA}, s{sTopA}, s{sTopB}\ns_cmp_le_u32 s{sA}, {th2}")
        A(f"s_cselect_b32 s{sCntA}, s{sC}, s{sCntA}\ns_cselect_b32 s{sCntB}, s{sD}, s{sCntB}\ns_cselect_b32 s{sF2}, 0x1000, {theta}")
    A(f"s_sub_u32 s{sC}, s{sTopA}, s{sCntA}\ns_sub_u32 s{sD}, s{sTopB}, s{sCntB}")
    A(f"s_add_u32 s{sBb}, s{sC}, s{sD}\ns_add_u32 s{sBb}, s{sBb}, {ex + rx}\ns_lshr_b32 s{sBb}, s{sBb}, 1\ns_min_u32 s{sBb}, s{sBb}, s{sC}")
    A(f"s_sub_u32 s{sExp}, s{sC}, s{sBb}\ns_cmp_le_u32 s{sExp}, {f's{sF2}' if th2 else theta}\ns_cselect_b32 s{sBb}, s{sC}, s{sBb}\ns_cselect_b32 s{sExp}, 0, s{sExp}")
    A(f"s_cmp_ge_u32 s{sRole}, 2\ns_cbranch_scc1 L_plan_top")
    A(f"s_mov_b32 s{sNv}, 32\ns_mov_b32 s{sTopB}, s{sD}\ns_mov_b32 s{sCntB}, s{sD}")
    A(f"s_cmp_eq_u32 s{sRole}, 0\ns_cselect_b32 s{sCntA}, s{sBb}, s{sExp}\ns_cselect_b32 s{sTopA}, s{sBb}, s{sC}")
    A("L_plan_top:")
    A(f"s_bitcmp1_b32 s{sRole}, 0\ns_cselect_b32 s{sCntB}, s{sCntB}, 0\ns_cselect_b32 s{sExp}, 0, s{sExp}")
    A(f"s_cmp_eq_u32 s{sRole}, 3\ns_cselect_b32 s{sCntA}, 0, s{sCntA}")
    A(f"s_cmp_lt_u32 s{sW}, 4\ns_cbranch_scc1 L_consumer\ns_cmp_eq_u32 s{sW}, 6\ns_cbranch_scc1 L_pacer")
    A(f"s_sub_u32 s{sA}, s{sW}, 4\ns_mul_i32 s{sA}, s{sA}, {k0}\nv_add_u32 v{vRow + 2}, s{sA}, v{vLane}")
    A(f"s_add_u32 s{sCnt}, s{sCntA}, s{sCntB}\ns_add_u32 s{sBb}, s{sTopB}, s{sCntA}\nv_cmp_gt_u32 vcc, s{sCntA}, v{vRow + 2}")
    A(f"v_mov_b32 v{vT2}, s{sTopA}\nv_mov_b32 v{vT3}, s{sBb}\ns_lshl_b32 s{sA}, s{sSwap}, 10\ns_add_u32 s{sA}, s{sA}, {A_TAB}")
    A(f"v_cndmask_b32 v{vT2}, v{vT3}, v{vT2}, vcc\ns_lshl_b32 s{sBb}, s{sSwap}, 10\ns_sub_u32 s{sBb}, {A_TAB + 1024}, s{sBb}")
    A(f"v_xad_u32 v{vT2}, v{vRow + 2}, -1, v{vT2}\nv_mov_b32 v{vT3}, s{sA}\nv_mov_b32 v{vRow}, s{sBb}")
    A(f"v_and_b32 v{vT2}, 127, v{vT2}\nv_cndmask_b32 v{vT3}, v{vRow}, v{vT3}, vcc\nv_lshl_add_u32 v{vT2}, v{vT2}, 3, v{vT3}")
    A(f"s_cmp_eq_u32 s{sW}, 5\ns_cbranch_scc1 L_helper")

    def min4(dst, add):
        A(f"v_readlane_b32 s{sA}, v{vDn}, 0\nv_readlane_b32 s{sBb}, v{vDn}, 1\nv_readlane_b32 s{sC}, v{vDn}, 2\n"
          f"v_readlane_b32 s{sD}, v{vDn}, 3")
        A(f"s_min_u32 s{sA}, s{sA}, s{sBb}\ns_min_u32 s{sC}, s{sC}, s{sD}\ns_min_u32 s{dst}, s{sA}, s{sC}")
        if add:
            A(f"s_add_u32 s{dst}, s{dst}, {add}")

    A(f"s_cmp_eq_u32 s{sCnt}, 0\ns_cbranch_scc1 L_ldone")
    A(f"s_waitcnt vmcnt(0)\nds_read_b64 {vr(vRow, 2)}, v{vT2}")
    st(2)
    A(f"s_mov_b32 s{sS}, 1\ns_mov_b32 s{sOff}, {SLOT}\ns_mov_b32 s{sPub}, 0\ns_mov_b32 s{sFree}, {NS}")
    if skipb:
        A(f"s_cmp_le_u32 s{sNv}, 16")
    A(f"s_mov_b32 s{sTile}, 1\ns_mov_b32 s{sSw}, {k0 if not nosort else 64}\ns_mov_b32 m0, 0")
    A(f"s_waitcnt lgkmcnt(0)\nv_lshlrev_b32 v{vRow}, 15, v{vRow}\nv_lshlrev_b32 v{vRow + 1}, 15, v{vRow + 1}")
    A(f"v_readlane_b32 s{sA}, v{vRow}, 0\nv_readlane_b32 s{sBb}, v{vRow + 1}, 0\nv_readlane_b32 s{sN0}, v{vRow}, 1\nv_readlane_b32 s{sN1}, v{vRow + 1}, 1")
    A(f"s_mov_b32 s{sO0}, s{sA}\n" + (f"s_cselect_b32 s{sO1}, {hex(OOB)}, s{sBb}" if skipb else f"s_mov_b32 s{sO1}, s{sBb}"))
    for g in range(2):
        if g:
            A("s_mov_b32 m0, 4352\ns_nop 0")
        for j in range(4):
            A(f"buffer_load_dwordx4 v{vKo + j}, {SK}, s{sO0 + g} offen offset:{j * 1088} {pol} lds")
    if lag:
        A(f"s_mov_b32 s{sLag}, {lag}\ns_lshr_b32 s{sDec}, s2, 3\ns_and_b32 s{sDec}, s{sDec}, {dmask}")
        if dmul != 4:
            A(f"s_mul_i32 s{sDec}, s{sDec}, {dmul}\ns_lshr_b32 s{sDec}, s{sDec}, 2")
        A(f"s_add_u32 s{sDec}, s{sDec}, {dec0}")
    A(f"v_lshlrev_b32 v{vT2}, 3, v{vLane}\nv_add_u32 v{vT2}, {A_LIST}, v{vT2}\nv_mov_b32 v{vT3}, {A_SIG}")
    sLvl = 53
    A(f"s_mov_b32 s{sA}, {A_SIG + 8}\nv_writelane_b32 v{vDnA}, s{sA}, 4\ns_mov_b32 s{sLvl}, {l0}")
    A("L_next:")
    A(f"s_sub_u32 s{sCnt}, s{sCnt}, 1\ns_cmp_eq_u32 s{sCnt}, 0\ns_cbranch_scc1 L_lsegend")
    A(f"s_mov_b32 s{sP0}, s{sO0}\ns_mov_b32 s{sP1}, s{sO1}\ns_mov_b32 s{sO0}, s{sN0}\ns_mov_b32 s{sO1}, s{sN1}")
    A(f"s_cmp_lt_u32 s{sS}, s{sFree}\ns_cbranch_scc0 L_full_a")
    A("L_free_a:")

    def tree(lo, hi):
        if lo == hi:
            stage_loop(str(lo), w_lo + 2 * lo)
            return
        mid = (lo + hi + 1) // 2
        A(f"s_cmp_ge_i32 s{sLvl}, {mid}\ns_cbranch_scc1 L_t{mid}_{hi}")
        tree(lo, mid - 1)
        A(f"L_t{mid}_{hi}:")
        tree(mid, hi)

    def next_offsets(tag):
        A(f"s_add_u32 s{sTile}, s{sTile}, 1\ns_cmp_eq_u32 s{sTile}, s{sSw}\ns_cbranch_scc1 L_sw_{tag}")
        A(f"L_swd_{tag}:")
        A(f"v_readlane_b32 s{sN0}, v{vRow}, s{sTile}\nv_readlane_b32 s{sN1}, v{vRow + 1}, s{sTile}")

    def publish(back, lagged):
        A(f"s_sub_u32 s{sE2}, s{sS}, {back}")
        if lagged:
            A(f"s_sub_u32 s{sF2}, s{sE2}, s{sLag}\ns_max_i32 s{sPub}, s{sPub}, s{sF2}")
        else:
            A(f"s_max_i32 s{sPub}, s{sPub}, s{sE2}")
        A(f"v_mov_b32 v{vPub}, s{sPub}")
        if lagged:
            A(f"v_writelane_b32 v{vPub}, s{sE2}, 1")

    def stage_loop(tag, w):
        pub_i = -(-((w - gran) % 16) // gran) * gran
        back = (w - gran) // 16
        if pub_i == 16:
            pub_i, back = 0, back + 1
        for i in range(16):
            g, j = i >> 2, i & 3
            srd, vo, so = ((SK, vKo, sO0), (SK, vKo, sO1), (SV, vVo, sP0), (SV, vVo, sP1))[g]
            if j == 0:
                A(f"s_mov_b32 m0, s{sOff}" if g == 0 else f"s_add_u32 m0, s{sOff}, {g * 4352}")
            if i == pub_i:
                publish(back, lag)
            if i % gran == 0:
                A(f"s_waitcnt vmcnt({w - gran})")
            elif j == 0:
                A("s_nop 0")
            if i == pub_i:
                A(f"ds_write_b32 v{vDoneA}, v{vPub}")
            A(f"buffer_load_dwordx4 v{vo + j}, {srd}, s{so} offen offset:{j * 1088} {pol} lds")
            if i == 3:
                next_offsets(tag)
            if i == 8:
                A(f"ds_read_b32 v{vDn}, v{vDnA}")
            if i == 10:
                A("s_waitcnt lgkmcnt(0)")
                min4(sFree, NS)
            if i == 12:
                AL(adv(sOff))
                A(f"v_readlane_b32 s{sBb}, v{vDn}, 4\ns_cmp_lt_u32 s{sS}, {n1 - 1}\ns_cselect_b32 s{sA}, {l1}, {l2}")
                if nm:
                    A(f"s_cmp_lt_u32 s{sS}, {nm - 1}\ns_cselect_b32 s{sA}, {lm}, s{sA}")
                A(f"s_cmp_lt_u32 s{sS}, {n0 - 1}\ns_cselect_b32 s{sA}, {l0}, s{sA}\ns_add_u32 s{sLvl}, s{sA}, s{sBb}")
            if i == 13 and lag:
                assert lag == 1
                A(f"s_cmp_ge_u32 s{sS}, s{sDec}\ns_cselect_b32 s{sLag}, 0, 1")
        A(f"s_add_u32 s{sS}, s{sS}, 1")
        A("s_branch L_stg" if stamp or noload else "s_branch L_next")

    tree(0, 7)
    if stamp or noload:
        A("L_stg:")
        for k, n in ((5, 8), (6, 24), (7, 40)):
            A(f"s_cmp_lg_u32 s{sS}, {n}\ns_cbranch_scc1 L_ns{k}")
            st(k)
            A(f"L_ns{k}:")
        if noload:
            A(f"s_cmp_lt_u32 s{sS}, {NS}\ns_cbranch_scc1 L_next\ns_waitcnt vmcnt(0)\nv_mov_b32 v{vPub}, 0x7fffffff\n"
              f"ds_write_b32 v{vDoneA}, v{vPub}\ns_branch L_ldone")
        A("s_branch L_next")
    A("L_lsegend:")
    if pre:
        A(f"ds_read_b32 v{vPoll}, v{vT3}")
    A(f"s_cmp_lt_u32 s{sS}, s{sFree}\ns_cbranch_scc0 L_full_e")
    A("L_free_e:")
    for g in (2, 3):
        A(f"s_add_u32 m0, s{sOff}, {g * 4352}\ns_nop 0")
        for j in range(4):
            A(f"buffer_load_dwordx4 v{vVo + j}, {SV}, s{sO0 if g == 2 else sO1} offen offset:{j * 1088} {pol} lds")
    st(3)
    if pre:
        A(f"s_bitcmp1_b32 s{sRole}, 0\ns_cselect_b32 s48, s{sBB}, s{sBA}\ns_lshl_b32 s48, s48, 3\ns_add_u32 s48, s48, s{sH}")
        A(f"s_lshl_b32 s48, s48, 15\ns_add_u32 s48, s48, s{sPar}")
        A(f"v_lshrrev_b32 v93, 5, v{vLane}\nv_lshlrev_b32 v93, 12, v93\nv_lshl_add_u32 v93, v{vLane}, 7, v93\nv_lshlrev_b32 v95, 7, v{vLane}")
        A(f"s_xor_b32 s{sA}, s{sRole}, 2\ns_lshr_b32 s{sBb}, s{sRole}, 1\ns_add_u32 s{sBb}, s{sBb}, 4")
        box_off(50, f"s{sA}")
        box_off(49, f"s{sBb}")
        A(f"s_cmp_eq_u32 s{sExp}, 0\ns_cselect_b32 s49, {hex(OOB)}, s49\ns_cselect_b32 s51, s50, s49")
        A(f"v_and_b32 v94, 4, v{vLane}\nv_cmp_eq_u32 vcc, 0, v94\nv_mov_b32 v94, s50\nv_mov_b32 v96, s51\nv_and_b32 v97, 3, v{vLane}")
        A(f"v_cndmask_b32 v94, v96, v94, vcc\nv_lshl_add_u32 v94, v97, 7, v94")
    npre = 5 if pre else 0

    def pre_loads():
        A(f"s_waitcnt lgkmcnt(0)\nv_readfirstlane_b32 s{sA}, v{vPoll}\ns_nop 0\ns_cmp_eq_u32 s{sA}, 1")
        A(f"s_cselect_b32 s48, s48, {hex(OOB)}\ns_cselect_b32 s49, s49, {hex(OOB)}\ns_cselect_b32 s50, 16384, {hex(OOB)}")
        A("s_add_u32 s51, s48, 16384\ns_add_u32 s52, s49, 8192")
        A(f"buffer_load_dword v96, v94, {SWS}, s50 offen {prepol}")
        A(f"buffer_load_dword v96, v93, {SO}, s48 offen {prepol}\nbuffer_load_dword v96, v93, {SO}, s51 offen {prepol}")
        A(f"buffer_load_dword v96, v95, {SWS}, s49 offen {prepol}\nbuffer_load_dword v96, v95, {SWS}, s52 offen {prepol}")

    backs = list(range((wmax - 1) // 16, -2, -1))
    for n, back in enumerate(backs):
        if pre and n == pre - 1:
            pre_loads()
        ex_n = npre if pre and n >= pre - 1 else 0
        publish(back, False) if back >= 0 else A(f"s_add_u32 s{sA}, s{sS}, 1\nv_mov_b32 v{vPub}, s{sA}")
        A(f"s_waitcnt vmcnt({(16 * back + 8 if back >= 0 else 0) + ex_n})\nds_write_b32 v{vDoneA}, v{vPub}")
    if pre > len(backs):
        pre_loads()
    A("L_ldone:")
    st(4)
    dump_stamps(0)
    A("s_endpgm")
    for tag in "01234567":
        A(f"L_sw_{tag}:")
        budget()
        A(f"ds_read_b32 v{vDn}, v{vT3} offset:4\nds_read_b64 {vr(vRow, 2)}, v{vT2}\ns_waitcnt lgkmcnt(0)\nv_readfirstlane_b32 s{sA}, v{vDn}\ns_nop 0")
        A(f"s_cmp_eq_u32 s{sA}, 0\ns_cbranch_scc1 L_sw_{tag}")
        A(f"s_mov_b32 s{sTile}, 0\ns_mov_b32 s{sSw}, -1\ns_branch L_swd_{tag}")
    for tag in "ae":
        A(f"L_full_{tag}:")
        budget()
        A(f"ds_read_b32 v{vDn}, v{vDnA}\ns_waitcnt lgkmcnt(0)")
        min4(sFree, NS)
        A(f"s_cmp_lt_u32 s{sS}, s{sFree}\ns_cbranch_scc0 L_full_{tag}\ns_branch L_free_{tag}")

    A("L_pacer:")
    sPos, sIdx, sLine, sNx = 54, 55, 56, 57
    A(f"s_add_u32 s{sCnt}, s{sCntA}, s{sCntB}\ns_lshr_b32 s{sIdx}, s2, 3")
    A(f"s_sub_u32 s{sA}, s{sCnt}, {base}\ns_mul_i32 s{sA}, s{sA}, {sg}\ns_add_u32 s{sA}, s{sA}, {128 - sg * 3 // 4}\ns_ashr_i32 s{sA}, s{sA}, 8")
    A(f"s_min_i32 s{sA}, s{sA}, {amax}\ns_max_i32 s{sA}, s{sA}, {-amax}\nv_mov_b32 v101, s{sA}\nv_mov_b32 v{vT3}, {A_SIG + 8}\nds_write_b32 v{vT3}, v101")
    A(f"s_lshl_b32 s{sA}, s{sH}, 7\ns_add_u32 s{sLine}, s{sA}, {64 * 6 * BOX}\nv_and_b32 v98, 31, v{vLane}\nv_lshlrev_b32 v98, 2, v98")
    A(f"s_lshl_b64 s[58:59], 1, s{sIdx}\nbuffer_load_dword v99, v98, {SWS}, s{sLine} offen sc1")
    A(f"s_and_b32 s{sNx}, s{sIdx}, 1\ns_add_u32 s{sNx}, s{sNx}, {fb0}\ns_waitcnt vmcnt(0)")
    A("L_pc0:")
    A(f"s_cmp_ge_u32 s{sNx}, s{sCnt}\ns_cbranch_scc1 L_end")
    A("L_pc1:")
    budget()
    if fsleep:
        A(f"s_sleep {fsleep}")
    A(f"ds_read_b32 v{vF}, v{vRdyA} offset:4\ns_waitcnt lgkmcnt(0)\nv_readfirstlane_b32 s{sF}, v{vF}\ns_nop 0")
    A(f"s_cmp_lt_i32 s{sF}, s{sNx}\ns_cbranch_scc1 L_pc1")
    A(f"s_sub_u32 s{sBb}, s{sCnt}, s{sF}\ns_sub_u32 s{sPos}, 128, s{sBb}\nv_add_u32 v102, s{sPos}, v99\ns_mov_b64 exec, s[58:59]")
    A(f"buffer_store_dword v102, v98, {SWS}, s{sLine} offen\ns_mov_b64 exec, -1")
    A(f"buffer_load_dword v100, v98, {SWS}, s{sLine} offen sc1")
    A(f"s_add_u32 s{sNx}, s{sF}, 2\ns_sub_u32 s{sA}, s{sBb}, 2\ns_min_i32 s{sA}, s{sA}, {rhi}\ns_max_i32 s{sA}, s{sA}, {rlo}")
    A(f"v_cvt_f32_u32 v102, s{sA}\ns_lshl_b32 s{sD}, s{sPos}, 5\ns_sub_u32 s{sD}, s{sD}, {foff}\nv_rcp_f32 v102, v102\ns_waitcnt vmcnt(0)")
    A(f"v_sub_u32 v101, v100, v99\nv_cmp_eq_u32 vcc, 0, v101\ns_nop 0")
    for sh in (1, 2, 4, 8):
        A(f"v_add_u32_dpp v101, v101, v101 row_shr:{sh} row_mask:0xf bank_mask:0xf bound_ctrl:0\ns_nop 1")
    A(f"v_add_u32_dpp v101, v101, v101 row_bcast:15 row_mask:0xa bank_mask:0xf\ns_cbranch_vccnz L_pc0")
    A(f"v_subrev_u32 v101, s{sD}, v101\nv_cvt_f32_i32 v101, v101\nv_mul_f32 v101, {hex(f2u(fbg / 32))}, v101\nv_mul_f32 v101, v101, v102")
    A(f"v_rndne_f32 v101, v101\nv_cvt_i32_f32 v101, v101\nv_med3_i32 v101, v101, {-amax}, {amax}")
    A(f"s_mov_b32 exec_lo, 0x80000000\ns_mov_b32 exec_hi, 0\nds_write_b32 v{vT3}, v101\ns_mov_b64 exec, -1\ns_branch L_pc0")

    A("L_helper:")
    a_0, a_1, p_0, p_1, hh, tt, one = 64, 65, 66, 67, 68, 96, 75
    A(f"s_waitcnt vmcnt(1)\nds_read_b64 {vr(vRow, 2)}, v{vT2}")
    A(f"v_mov_b32 v{a_0}, {A_HIST}\nv_mov_b32 v{a_1}, {A_HIST + 512}\nv_add_u32 v{vT3}, {A_HIST}, v{vL16}")
    A(f"v_cndmask_b32 v{p_0}, v{a_1}, v{a_0}, vcc\nv_cmp_gt_u32 vcc, s{sCnt}, v{vRow + 2}\nv_mov_b32 v{one}, 1")
    A(f"s_waitcnt lgkmcnt(0)\nv_bfe_u32 v{a_0}, v{vRow}, {bsh}, 7\nv_bfe_u32 v{a_1}, v{vRow + 1}, {bsh}, 7")
    A(f"v_lshl_add_u32 v{a_0}, v{a_0}, 2, v{p_0}\nv_lshl_add_u32 v{a_1}, v{a_1}, 2, v{p_0}")
    A(f"s_mov_b64 s[48:49], vcc\ns_mov_b64 exec, vcc")
    A(f"ds_add_rtn_u32 v{p_0}, v{a_0}, v{one}\nds_add_rtn_u32 v{p_1}, v{a_1}, v{one}")
    A(f"s_mov_b64 exec, -1\nds_read_b128 {vr(hh, 4)}, v{vT3}")
    A(f"v_lshlrev_b32 v{vRow}, 15, v{vRow}\nv_lshlrev_b32 v{vRow + 1}, 15, v{vRow + 1}\ns_waitcnt lgkmcnt(0)")
    A(f"v_add_u32 v{hh + 1}, v{hh}, v{hh + 1}\nv_add_u32 v{hh + 2}, v{hh + 1}, v{hh + 2}\nv_add_u32 v{hh + 3}, v{hh + 2}, v{hh + 3}")
    A(f"v_mov_b32 v{tt}, v{hh + 3}\ns_nop 1")
    for sh in (1, 2, 4, 8):
        A(f"v_add_u32_dpp v{tt}, v{tt}, v{tt} row_shr:{sh} row_mask:0xf bank_mask:0xf bound_ctrl:0\ns_nop 1")
    A(f"v_add_u32_dpp v{tt}, v{tt}, v{tt} row_bcast:15 row_mask:0xa bank_mask:0xf\ns_nop 1")
    A(f"v_add_u32_dpp v{tt}, v{tt}, v{tt} row_bcast:31 row_mask:0xc bank_mask:0xf")
    A(f"v_sub_u32 v{tt}, v{tt}, v{hh + 3}")
    for j in range(3):
        A(f"v_add_u32 v{tt + 1 + j}, v{tt}, v{hh + j}")
    A(f"ds_write_b128 v{vT3}, {vr(tt, 4)}\nds_read_b32 v{a_0}, v{a_0}\nds_read_b32 v{a_1}, v{a_1}")
    A(f"v_mov_b32 v{vT3}, {A_LIST}\nv_mov_b32 v{vT2}, {A_SIG}\ns_mov_b64 exec, s[48:49]\ns_waitcnt lgkmcnt(0)")
    A(f"v_add_u32 v{p_0}, v{p_0}, v{a_0}\nv_add_u32 v{p_1}, v{p_1}, v{a_1}")
    A(f"v_lshl_add_u32 v{p_0}, v{p_0}, 2, v{vT3}\nv_lshl_add_u32 v{p_1}, v{p_1}, 2, v{vT3}")
    A(f"ds_write_b32 v{p_0}, v{vRow}\nds_write_b32 v{p_1}, v{vRow + 1}")
    A(f"s_mov_b64 exec, -1\nds_write_b32 v{vT2}, v{one} offset:4")
    st(5)
    A(f"s_setprio 0\ns_mov_b32 s{sItem}, 1")
    A(f"s_cmp_eq_u32 s{sCntA}, 0\ns_cselect_b32 s{sCntB}, 0, s{sCntB}")

    def pb_free(tag):
        A(f"s_branch L_hfree_{tag}")
        A(f"L_hfree0_{tag}:")
        budget()
        if psleep:
            A(f"s_sleep {psleep}")
        A(f"L_hfree_{tag}:")
        A(f"ds_read_b32 v{vDn}, v{vDnA} offset:1536\ns_waitcnt lgkmcnt(0)")
        min4(sA, 0)
        A(f"s_cmp_lt_u32 s{sA}, s{sItem}\ns_cbranch_scc1 L_hfree0_{tag}")

    def pb_publish():
        A(f"s_add_u32 s{sItem}, s{sItem}, 1\nv_mov_b32 v{vPub}, s{sItem}\ns_waitcnt vmcnt(0)\nds_write_b32 v{vDoneA}, v{vPub}")

    def q_item(w):
        A(f"s_lshl_b32 s{sO1}, s{sB}, 3\ns_add_u32 s{sO1}, s{sO1}, s{sH}\ns_lshl_b32 s{sO1}, s{sO1}, 15\ns_xor_b32 s{sO0}, s{sO1}, s{sPar}")
        for r in range(32):
            A(f"s_mov_b32 m0, {PB + r * 1088 - (r & 3) * 1024}")
            if r and (r & 3) == 0:
                A(f"s_add_u32 s{sO1}, s{sO1}, 4096\ns_xor_b32 s{sO0}, s{sO1}, s{sPar}")
            elif w and r >= w:
                A(f"s_waitcnt vmcnt({w - 1})")
            else:
                A("s_nop 0")
            A(f"buffer_load_dwordx4 v{vQd}, {SQ}, s{sO0} offen offset:{(r & 3) * 1024} {q2pol} lds")

    def wait_progress(tag):
        A(f"s_branch L_hp_{tag}")
        A(f"L_hp0_{tag}:")
        budget()
        if psleep:
            A(f"s_sleep {psleep}")
        A(f"L_hp_{tag}:")
        A(f"ds_read_b32 v{vF}, v{vRdyA}\ns_waitcnt lgkmcnt(0)\nv_readfirstlane_b32 s{sF}, v{vF}\ns_nop 0")
        A(f"s_cmp_lt_u32 s{sF}, s{sNeed}\ns_cbranch_scc1 L_hp0_{tag}")

    A(f"s_lshl_b32 s{sA}, s{sGrp}, 2\nv_mov_b32 v{vDb}, s{sA}\ns_getreg_b32 s{sA}, hwreg(HW_REG_XCC_ID, 0, 4)")
    A(f"s_or_b32 s{sD}, s{sA}, 16\ns_lshl_b32 s{sBb}, s{sRole}, 3\ns_lshl_b32 s{sA}, s{sD}, s{sBb}\ns_mul_i32 s{sK}, s{sD}, 0x01010101")
    A(f"s_waitcnt vmcnt(0)\nv_mov_b32 v{vPoll}, s{sA}")
    A(f"ds_write_b32 v{vDoneA}, v{vF0} offset:1536")
    A(f"s_mov_b64 exec, 1\nbuffer_atomic_or v{vPoll}, v{vDb}, {SD}, 0 offen sc1\ns_mov_b64 exec, -1")
    st(2)
    A(f"s_cmp_eq_u32 s{sCntB}, 0\ns_cbranch_scc1 L_hq2")
    A(f"s_mov_b32 s{sB}, s{sBB}")
    pb_free("q")
    q_item(hwin)
    A(f"v_mov_b32 v{vPub}, 1\ns_waitcnt vmcnt(0)\nds_write_b32 v{vDoneA}, v{vPub}")
    A("L_hq2:")
    A(f"s_lshr_b32 s{sIt}, s2, 3\ns_and_b32 s{sIt}, s{sIt}, {cmask}")
    if rmode < 2:
        A(f"s_add_u32 s{sNeed}, s{sIt}, {chk0}\ns_min_u32 s{sNeed}, s{sNeed}, s{sCnt}")
        wait_progress("c")
        A("s_branch L_hchk")
        A("L_hchk0:")
        budget()
        if psleep:
            A(f"s_sleep {4 * psleep}")
        A("L_hchk:")
        A(f"buffer_load_dword v{vPoll2}, v{vDb}, {SD}, 0 offen sc1\ns_waitcnt vmcnt(0)")
        A(f"v_readfirstlane_b32 s{sA}, v{vPoll2}\ns_nop 0\ns_and_b32 s{sBb}, s{sA}, 0x10101010\ns_cmp_eq_u32 s{sBb}, 0x10101010\ns_cbranch_scc0 L_hchk0")
        A(f"s_cmp_eq_u32 s{sA}, s{sK}\ns_cselect_b32 s{sK}, 1, 2")
    if force or rmode >= 2:
        A(f"s_mov_b32 s{sK}, {force or 1}")
    A(f"v_mov_b32 v{vPoll2}, s{sK}")
    A(f"v_mov_b32 v{vT2}, {A_SIG}\nds_write_b32 v{vT2}, v{vPoll2}")
    A(f"s_cmp_eq_u32 s{sRole}, 1\ns_cbranch_scc0 L_hdone\ns_cmp_eq_u32 s{sCntA}, 0\ns_cbranch_scc1 L_hdone")
    A(f"s_mov_b32 s{sItem}, 2")
    pb_free("h")
    A(f"v_add_u32 v{vT3}, {PB}, v{vL16}\nv_mul_u32_u24 v{vT2}, 8704, v{vT0}\nv_lshl_add_u32 v{vT2}, v{vT1}, 4, v{vT2}")
    A(f"v_add_u32 v{vT2}, {PB + 8192}, v{vT2}")
    for r in range(32):
        A(f"ds_read_b128 {vr(HR + 4 * r, 4)}, v{vT3} offset:{(r >> 3) * 8704 + (r & 7) * 1024}")
    A(f"ds_read_b128 {vr(HR + 128, 4)}, v{vT2}")
    box_off(sE2, 4)
    A(f"v_lshrrev_b32 v{vT2}, 3, v{vT1}\nv_mul_u32_u24 v{vT2}, {BOX}, v{vT2}\nv_lshl_add_u32 v{vT2}, v{vT0}, 7, v{vT2}")
    A(f"v_and_b32 v{vT3}, 7, v{vT1}\nv_lshl_add_u32 v{vT2}, v{vT3}, 4, v{vT2}")
    A(f"v_add_u32 v{vF0}, 1, v{vF0}")
    A(f"s_cmp_eq_u32 s{sK}, 1\ns_cselect_b32 s{sA}, {lead}, 1\ns_sub_u32 s{sNeed}, s{sCnt}, s{sA}\ns_max_i32 s{sNeed}, s{sNeed}, 0")
    wait_progress("h")
    st(3)
    A(f"s_cmp_eq_u32 s{sK}, 1\ns_cbranch_scc0 L_hwt")
    for pl in (hpol, "sc1"):
        if pl == "sc1":
            A("L_hwt:")
        for r in range(32):
            if (r & 3) == 0:
                A(f"s_add_u32 s{sO1}, s{sE2}, {((r >> 2) & 1) * BOX + (r >> 3) * 4096}")
            A(f"buffer_store_dwordx4 {vr(HR + 4 * r, 4)}, v{vL16}, {SWS}, s{sO1} offen offset:{(r & 3) * 1024} {pl}")
        A(f"s_add_u32 s{sO0}, s{sE2}, 16384")
        A(f"buffer_store_dwordx4 {vr(HR + 128, 4)}, v{vT2}, {SWS}, s{sO0} offen {pl}")
        A("s_mov_b64 exec, 0xff0000\ns_waitcnt vmcnt(0)")
        A(f"buffer_store_dword v{vF0}, v{vFa}, {SWS}, 0 offen {pl}")
        A("s_mov_b64 exec, -1")
        if pl != "sc1":
            A("s_branch L_hdone")
    A("L_hdone:")
    if trace:
        A(f"s_cmp_eq_u32 s{sRole}, 0\ns_cbranch_scc0 L_end")
        A(f"s_mov_b32 s{sIt}, 0\nv_mov_b32 v100, 0\nv_mov_b32 v101, 0\nv_mov_b32 v102, 0\nv_mov_b32 v103, 0")
        A("L_tr:")
        A(f"s_memrealtime s[84:85]\ns_memtime s[86:87]\nds_read_b32 v{vF}, v{vRdyA}\nds_read_b32 v{vDn}, v{vDnA}\ns_waitcnt lgkmcnt(0)")
        A(f"v_readfirstlane_b32 s{sF}, v{vF}\nv_readfirstlane_b32 s{sA}, v{vDn}\ns_mov_b32 m0, s{sIt}\ns_nop 3")
        A(f"v_writelane_b32 v100, s84, m0\nv_writelane_b32 v101, s86, m0\nv_writelane_b32 v102, s{sF}, m0\nv_writelane_b32 v103, s{sA}, m0")
        A("L_tr2:")
        A(f"s_sleep 2\ns_memrealtime s[88:89]\ns_waitcnt lgkmcnt(0)\ns_sub_u32 s{sA}, s88, s84\ns_cmp_lt_u32 s{sA}, {trace}\ns_cbranch_scc1 L_tr2")
        A(f"s_add_u32 s{sIt}, s{sIt}, 1\ns_cmp_ge_u32 s{sF}, s{sCnt}\ns_cbranch_scc1 L_tr3\ns_cmp_lt_u32 s{sIt}, 64\ns_cbranch_scc1 L_tr")
        A("L_tr3:")
        A(f"s_lshl_b32 s{sA}, s2, 10\ns_add_u32 s{sA}, s{sA}, {WSB - 64 * 1024}")
        A(f"buffer_store_dwordx4 v[100:103], v{vL16}, {SWS}, s{sA} offen")
    st(4)
    dump_stamps(64)
    A("s_endpgm")

    A("L_consumer:")
    A(f"v_lshlrev_b32 v{vG4}, 2, v{vT0}")
    A(f"v_lshrrev_b32 v{vT2}, 2, v{vT1}\nv_mul_u32_u24 v{vT2}, 1088, v{vT2}\nv_and_b32 v{vT3}, 3, v{vT1}")
    A(f"v_lshl_add_u32 v{vKc}, v{vT3}, 8, v{vT2}\nv_xor_b32 v{vU}, v{vT3}, v{vT0}\nv_lshl_add_u32 v{vKc}, v{vU}, 4, v{vKc}")
    A(f"v_lshl_add_u32 v{vT2}, v{vT0}, 8, v{vT2}\nv_lshl_add_u32 v{vT2}, v{vT3}, 3, v{vT2}\nv_add_u32 v{vT2}, 8704, v{vT2}")
    A(f"v_and_b32 v{vU}, 1, v{vT0}\nv_lshl_add_u32 v{vV0c}, v{vU}, 5, v{vT2}\nv_xor_b32 v{vV1c}, 32, v{vV0c}")
    A(f"v_lshlrev_b32 v{vQo}, 8, v{vT1}\nv_lshl_add_u32 v{vQo}, v{vU}, 5, v{vQo}\nv_lshrrev_b32 v{vU}, 1, v{vT0}\nv_lshl_add_u32 v{vQo}, v{vU}, 4, v{vQo}")
    if fullrow:
        A(f"v_lshrrev_b32 v{vU}, 3, v{vT1}\nv_mul_u32_u24 v{vU}, {2048 - 64}, v{vU}\nv_sub_u32 v{vQo}, v{vQo}, v{vU}")
    for j in range(4):
        A(f"v_mov_b32 v{ON + j}, 0x3f803f80")
    A(f"v_lshlrev_b32 v{vPL}, 3, v{vT1}\nv_mov_b32 v{vPd}, 0")
    A(f"s_mov_b32 s{sT}, 0\ns_mov_b32 s{sOffK}, 0\ns_mov_b32 s{sItem}, 0")
    sSd, sSs, sFo, sOut, sPi, sHi, sPs, sHs, sPd, sHd, sMy, sLp, sLh = range(48, 61)
    sCs, sCr, sCt = 61, 62, 63
    A(f"s_mov_b32 s{sCs}, {SLOT}\ns_mov_b32 s{sCr}, {RING}\ns_mov_b32 s{sCt}, {hex(f2u(T))}")
    A(f"s_bitcmp1_b32 s{sRole}, 0\ns_cselect_b32 s{sOut}, s{sBB}, s{sBA}")
    A(f"s_lshl_b32 s{sOut}, s{sOut}, 3\ns_add_u32 s{sOut}, s{sOut}, s{sH}\ns_lshl_b32 s{sOut}, s{sOut}, 2\n"
      f"s_add_u32 s{sOut}, s{sOut}, s{sW}\ns_lshl_b32 s{sOut}, s{sOut}, 13\ns_add_u32 s{sOut}, s{sOut}, s{sPar}")
    box_off(sMy, f"s{sRole}")
    A(f"s_lshl_b32 s{sC}, s{sW}, 12\ns_lshl_b32 s{sD}, s{sW}, 7\ns_add_u32 s{sD}, s{sD}, 16384\ns_add_u32 s{sFo}, s{sD}, 512")
    if alias:
        A(f"s_xor_b32 s{sSd}, s{sOut}, 4096")
    else:
        A(f"s_add_u32 s{sSd}, s{sMy}, s{sC}")
    A(f"s_add_u32 s{sSs}, s{sMy}, s{sD}")
    A(f"s_xor_b32 s{sLp}, s{sRole}, 2\ns_lshr_b32 s{sLh}, s{sRole}, 1\ns_add_u32 s{sLh}, s{sLh}, 4")
    A(f"s_cmp_eq_u32 s{sExp}, 0\ns_cselect_b32 s{sLh}, s{sLp}, s{sLh}")
    box_off(sPi, f"s{sLp}")
    box_off(sHi, f"s{sLh}")
    A(f"s_add_u32 s{sPs}, s{sPi}, s{sD}\ns_add_u32 s{sHs}, s{sHi}, s{sD}\ns_add_u32 s{sHd}, s{sHi}, s{sC}")
    A(f"s_mov_b32 s{sPd}, s{sOut}" if alias else f"s_add_u32 s{sPd}, s{sPi}, s{sC}")
    vPo, vSa = 246, 247
    A(f"v_mov_b32 v{vSa}, s{sRole}\nv_writelane_b32 v{vSa}, s{sLp}, 0\nv_writelane_b32 v{vSa}, s{sLh}, 1")
    A(f"v_mov_b32 v{vPo}, s{sMy}\nv_writelane_b32 v{vPo}, s{sPi}, 0\nv_writelane_b32 v{vPo}, s{sHi}, 1")
    A(f"s_lshl_b32 s{sA}, s{sW}, 2\ns_add_u32 s{sA}, s{sA}, {A_SIG + 256}\nv_lshl_add_u32 v{vSa}, v{vSa}, 4, s{sA}")
    if nopart:
        for x in (sPs, sHs, sPd, sHd):
            A(f"s_mov_b32 s{x}, {hex(OOB)}")

    def zero_acc():
        for i in range(LA, O + 64):
            A(f"v_mov_b32 v{i}, 0")

    zero_acc()
    A(f"s_cmp_eq_u32 s{sCntA}, 0\ns_cselect_b32 s{sA}, s{sBB}, s{sBA}\ns_cmp_eq_u32 s{sA}, s{sB}\ns_cbranch_scc1 L_qok")
    A(f"s_mov_b32 s{sB}, s{sA}")
    q_own()
    A("s_waitcnt vmcnt(0)")
    q_own_loads()
    A("L_qok:")
    A(f"s_cmp_eq_u32 s{sCntA}, 0\ns_cbranch_scc1 L_segB")
    A(f"s_mov_b32 s{sCnt}, s{sCntA}\ns_bitcmp1_b32 s{sZ}, 0\ns_branch L_seg")
    A("L_segB:")
    A(f"s_cmp_eq_u32 s{sCntB}, 0\ns_cbranch_scc1 L_empty")
    A(f"s_mov_b32 s{sB}, s{sBB}\ns_mov_b32 s{sCnt}, s{sCntB}\ns_mov_b32 s{sCntA}, 0\ns_bitcmp1_b32 s{sZ}, 1")

    def spin(tag, off=0, need=None, le=False):
        A(f"L_spin_{tag}:")
        budget()
        A(f"ds_read_b32 v{vF}, v{vRdyA} offset:{off}\ns_waitcnt lgkmcnt(0)\nv_readfirstlane_b32 s{sF}, v{vF}\ns_nop 0")
        A(f"s_cmp_{'le' if le else 'lt'}_u32 s{sF}, s{need or sNeed}\ns_cbranch_scc1 L_spin_{tag}")

    def addrs():
        return [f"v_add_u32 v{vK}, s{sOffK}, v{vKc}", f"v_add_u32 v{vV0}, s{sOffK}, v{vV0c}",
                f"v_add_u32 v{vV1}, s{sOffK}, v{vV1c}"]

    def kreads(dst=KF):
        return [f"ds_read_b128 {vr(dst + 4 * f, 4)}, v{vK} offset:{(f & 1) * 4352 + (f >> 1) * 64}" for f in range(8)]

    def vreads(dst=VF):
        return [f"ds_read_b64_tr_b16 {vr(dst + 4 * dt + 2 * u, 2)}, v{vV1 if dt & 1 else vV0} "
                f"offset:{u * 4352 + (dt >> 1) * 64}" for dt in range(8) for u in range(2)]

    MF = "v_mfma_f32_16x16x32_bf16"

    def qk(first):
        out = []
        for ks, kh in ([(a, b) for a in range(4) for b in range(2)] if first else [(a, b) for b in range(2) for a in range(4)]):
            if True:
                for qh in range(2):
                    d = vr(S + 8 * qh + 4 * kh, 4)
                    c = d if ks else ("0" if first else vr(CM + 4 * qh, 4))
                    out.append(f"{MF} {d}, {vr(KF + 4 * (2 * ks + kh), 4)}, {vr(Q + 4 * (2 * ks + qh), 4)}, {c}")
        return out

    def pv(dt, qh, src=VF):
        d = vr(O + 32 * qh + 4 * dt, 4)
        return f"{MF} {d}, {vr(src + 4 * dt, 4)}, {vr(P + 4 * qh, 4)}, {d}"

    def rs(qh):
        return f"{MF} {vr(LA + 4 * qh, 4)}, {vr(ON, 4)}, {vr(P + 4 * qh, 4)}, {vr(LA + 4 * qh, 4)}"

    def cvt(j):
        return f"v_cvt_pk_bf16_f32 v{P + j}, v{E + 2 * j}, v{E + 2 * j + 1}"

    def maxes():
        o = []
        for a in (0, 3, 5):
            for qh, m in ((0, vMx), (1, vMx2)):
                b = S + 8 * qh + a
                o.append(f"v_max3_f32 v{m}, v{b}, v{b + 1}, v{b + 2}" if a == 0 else f"v_max3_f32 v{m}, v{m}, v{b}, v{b + 1}")
        return o

    def new_max(floor0):
        A(f"v_max_f32 v{vMx}, v{vMx}, v{S + 7}\nv_max_f32 v{vMx2}, v{vMx2}, v{S + 15}")
        for sw in ("v_permlane32_swap_b32", "v_permlane16_swap_b32"):
            A(f"v_mov_b32 v{vT0}, v{vMx}\nv_mov_b32 v{vT1}, v{vMx2}\ns_nop 0")
            A(f"{sw} v{vMx}, v{vT0}\n{sw} v{vMx2}, v{vT1}\ns_nop 0")
            A(f"v_max_f32 v{vMx}, v{vMx}, v{vT0}\nv_max_f32 v{vMx2}, v{vMx2}, v{vT1}")
        if floor0:
            A(f"v_max_f32 v{vMx}, 0, v{vMx}\nv_max_f32 v{vMx2}, 0, v{vMx2}")
        A(f"v_ceil_f32 v{vMx}, v{vMx}\nv_ceil_f32 v{vMx2}, v{vMx2}")

    def exp_shifted():
        for i in range(16):
            A(f"v_sub_f32 v{E + i}, v{S + i}, v{vMx if i < 8 else vMx2}")
        for i in range(16):
            A(f"v_exp_f32 v{E + i}, v{E + i}")

    def scale_acc(f, with_la=True):
        for qh in range(2):
            sel = "op_sel_hi:[1,0]" if qh == 0 else "op_sel:[0,1] op_sel_hi:[1,1]"
            for i in range(16):
                r = O + 32 * qh + 2 * i
                A(f"v_pk_mul_f32 {vr(r, 2)}, {vr(r, 2)}, {vr(f, 2)} {sel}")
            if with_la:
                A(f"v_mul_f32 v{LA + 4 * qh}, v{f + qh}, v{LA + 4 * qh}")

    def pack_o(i, dst=KF):
        for j in range(4):
            r = O + 8 * i + 2 * j
            A(f"v_cvt_pk_bf16_f32 v{dst + 4 * i + j}, v{r}, v{r + 1}")

    def park():
        A(f"v_add_u32 v{vT2}, s{sOffQ}, v{vL16}\nv_add_u32 v{vT3}, s{sOffQ}, v{vPL}")
        A(f"v_mov_b32 v{CM + 1}, v{LA}\nv_mov_b32 v{CM + 5}, v{LA + 4}")
        A(f"ds_write_b64 v{vT3}, {vr(CM, 2)} offset:8192\nds_write_b64 v{vT3}, {vr(CM + 4, 2)} offset:8320")
        for i in range(8):
            pack_o(i)
            A(f"ds_write_b128 v{vT2}, {vr(KF + 4 * i, 4)} offset:{i * 1024}")
        zero_acc()

    A("L_seg:")
    c = f2u(1.4426950408889634 / 128 ** 0.5)
    A(f"s_cselect_b32 s{sScale}, 0, {hex(c)}")
    A(f"s_add_u32 s{sEnd}, s{sT}, s{sCnt}\ns_add_u32 s{sNeed}, s{sT}, 1")
    A(f"s_cmp_eq_u32 s{sRole}, 1\ns_cselect_b32 s{sRet}, s{sCntA}, 0")
    A(f"v_add_u32 v{vK}, s{sOffQ}, v{vKc}\nv_mov_b32 v{vF2}, s{sScale}")
    A(f"s_cmp_eq_u32 s{sT}, 0\ns_cbranch_scc0 L_hold")
    A("s_waitcnt vmcnt(0)")
    AL(kreads(Q))
    A("L_nohold:")
    A(f"v_add_u32 v{vPd}, 1, v{vPd}\nds_write_b32 v{vDoneA}, v{vPd} offset:1536")
    A(f"v_add_u32 v{vK}, s{sOffK}, v{vKc}\nv_mov_b32 v{vDone}, s{sNeed}")
    AL(adv(sOffK))
    for t in range(8):
        A(f"s_waitcnt lgkmcnt({8 - t})")
        for j in range(4):
            r = Q + 4 * t + j
            A(f"v_lshlrev_b32 v{vU + 2 * j}, 16, v{r}\nv_and_b32 v{vU + 2 * j + 1}, 0xffff0000, v{r}")
        for j in range(4):
            A(f"v_pk_mul_f32 {vr(vU + 2 * j, 2)}, {vr(vU + 2 * j, 2)}, {vr(vF2, 2)} op_sel_hi:[1,0]")
        for j in range(4):
            A(f"v_cvt_pk_bf16_f32 v{Q + 4 * t + j}, v{vU + 2 * j}, v{vU + 2 * j + 1}")
    if not st2:
        st(2)
    spin("p0")
    if not st2:
        st(3)
    AL(kreads())
    A(f"ds_write_b32 v{vDoneA}, v{vDone}")
    A(f"s_add_u32 s{sNeed}, s{sT}, 2\ns_min_u32 s{sNeed}, s{sNeed}, s{sEnd}")
    A(f"v_sub_u32 v{vT2}, s{sNv}, v{vG4}")
    A(f"v_mov_b32 v{vT3}, 0xff800000")
    for i, x in enumerate(qk(True)):
        if i % 2 == 0:
            A(f"s_waitcnt lgkmcnt({8 - i // 2})")
        A(x)
    AL(addrs())
    spin("p1")
    AL(kreads())
    A(f"s_cmp_eq_u32 s{sNv}, 32\ns_cbranch_scc1 L_nomask")
    for kh in range(2):
        for r in range(4):
            a = S + 4 * kh + r
            A(f"v_cmp_lt_i32 vcc, {16 * kh + r}, v{vT2}\ns_nop 1\nv_cndmask_b32 v{a}, v{vT3}, v{a}, vcc\n"
              f"v_cndmask_b32 v{a + 8}, v{vT3}, v{a + 8}, vcc")
    A("L_nomask:")
    AL(maxes())
    new_max(False)
    for i in range(8):
        A(f"v_sub_f32 v{CM + i}, 0, v{vMx if i < 4 else vMx2}")
    exp_shifted()
    A(f"s_waitcnt lgkmcnt(0)\ns_sub_u32 s{sIt}, s{sCnt}, 2\ns_cbranch_scc1 L_final")

    A(".p2align 3")
    A("L_loop:")
    loop_start = len(L)
    vrd = vreads()
    f_inc, f_wr, f_rd = f"v_add_u32 v{vDone}, 1, v{vDone}", f"ds_write_b32 v{vDoneA}, v{vDone}", f"ds_read2st64_b32 {vr(vF2, 2)}, v{vRdyA} offset0:0 offset1:6"
    ex1 = lambda i: f"v_exp_f32 v{E + i}, v{S + i}"
    lg = lambda n: f"s_waitcnt lgkmcnt({n})"
    krd = kreads()
    krd = krd[0::2] + krd[1::2]
    mo = [0, 1, 2, 3, 8, 9, 10, 11, 4, 5, 6, 7, 12, 13, 14, 15]
    mxs = [f"v_max3_f32 v{vT0}, v{S + mo[0]}, v{S + mo[1]}, v{S + mo[2]}"]
    mxs += [f"v_max3_f32 v{vT0}, v{vT0}, v{S + mo[i]}, v{S + mo[i + 1]}" for i in range(3, 15, 2)]
    mxs += [f"v_max_f32 v{vT0}, v{vT0}, v{S + 15}", f"v_cmp_lt_f32 vcc, s{sCt}, v{vT0}"]
    aa = addrs()
    ad = [f"s_add_u32 s{sOffK}, s{sOffK}, s{sCs}", f"s_cmp_ge_u32 s{sOffK}, s{sCr}", f"s_cselect_b32 s{sOffK}, 0, s{sOffK}"]
    fa = [[vrd[i], cvt(j)] for i, j in enumerate((0, 1, 4, 5, 2, 3, 6, 7))]
    fa[0].insert(0, f"s_add_u32 s{sNeed}, s{sNeed}, 1")
    fa[1].insert(0, f"s_sub_u32 s{sIt}, s{sIt}, 1")
    fa[2].insert(0, f"s_cselect_b32 s{sA}, -1, s{sNeed}")
    for i in range(3):
        fa[3 + i].insert(0, ad[i])
    fa[7].insert(0, lg(7))
    fa += [[vrd[8], f_rd], [vrd[9], f_inc], [vrd[10], ex1(0)], [vrd[11], ex1(1)], [vrd[12], ex1(2)],
           [vrd[13], ex1(3)], [vrd[14], ex1(8)], [lg(6), vrd[15], f_wr]]
    for x, f in zip(qk(False), fa):
        A(x)
        AL(f)
    mf = []
    for dt in range(8):
        mf += [pv(dt, 1), pv(dt, 0)]
        if dt == 3:
            mf += [rs(0), rs(1)]
    if pvo == 1:
        mf = mf[:4]
        mf[2], mf[3] = mf[3], mf[2]
        mf += [pv(2, 1), pv(2, 0), pv(3, 0), pv(3, 1), rs(1), rs(0), pv(4, 0), pv(4, 1), pv(5, 1), pv(5, 0), pv(6, 0), pv(6, 1), pv(7, 1), pv(7, 0)]
    if pvo == 2:
        mf = mf[:4] + [pv(2, 0), pv(3, 0), rs(0), pv(2, 1), pv(3, 1), rs(1)] + [pv(d, 1) for d in range(4, 8)] + [pv(d, 0) for d in range(4, 8)]
    if nors:
        mf = [x if f"{vr(ON, 4)}" not in x else "s_nop 0" for x in mf]
    AL([mf[0], f"v_readfirstlane_b32 s{sF}, v{vF2}", aa[0]])
    AL([mf[1], ex1(9)])
    AL([mf[2], f"s_cmp_lt_u32 s{sF}, s{sA}", ex1(10)])
    AL([mf[3], "s_cbranch_scc1 L_slow"])
    A("L_back:")

    def phase_b(kr):
        k = list(kr) if kr else [None] * 8
        n = (lambda x: x) if kr else (lambda x: 0)
        A(ex1(11))
        fb = [[k[0], mxs[0], mxs[1]], [k[1], ex1(4)], [k[2], mxs[2], mxs[3]], [ex1(5)], [k[3], mxs[4], mxs[5]],
              [lg(n(4)), ex1(6)], [k[4], mxs[6], mxs[7]], [ex1(7)], [k[5], mxs[8], aa[1]], [ex1(12)],
              [k[6], aa[2]], [ex1(13)], [k[7], ex1(14)], [lg(n(4)), ex1(15)]]
        for i in range(4, 18):
            A(mf[i])
            AL([x for x in fb[i - 4] if x])

    phase_b(krd)
    if nocomp:
        keep = []
        for x in L[loop_start:]:
            y = x.strip()
            if nocomp & 1 and y.startswith("v_mfma"):
                continue
            if nocomp & 2 and y.startswith(("v_exp", "v_max", "v_cvt")):
                continue
            if nocomp & 4 and y.startswith(("ds_read_b128", "ds_read_b64_tr")):
                continue
            keep.append(x)
        L[loop_start:] = keep
        A("s_mov_b64 vcc, 0")
    A("s_cbranch_vccz L_loop\ns_branch L_rare")

    HB = Q

    def send_stats(spol=spol):
        A(f"v_mov_b32 v{CM + 5}, v{LA + 4}")
        if smask:
            A("s_mov_b64 exec, 0xffff")
        A(f"buffer_store_dwordx2 {vr(CM + 4, 2)}, v{vPL}, {SWS}, s{sSs} offen {spol}")
        if smask:
            A("s_mov_b64 exec, -1")

    def send(i, spol=spol):
        pack_o(i, Q)
        A(f"buffer_store_dwordx4 {vr(Q + 4 * i, 4)}, v{vL16}, {SO if alias else SWS}, s{sSd} offen offset:{(i & 3) * 1024} {spol}")

    def final():
        A("L_lastg:")
        phase_b([])
        A("s_cbranch_vccnz L_rare")
        A("L_final:")
        A(f"{f_rd}\ns_add_u32 s{sNeed}, s{sEnd}, 1\ns_mov_b32 s{sT}, s{sEnd}")
        for j in range(8):
            A(cvt(j))
        A("s_nop 0")
        A(rs(0))
        A(rs(1))
        A(f"s_cmp_lg_u32 s{sRet}, 0\ns_cbranch_scc1 L_final_a")
        A(f"s_waitcnt lgkmcnt(0)\nv_readfirstlane_b32 s{sF}, v{vF2}\nv_readfirstlane_b32 s{sK}, v{vF2 + 1}")
        A(f"s_cmp_ge_u32 s{sF}, s{sNeed}\ns_cbranch_scc1 L_final1")
        spin("f")
        A(f"L_final1:\nds_read_b32 v{vU + 1}, v{vSa}")
        AL(vrd)
        A(f"s_cmp_eq_u32 s{sK}, 1\ns_cbranch_scc1 L_final2")
        for pl in ("sc1", spol):
            send_stats(pl)
            for dt in range(8):
                A(f"s_waitcnt lgkmcnt({14 - 2 * dt})")
                A(pv(dt, 1))
                if dt >= 5:
                    send(dt - 1, pl)
            for dt in range(8):
                A(pv(dt, 0))
                if dt == 2:
                    send(7, pl)
                    st(4)
            if pl == "sc1":
                A("s_branch L_sentw\nL_final2:")

    A("L_slow:")
    A(f"s_cmp_ge_i32 s{sIt}, 0\ns_cbranch_scc1 L_slow1")
    if spincnt:
        A(f"s_waitcnt lgkmcnt(0)\ns_sub_u32 s{sSt + 2}, 0x400000, s{sBud}\ns_sub_u32 s{sSt + 4}, s{sF}, s{sNeed}\ns_add_u32 s{sSt + 4}, s{sSt + 4}, 100")
        st(3)
    if tail:
        A(f"v_readfirstlane_b32 s{sK}, v{vF2 + 1}\ns_cmp_lt_u32 s{sF}, s{sNeed}\ns_cselect_b32 s{sA}, 1, s{sRet}")
        A(f"s_xor_b32 s{sBb}, s{sK}, 1\ns_or_b32 s{sA}, s{sA}, s{sBb}\ns_cbranch_scc1 L_lastg")
        A("L_tail:")
        if st3:
            st(1)
        AL([f"ds_read_b32 v{vU + 1}, v{vSa}"] + aa[1:] + [lg(1)])
        vk = vreads(KF)
        m1 = [pv(dt, 1) for dt in range(2, 8)] + [rs(1)]
        ft = [[ex1(11), mxs[0]], [ex1(12), mxs[1]], [ex1(13), mxs[2]], [ex1(14), mxs[3]], [ex1(15), mxs[4]],
              [mxs[5], mxs[6]], [mxs[7], mxs[8]]]
        AL(vk[:2])
        for i in range(7):
            A(m1[i])
            AL(vk[2 * i + 2:2 * i + 4] + ft[i])
        if st3:
            st(2)
        A("s_cbranch_vccnz L_tail_fix")
        for j in range(4, 8):
            A(cvt(j))
        A(pv(2, 0))
        A(ex1(4))
        A(rs(1))
        for dt in range(8):
            A(lg(14 - 2 * dt))
            A(pv(dt, 1, KF))
            if dt == 4:
                if st3:
                    st(3)
                send_stats()
            if dt >= 5:
                send(dt - 1)
        for dt in range(3, 8):
            A(pv(dt, 0))
            if dt < 6:
                A(ex1(dt + 2))
            if dt == 4:
                send(7)
                st(4)
        A(rs(0))
        for j in range(4):
            A(cvt(j))
        A("s_nop 1")
        A(rs(0))
        for dt in range(8):
            A(pv(dt, 0, KF))
    else:
        final()
    A("L_sent:")
    st(5)
    if not nopart:
        A(f"v_add_u32 v{vU + 2}, 1, v{vU + 1}\ns_mov_b64 exec, 4\ns_waitcnt vmcnt(0)")
        A(f"buffer_store_dword v{vU + 2}, v{vPo}, {SWS}, s{sFo} offen")
        A("L_reld:")
        if st2:
            st(1)
        A(f"s_mov_b64 exec, 3\nv_mov_b32 v{vU + 3}, v{vU + 1}")
        A("L_poll0:")
        budget()
        A(f"buffer_load_dword v{vU + 3}, v{vPo}, {SWS}, s{sFo} offen {fpol}")
        if csleep:
            A(f"s_sleep {csleep}")
        A(f"s_waitcnt vmcnt({npoll})")
        A(f"v_cmp_eq_u32 vcc, v{vU + 3}, v{vU + 1}\ns_cbranch_vccnz L_poll0")
        A("s_mov_b64 exec, -1")
    st(6)
    A(f"buffer_load_dwordx2 {vr(vU + 4, 2)}, v{vPL}, {SWS}, s{sPs} offen {lpol}")
    A(f"buffer_load_dwordx2 {vr(vU + 6, 2)}, v{vPL}, {SWS}, s{sHs} offen {hlpol}")
    for i in range(4):
        A(f"buffer_load_dwordx4 {vr(HB + 16 + 4 * i, 4)}, v{vL16}, {SO if alias else SWS}, s{sPd} offen offset:{i * 1024} {lpol}")

    def unpack_fma(src, i, f, sel):
        for j in range(4):
            A(f"v_lshlrev_b32 v{E + 2 * j}, 16, v{src + j}\nv_and_b32 v{E + 2 * j + 1}, 0xffff0000, v{src + j}")
        for j in range(4):
            o = O + 8 * i + 2 * j
            A(f"v_pk_fma_f32 {vr(o, 2)}, {vr(E + 2 * j, 2)}, {vr(f, 2)}, {vr(o, 2)} {sel}")

    def finish(held):
        n = 8 if held else 4
        if held:
            for i in range(4):
                A(f"buffer_load_dwordx4 {vr(HB + 4 * i, 4)}, v{vL16}, {SWS}, s{sHd} offen offset:{i * 1024} {hlpol}")
        A(f"s_waitcnt vmcnt({n})")
        if st2:
            st(2)
        if held:
            A(f"v_min3_f32 v{vT0}, v{CM}, v{vU + 4}, v{vU + 6}")
        else:
            A(f"v_min_f32 v{vT0}, v{CM}, v{vU + 4}")
        A(f"v_sub_f32 v{vT2}, v{vT0}, v{CM}\nv_sub_f32 v{vMx}, v{vT0}, v{vU + 4}")
        if held:
            A(f"v_sub_f32 v{vMx2}, v{vT0}, v{vU + 6}")
        A(f"v_exp_f32 v{vT2}, v{vT2}\nv_exp_f32 v{vMx}, v{vMx}")
        A(f"v_exp_f32 v{vMx2}, v{vMx2}" if held else "s_nop 0")
        A(f"v_mul_f32 v{vT1}, v{vT2}, v{LA}\nv_fmac_f32 v{vT1}, v{vMx}, v{vU + 5}")
        if held:
            A(f"v_fmac_f32 v{vT1}, v{vMx2}, v{vU + 7}")
        A(f"v_rcp_f32 v{vT1}, v{vT1}\ns_nop 0\nv_mul_f32 v{vT2}, v{vT2}, v{vT1}\nv_mul_f32 v{vMx}, v{vMx}, v{vT1}")
        if held:
            A(f"v_mul_f32 v{vMx2}, v{vMx2}, v{vT1}")
        for i in range(16):
            A(f"v_pk_mul_f32 {vr(O + 2 * i, 2)}, {vr(O + 2 * i, 2)}, {vr(vT2, 2)} op_sel_hi:[1,0]")
        if held:
            for i in range(4):
                A(f"s_waitcnt vmcnt({7 - i})")
                unpack_fma(HB + 16 + 4 * i, i, vMx, "op_sel_hi:[1,0,1]")
        for i in range(4):
            if i < 2:
                A(f"s_waitcnt vmcnt({0 if i else 3})")
            if held:
                unpack_fma(HB + 4 * i, i, vMx, "op_sel:[0,1,0] op_sel_hi:[1,1,1]")
            else:
                unpack_fma(HB + 16 + 4 * i, i, vMx, "op_sel_hi:[1,0,1]")
            if fullrow:
                if i == 2:
                    out_store2(0)
            elif i:
                out_store(i - 1)
            pack_o(i)
        A("s_nop 1")
        if fullrow:
            out_store2(2)
        else:
            out_store(3)
        if st2:
            st(3)
        if stamp:
            A("s_waitcnt vmcnt(0)")
            st(7)
            A(f"s_cmp_eq_u32 s{sW}, {sw}\ns_cbranch_scc0 L_end")
        dump_stamps(32)
        A("s_endpgm")

    def out_store(i):
        d = KF + 4 * i
        A(f"v_permlane16_swap_b32 v{d}, v{d + 2}\nv_permlane16_swap_b32 v{d + 1}, v{d + 3}")
        A(f"buffer_store_dwordx4 {vr(d, 4)}, v{vQo}, {SO}, s{sOut} offen offset:{i * 64} {opol}")

    def out_store2(i):
        d = KF + 4 * i
        for x in (d, d + 4):
            A(f"v_permlane16_swap_b32 v{x}, v{x + 2}\nv_permlane16_swap_b32 v{x + 1}, v{x + 3}")
        for j in range(4):
            A(f"v_mov_b32 v{S + j}, v{d + j}")
        for j in range(4):
            A(f"v_mov_b32_dpp v{d + j}, v{d + 4 + j} row_ror:8 row_mask:0xf bank_mask:0xc")
        for j in range(4):
            A(f"v_mov_b32_dpp v{d + 4 + j}, v{S + j} row_ror:8 row_mask:0xf bank_mask:0x3")
        A(f"buffer_store_dwordx4 {vr(d, 4)}, v{vQo}, {SO}, s{sOut} offen offset:{i * 64} {opol}")
        A(f"buffer_store_dwordx4 {vr(d + 4, 4)}, v{vQo}, {SO}, s{sOut} offen offset:{2048 + i * 64} {opol}")

    A(f"s_cmp_lg_u32 s{sExp}, 0\ns_cbranch_scc1 L_fin_held")
    finish(False)
    A("L_fin_held:")
    finish(True)
    A("L_end:\ns_endpgm")

    if tail:
        final()
        A("s_branch L_sent")
        A("L_tail_fix:")
        for dt in range(2, 8):
            A(pv(dt, 0))
        A(rs(0))
        A("s_branch L_rare")
    A("L_final_a:")
    spin("g")
    AL(vrd)
    for dt in range(8):
        A(f"s_waitcnt lgkmcnt({14 - 2 * dt})")
        A(pv(dt, 1))
        A(pv(dt, 0))
    A("s_branch L_segB")
    A("L_sentw:")
    if nopart:
        A("s_branch L_sent")
    else:
        A(f"v_mov_b32 v{vT0}, {A_SIG}")
        A("L_peers:")
        budget()
        A(f"ds_read_b32 v{vF}, v{vT0}\nds_read_b32 v{vU + 1}, v{vSa}\ns_waitcnt lgkmcnt(0)\nv_readfirstlane_b32 s{sA}, v{vF}\ns_nop 0")
        A(f"s_cmp_eq_u32 s{sA}, 0\ns_cbranch_scc1 L_peers")
        A(f"v_add_u32 v{vU + 2}, 1, v{vU + 1}\ns_mov_b64 exec, 4\ns_waitcnt vmcnt(0)")
        A(f"buffer_store_dword v{vU + 2}, v{vPo}, {SWS}, s{sFo} offen sc1\ns_branch L_reld")
    A("L_hold:")
    spin("q", off=256, need=sItem, le=True)
    AL(kreads(Q))
    park()
    A("s_branch L_nohold")
    A("L_empty:")
    A(f"s_cmp_eq_u32 s{sT}, 0\ns_cbranch_scc1 L_empty1\ns_nop 5")
    park()
    A(f"v_add_u32 v{vPd}, 1, v{vPd}\nds_write_b32 v{vDoneA}, v{vPd} offset:1536")
    A("L_empty1:")
    A(f"v_mov_b32 v{CM}, {hex(BIG)}\nv_mov_b32 v{CM + 4}, {hex(BIG)}")
    A("s_waitcnt vmcnt(0)")
    send_stats("sc1")
    for i in range(4, 8):
        send(i, "sc1")
    A("s_branch L_sentw")
    A("L_slow1:")
    if sleep:
        A(f"s_branch L_slow2\nL_slow3:\ns_sleep {sleep}\nL_slow2:")
        budget()
        A(f"ds_read_b32 v{vF}, v{vRdyA}\ns_waitcnt lgkmcnt(0)\nv_readfirstlane_b32 s{sF}, v{vF}\ns_nop 0")
        A(f"s_cmp_lt_u32 s{sF}, s{sNeed}\ns_cbranch_scc1 L_slow3")
    else:
        spin("s")
    A("s_branch L_back")
    A("L_rare:")
    AL(maxes())
    new_max(True)
    A(f"v_exp_f32 v{vT2}, -v{vMx}\nv_exp_f32 v{vT3}, -v{vMx2}")
    for i in range(8):
        A(f"v_sub_f32 v{CM + i}, v{CM + i}, v{vMx if i < 4 else vMx2}")
    exp_shifted()
    scale_acc(vT2)
    A(f"s_cmp_lt_i32 s{sIt}, 0\ns_cbranch_scc1 L_final\ns_branch L_loop")

    A("L_code_end:")
    A(f""".section .rodata,"a"
.p2align 6
.amdhsa_kernel {NAME}
  .amdhsa_next_free_vgpr 256
  .amdhsa_next_free_sgpr 102
  .amdhsa_accum_offset 256
  .amdhsa_group_segment_fixed_size 0
  .amdhsa_kernarg_size 64
  .amdhsa_user_sgpr_count 2
  .amdhsa_user_sgpr_kernarg_segment_ptr 1
  .amdhsa_system_sgpr_workgroup_id_x 1
.end_amdhsa_kernel""")
    notes = {'L_next': '; ---- loader: one stage (K of tile s, V of tile s-1) per trip, eight copies that differ in the depth only', 'L_lsegend': '; ---- loader: V of the last tile, drain, then fetch the lines the hand-off will use', 'L_pacer': '; ==== wave 6: position report and depth correction (speed only)', 'L_helper': '; ==== wave 5: bucket sort of the block list, group hand-shake, second Q, held partial', 'L_consumer': '; ==== waves 0-3', 'L_seg': '; ---- segment start: Q (scaled by log2(e)/sqrt(D)), first tile with mask and true max', 'L_loop': '; ---- steady loop: S(t+1), P(t), V(t) reads | O += V(t) P(t), exp(t+1), max check, K(t+2) reads', 'L_slow': '; ---- next stage not there yet, or last trip; L_tail: the half that is sent goes first', 'L_sent': '; ---- hand-off word, wait for the partner, merge, normalise, store', 'L_lastg': '; ---- last two tiles in plain order', 'L_rare': '; ---- a score rose more than 2^8 above the max in use: move to the true running max', 'L_empty': '; ---- no keys of the batch this workgroup ends on', 'L_hold': '; ---- role 1 between its segments: park the partial of A in LDS', 'L_sentw': '; ---- write-through hand-off'}
    out = []
    for x in L:
        if x.endswith(":") and x[:-1] in notes:
            out.append(notes[x[:-1]])
        out.append(x)
    L[:] = out
    if nostore:
        L[:] = [x for x in L if not (x.strip().startswith("buffer_store") and "v[16:19]" not in x and "v[20:23]" not in x
                                     and "v[100:103], v239, s[20:23], s73 offen" != x.strip()[21:]
                                     and ((SWS in x and nostore & 1) or (SO in x and nostore & 2)))]
    return "\n".join(L) + "\n"


def parse(spec):
    kw = {}
    for kv in spec.split(","):
        if not kv or kv == "default":
            continue
        k, v = kv.split("=")
        try:
            kw[k] = int(v)
        except ValueError:
            try:
                kw[k] = float(v)
            except ValueError:
                kw[k] = v.replace("+", " ").replace("none", "")
    return kw


if __name__ == "__main__":
    from build import build
    import hz
    files = []
    for spec in sys.argv[1:]:
        txt = gen(**parse(spec))
        pr = hz.check(txt)
        for p in pr:
            print("HAZARD", p, file=sys.stderr)
        fn = "k_" + spec.replace("=", "").replace(",", "_").replace("+", "") + ".s"
        open(fn, "w").write(txt)
        build(fn)
        files.append(fn)
    print(" ".join(files))
```

```python
import sys
import struct

NAME = "standalone__paged_block_table_kv_pagedattention__sampling_kernel"
WSB = 537395200
KVB = 4100 * 32768
QB = 16 * 32 * 32 * 128 * 2

HDR = """; Paged GQA attention, B=16 Hq=32 Hkv=8 Sq=32 D=128 block=16, bf16.  Generated by the author's own script.
;
"""

PAIRS = [(4, 13), (9, 8), (14, 3), (0, 12), (5, 7), (10, 2), (15, 11), (1, 6)]


def f2u(x):
    return struct.unpack('<I', struct.pack('<f', x))[0]


def gen(NS=7, win=23, win2=27, ntail=0, gran=2, win0=16, n0=6, lag=1, dec0=16, decs=8,
        delta=0, ex=0, theta=2, lead=8, npoll=1, hwin=8, psleep=16, csleep=0, lprio=3, rdy0=2, chk0=10, rmode=1, cmask=15, base=48, kb=6, firstb=-1, th2=22, b1=4, pre=4, prepol='', k0=4, nosort=0, tail=1, st3=0, smask=0, sleep=2, pvo=0, qko=0, nors=0, sw=0, spincnt=0, bsh=5, touch=0, ra=2, rx=1, apol='sc1', fpol='sc1', alias=1, fullrow=0, st2=0, hpol='', hlpol='sc1', force=0, remap=0, w_lo=10, l0=3, l1=5, l2=6, fbg=12.0, rlo=4, rhi=24, amax=5, fb0=3, sg=45, foff=40, fsleep=4, nm=10, lm=4, q2pol='nt', q3=0, skipb=1, cpf=1, cpol='', ek=6, hw0=0, th3=60, amin=6, nlev=12, bia=0.0, bib=0.0, nsc=1, win1=20, n1=18, dmask=31, dmul=3,
        pol="nt", qpol="nt", opol="", spol="", lpol="sc1", T=8.0,
        stamp=0, trace=0, nocomp=0, noload=0, nopart=0, nostore=0):
    if firstb < 0:
        nt = [-(-(4096 - ((i + 1) * 2654435761) % 2048) // 32) for i in range(16)]
        firstb = sum(1 << i for i, (a, b) in enumerate(PAIRS) if nt[a] - nt[b] <= max(th2, 2 * theta))
        firstb3 = sum(1 << i for i, (a, b) in enumerate(PAIRS) if nt[a] - nt[b] <= max(th3, 2 * theta))
    amin = amin or amax
    SLOT = 17408
    RING = NS * SLOT
    PB = RING
    A_DONE = PB + 2 * SLOT
    A_READY = A_DONE + 1024
    A_PDONE = A_DONE + 1536
    A_SIG = A_PDONE + 1024
    A_TAB = A_SIG + 512
    A_LIST = A_TAB + 2048
    A_HIST = A_LIST + 512
    LDS = A_HIST + 1024
    wmax = w_lo + 2 * (nlev - 1)
    assert LDS <= 163840
    assert NS >= (wmax - 1) // 16 + lag + 3 and wmax <= 52
    BOX = 17408
    BIG = f2u(1e30)
    OOB = 0x40000000
    L = []

    def A(s):
        for x in s.split('\n'):
            L.append(x if x.endswith(':') or x.startswith(('.', ';')) else '    ' + x)

    vLane, vT0, vT1, vT2, vT3 = 1, 2, 3, 4, 5
    vKc, vV0c, vV1c, vK, vV0, vV1 = 6, 7, 8, 9, 10, 11
    vQo, vRdyA, vDoneA, vF = 12, 13, 14, 15
    S, E, CM, LA, O, Q, KF, VF, P, ON = 16, 32, 48, 56, 64, 128, 160, 192, 224, 232
    vMx, vMx2, vDone, vL16, vG4, vPd, vPA, vPL = 236, 237, 238, 239, 240, 241, 242, 243
    vF2, vU = 244, 248
    TA, TBb, vRow = 64, 68, 72
    vKo, vVo = 76, 80
    vPoll, vPub, vDn, vDnA, vF0, vDb, vPoll2, vFa = 84, 85, 86, 87, 89, 90, 91, 92
    vQd = 242
    HR = 100

    sW, sH, sRole = 3, 32, 33
    sBA, sBB, sCntA, sCntB, sTopA, sTopB, sNv, sExp, sZ = 35, 36, 37, 38, 39, 40, 41, 42, 43
    sGrp, sSwap, sBud, sPar = 44, 45, 46, 47
    sB, sCnt, sT, sEnd, sOffK, sRet, sNeed, sF, sScale = 64, 65, 66, 67, 68, 69, 70, 71, 72
    sA, sBb, sC, sD, sE2, sF2 = 73, 74, 75, 76, 77, 78
    sQoff, sIt, sOffQ, sItem, sK = 79, 80, 81, 82, 83
    sS, sOff, sPub, sFree, sTile, sO0, sO1, sN0, sN1, sLag, sDec = 66, 67, 68, 69, 70, 71, 72, 79, 80, 81, 82
    sP0, sP1, sSw = 34, 64, 41
    sSt = 84
    SQ, SK, SV, SWS, SO, SD = "s[8:11]", "s[12:15]", "s[16:19]", "s[20:23]", "s[24:27]", "s[28:31]"

    def vr(a, n):
        return f"v[{a}:{a + n - 1}]" if n > 1 else f"v{a}"

    def adv(s):
        return [f"s_add_u32 s{s}, s{s}, {SLOT}", f"s_cmp_ge_u32 s{s}, {RING}", f"s_cselect_b32 s{s}, 0, s{s}"]

    def AL(lst):
        for x in lst:
            A(x)

    def budget():
        A(f"s_sub_u32 s{sBud}, s{sBud}, 1\ns_cbranch_scc1 L_end")

    def st(i):
        if stamp:
            A(f"{'s_memrealtime' if stamp == 1 else 's_memtime'} s[{sSt + 2 * i}:{sSt + 2 * i + 1}]")

    def dump_stamps(base):
        if not stamp:
            return
        A("s_waitcnt lgkmcnt(0)")
        for i in range(8):
            A(f"v_mov_b32 v{16 + i}, s{sSt + 2 * i}")
        A(f"s_mul_i32 s{sA}, s2, 96\ns_add_u32 s{sA}, s{sA}, {WSB - 256 * 96 + base}")
        A(f"v_mov_b32 v{vT0}, 0\ns_mov_b64 exec, 1")
        A(f"buffer_store_dwordx4 v[16:19], v{vT0}, {SWS}, s{sA} offen")
        A(f"buffer_store_dwordx4 v[20:23], v{vT0}, {SWS}, s{sA} offen offset:16")
        A("s_mov_b64 exec, -1")

    def box_off(dst, k):
        A(f"s_mul_i32 s{dst}, s{sGrp}, 6\ns_add_u32 s{dst}, s{dst}, {k}\ns_mul_i32 s{dst}, s{dst}, {BOX}")

    tabA = sum(p[0] << (4 * i) for i, p in enumerate(PAIRS))
    tabB = sum(p[1] << (4 * i) for i, p in enumerate(PAIRS))

    A(HDR.rstrip())
    A(f"; @launch grid=(256,1,1) block=(448,1,1) lds={LDS}")
    A('.amdgcn_target "amdgcn-amd-amdhsa--gfx950"\n.text')
    A(f".globl {NAME}\n.p2align 8\n.type {NAME},@function\n{NAME}:")
    A("s_cmp_ge_u32 s2, 256\ns_cbranch_scc1 L_end")
    A("s_load_dwordx16 s[48:63], s[0:1], 0")
    if remap:
        A(f"s_lshr_b32 s4, s2, {6 if remap == 1 else 7}\ns_add_u32 s4, s4, s2\ns_and_b32 s4, s4, 7\ns_and_b32 s2, s2, 0xf8\ns_or_b32 s2, s2, s4")
    if stamp:
        for i in range(8):
            A(f"s_mov_b64 s[{sSt + 2 * i}:{sSt + 2 * i + 1}], 0")
    st(0)
    A(f"v_lshrrev_b32 v{vT0}, 6, v0\nv_and_b32 v{vLane}, 63, v0")
    A(f"v_readfirstlane_b32 s{sW}, v{vT0}")
    if cpf:
        A("s_getpc_b64 s[4:5]\nL_pc:")
        A(f"s_and_b32 s6, s2, {0xf8 if cpf == 1 else 0x38}\nv_subrev_u32 v{vT1}, 384, v0\nv_cmp_gt_u32 vcc, {8 if cpf == 1 else 32}, v{vT1}")
        if cpf == 2:
            A("s_lshl_b32 s6, s6, 2")
        A(f"v_add_u32 v{vT1}, s6, v{vT1}\nv_lshlrev_b32 v{vT1}, 7, v{vT1}\nv_min_u32 v{vT1}, L_code_end-L_pc-4, v{vT1}")
        A(f"s_and_saveexec_b64 s[6:7], vcc\ns_cbranch_execz L_nocp\nglobal_load_dword v{vU + 7}, v{vT1}, s[4:5] {cpol}\nL_nocp:\ns_mov_b64 exec, s[6:7]")
    A(f"v_lshlrev_b32 v{vL16}, 4, v{vLane}")
    A(f"s_and_b32 s{sH}, s2, 7\ns_lshr_b32 s{sRole}, s2, 6\ns_lshr_b32 s{sA}, s2, 1\ns_and_b32 s{sA}, s{sA}, 28")
    A(f"s_lshr_b32 s{sBA}, {hex(tabA)}, s{sA}\ns_lshr_b32 s{sBB}, {hex(tabB)}, s{sA}")
    A(f"s_and_b32 s{sBA}, s{sBA}, 15\ns_and_b32 s{sBB}, s{sBB}, 15")
    A(f"s_lshl_b32 s{sA}, s{sBA}, 2\ns_lshl_b32 s{sBb}, s{sBB}, 2")
    A(f"s_lshl_b32 s{sC}, s{sBA}, 10\ns_lshl_b32 s{sD}, s{sBB}, 10")
    A(f"v_add_u32 v{vT2}, s{sC}, v{vL16}\nv_add_u32 v{vT3}, s{sD}, v{vL16}")
    A(f"s_mov_b32 s{sBud}, 0x400000\ns_and_b32 s{sGrp}, s2, 63")
    A(f"s_cmp_lt_u32 s{sRole}, 2\ns_cselect_b32 s{sPar}, 4096, 0")
    A(f"v_min_u32 v{vDoneA}, 383, v0\nv_lshlrev_b32 v{vDoneA}, 2, v{vDoneA}\nv_add_u32 v{vDoneA}, {A_DONE}, v{vDoneA}")
    A(f"v_mov_b32 v{vDone}, 0")
    A(f"ds_write_b32 v{vDoneA}, v{vDone}\nds_write_b32 v{vDoneA}, v{vDone} offset:1536")
    A(f"v_mov_b32 v{vRdyA}, {A_READY}")
    A(f"v_lshrrev_b32 v{vT0}, 4, v{vLane}\nv_and_b32 v{vT1}, 15, v{vLane}")
    A(f"v_xor_b32 v{vU}, v{vT1}, v{vT0}\nv_lshlrev_b32 v{vU}, 4, v{vU}\nv_lshl_add_u32 v{vQd}, v{vT0}, 8, v{vU}")
    if th3:
        A(f"s_and_b32 s{sE2}, s{sH}, 3\ns_cmp_eq_u32 s{sE2}, 1\ns_cselect_b32 s34, {th2}, {th3}")
        A(f"s_mov_b32 s{sF2}, {hex(0xff000000 | firstb3 << 8)}\ns_cselect_b32 s{sF2}, {hex(0xff000000 | firstb << 8)}, s{sF2}")
        A(f"s_lshr_b32 s{sE2}, s2, 3\ns_bitcmp1_b32 s{sF2}, s{sE2}\ns_cselect_b32 s{sB}, s{sBB}, s{sBA}")
    else:
        A(f"s_lshr_b32 s{sE2}, s2, 3\ns_bitcmp1_b32 {hex(0xff000000 | firstb << 8)}, s{sE2}\ns_cselect_b32 s{sB}, s{sBB}, s{sBA}")
    A(f"s_mul_i32 s{sOffQ}, s{sW}, 8704\ns_add_u32 s{sOffQ}, s{sOffQ}, {PB}")
    A(f"s_mov_b32 s10, {QB}\ns_mov_b32 s11, 0x20000")

    def q_own():
        A(f"s_lshl_b32 s{sE2}, s{sB}, 3\ns_add_u32 s{sE2}, s{sE2}, s{sH}\ns_lshl_b32 s{sE2}, s{sE2}, 2\ns_add_u32 s{sE2}, s{sE2}, s{sW}")
        A(f"s_lshl_b32 s{sE2}, s{sE2}, 13\ns_add_u32 s{sE2}, s{sE2}, s{sPar}\ns_xor_b32 s{sF2}, s{sE2}, 4096")

    def q_own_loads(qpol=qpol):
        for r in range(8):
            A(f"s_add_u32 m0, s{sOffQ}, {r * 1088 - (r & 3) * 1024}\ns_nop 0")
            A(f"buffer_load_dwordx4 v{vQd}, {SQ}, s{sE2 if r < 4 else sF2} offen offset:{(r & 3) * 1024} {qpol} lds")

    q_own()
    A(f"s_mov_b32 m0, {A_TAB}\ns_and_b32 s{sC}, s{sW}, 6\ns_cmp_eq_u32 s{sC}, 4")
    A("s_waitcnt lgkmcnt(0)")
    A("s_cbranch_scc0 L_notab")
    A(f"global_load_lds_dwordx4 v{vT2}, s[54:55]\ns_mov_b32 m0, {A_TAB + 1024}\ns_setprio {lprio}\nglobal_load_lds_dwordx4 v{vT3}, s[54:55]")
    A("L_notab:")
    A(f"s_load_dword s{sCntA}, s[56:57], s{sA}\ns_load_dword s{sCntB}, s[56:57], s{sBb}")
    A(f"s_mov_b32 s8, s48\ns_mov_b32 s9, s49\ns_cmp_lt_u32 s{sW}, 4")
    A("s_barrier")
    A("s_cbranch_scc0 L_noq")
    if q3:
        A(f"s_cmp_eq_u32 s{sRole}, 3\ns_cbranch_scc0 L_q012")
        q_own_loads("")
        A("s_branch L_noq\nL_q012:")
    q_own_loads()
    A("L_noq:")
    for srd, p, n in ((12, 50, KVB), (16, 52, KVB), (20, 62, WSB), (24, 58, QB), (28, 60, 256)):
        A(f"s_mov_b32 s{srd}, s{p}\ns_mov_b32 s{srd + 1}, s{p + 1}\ns_mov_b32 s{srd + 2}, {n}\n"
          f"s_mov_b32 s{srd + 3}, 0x20000")
    box_off(sE2, 0)
    A(f"v_lshrrev_b32 v{vT2}, 2, v{vLane}\nv_min_u32 v{vT2}, 5, v{vT2}\nv_mul_u32_u24 v{vT2}, {BOX}, v{vT2}")
    A(f"v_and_b32 v{vT3}, 3, v{vLane}\nv_lshl_add_u32 v{vFa}, v{vT3}, 7, v{vT2}\ns_add_u32 s{sE2}, s{sE2}, 16896\nv_add_u32 v{vFa}, s{sE2}, v{vFa}")
    A(f"s_cmp_eq_u32 s{sW}, 5\ns_cbranch_scc0 L_nosnap")
    A(f"buffer_load_dword v{vF0}, v{vFa}, {SWS}, 0 offen sc1")
    A(f"v_add_u32 v{vT2}, {A_HIST}, v{vL16}")
    for j in range(4):
        A(f"v_mov_b32 v{68 + j}, 0")
    A(f"ds_write_b128 v{vT2}, v[68:71]")
    if touch:
        A(f"s_lshr_b32 s{sE2}, s2, 3\ns_lshl_b32 s{sE2}, s{sE2}, 22\nv_and_b32 v{vT2}, 1, v{vLane}\nv_lshlrev_b32 v{vT2}, 21, v{vT2}")
        A(f"buffer_load_dword v{vPoll}, v{vT2}, {SK}, s{sE2} offen nt\nbuffer_load_dword v{vPoll2}, v{vT2}, {SV}, s{sE2} offen nt")
    A("L_nosnap:")
    A(f"v_and_b32 v{vDnA}, 3, v{vLane}\nv_lshlrev_b32 v{vDnA}, 8, v{vDnA}\nv_add_u32 v{vDnA}, {A_DONE}, v{vDnA}")
    A(f"s_lshl_b32 s{sE2}, s{sH}, 8")
    A(f"v_lshl_add_u32 v{vT2}, v{vT0}, 11, v{vU}\nv_add_u32 v{vKo}, s{sE2}, v{vT2}")
    A(f"v_and_b32 v{vT2}, 1, v{vT0}\nv_lshlrev_b32 v{vT2}, 1, v{vT2}\nv_xor_b32 v{vT2}, v{vT2}, v{vT1}\nv_lshlrev_b32 v{vT2}, 4, v{vT2}")
    A(f"v_lshl_add_u32 v{vT2}, v{vT0}, 13, v{vT2}\nv_add_u32 v{vVo}, s{sE2}, v{vT2}")
    for j in range(1, 4):
        A(f"v_add_u32 v{vKo + j}, {j * (8192 - 1088)}, v{vKo}\nv_add_u32 v{vVo + j}, {j * (2048 - 1088)}, v{vVo}")
    A("s_waitcnt lgkmcnt(0)")
    st(1)
    A(f"s_min_i32 s{sA}, s{sCntA}, 0x1000\ns_cmp_lt_i32 s{sA}, 1\ns_cselect_b32 s{sA}, 0x1000, s{sA}\ns_cselect_b32 s{sC}, 1, 0")
    A(f"s_min_i32 s{sBb}, s{sCntB}, 0x1000\ns_cmp_lt_i32 s{sBb}, 1\ns_cselect_b32 s{sBb}, 0x1000, s{sBb}\ns_cselect_b32 s{sD}, 1, 0")
    A(f"s_mov_b32 s{sE2}, s{sBA}\ns_cmp_lt_u32 s{sA}, s{sBb}\ns_cselect_b32 s{sSwap}, 1, 0")
    A(f"s_cselect_b32 s{sCntA}, s{sBb}, s{sA}\ns_cselect_b32 s{sCntB}, s{sA}, s{sBb}")
    A(f"s_cselect_b32 s{sBA}, s{sBB}, s{sBA}\ns_cselect_b32 s{sBB}, s{sE2}, s{sBB}")
    A(f"s_cselect_b32 s{sZ}, s{sD}, s{sC}\ns_cselect_b32 s{sD}, s{sC}, s{sD}\ns_lshl_b32 s{sD}, s{sD}, 1\ns_or_b32 s{sZ}, s{sZ}, s{sD}")
    A(f"s_cmp_eq_u32 s{sRole}, 3\ns_cselect_b32 s{sNv}, s{sCntB}, s{sCntA}")
    A(f"s_sub_u32 s{sNv}, s{sNv}, 1\ns_and_b32 s{sNv}, s{sNv}, 31\ns_add_u32 s{sNv}, s{sNv}, 1")
    A(f"s_add_u32 s{sTopA}, s{sCntA}, 31\ns_lshr_b32 s{sTopA}, s{sTopA}, 5")
    A(f"s_add_u32 s{sTopB}, s{sCntB}, 31\ns_lshr_b32 s{sTopB}, s{sTopB}, 5")
    A(f"s_add_u32 s{sA}, s{sTopA}, s{sTopB}\ns_add_u32 s{sA}, s{sA}, {2 * delta + ex + ra}\ns_lshr_b32 s{sA}, s{sA}, 2\ns_max_u32 s{sA}, s{sA}, 1")
    A(f"s_min_u32 s{sCntA}, s{sA}, s{sTopA}\ns_min_u32 s{sCntB}, s{sA}, s{sTopB}")
    if th2:
        A(f"s_add_u32 s{sC}, s{sTopA}, 1\ns_lshr_b32 s{sC}, s{sC}, 1\ns_add_u32 s{sD}, s{sTopB}, 1\ns_lshr_b32 s{sD}, s{sD}, 1")
        A(f"s_sub_u32 s{sA}, s{sTopA}, s{sTopB}\ns_cmp_le_u32 s{sA}, {'s34' if th3 else th2}")
        A(f"s_cselect_b32 s{sCntA}, s{sC}, s{sCntA}\ns_cselect_b32 s{sCntB}, s{sD}, s{sCntB}\ns_cselect_b32 s{sF2}, 0x1000, {theta}")
    A(f"s_sub_u32 s{sC}, s{sTopA}, s{sCntA}\ns_sub_u32 s{sD}, s{sTopB}, s{sCntB}")
    A(f"s_add_u32 s{sBb}, s{sC}, s{sD}\ns_add_u32 s{sBb}, s{sBb}, {ex + rx}\ns_lshr_b32 s{sBb}, s{sBb}, 1\ns_min_u32 s{sBb}, s{sBb}, s{sC}")
    A(f"s_sub_u32 s{sExp}, s{sC}, s{sBb}\ns_cmp_le_u32 s{sExp}, {f's{sF2}' if th2 else theta}\ns_cselect_b32 s{sBb}, s{sC}, s{sBb}\ns_cselect_b32 s{sExp}, 0, s{sExp}")
    A(f"s_cmp_ge_u32 s{sRole}, 2\ns_cbranch_scc1 L_plan_top")
    A(f"s_mov_b32 s{sNv}, 32\ns_mov_b32 s{sTopB}, s{sD}\ns_mov_b32 s{sCntB}, s{sD}")
    A(f"s_cmp_eq_u32 s{sRole}, 0\ns_cselect_b32 s{sCntA}, s{sBb}, s{sExp}\ns_cselect_b32 s{sTopA}, s{sBb}, s{sC}")
    A("L_plan_top:")
    A(f"s_bitcmp1_b32 s{sRole}, 0\ns_cselect_b32 s{sCntB}, s{sCntB}, 0\ns_cselect_b32 s{sExp}, 0, s{sExp}")
    A(f"s_cmp_eq_u32 s{sRole}, 3\ns_cselect_b32 s{sCntA}, 0, s{sCntA}")
    A(f"s_cmp_lt_u32 s{sW}, 4\ns_cbranch_scc1 L_consumer\ns_cmp_eq_u32 s{sW}, 6\ns_cbranch_scc1 L_pacer")
    A(f"s_sub_u32 s{sA}, s{sW}, 4\ns_mul_i32 s{sA}, s{sA}, {k0}\nv_add_u32 v{vRow + 2}, s{sA}, v{vLane}")
    A(f"s_add_u32 s{sCnt}, s{sCntA}, s{sCntB}\ns_add_u32 s{sBb}, s{sTopB}, s{sCntA}\nv_cmp_gt_u32 vcc, s{sCntA}, v{vRow + 2}")
    A(f"v_mov_b32 v{vT2}, s{sTopA}\nv_mov_b32 v{vT3}, s{sBb}\ns_lshl_b32 s{sA}, s{sSwap}, 10\ns_add_u32 s{sA}, s{sA}, {A_TAB}")
    A(f"v_cndmask_b32 v{vT2}, v{vT3}, v{vT2}, vcc\ns_lshl_b32 s{sBb}, s{sSwap}, 10\ns_sub_u32 s{sBb}, {A_TAB + 1024}, s{sBb}")
    A(f"v_xad_u32 v{vT2}, v{vRow + 2}, -1, v{vT2}\nv_mov_b32 v{vT3}, s{sA}\nv_mov_b32 v{vRow}, s{sBb}")
    A(f"v_and_b32 v{vT2}, 127, v{vT2}\nv_cndmask_b32 v{vT3}, v{vRow}, v{vT3}, vcc\nv_lshl_add_u32 v{vT2}, v{vT2}, 3, v{vT3}")
    A(f"s_cmp_eq_u32 s{sW}, 5\ns_cbranch_scc1 L_helper")

    def min4(dst, add):
        A(f"v_readlane_b32 s{sA}, v{vDn}, 0\nv_readlane_b32 s{sBb}, v{vDn}, 1\nv_readlane_b32 s{sC}, v{vDn}, 2\n"
          f"v_readlane_b32 s{sD}, v{vDn}, 3")
        A(f"s_min_u32 s{sA}, s{sA}, s{sBb}\ns_min_u32 s{sC}, s{sC}, s{sD}\ns_min_u32 s{dst}, s{sA}, s{sC}")
        if add:
            A(f"s_add_u32 s{dst}, s{dst}, {add}")

    A(f"s_cmp_eq_u32 s{sCnt}, 0\ns_cbranch_scc1 L_ldone")
    A(f"s_waitcnt vmcnt(0)\nds_read_b64 {vr(vRow, 2)}, v{vT2}")
    st(2)
    A(f"s_mov_b32 s{sS}, 1\ns_mov_b32 s{sOff}, {SLOT}\ns_mov_b32 s{sPub}, 0\ns_mov_b32 s{sFree}, {NS}")
    if skipb:
        A(f"s_cmp_le_u32 s{sNv}, 16")
    A(f"s_mov_b32 s{sTile}, 1\ns_mov_b32 s{sSw}, {k0 if not nosort else 64}\ns_mov_b32 m0, 0")
    A(f"s_waitcnt lgkmcnt(0)\nv_lshlrev_b32 v{vRow}, 15, v{vRow}\nv_lshlrev_b32 v{vRow + 1}, 15, v{vRow + 1}")
    A(f"v_readlane_b32 s{sA}, v{vRow}, 0\nv_readlane_b32 s{sBb}, v{vRow + 1}, 0\nv_readlane_b32 s{sN0}, v{vRow}, 1\nv_readlane_b32 s{sN1}, v{vRow + 1}, 1")
    A(f"s_mov_b32 s{sO0}, s{sA}\n" + (f"s_cselect_b32 s{sO1}, {hex(OOB)}, s{sBb}" if skipb else f"s_mov_b32 s{sO1}, s{sBb}"))
    for g in range(2):
        if g:
            A("s_mov_b32 m0, 4352\ns_nop 0")
        for j in range(4):
            A(f"buffer_load_dwordx4 v{vKo + j}, {SK}, s{sO0 + g} offen offset:{j * 1088} {pol} lds")
    if lag:
        A(f"s_mov_b32 s{sLag}, {lag}\ns_lshr_b32 s{sDec}, s2, 3\ns_and_b32 s{sDec}, s{sDec}, {dmask}")
        if dmul != 4:
            A(f"s_mul_i32 s{sDec}, s{sDec}, {dmul}\ns_lshr_b32 s{sDec}, s{sDec}, 2")
        A(f"s_add_u32 s{sDec}, s{sDec}, {dec0}")
    A(f"v_lshlrev_b32 v{vT2}, 3, v{vLane}\nv_add_u32 v{vT2}, {A_LIST}, v{vT2}\nv_mov_b32 v{vT3}, {A_SIG}")
    sLvl = 53
    A(f"s_mov_b32 s{sA}, {A_SIG + 8}\nv_writelane_b32 v{vDnA}, s{sA}, 4\ns_mov_b32 s{sLvl}, {l0}")
    if nsc:
        for r, n in ((54, n0), (55, nm), (56, n1)):
            A(f"s_mul_i32 s{r}, s{sCnt}, {round((n - 0.5) * 256 / 49)}\ns_lshr_b32 s{r}, s{r}, 8")
        A(f"s_mul_i32 s{sDec}, s{sDec}, s{sCnt}\ns_mul_i32 s{sDec}, s{sDec}, 84\ns_lshr_b32 s{sDec}, s{sDec}, 12")
    A("L_next:")
    A(f"s_sub_u32 s{sCnt}, s{sCnt}, 1\ns_cmp_eq_u32 s{sCnt}, 0\ns_cbranch_scc1 L_lsegend")
    A(f"s_mov_b32 s{sP0}, s{sO0}\ns_mov_b32 s{sP1}, s{sO1}\ns_mov_b32 s{sO0}, s{sN0}\ns_mov_b32 s{sO1}, s{sN1}")
    A(f"s_cmp_lt_u32 s{sS}, s{sFree}\ns_cbranch_scc0 L_full_a")
    A("L_free_a:")

    def tree(lo, hi):
        if lo == hi:
            stage_loop(str(lo), w_lo + 2 * lo)
            return
        mid = (lo + hi + 1) // 2
        A(f"s_cmp_ge_i32 s{sLvl}, {mid}\ns_cbranch_scc1 L_t{mid}_{hi}")
        tree(lo, mid - 1)
        A(f"L_t{mid}_{hi}:")
        tree(mid, hi)

    def next_offsets(tag):
        A(f"s_add_u32 s{sTile}, s{sTile}, 1\ns_cmp_eq_u32 s{sTile}, s{sSw}\ns_cbranch_scc1 L_sw_{tag}")
        A(f"L_swd_{tag}:")
        A(f"v_readlane_b32 s{sN0}, v{vRow}, s{sTile}\nv_readlane_b32 s{sN1}, v{vRow + 1}, s{sTile}")

    def publish(back, lagged):
        A(f"s_sub_u32 s{sE2}, s{sS}, {back}")
        if lagged:
            A(f"s_sub_u32 s{sF2}, s{sE2}, s{sLag}\ns_max_i32 s{sPub}, s{sPub}, s{sF2}")
        else:
            A(f"s_max_i32 s{sPub}, s{sPub}, s{sE2}")
        A(f"v_mov_b32 v{vPub}, s{sPub}")
        if lagged:
            A(f"v_writelane_b32 v{vPub}, s{sE2}, 1")

    def stage_loop(tag, w):
        pub_i = -(-((w - gran) % 16) // gran) * gran
        back = (w - gran) // 16
        if pub_i == 16:
            pub_i, back = 0, back + 1
        for i in range(16):
            g, j = i >> 2, i & 3
            srd, vo, so = ((SK, vKo, sO0), (SK, vKo, sO1), (SV, vVo, sP0), (SV, vVo, sP1))[g]
            if j == 0:
                A(f"s_mov_b32 m0, s{sOff}" if g == 0 else f"s_add_u32 m0, s{sOff}, {g * 4352}")
            if i == pub_i:
                publish(back, lag)
            if i % gran == 0:
                A(f"s_waitcnt vmcnt({w - gran})")
            elif j == 0:
                A("s_nop 0")
            if i == pub_i:
                A(f"ds_write_b32 v{vDoneA}, v{vPub}")
            A(f"buffer_load_dwordx4 v{vo + j}, {srd}, s{so} offen offset:{j * 1088} {pol} lds")
            if i == 3:
                next_offsets(tag)
            if i == 8:
                A(f"ds_read_b32 v{vDn}, v{vDnA}")
            if i == 10:
                A("s_waitcnt lgkmcnt(0)")
                min4(sFree, NS)
            if i == 12:
                AL(adv(sOff))
                A(f"v_readlane_b32 s{sBb}, v{vDn}, 4\ns_cmp_lt_u32 s{sS}, {'s56' if nsc else n1 - 1}\ns_cselect_b32 s{sA}, {l1}, {l2}")
                if nm:
                    A(f"s_cmp_lt_u32 s{sS}, {'s55' if nsc else nm - 1}\ns_cselect_b32 s{sA}, {lm}, s{sA}")
                A(f"s_cmp_lt_u32 s{sS}, {'s54' if nsc else n0 - 1}\ns_cselect_b32 s{sA}, {l0}, s{sA}\ns_add_u32 s{sLvl}, s{sA}, s{sBb}")
            if i == 13 and lag:
                assert lag == 1
                A(f"s_cmp_ge_u32 s{sS}, s{sDec}\ns_cselect_b32 s{sLag}, 0, 1")
        A(f"s_add_u32 s{sS}, s{sS}, 1")
        A("s_branch L_stg" if stamp or noload else "s_branch L_next")

    tree(0, nlev - 1)
    if stamp or noload:
        A("L_stg:")
        for k, n in ((5, 8), (6, 24), (7, 40)):
            A(f"s_cmp_lg_u32 s{sS}, {n}\ns_cbranch_scc1 L_ns{k}")
            st(k)
            A(f"L_ns{k}:")
        if noload:
            A(f"s_cmp_lt_u32 s{sS}, {NS}\ns_cbranch_scc1 L_next\ns_waitcnt vmcnt(0)\nv_mov_b32 v{vPub}, 0x7fffffff\n"
              f"ds_write_b32 v{vDoneA}, v{vPub}\ns_branch L_ldone")
        A("s_branch L_next")
    A("L_lsegend:")
    if pre:
        A(f"ds_read_b32 v{vPoll}, v{vT3}")
    A(f"s_cmp_lt_u32 s{sS}, s{sFree}\ns_cbranch_scc0 L_full_e")
    A("L_free_e:")
    assert wmax <= 32
    for i in range(9):
        g, j = 2 + (i >> 2), i & 3
        if j == 0 and i < 8:
            A(f"s_add_u32 m0, s{sOff}, {g * 4352}\ns_nop 0")
        if i == ek:
            publish(1, False)
            A(f"s_waitcnt vmcnt({16 + i})\nds_write_b32 v{vDoneA}, v{vPub}")
        if i < 8:
            A(f"buffer_load_dwordx4 v{vVo + j}, {SV}, s{sO0 if g == 2 else sO1} offen offset:{j * 1088} {pol} lds")
    st(3)
    if pre:
        A(f"s_bitcmp1_b32 s{sRole}, 0\ns_cselect_b32 s48, s{sBB}, s{sBA}\ns_lshl_b32 s48, s48, 3\ns_add_u32 s48, s48, s{sH}")
        A(f"s_lshl_b32 s48, s48, 15\ns_add_u32 s48, s48, s{sPar}")
        A(f"v_lshrrev_b32 v93, 5, v{vLane}\nv_lshlrev_b32 v93, 12, v93\nv_lshl_add_u32 v93, v{vLane}, 7, v93\nv_lshlrev_b32 v95, 7, v{vLane}")
        A(f"s_xor_b32 s{sA}, s{sRole}, 2\ns_lshr_b32 s{sBb}, s{sRole}, 1\ns_add_u32 s{sBb}, s{sBb}, 4")
        box_off(50, f"s{sA}")
        box_off(49, f"s{sBb}")
        A(f"s_cmp_eq_u32 s{sExp}, 0\ns_cselect_b32 s49, {hex(OOB)}, s49\ns_cselect_b32 s51, s50, s49")
        A(f"v_and_b32 v94, 4, v{vLane}\nv_cmp_eq_u32 vcc, 0, v94\nv_mov_b32 v94, s50\nv_mov_b32 v96, s51\nv_and_b32 v97, 3, v{vLane}")
        A(f"v_cndmask_b32 v94, v96, v94, vcc\nv_lshl_add_u32 v94, v97, 7, v94")
    npre = 5 if pre else 0

    def pre_loads():
        A(f"s_waitcnt lgkmcnt(0)\nv_readfirstlane_b32 s{sA}, v{vPoll}\ns_nop 0\ns_cmp_eq_u32 s{sA}, 1")
        A(f"s_cselect_b32 s48, s48, {hex(OOB)}\ns_cselect_b32 s49, s49, {hex(OOB)}\ns_cselect_b32 s50, 16384, {hex(OOB)}")
        A("s_add_u32 s51, s48, 16384\ns_add_u32 s52, s49, 8192")
        A(f"buffer_load_dword v96, v94, {SWS}, s50 offen {prepol}")
        A(f"buffer_load_dword v96, v93, {SO}, s48 offen {prepol}\nbuffer_load_dword v96, v93, {SO}, s51 offen {prepol}")
        A(f"buffer_load_dword v96, v95, {SWS}, s49 offen {prepol}\nbuffer_load_dword v96, v95, {SWS}, s52 offen {prepol}")

    backs = [0, -1]
    for n, back in enumerate(backs):
        if pre and n == pre - 1:
            pre_loads()
        ex_n = npre if pre and n >= pre - 1 else 0
        publish(back, False) if back >= 0 else A(f"s_add_u32 s{sA}, s{sS}, 1\nv_mov_b32 v{vPub}, s{sA}")
        A(f"s_waitcnt vmcnt({(16 * back + 8 if back >= 0 else 0) + ex_n})\nds_write_b32 v{vDoneA}, v{vPub}")
    if pre > len(backs):
        pre_loads()
    A("L_ldone:")
    st(4)
    dump_stamps(0)
    A("s_endpgm")
    for tag in map(str, range(nlev)):
        A(f"L_sw_{tag}:")
        budget()
        A(f"ds_read_b32 v{vDn}, v{vT3} offset:4\nds_read_b64 {vr(vRow, 2)}, v{vT2}\ns_waitcnt lgkmcnt(0)\nv_readfirstlane_b32 s{sA}, v{vDn}\ns_nop 0")
        A(f"s_cmp_eq_u32 s{sA}, 0\ns_cbranch_scc1 L_sw_{tag}")
        A(f"s_mov_b32 s{sTile}, 0\ns_mov_b32 s{sSw}, -1\ns_branch L_swd_{tag}")
    for tag in "ae":
        A(f"L_full_{tag}:")
        budget()
        A(f"ds_read_b32 v{vDn}, v{vDnA}\ns_waitcnt lgkmcnt(0)")
        min4(sFree, NS)
        A(f"s_cmp_lt_u32 s{sS}, s{sFree}\ns_cbranch_scc0 L_full_{tag}\ns_branch L_free_{tag}")

    A("L_pacer:")
    sPos, sIdx, sLine, sNx = 54, 55, 56, 57
    A(f"s_add_u32 s{sCnt}, s{sCntA}, s{sCntB}\ns_lshr_b32 s{sIdx}, s2, 3")
    A(f"s_sub_u32 s{sA}, s{sCnt}, {base}\ns_mul_i32 s{sA}, s{sA}, {sg}\ns_add_u32 s{sA}, s{sA}, {128 - sg * 3 // 4}\ns_ashr_i32 s{sA}, s{sA}, 8")
    A(f"s_min_i32 s{sA}, s{sA}, {amax}\ns_max_i32 s{sA}, s{sA}, {-amin}\nv_mov_b32 v101, s{sA}\nv_mov_b32 v{vT3}, {A_SIG + 8}\nds_write_b32 v{vT3}, v101")
    A(f"s_lshl_b32 s{sA}, s{sH}, 7\ns_add_u32 s{sLine}, s{sA}, {64 * 6 * BOX}\nv_and_b32 v98, 31, v{vLane}\nv_lshlrev_b32 v98, 2, v98")
    A(f"s_lshl_b64 s[58:59], 1, s{sIdx}\nbuffer_load_dword v99, v98, {SWS}, s{sLine} offen sc1")
    A(f"s_mov_b32 s{sA}, {hex(f2u(bib))}\ns_cmp_eq_u32 s34, {th2}\ns_cselect_b32 s{sA}, {hex(f2u(bia))}, s{sA}\nv_mov_b32 v104, s{sA}")
    A(f"s_and_b32 s{sNx}, s{sIdx}, 1\ns_add_u32 s{sNx}, s{sNx}, {fb0}\ns_waitcnt vmcnt(0)")
    A("L_pc0:")
    A(f"s_cmp_ge_u32 s{sNx}, s{sCnt}\ns_cbranch_scc1 L_end")
    A("L_pc1:")
    budget()
    if fsleep:
        A(f"s_sleep {fsleep}")
    A(f"ds_read_b32 v{vF}, v{vRdyA} offset:4\ns_waitcnt lgkmcnt(0)\nv_readfirstlane_b32 s{sF}, v{vF}\ns_nop 0")
    A(f"s_cmp_lt_i32 s{sF}, s{sNx}\ns_cbranch_scc1 L_pc1")
    A(f"s_sub_u32 s{sBb}, s{sCnt}, s{sF}\ns_sub_u32 s{sPos}, 128, s{sBb}\nv_add_u32 v102, s{sPos}, v99\ns_mov_b64 exec, s[58:59]")
    A(f"buffer_store_dword v102, v98, {SWS}, s{sLine} offen\ns_mov_b64 exec, -1")
    A(f"buffer_load_dword v100, v98, {SWS}, s{sLine} offen sc1")
    A(f"s_add_u32 s{sNx}, s{sF}, 2\ns_sub_u32 s{sA}, s{sBb}, 2\ns_min_i32 s{sA}, s{sA}, {rhi}\ns_max_i32 s{sA}, s{sA}, {rlo}")
    A(f"v_cvt_f32_u32 v102, s{sA}\ns_lshl_b32 s{sD}, s{sPos}, 5\ns_sub_u32 s{sD}, s{sD}, {foff}\nv_rcp_f32 v102, v102\ns_waitcnt vmcnt(0)")
    A(f"v_sub_u32 v101, v100, v99\nv_cmp_eq_u32 vcc, 0, v101\ns_nop 0")
    for sh in (1, 2, 4, 8):
        A(f"v_add_u32_dpp v101, v101, v101 row_shr:{sh} row_mask:0xf bank_mask:0xf bound_ctrl:0\ns_nop 1")
    A(f"v_add_u32_dpp v101, v101, v101 row_bcast:15 row_mask:0xa bank_mask:0xf\ns_cbranch_vccnz L_pc0")
    A(f"v_subrev_u32 v101, s{sD}, v101\nv_cvt_f32_i32 v101, v101\nv_mul_f32 v101, {hex(f2u(fbg / 32))}, v101\nv_fma_f32 v101, v101, v102, v104")
    A(f"v_rndne_f32 v101, v101\nv_cvt_i32_f32 v101, v101\nv_med3_i32 v101, v101, {-amin}, {amax}")
    A(f"s_mov_b32 exec_lo, 0x80000000\ns_mov_b32 exec_hi, 0\nds_write_b32 v{vT3}, v101\ns_mov_b64 exec, -1\ns_branch L_pc0")

    A("L_helper:")
    a_0, a_1, p_0, p_1, hh, tt, one = 64, 65, 66, 67, 68, 96, 75
    A(f"s_waitcnt vmcnt({hw0})\nds_read_b64 {vr(vRow, 2)}, v{vT2}")
    A(f"v_mov_b32 v{a_0}, {A_HIST}\nv_mov_b32 v{a_1}, {A_HIST + 512}\nv_add_u32 v{vT3}, {A_HIST}, v{vL16}")
    A(f"v_cndmask_b32 v{p_0}, v{a_1}, v{a_0}, vcc\nv_cmp_gt_u32 vcc, s{sCnt}, v{vRow + 2}\nv_mov_b32 v{one}, 1")
    A(f"s_waitcnt lgkmcnt(0)\nv_bfe_u32 v{a_0}, v{vRow}, {bsh}, 7\nv_bfe_u32 v{a_1}, v{vRow + 1}, {bsh}, 7")
    A(f"v_lshl_add_u32 v{a_0}, v{a_0}, 2, v{p_0}\nv_lshl_add_u32 v{a_1}, v{a_1}, 2, v{p_0}")
    A(f"s_mov_b64 s[48:49], vcc\ns_mov_b64 exec, vcc")
    A(f"ds_add_rtn_u32 v{p_0}, v{a_0}, v{one}\nds_add_rtn_u32 v{p_1}, v{a_1}, v{one}")
    A(f"s_mov_b64 exec, -1\nds_read_b128 {vr(hh, 4)}, v{vT3}")
    A(f"v_lshlrev_b32 v{vRow}, 15, v{vRow}\nv_lshlrev_b32 v{vRow + 1}, 15, v{vRow + 1}\ns_waitcnt lgkmcnt(0)")
    A(f"v_add_u32 v{hh + 1}, v{hh}, v{hh + 1}\nv_add_u32 v{hh + 2}, v{hh + 1}, v{hh + 2}\nv_add_u32 v{hh + 3}, v{hh + 2}, v{hh + 3}")
    A(f"v_mov_b32 v{tt}, v{hh + 3}\ns_nop 1")
    for sh in (1, 2, 4, 8):
        A(f"v_add_u32_dpp v{tt}, v{tt}, v{tt} row_shr:{sh} row_mask:0xf bank_mask:0xf bound_ctrl:0\ns_nop 1")
    A(f"v_add_u32_dpp v{tt}, v{tt}, v{tt} row_bcast:15 row_mask:0xa bank_mask:0xf\ns_nop 1")
    A(f"v_add_u32_dpp v{tt}, v{tt}, v{tt} row_bcast:31 row_mask:0xc bank_mask:0xf")
    A(f"v_sub_u32 v{tt}, v{tt}, v{hh + 3}")
    for j in range(3):
        A(f"v_add_u32 v{tt + 1 + j}, v{tt}, v{hh + j}")
    A(f"ds_write_b128 v{vT3}, {vr(tt, 4)}\nds_read_b32 v{a_0}, v{a_0}\nds_read_b32 v{a_1}, v{a_1}")
    A(f"v_mov_b32 v{vT3}, {A_LIST}\nv_mov_b32 v{vT2}, {A_SIG}\ns_mov_b64 exec, s[48:49]\ns_waitcnt lgkmcnt(0)")
    A(f"v_add_u32 v{p_0}, v{p_0}, v{a_0}\nv_add_u32 v{p_1}, v{p_1}, v{a_1}")
    A(f"v_lshl_add_u32 v{p_0}, v{p_0}, 2, v{vT3}\nv_lshl_add_u32 v{p_1}, v{p_1}, 2, v{vT3}")
    A(f"ds_write_b32 v{p_0}, v{vRow}\nds_write_b32 v{p_1}, v{vRow + 1}")
    A(f"s_mov_b64 exec, -1\nds_write_b32 v{vT2}, v{one} offset:4")
    st(5)
    A(f"s_setprio 0\ns_mov_b32 s{sItem}, 1")
    A(f"s_cmp_eq_u32 s{sCntA}, 0\ns_cselect_b32 s{sCntB}, 0, s{sCntB}")

    def pb_free(tag):
        A(f"s_branch L_hfree_{tag}")
        A(f"L_hfree0_{tag}:")
        budget()
        if psleep:
            A(f"s_sleep {psleep}")
        A(f"L_hfree_{tag}:")
        A(f"ds_read_b32 v{vDn}, v{vDnA} offset:1536\ns_waitcnt lgkmcnt(0)")
        min4(sA, 0)
        A(f"s_cmp_lt_u32 s{sA}, s{sItem}\ns_cbranch_scc1 L_hfree0_{tag}")

    def pb_publish():
        A(f"s_add_u32 s{sItem}, s{sItem}, 1\nv_mov_b32 v{vPub}, s{sItem}\ns_waitcnt vmcnt(0)\nds_write_b32 v{vDoneA}, v{vPub}")

    def q_item(w):
        A(f"s_lshl_b32 s{sO1}, s{sB}, 3\ns_add_u32 s{sO1}, s{sO1}, s{sH}\ns_lshl_b32 s{sO1}, s{sO1}, 15\ns_xor_b32 s{sO0}, s{sO1}, s{sPar}")
        for r in range(32):
            A(f"s_mov_b32 m0, {PB + r * 1088 - (r & 3) * 1024}")
            if r and (r & 3) == 0:
                A(f"s_add_u32 s{sO1}, s{sO1}, 4096\ns_xor_b32 s{sO0}, s{sO1}, s{sPar}")
            elif w and r >= w:
                A(f"s_waitcnt vmcnt({w - 1})")
            else:
                A("s_nop 0")
            A(f"buffer_load_dwordx4 v{vQd}, {SQ}, s{sO0} offen offset:{(r & 3) * 1024} {q2pol} lds")

    def wait_progress(tag):
        A(f"s_branch L_hp_{tag}")
        A(f"L_hp0_{tag}:")
        budget()
        if psleep:
            A(f"s_sleep {psleep}")
        A(f"L_hp_{tag}:")
        A(f"ds_read_b32 v{vF}, v{vRdyA}\ns_waitcnt lgkmcnt(0)\nv_readfirstlane_b32 s{sF}, v{vF}\ns_nop 0")
        A(f"s_cmp_lt_u32 s{sF}, s{sNeed}\ns_cbranch_scc1 L_hp0_{tag}")

    A(f"s_lshl_b32 s{sA}, s{sGrp}, 2\nv_mov_b32 v{vDb}, s{sA}\ns_getreg_b32 s{sA}, hwreg(HW_REG_XCC_ID, 0, 4)")
    A(f"s_or_b32 s{sD}, s{sA}, 16\ns_lshl_b32 s{sBb}, s{sRole}, 3\ns_lshl_b32 s{sA}, s{sD}, s{sBb}\ns_mul_i32 s{sK}, s{sD}, 0x01010101")
    A(f"s_waitcnt vmcnt(0)\nv_mov_b32 v{vPoll}, s{sA}")
    A(f"ds_write_b32 v{vDoneA}, v{vF0} offset:1536")
    A(f"s_mov_b64 exec, 1\nbuffer_atomic_or v{vPoll}, v{vDb}, {SD}, 0 offen sc1\ns_mov_b64 exec, -1")
    st(2)
    A(f"s_cmp_eq_u32 s{sCntB}, 0\ns_cbranch_scc1 L_hq2")
    A(f"s_mov_b32 s{sB}, s{sBB}")
    pb_free("q")
    q_item(hwin)
    A(f"v_mov_b32 v{vPub}, 1\ns_waitcnt vmcnt(0)\nds_write_b32 v{vDoneA}, v{vPub}")
    A("L_hq2:")
    A(f"s_lshr_b32 s{sIt}, s2, 3\ns_and_b32 s{sIt}, s{sIt}, {cmask}")
    if rmode < 2:
        A(f"s_add_u32 s{sNeed}, s{sIt}, {chk0}\ns_min_u32 s{sNeed}, s{sNeed}, s{sCnt}")
        wait_progress("c")
        A("s_branch L_hchk")
        A("L_hchk0:")
        budget()
        if psleep:
            A(f"s_sleep {4 * psleep}")
        A("L_hchk:")
        A(f"buffer_load_dword v{vPoll2}, v{vDb}, {SD}, 0 offen sc1\ns_waitcnt vmcnt(0)")
        A(f"v_readfirstlane_b32 s{sA}, v{vPoll2}\ns_nop 0\ns_and_b32 s{sBb}, s{sA}, 0x10101010\ns_cmp_eq_u32 s{sBb}, 0x10101010\ns_cbranch_scc0 L_hchk0")
        A(f"s_cmp_eq_u32 s{sA}, s{sK}\ns_cselect_b32 s{sK}, 1, 2")
    if force or rmode >= 2:
        A(f"s_mov_b32 s{sK}, {force or 1}")
    A(f"v_mov_b32 v{vPoll2}, s{sK}")
    A(f"v_mov_b32 v{vT2}, {A_SIG}\nds_write_b32 v{vT2}, v{vPoll2}")
    A(f"s_cmp_eq_u32 s{sRole}, 1\ns_cbranch_scc0 L_hdone\ns_cmp_eq_u32 s{sCntA}, 0\ns_cbranch_scc1 L_hdone")
    A(f"s_mov_b32 s{sItem}, 2")
    pb_free("h")
    A(f"v_add_u32 v{vT3}, {PB}, v{vL16}\nv_mul_u32_u24 v{vT2}, 8704, v{vT0}\nv_lshl_add_u32 v{vT2}, v{vT1}, 4, v{vT2}")
    A(f"v_add_u32 v{vT2}, {PB + 8192}, v{vT2}")
    for r in range(32):
        A(f"ds_read_b128 {vr(HR + 4 * r, 4)}, v{vT3} offset:{(r >> 3) * 8704 + (r & 7) * 1024}")
    A(f"ds_read_b128 {vr(HR + 128, 4)}, v{vT2}")
    box_off(sE2, 4)
    A(f"v_lshrrev_b32 v{vT2}, 3, v{vT1}\nv_mul_u32_u24 v{vT2}, {BOX}, v{vT2}\nv_lshl_add_u32 v{vT2}, v{vT0}, 7, v{vT2}")
    A(f"v_and_b32 v{vT3}, 7, v{vT1}\nv_lshl_add_u32 v{vT2}, v{vT3}, 4, v{vT2}")
    A(f"v_add_u32 v{vF0}, 1, v{vF0}")
    A(f"s_cmp_eq_u32 s{sK}, 1\ns_cselect_b32 s{sA}, {lead}, 1\ns_sub_u32 s{sNeed}, s{sCnt}, s{sA}\ns_max_i32 s{sNeed}, s{sNeed}, 0")
    wait_progress("h")
    st(3)
    A(f"s_cmp_eq_u32 s{sK}, 1\ns_cbranch_scc0 L_hwt")
    for pl in (hpol, "sc1"):
        if pl == "sc1":
            A("L_hwt:")
        for r in range(32):
            if (r & 3) == 0:
                A(f"s_add_u32 s{sO1}, s{sE2}, {((r >> 2) & 1) * BOX + (r >> 3) * 4096}")
            A(f"buffer_store_dwordx4 {vr(HR + 4 * r, 4)}, v{vL16}, {SWS}, s{sO1} offen offset:{(r & 3) * 1024} {pl}")
        A(f"s_add_u32 s{sO0}, s{sE2}, 16384")
        A(f"buffer_store_dwordx4 {vr(HR + 128, 4)}, v{vT2}, {SWS}, s{sO0} offen {pl}")
        A("s_mov_b64 exec, 0xff0000\ns_waitcnt vmcnt(0)")
        A(f"buffer_store_dword v{vF0}, v{vFa}, {SWS}, 0 offen {pl}")
        A("s_mov_b64 exec, -1")
        if pl != "sc1":
            A("s_branch L_hdone")
    A("L_hdone:")
    if trace:
        A(f"s_cmp_eq_u32 s{sRole}, 0\ns_cbranch_scc0 L_end")
        A(f"s_mov_b32 s{sIt}, 0\nv_mov_b32 v100, 0\nv_mov_b32 v101, 0\nv_mov_b32 v102, 0\nv_mov_b32 v103, 0")
        A("L_tr:")
        A(f"s_memrealtime s[84:85]\ns_memtime s[86:87]\nds_read_b32 v{vF}, v{vRdyA}\nds_read_b32 v{vDn}, v{vDnA}\ns_waitcnt lgkmcnt(0)")
        A(f"v_readfirstlane_b32 s{sF}, v{vF}\nv_readfirstlane_b32 s{sA}, v{vDn}\ns_mov_b32 m0, s{sIt}\ns_nop 3")
        A(f"v_writelane_b32 v100, s84, m0\nv_writelane_b32 v101, s86, m0\nv_writelane_b32 v102, s{sF}, m0\nv_writelane_b32 v103, s{sA}, m0")
        A("L_tr2:")
        A(f"s_sleep 2\ns_memrealtime s[88:89]\ns_waitcnt lgkmcnt(0)\ns_sub_u32 s{sA}, s88, s84\ns_cmp_lt_u32 s{sA}, {trace}\ns_cbranch_scc1 L_tr2")
        A(f"s_add_u32 s{sIt}, s{sIt}, 1\ns_cmp_ge_u32 s{sF}, s{sCnt}\ns_cbranch_scc1 L_tr3\ns_cmp_lt_u32 s{sIt}, 64\ns_cbranch_scc1 L_tr")
        A("L_tr3:")
        A(f"s_lshl_b32 s{sA}, s2, 10\ns_add_u32 s{sA}, s{sA}, {WSB - 64 * 1024}")
        A(f"buffer_store_dwordx4 v[100:103], v{vL16}, {SWS}, s{sA} offen")
    st(4)
    dump_stamps(64)
    A("s_endpgm")

    A("L_consumer:")
    A(f"v_lshlrev_b32 v{vG4}, 2, v{vT0}")
    A(f"v_lshrrev_b32 v{vT2}, 2, v{vT1}\nv_mul_u32_u24 v{vT2}, 1088, v{vT2}\nv_and_b32 v{vT3}, 3, v{vT1}")
    A(f"v_lshl_add_u32 v{vKc}, v{vT3}, 8, v{vT2}\nv_xor_b32 v{vU}, v{vT3}, v{vT0}\nv_lshl_add_u32 v{vKc}, v{vU}, 4, v{vKc}")
    A(f"v_lshl_add_u32 v{vT2}, v{vT0}, 8, v{vT2}\nv_lshl_add_u32 v{vT2}, v{vT3}, 3, v{vT2}\nv_add_u32 v{vT2}, 8704, v{vT2}")
    A(f"v_and_b32 v{vU}, 1, v{vT0}\nv_lshl_add_u32 v{vV0c}, v{vU}, 5, v{vT2}\nv_xor_b32 v{vV1c}, 32, v{vV0c}")
    A(f"v_lshlrev_b32 v{vQo}, 8, v{vT1}\nv_lshl_add_u32 v{vQo}, v{vU}, 5, v{vQo}\nv_lshrrev_b32 v{vU}, 1, v{vT0}\nv_lshl_add_u32 v{vQo}, v{vU}, 4, v{vQo}")
    if fullrow:
        A(f"v_lshrrev_b32 v{vU}, 3, v{vT1}\nv_mul_u32_u24 v{vU}, {2048 - 64}, v{vU}\nv_sub_u32 v{vQo}, v{vQo}, v{vU}")
    for j in range(4):
        A(f"v_mov_b32 v{ON + j}, 0x3f803f80")
    A(f"v_lshlrev_b32 v{vPL}, 3, v{vT1}\nv_mov_b32 v{vPd}, 0")
    A(f"s_mov_b32 s{sT}, 0\ns_mov_b32 s{sOffK}, 0\ns_mov_b32 s{sItem}, 0")
    sSd, sSs, sFo, sOut, sPi, sHi, sPs, sHs, sPd, sHd, sMy, sLp, sLh = range(48, 61)
    sCs, sCr, sCt = 61, 62, 63
    A(f"s_mov_b32 s{sCs}, {SLOT}\ns_mov_b32 s{sCr}, {RING}\ns_mov_b32 s{sCt}, {hex(f2u(T))}")
    A(f"s_bitcmp1_b32 s{sRole}, 0\ns_cselect_b32 s{sOut}, s{sBB}, s{sBA}")
    A(f"s_lshl_b32 s{sOut}, s{sOut}, 3\ns_add_u32 s{sOut}, s{sOut}, s{sH}\ns_lshl_b32 s{sOut}, s{sOut}, 2\n"
      f"s_add_u32 s{sOut}, s{sOut}, s{sW}\ns_lshl_b32 s{sOut}, s{sOut}, 13\ns_add_u32 s{sOut}, s{sOut}, s{sPar}")
    box_off(sMy, f"s{sRole}")
    A(f"s_lshl_b32 s{sC}, s{sW}, 12\ns_lshl_b32 s{sD}, s{sW}, 7\ns_add_u32 s{sD}, s{sD}, 16384\ns_add_u32 s{sFo}, s{sD}, 512")
    if alias:
        A(f"s_xor_b32 s{sSd}, s{sOut}, 4096")
    else:
        A(f"s_add_u32 s{sSd}, s{sMy}, s{sC}")
    A(f"s_add_u32 s{sSs}, s{sMy}, s{sD}")
    A(f"s_xor_b32 s{sLp}, s{sRole}, 2\ns_lshr_b32 s{sLh}, s{sRole}, 1\ns_add_u32 s{sLh}, s{sLh}, 4")
    A(f"s_cmp_eq_u32 s{sExp}, 0\ns_cselect_b32 s{sLh}, s{sLp}, s{sLh}")
    box_off(sPi, f"s{sLp}")
    box_off(sHi, f"s{sLh}")
    A(f"s_add_u32 s{sPs}, s{sPi}, s{sD}\ns_add_u32 s{sHs}, s{sHi}, s{sD}\ns_add_u32 s{sHd}, s{sHi}, s{sC}")
    A(f"s_mov_b32 s{sPd}, s{sOut}" if alias else f"s_add_u32 s{sPd}, s{sPi}, s{sC}")
    vPo, vSa = 246, 247
    A(f"v_mov_b32 v{vSa}, s{sRole}\nv_writelane_b32 v{vSa}, s{sLp}, 0\nv_writelane_b32 v{vSa}, s{sLh}, 1")
    A(f"v_mov_b32 v{vPo}, s{sMy}\nv_writelane_b32 v{vPo}, s{sPi}, 0\nv_writelane_b32 v{vPo}, s{sHi}, 1")
    A(f"s_lshl_b32 s{sA}, s{sW}, 2\ns_add_u32 s{sA}, s{sA}, {A_SIG + 256}\nv_lshl_add_u32 v{vSa}, v{vSa}, 4, s{sA}")
    if nopart:
        for x in (sPs, sHs, sPd, sHd):
            A(f"s_mov_b32 s{x}, {hex(OOB)}")

    def zero_acc():
        for i in range(LA, O + 64):
            A(f"v_mov_b32 v{i}, 0")

    zero_acc()
    A(f"s_cmp_eq_u32 s{sCntA}, 0\ns_cselect_b32 s{sA}, s{sBB}, s{sBA}\ns_cmp_eq_u32 s{sA}, s{sB}\ns_cbranch_scc1 L_qok")
    A(f"s_mov_b32 s{sB}, s{sA}")
    q_own()
    A("s_waitcnt vmcnt(0)")
    q_own_loads()
    A("L_qok:")
    A(f"s_cmp_eq_u32 s{sCntA}, 0\ns_cbranch_scc1 L_segB")
    A(f"s_mov_b32 s{sCnt}, s{sCntA}\ns_bitcmp1_b32 s{sZ}, 0\ns_branch L_seg")
    A("L_segB:")
    A(f"s_cmp_eq_u32 s{sCntB}, 0\ns_cbranch_scc1 L_empty")
    A(f"s_mov_b32 s{sB}, s{sBB}\ns_mov_b32 s{sCnt}, s{sCntB}\ns_mov_b32 s{sCntA}, 0\ns_bitcmp1_b32 s{sZ}, 1")

    def spin(tag, off=0, need=None, le=False):
        A(f"L_spin_{tag}:")
        budget()
        A(f"ds_read_b32 v{vF}, v{vRdyA} offset:{off}\ns_waitcnt lgkmcnt(0)\nv_readfirstlane_b32 s{sF}, v{vF}\ns_nop 0")
        A(f"s_cmp_{'le' if le else 'lt'}_u32 s{sF}, s{need or sNeed}\ns_cbranch_scc1 L_spin_{tag}")

    def addrs():
        return [f"v_add_u32 v{vK}, s{sOffK}, v{vKc}", f"v_add_u32 v{vV0}, s{sOffK}, v{vV0c}",
                f"v_add_u32 v{vV1}, s{sOffK}, v{vV1c}"]

    def kreads(dst=KF):
        return [f"ds_read_b128 {vr(dst + 4 * f, 4)}, v{vK} offset:{(f & 1) * 4352 + (f >> 1) * 64}" for f in range(8)]

    def vreads(dst=VF):
        return [f"ds_read_b64_tr_b16 {vr(dst + 4 * dt + 2 * u, 2)}, v{vV1 if dt & 1 else vV0} "
                f"offset:{u * 4352 + (dt >> 1) * 64}" for dt in range(8) for u in range(2)]

    MF = "v_mfma_f32_16x16x32_bf16"

    def qk(first):
        out = []
        for ks, kh in ([(a, b) for a in range(4) for b in range(2)] if first else [(a, b) for b in range(2) for a in range(4)]):
            if True:
                for qh in range(2):
                    d = vr(S + 8 * qh + 4 * kh, 4)
                    c = d if ks else ("0" if first else vr(CM + 4 * qh, 4))
                    out.append(f"{MF} {d}, {vr(KF + 4 * (2 * ks + kh), 4)}, {vr(Q + 4 * (2 * ks + qh), 4)}, {c}")
        return out

    def pv(dt, qh, src=VF):
        d = vr(O + 32 * qh + 4 * dt, 4)
        return f"{MF} {d}, {vr(src + 4 * dt, 4)}, {vr(P + 4 * qh, 4)}, {d}"

    def rs(qh):
        return f"{MF} {vr(LA + 4 * qh, 4)}, {vr(ON, 4)}, {vr(P + 4 * qh, 4)}, {vr(LA + 4 * qh, 4)}"

    def cvt(j):
        return f"v_cvt_pk_bf16_f32 v{P + j}, v{E + 2 * j}, v{E + 2 * j + 1}"

    def maxes():
        o = []
        for a in (0, 3, 5):
            for qh, m in ((0, vMx), (1, vMx2)):
                b = S + 8 * qh + a
                o.append(f"v_max3_f32 v{m}, v{b}, v{b + 1}, v{b + 2}" if a == 0 else f"v_max3_f32 v{m}, v{m}, v{b}, v{b + 1}")
        return o

    def new_max(floor0):
        A(f"v_max_f32 v{vMx}, v{vMx}, v{S + 7}\nv_max_f32 v{vMx2}, v{vMx2}, v{S + 15}")
        for sw in ("v_permlane32_swap_b32", "v_permlane16_swap_b32"):
            A(f"v_mov_b32 v{vT0}, v{vMx}\nv_mov_b32 v{vT1}, v{vMx2}\ns_nop 0")
            A(f"{sw} v{vMx}, v{vT0}\n{sw} v{vMx2}, v{vT1}\ns_nop 0")
            A(f"v_max_f32 v{vMx}, v{vMx}, v{vT0}\nv_max_f32 v{vMx2}, v{vMx2}, v{vT1}")
        if floor0:
            A(f"v_max_f32 v{vMx}, 0, v{vMx}\nv_max_f32 v{vMx2}, 0, v{vMx2}")
        A(f"v_ceil_f32 v{vMx}, v{vMx}\nv_ceil_f32 v{vMx2}, v{vMx2}")

    def exp_shifted():
        for i in range(16):
            A(f"v_sub_f32 v{E + i}, v{S + i}, v{vMx if i < 8 else vMx2}")
        for i in range(16):
            A(f"v_exp_f32 v{E + i}, v{E + i}")

    def scale_acc(f, with_la=True):
        for qh in range(2):
            sel = "op_sel_hi:[1,0]" if qh == 0 else "op_sel:[0,1] op_sel_hi:[1,1]"
            for i in range(16):
                r = O + 32 * qh + 2 * i
                A(f"v_pk_mul_f32 {vr(r, 2)}, {vr(r, 2)}, {vr(f, 2)} {sel}")
            if with_la:
                A(f"v_mul_f32 v{LA + 4 * qh}, v{f + qh}, v{LA + 4 * qh}")

    def pack_o(i, dst=KF):
        for j in range(4):
            r = O + 8 * i + 2 * j
            A(f"v_cvt_pk_bf16_f32 v{dst + 4 * i + j}, v{r}, v{r + 1}")

    def park():
        A(f"v_add_u32 v{vT2}, s{sOffQ}, v{vL16}\nv_add_u32 v{vT3}, s{sOffQ}, v{vPL}")
        A(f"v_mov_b32 v{CM + 1}, v{LA}\nv_mov_b32 v{CM + 5}, v{LA + 4}")
        A(f"ds_write_b64 v{vT3}, {vr(CM, 2)} offset:8192\nds_write_b64 v{vT3}, {vr(CM + 4, 2)} offset:8320")
        for i in range(8):
            pack_o(i)
            A(f"ds_write_b128 v{vT2}, {vr(KF + 4 * i, 4)} offset:{i * 1024}")
        zero_acc()

    A("L_seg:")
    c = f2u(1.4426950408889634 / 128 ** 0.5)
    A(f"s_cselect_b32 s{sScale}, 0, {hex(c)}")
    A(f"s_add_u32 s{sEnd}, s{sT}, s{sCnt}\ns_add_u32 s{sNeed}, s{sT}, 1")
    A(f"s_cmp_eq_u32 s{sRole}, 1\ns_cselect_b32 s{sRet}, s{sCntA}, 0")
    A(f"v_add_u32 v{vK}, s{sOffQ}, v{vKc}\nv_mov_b32 v{vF2}, s{sScale}")
    A(f"s_cmp_eq_u32 s{sT}, 0\ns_cbranch_scc0 L_hold")
    A("s_waitcnt vmcnt(0)")
    AL(kreads(Q))
    A("L_nohold:")
    A(f"v_add_u32 v{vPd}, 1, v{vPd}\nds_write_b32 v{vDoneA}, v{vPd} offset:1536")
    A(f"v_add_u32 v{vK}, s{sOffK}, v{vKc}\nv_mov_b32 v{vDone}, s{sNeed}")
    AL(adv(sOffK))
    for t in range(8):
        A(f"s_waitcnt lgkmcnt({8 - t})")
        for j in range(4):
            r = Q + 4 * t + j
            A(f"v_lshlrev_b32 v{vU + 2 * j}, 16, v{r}\nv_and_b32 v{vU + 2 * j + 1}, 0xffff0000, v{r}")
        for j in range(4):
            A(f"v_pk_mul_f32 {vr(vU + 2 * j, 2)}, {vr(vU + 2 * j, 2)}, {vr(vF2, 2)} op_sel_hi:[1,0]")
        for j in range(4):
            A(f"v_cvt_pk_bf16_f32 v{Q + 4 * t + j}, v{vU + 2 * j}, v{vU + 2 * j + 1}")
    if not st2:
        st(2)
    spin("p0")
    if not st2:
        st(3)
    AL(kreads())
    A(f"ds_write_b32 v{vDoneA}, v{vDone}")
    A(f"s_add_u32 s{sNeed}, s{sT}, 2\ns_min_u32 s{sNeed}, s{sNeed}, s{sEnd}")
    A(f"v_sub_u32 v{vT2}, s{sNv}, v{vG4}")
    A(f"v_mov_b32 v{vT3}, 0xff800000")
    for i, x in enumerate(qk(True)):
        if i % 2 == 0:
            A(f"s_waitcnt lgkmcnt({8 - i // 2})")
        A(x)
    AL(addrs())
    spin("p1")
    AL(kreads())
    A(f"s_cmp_eq_u32 s{sNv}, 32\ns_cbranch_scc1 L_nomask")
    for kh in range(2):
        for r in range(4):
            a = S + 4 * kh + r
            A(f"v_cmp_lt_i32 vcc, {16 * kh + r}, v{vT2}\ns_nop 1\nv_cndmask_b32 v{a}, v{vT3}, v{a}, vcc\n"
              f"v_cndmask_b32 v{a + 8}, v{vT3}, v{a + 8}, vcc")
    A("L_nomask:")
    AL(maxes())
    new_max(False)
    for i in range(8):
        A(f"v_sub_f32 v{CM + i}, 0, v{vMx if i < 4 else vMx2}")
    exp_shifted()
    A(f"s_waitcnt lgkmcnt(0)\ns_sub_u32 s{sIt}, s{sCnt}, 2\ns_cbranch_scc1 L_final")

    A(".p2align 3")
    A("L_loop:")
    loop_start = len(L)
    vrd = vreads()
    f_inc, f_wr, f_rd = f"v_add_u32 v{vDone}, 1, v{vDone}", f"ds_write_b32 v{vDoneA}, v{vDone}", f"ds_read2st64_b32 {vr(vF2, 2)}, v{vRdyA} offset0:0 offset1:6"
    ex1 = lambda i: f"v_exp_f32 v{E + i}, v{S + i}"
    lg = lambda n: f"s_waitcnt lgkmcnt({n})"
    krd = kreads()
    krd = krd[0::2] + krd[1::2]
    mo = [0, 1, 2, 3, 8, 9, 10, 11, 4, 5, 6, 7, 12, 13, 14, 15]
    mxs = [f"v_max3_f32 v{vT0}, v{S + mo[0]}, v{S + mo[1]}, v{S + mo[2]}"]
    mxs += [f"v_max3_f32 v{vT0}, v{vT0}, v{S + mo[i]}, v{S + mo[i + 1]}" for i in range(3, 15, 2)]
    mxs += [f"v_max_f32 v{vT0}, v{vT0}, v{S + 15}", f"v_cmp_lt_f32 vcc, s{sCt}, v{vT0}"]
    aa = addrs()
    ad = [f"s_add_u32 s{sOffK}, s{sOffK}, s{sCs}", f"s_cmp_ge_u32 s{sOffK}, s{sCr}", f"s_cselect_b32 s{sOffK}, 0, s{sOffK}"]
    fa = [[vrd[i], cvt(j)] for i, j in enumerate((0, 1, 4, 5, 2, 3, 6, 7))]
    fa[0].insert(0, f"s_add_u32 s{sNeed}, s{sNeed}, 1")
    fa[1].insert(0, f"s_sub_u32 s{sIt}, s{sIt}, 1")
    fa[2].insert(0, f"s_cselect_b32 s{sA}, -1, s{sNeed}")
    for i in range(3):
        fa[3 + i].insert(0, ad[i])
    fa[7].insert(0, lg(7))
    fa += [[vrd[8], f_rd], [vrd[9], f_inc], [vrd[10], ex1(0)], [vrd[11], ex1(1)], [vrd[12], ex1(2)],
           [vrd[13], ex1(3)], [vrd[14], ex1(8)], [lg(6), vrd[15], f_wr]]
    for x, f in zip(qk(False), fa):
        A(x)
        AL(f)
    mf = []
    for dt in range(8):
        mf += [pv(dt, 1), pv(dt, 0)]
        if dt == 3:
            mf += [rs(0), rs(1)]
    if pvo == 1:
        mf = mf[:4]
        mf[2], mf[3] = mf[3], mf[2]
        mf += [pv(2, 1), pv(2, 0), pv(3, 0), pv(3, 1), rs(1), rs(0), pv(4, 0), pv(4, 1), pv(5, 1), pv(5, 0), pv(6, 0), pv(6, 1), pv(7, 1), pv(7, 0)]
    if pvo == 2:
        mf = mf[:4] + [pv(2, 0), pv(3, 0), rs(0), pv(2, 1), pv(3, 1), rs(1)] + [pv(d, 1) for d in range(4, 8)] + [pv(d, 0) for d in range(4, 8)]
    if nors:
        mf = [x if f"{vr(ON, 4)}" not in x else "s_nop 0" for x in mf]
    AL([mf[0], f"v_readfirstlane_b32 s{sF}, v{vF2}", aa[0]])
    AL([mf[1], ex1(9)])
    AL([mf[2], f"s_cmp_lt_u32 s{sF}, s{sA}", ex1(10)])
    AL([mf[3], "s_cbranch_scc1 L_slow"])
    A("L_back:")

    def phase_b(kr):
        k = list(kr) if kr else [None] * 8
        n = (lambda x: x) if kr else (lambda x: 0)
        A(ex1(11))
        fb = [[k[0], mxs[0], mxs[1]], [k[1], ex1(4)], [k[2], mxs[2], mxs[3]], [ex1(5)], [k[3], mxs[4], mxs[5]],
              [lg(n(4)), ex1(6)], [k[4], mxs[6], mxs[7]], [ex1(7)], [k[5], mxs[8], aa[1]], [ex1(12)],
              [k[6], aa[2]], [ex1(13)], [k[7], ex1(14)], [lg(n(4)), ex1(15)]]
        for i in range(4, 18):
            A(mf[i])
            AL([x for x in fb[i - 4] if x])

    phase_b(krd)
    if nocomp:
        keep = []
        for x in L[loop_start:]:
            y = x.strip()
            if nocomp & 1 and y.startswith("v_mfma"):
                continue
            if nocomp & 2 and y.startswith(("v_exp", "v_max", "v_cvt")):
                continue
            if nocomp & 4 and y.startswith(("ds_read_b128", "ds_read_b64_tr")):
                continue
            keep.append(x)
        L[loop_start:] = keep
        A("s_mov_b64 vcc, 0")
    A("s_cbranch_vccz L_loop\ns_branch L_rare")

    HB = Q

    def send_stats(spol=spol):
        A(f"v_mov_b32 v{CM + 5}, v{LA + 4}")
        if smask:
            A("s_mov_b64 exec, 0xffff")
        A(f"buffer_store_dwordx2 {vr(CM + 4, 2)}, v{vPL}, {SWS}, s{sSs} offen {spol}")
        if smask:
            A("s_mov_b64 exec, -1")

    def send(i, spol=spol):
        pack_o(i, Q)
        A(f"buffer_store_dwordx4 {vr(Q + 4 * i, 4)}, v{vL16}, {SO if alias else SWS}, s{sSd} offen offset:{(i & 3) * 1024} {spol}")

    def final():
        A("L_lastg:")
        phase_b([])
        A("s_cbranch_vccnz L_rare")
        A("L_final:")
        A(f"{f_rd}\ns_add_u32 s{sNeed}, s{sEnd}, 1\ns_mov_b32 s{sT}, s{sEnd}")
        for j in range(8):
            A(cvt(j))
        A("s_nop 0")
        A(rs(0))
        A(rs(1))
        A(f"s_cmp_lg_u32 s{sRet}, 0\ns_cbranch_scc1 L_final_a")
        A(f"s_waitcnt lgkmcnt(0)\nv_readfirstlane_b32 s{sF}, v{vF2}\nv_readfirstlane_b32 s{sK}, v{vF2 + 1}")
        A(f"s_cmp_ge_u32 s{sF}, s{sNeed}\ns_cbranch_scc1 L_final1")
        spin("f")
        A(f"L_final1:\nds_read_b32 v{vU + 1}, v{vSa}")
        AL(vrd)
        A(f"s_cmp_eq_u32 s{sK}, 1\ns_cbranch_scc1 L_final2")
        for pl in ("sc1", spol):
            send_stats(pl)
            for dt in range(8):
                A(f"s_waitcnt lgkmcnt({14 - 2 * dt})")
                A(pv(dt, 1))
                if dt >= 5:
                    send(dt - 1, pl)
            for dt in range(8):
                A(pv(dt, 0))
                if dt == 2:
                    send(7, pl)
                    st(4)
            if pl == "sc1":
                A("s_branch L_sentw\nL_final2:")

    A("L_slow:")
    A(f"s_cmp_ge_i32 s{sIt}, 0\ns_cbranch_scc1 L_slow1")
    if spincnt:
        A(f"s_waitcnt lgkmcnt(0)\ns_sub_u32 s{sSt + 2}, 0x400000, s{sBud}\ns_sub_u32 s{sSt + 4}, s{sF}, s{sNeed}\ns_add_u32 s{sSt + 4}, s{sSt + 4}, 100")
        st(3)
    if tail:
        A(f"v_readfirstlane_b32 s{sK}, v{vF2 + 1}\ns_cmp_lt_u32 s{sF}, s{sNeed}\ns_cselect_b32 s{sA}, 1, s{sRet}")
        A(f"s_xor_b32 s{sBb}, s{sK}, 1\ns_or_b32 s{sA}, s{sA}, s{sBb}\ns_cbranch_scc1 L_lastg")
        A("L_tail:")
        if st3:
            st(1)
        AL([f"ds_read_b32 v{vU + 1}, v{vSa}"] + aa[1:] + [lg(1)])
        vk = vreads(KF)
        m1 = [pv(dt, 1) for dt in range(2, 8)] + [rs(1)]
        ft = [[ex1(11), mxs[0]], [ex1(12), mxs[1]], [ex1(13), mxs[2]], [ex1(14), mxs[3]], [ex1(15), mxs[4]],
              [mxs[5], mxs[6]], [mxs[7], mxs[8]]]
        AL(vk[:2])
        for i in range(7):
            A(m1[i])
            AL(vk[2 * i + 2:2 * i + 4] + ft[i])
        if st3:
            st(2)
        A("s_cbranch_vccnz L_tail_fix")
        for j in range(4, 8):
            A(cvt(j))
        A(pv(2, 0))
        A(ex1(4))
        A(rs(1))
        for dt in range(8):
            A(lg(14 - 2 * dt))
            A(pv(dt, 1, KF))
            if dt == 4:
                if st3:
                    st(3)
                send_stats()
            if dt >= 5:
                send(dt - 1)
        for dt in range(3, 8):
            A(pv(dt, 0))
            if dt < 6:
                A(ex1(dt + 2))
            if dt == 4:
                send(7)
                st(4)
        A(rs(0))
        for j in range(4):
            A(cvt(j))
        A("s_nop 1")
        A(rs(0))
        for dt in range(8):
            A(pv(dt, 0, KF))
    else:
        final()
    A("L_sent:")
    st(5)
    if not nopart:
        A(f"v_add_u32 v{vU + 2}, 1, v{vU + 1}\ns_mov_b64 exec, 4\ns_waitcnt vmcnt(0)")
        A(f"buffer_store_dword v{vU + 2}, v{vPo}, {SWS}, s{sFo} offen")
        A("L_reld:")
        if st2:
            st(1)
        A(f"s_mov_b64 exec, 3\nv_mov_b32 v{vU + 3}, v{vU + 1}")
        A("L_poll0:")
        budget()
        A(f"buffer_load_dword v{vU + 3}, v{vPo}, {SWS}, s{sFo} offen {fpol}")
        if csleep:
            A(f"s_sleep {csleep}")
        A(f"s_waitcnt vmcnt({npoll})")
        A(f"v_cmp_eq_u32 vcc, v{vU + 3}, v{vU + 1}\ns_cbranch_vccnz L_poll0")
        A("s_mov_b64 exec, -1")
    st(6)
    A(f"buffer_load_dwordx2 {vr(vU + 4, 2)}, v{vPL}, {SWS}, s{sPs} offen {lpol}")
    A(f"buffer_load_dwordx2 {vr(vU + 6, 2)}, v{vPL}, {SWS}, s{sHs} offen {hlpol}")
    for i in range(4):
        A(f"buffer_load_dwordx4 {vr(HB + 16 + 4 * i, 4)}, v{vL16}, {SO if alias else SWS}, s{sPd} offen offset:{i * 1024} {lpol}")

    def unpack_fma(src, i, f, sel):
        for j in range(4):
            A(f"v_lshlrev_b32 v{E + 2 * j}, 16, v{src + j}\nv_and_b32 v{E + 2 * j + 1}, 0xffff0000, v{src + j}")
        for j in range(4):
            o = O + 8 * i + 2 * j
            A(f"v_pk_fma_f32 {vr(o, 2)}, {vr(E + 2 * j, 2)}, {vr(f, 2)}, {vr(o, 2)} {sel}")

    def finish(held):
        n = 8 if held else 4
        if held:
            for i in range(4):
                A(f"buffer_load_dwordx4 {vr(HB + 4 * i, 4)}, v{vL16}, {SWS}, s{sHd} offen offset:{i * 1024} {hlpol}")
        A(f"s_waitcnt vmcnt({n})")
        if st2:
            st(2)
        if held:
            A(f"v_min3_f32 v{vT0}, v{CM}, v{vU + 4}, v{vU + 6}")
        else:
            A(f"v_min_f32 v{vT0}, v{CM}, v{vU + 4}")
        A(f"v_sub_f32 v{vT2}, v{vT0}, v{CM}\nv_sub_f32 v{vMx}, v{vT0}, v{vU + 4}")
        if held:
            A(f"v_sub_f32 v{vMx2}, v{vT0}, v{vU + 6}")
        A(f"v_exp_f32 v{vT2}, v{vT2}\nv_exp_f32 v{vMx}, v{vMx}")
        A(f"v_exp_f32 v{vMx2}, v{vMx2}" if held else "s_nop 0")
        A(f"v_mul_f32 v{vT1}, v{vT2}, v{LA}\nv_fmac_f32 v{vT1}, v{vMx}, v{vU + 5}")
        if held:
            A(f"v_fmac_f32 v{vT1}, v{vMx2}, v{vU + 7}")
        A(f"v_rcp_f32 v{vT1}, v{vT1}\ns_nop 0\nv_mul_f32 v{vT2}, v{vT2}, v{vT1}\nv_mul_f32 v{vMx}, v{vMx}, v{vT1}")
        if held:
            A(f"v_mul_f32 v{vMx2}, v{vMx2}, v{vT1}")
        for i in range(16):
            A(f"v_pk_mul_f32 {vr(O + 2 * i, 2)}, {vr(O + 2 * i, 2)}, {vr(vT2, 2)} op_sel_hi:[1,0]")
        if held:
            for i in range(4):
                A(f"s_waitcnt vmcnt({7 - i})")
                unpack_fma(HB + 16 + 4 * i, i, vMx, "op_sel_hi:[1,0,1]")
        for i in range(4):
            if i < 2:
                A(f"s_waitcnt vmcnt({0 if i else 3})")
            if held:
                unpack_fma(HB + 4 * i, i, vMx, "op_sel:[0,1,0] op_sel_hi:[1,1,1]")
            else:
                unpack_fma(HB + 16 + 4 * i, i, vMx, "op_sel_hi:[1,0,1]")
            if fullrow:
                if i == 2:
                    out_store2(0)
            elif i:
                out_store(i - 1)
            pack_o(i)
        A("s_nop 1")
        if fullrow:
            out_store2(2)
        else:
            out_store(3)
        if st2:
            st(3)
        if stamp:
            A("s_waitcnt vmcnt(0)")
            st(7)
            A(f"s_cmp_eq_u32 s{sW}, {sw}\ns_cbranch_scc0 L_end")
        dump_stamps(32)
        A("s_endpgm")

    def out_store(i):
        d = KF + 4 * i
        A(f"v_permlane16_swap_b32 v{d}, v{d + 2}\nv_permlane16_swap_b32 v{d + 1}, v{d + 3}")
        A(f"buffer_store_dwordx4 {vr(d, 4)}, v{vQo}, {SO}, s{sOut} offen offset:{i * 64} {opol}")

    def out_store2(i):
        d = KF + 4 * i
        for x in (d, d + 4):
            A(f"v_permlane16_swap_b32 v{x}, v{x + 2}\nv_permlane16_swap_b32 v{x + 1}, v{x + 3}")
        for j in range(4):
            A(f"v_mov_b32 v{S + j}, v{d + j}")
        for j in range(4):
            A(f"v_mov_b32_dpp v{d + j}, v{d + 4 + j} row_ror:8 row_mask:0xf bank_mask:0xc")
        for j in range(4):
            A(f"v_mov_b32_dpp v{d + 4 + j}, v{S + j} row_ror:8 row_mask:0xf bank_mask:0x3")
        A(f"buffer_store_dwordx4 {vr(d, 4)}, v{vQo}, {SO}, s{sOut} offen offset:{i * 64} {opol}")
        A(f"buffer_store_dwordx4 {vr(d + 4, 4)}, v{vQo}, {SO}, s{sOut} offen offset:{2048 + i * 64} {opol}")

    A(f"s_cmp_lg_u32 s{sExp}, 0\ns_cbranch_scc1 L_fin_held")
    finish(False)
    A("L_fin_held:")
    finish(True)
    A("L_end:\ns_endpgm")

    if tail:
        final()
        A("s_branch L_sent")
        A("L_tail_fix:")
        for dt in range(2, 8):
            A(pv(dt, 0))
        A(rs(0))
        A("s_branch L_rare")
    A("L_final_a:")
    spin("g")
    AL(vrd)
    for dt in range(8):
        A(f"s_waitcnt lgkmcnt({14 - 2 * dt})")
        A(pv(dt, 1))
        A(pv(dt, 0))
    A("s_branch L_segB")
    A("L_sentw:")
    if nopart:
        A("s_branch L_sent")
    else:
        A(f"v_mov_b32 v{vT0}, {A_SIG}")
        A("L_peers:")
        budget()
        A(f"ds_read_b32 v{vF}, v{vT0}\nds_read_b32 v{vU + 1}, v{vSa}\ns_waitcnt lgkmcnt(0)\nv_readfirstlane_b32 s{sA}, v{vF}\ns_nop 0")
        A(f"s_cmp_eq_u32 s{sA}, 0\ns_cbranch_scc1 L_peers")
        A(f"v_add_u32 v{vU + 2}, 1, v{vU + 1}\ns_mov_b64 exec, 4\ns_waitcnt vmcnt(0)")
        A(f"buffer_store_dword v{vU + 2}, v{vPo}, {SWS}, s{sFo} offen sc1\ns_branch L_reld")
    A("L_hold:")
    spin("q", off=256, need=sItem, le=True)
    AL(kreads(Q))
    park()
    A("s_branch L_nohold")
    A("L_empty:")
    A(f"s_cmp_eq_u32 s{sT}, 0\ns_cbranch_scc1 L_empty1\ns_nop 5")
    park()
    A(f"v_add_u32 v{vPd}, 1, v{vPd}\nds_write_b32 v{vDoneA}, v{vPd} offset:1536")
    A("L_empty1:")
    A(f"v_mov_b32 v{CM}, {hex(BIG)}\nv_mov_b32 v{CM + 4}, {hex(BIG)}")
    A("s_waitcnt vmcnt(0)")
    send_stats("sc1")
    for i in range(4, 8):
        send(i, "sc1")
    A("s_branch L_sentw")
    A("L_slow1:")
    if sleep:
        A(f"s_branch L_slow2\nL_slow3:\ns_sleep {sleep}\nL_slow2:")
        budget()
        A(f"ds_read_b32 v{vF}, v{vRdyA}\ns_waitcnt lgkmcnt(0)\nv_readfirstlane_b32 s{sF}, v{vF}\ns_nop 0")
        A(f"s_cmp_lt_u32 s{sF}, s{sNeed}\ns_cbranch_scc1 L_slow3")
    else:
        spin("s")
    A("s_branch L_back")
    A("L_rare:")
    AL(maxes())
    new_max(True)
    A(f"v_exp_f32 v{vT2}, -v{vMx}\nv_exp_f32 v{vT3}, -v{vMx2}")
    for i in range(8):
        A(f"v_sub_f32 v{CM + i}, v{CM + i}, v{vMx if i < 4 else vMx2}")
    exp_shifted()
    scale_acc(vT2)
    A(f"s_cmp_lt_i32 s{sIt}, 0\ns_cbranch_scc1 L_final\ns_branch L_loop")

    A("L_code_end:")
    A(f""".section .rodata,"a"
.p2align 6
.amdhsa_kernel {NAME}
  .amdhsa_next_free_vgpr 256
  .amdhsa_next_free_sgpr 102
  .amdhsa_accum_offset 256
  .amdhsa_group_segment_fixed_size 0
  .amdhsa_kernarg_size 64
  .amdhsa_user_sgpr_count 2
  .amdhsa_user_sgpr_kernarg_segment_ptr 1
  .amdhsa_system_sgpr_workgroup_id_x 1
.end_amdhsa_kernel""")
    notes = {'L_next': '; ---- loader: one stage (K of tile s, V of tile s-1) per trip, copies that differ in the depth only', 'L_lsegend': '; ---- loader: V of the last tile, drain, then fetch the lines the hand-off will use', 'L_pacer': '; ==== wave 6: position report and depth correction (speed only)', 'L_helper': '; ==== wave 5: bucket sort of the block list, group hand-shake, second Q, held partial', 'L_consumer': '; ==== waves 0-3', 'L_seg': '; ---- segment start: Q (scaled by log2(e)/sqrt(D)), first tile with mask and true max', 'L_loop': '; ---- steady loop: S(t+1), P(t), V(t) reads | O += V(t) P(t), exp(t+1), max check, K(t+2) reads', 'L_slow': '; ---- next stage not there yet, or last trip; L_tail: the half that is sent goes first', 'L_sent': '; ---- hand-off word, wait for the partner, merge, normalise, store', 'L_lastg': '; ---- last two tiles in plain order', 'L_rare': '; ---- a score rose more than 2^8 above the max in use: move to the true running max', 'L_empty': '; ---- no keys of the batch this workgroup ends on', 'L_hold': '; ---- role 1 between its segments: park the partial of A in LDS', 'L_sentw': '; ---- write-through hand-off'}
    out = []
    for x in L:
        if x.endswith(":") and x[:-1] in notes:
            out.append(notes[x[:-1]])
        out.append(x)
    L[:] = out
    if nostore:
        L[:] = [x for x in L if not (x.strip().startswith("buffer_store") and "v[16:19]" not in x and "v[20:23]" not in x
                                     and "v[100:103], v239, s[20:23], s73 offen" != x.strip()[21:]
                                     and ((SWS in x and nostore & 1) or (SO in x and nostore & 2)))]
    return "\n".join(L) + "\n"


def parse(spec):
    kw = {}
    for kv in spec.split(","):
        if not kv or kv == "default":
            continue
        k, v = kv.split("=")
        try:
            kw[k] = int(v)
        except ValueError:
            try:
                kw[k] = float(v)
            except ValueError:
                kw[k] = v.replace("+", " ").replace("none", "")
    return kw


if __name__ == "__main__":
    from build import build
    import hz
    files = []
    for spec in sys.argv[1:]:
        txt = gen(**parse(spec))
        pr = hz.check(txt)
        for p in pr:
            print("HAZARD", p, file=sys.stderr)
        fn = "k_" + spec.replace("=", "").replace(",", "_").replace("+", "") + ".s"
        open(fn, "w").write(txt)
        build(fn)
        files.append(fn)
    print(" ".join(files))
```

```python
import sys
import struct

NAME = "standalone__paged_block_table_kv_pagedattention__sampling_kernel"
WSB = 537395200
KVB = 4100 * 32768
QB = 16 * 32 * 32 * 128 * 2

HDR = """; Paged GQA attention, B=16 Hq=32 Hkv=8 Sq=32 D=128 block=16, bf16.  Generated by the author's own script.
;
"""

PAIRS = [(4, 13), (9, 8), (14, 3), (0, 12), (5, 7), (10, 2), (15, 11), (1, 6)]


def f2u(x):
    return struct.unpack('<I', struct.pack('<f', x))[0]


def gen(NS=7, win=23, win2=27, ntail=0, gran=2, win0=16, n0=6, lag=1, dec0=16, decs=8,
        delta=0, ex=0, theta=2, lead=8, npoll=1, hwin=8, psleep=16, csleep=0, lprio=3, rdy0=2, chk0=20, rmode=1, cmask=15, base=48, kb=6, firstb=-1, th2=22, b1=4, pre=4, prepol='', k0=4, nosort=0, tail=1, st3=0, smask=0, sleep=2, pvo=0, qko=0, nors=0, sw=0, spincnt=0, bsh=5, touch=0, ra=2, rx=1, apol='sc1', fpol='sc1', alias=1, fullrow=0, st2=0, hpol='', hlpol='sc1', force=0, remap=0, w_lo=14, l0=1, l1=3, l2=4, fbg=12.0, rlo=4, rhi=16, amax=3, fb0=3, sg=60, foff=40, fsleep=4, nm=10, lm=2, q2pol='nt', q3=0, skipb=1, cpf=1, cpol='', ek=6, hw0=0, win1=20, n1=18, dmask=31, dmul=3,
        pol="nt", qpol="nt", opol="", spol="", lpol="sc1", T=8.0,
        stamp=0, trace=0, nocomp=0, noload=0, nopart=0, nostore=0):
    if firstb < 0:
        nt = [-(-(4096 - ((i + 1) * 2654435761) % 2048) // 32) for i in range(16)]
        firstb = sum(1 << i for i, (a, b) in enumerate(PAIRS) if nt[a] - nt[b] <= max(th2, 2 * theta))
    SLOT = 17408
    RING = NS * SLOT
    PB = RING
    A_DONE = PB + 2 * SLOT
    A_READY = A_DONE + 1024
    A_PDONE = A_DONE + 1536
    A_SIG = A_PDONE + 1024
    A_TAB = A_SIG + 512
    A_LIST = A_TAB + 2048
    A_HIST = A_LIST + 512
    LDS = A_HIST + 1024
    wmax = w_lo + 14
    assert LDS <= 163840
    assert NS >= wmax // 16 + lag + 3 and wmax <= 52
    BOX = 17408
    BIG = f2u(1e30)
    OOB = 0x40000000
    L = []

    def A(s):
        for x in s.split('\n'):
            L.append(x if x.endswith(':') or x.startswith(('.', ';')) else '    ' + x)

    vLane, vT0, vT1, vT2, vT3 = 1, 2, 3, 4, 5
    vKc, vV0c, vV1c, vK, vV0, vV1 = 6, 7, 8, 9, 10, 11
    vQo, vRdyA, vDoneA, vF = 12, 13, 14, 15
    S, E, CM, LA, O, Q, KF, VF, P, ON = 16, 32, 48, 56, 64, 128, 160, 192, 224, 232
    vMx, vMx2, vDone, vL16, vG4, vPd, vPA, vPL = 236, 237, 238, 239, 240, 241, 242, 243
    vF2, vU = 244, 248
    TA, TBb, vRow = 64, 68, 72
    vKo, vVo = 76, 80
    vPoll, vPub, vDn, vDnA, vF0, vDb, vPoll2, vFa = 84, 85, 86, 87, 89, 90, 91, 92
    vQd = 242
    HR = 100

    sW, sH, sRole = 3, 32, 33
    sBA, sBB, sCntA, sCntB, sTopA, sTopB, sNv, sExp, sZ = 35, 36, 37, 38, 39, 40, 41, 42, 43
    sGrp, sSwap, sBud, sPar = 44, 45, 46, 47
    sB, sCnt, sT, sEnd, sOffK, sRet, sNeed, sF, sScale = 64, 65, 66, 67, 68, 69, 70, 71, 72
    sA, sBb, sC, sD, sE2, sF2 = 73, 74, 75, 76, 77, 78
    sQoff, sIt, sOffQ, sItem, sK = 79, 80, 81, 82, 83
    sS, sOff, sPub, sFree, sTile, sO0, sO1, sN0, sN1, sLag, sDec = 66, 67, 68, 69, 70, 71, 72, 79, 80, 81, 82
    sP0, sP1, sSw = 34, 64, 41
    sSt = 84
    SQ, SK, SV, SWS, SO, SD = "s[8:11]", "s[12:15]", "s[16:19]", "s[20:23]", "s[24:27]", "s[28:31]"

    def vr(a, n):
        return f"v[{a}:{a + n - 1}]" if n > 1 else f"v{a}"

    def adv(s):
        return [f"s_add_u32 s{s}, s{s}, {SLOT}", f"s_cmp_ge_u32 s{s}, {RING}", f"s_cselect_b32 s{s}, 0, s{s}"]

    def AL(lst):
        for x in lst:
            A(x)

    def budget():
        A(f"s_sub_u32 s{sBud}, s{sBud}, 1\ns_cbranch_scc1 L_end")

    def st(i):
        if stamp:
            A(f"{'s_memrealtime' if stamp == 1 else 's_memtime'} s[{sSt + 2 * i}:{sSt + 2 * i + 1}]")

    def dump_stamps(base):
        if not stamp:
            return
        A("s_waitcnt lgkmcnt(0)")
        for i in range(8):
            A(f"v_mov_b32 v{16 + i}, s{sSt + 2 * i}")
        A(f"s_mul_i32 s{sA}, s2, 96\ns_add_u32 s{sA}, s{sA}, {WSB - 256 * 96 + base}")
        A(f"v_mov_b32 v{vT0}, 0\ns_mov_b64 exec, 1")
        A(f"buffer_store_dwordx4 v[16:19], v{vT0}, {SWS}, s{sA} offen")
        A(f"buffer_store_dwordx4 v[20:23], v{vT0}, {SWS}, s{sA} offen offset:16")
        A("s_mov_b64 exec, -1")

    def box_off(dst, k):
        A(f"s_mul_i32 s{dst}, s{sGrp}, 6\ns_add_u32 s{dst}, s{dst}, {k}\ns_mul_i32 s{dst}, s{dst}, {BOX}")

    tabA = sum(p[0] << (4 * i) for i, p in enumerate(PAIRS))
    tabB = sum(p[1] << (4 * i) for i, p in enumerate(PAIRS))

    A(HDR.rstrip())
    A(f"; @launch grid=(256,1,1) block=(448,1,1) lds={LDS}")
    A('.amdgcn_target "amdgcn-amd-amdhsa--gfx950"\n.text')
    A(f".globl {NAME}\n.p2align 8\n.type {NAME},@function\n{NAME}:")
    A("s_cmp_ge_u32 s2, 256\ns_cbranch_scc1 L_end")
    A("s_load_dwordx16 s[48:63], s[0:1], 0")
    if remap:
        A(f"s_lshr_b32 s4, s2, {6 if remap == 1 else 7}\ns_add_u32 s4, s4, s2\ns_and_b32 s4, s4, 7\ns_and_b32 s2, s2, 0xf8\ns_or_b32 s2, s2, s4")
    if stamp:
        for i in range(8):
            A(f"s_mov_b64 s[{sSt + 2 * i}:{sSt + 2 * i + 1}], 0")
    st(0)
    A(f"v_lshrrev_b32 v{vT0}, 6, v0\nv_and_b32 v{vLane}, 63, v0")
    A(f"v_readfirstlane_b32 s{sW}, v{vT0}")
    if cpf:
        A("s_getpc_b64 s[4:5]\nL_pc:")
        A(f"s_and_b32 s6, s2, {0xf8 if cpf == 1 else 0x38}\nv_subrev_u32 v{vT1}, 384, v0\nv_cmp_gt_u32 vcc, {8 if cpf == 1 else 32}, v{vT1}")
        if cpf == 2:
            A("s_lshl_b32 s6, s6, 2")
        A(f"v_add_u32 v{vT1}, s6, v{vT1}\nv_lshlrev_b32 v{vT1}, 7, v{vT1}\nv_min_u32 v{vT1}, L_code_end-L_pc-4, v{vT1}")
        A(f"s_and_saveexec_b64 s[6:7], vcc\ns_cbranch_execz L_nocp\nglobal_load_dword v{vU + 7}, v{vT1}, s[4:5] {cpol}\nL_nocp:\ns_mov_b64 exec, s[6:7]")
    A(f"v_lshlrev_b32 v{vL16}, 4, v{vLane}")
    A(f"s_and_b32 s{sH}, s2, 7\ns_lshr_b32 s{sRole}, s2, 6\ns_lshr_b32 s{sA}, s2, 1\ns_and_b32 s{sA}, s{sA}, 28")
    A(f"s_lshr_b32 s{sBA}, {hex(tabA)}, s{sA}\ns_lshr_b32 s{sBB}, {hex(tabB)}, s{sA}")
    A(f"s_and_b32 s{sBA}, s{sBA}, 15\ns_and_b32 s{sBB}, s{sBB}, 15")
    A(f"s_lshl_b32 s{sA}, s{sBA}, 2\ns_lshl_b32 s{sBb}, s{sBB}, 2")
    A(f"s_lshl_b32 s{sC}, s{sBA}, 10\ns_lshl_b32 s{sD}, s{sBB}, 10")
    A(f"v_add_u32 v{vT2}, s{sC}, v{vL16}\nv_add_u32 v{vT3}, s{sD}, v{vL16}")
    A(f"s_mov_b32 s{sBud}, 0x400000\ns_and_b32 s{sGrp}, s2, 63")
    A(f"s_cmp_lt_u32 s{sRole}, 2\ns_cselect_b32 s{sPar}, 4096, 0")
    A(f"v_min_u32 v{vDoneA}, 383, v0\nv_lshlrev_b32 v{vDoneA}, 2, v{vDoneA}\nv_add_u32 v{vDoneA}, {A_DONE}, v{vDoneA}")
    A(f"v_mov_b32 v{vDone}, 0")
    A(f"ds_write_b32 v{vDoneA}, v{vDone}\nds_write_b32 v{vDoneA}, v{vDone} offset:1536")
    A(f"v_mov_b32 v{vRdyA}, {A_READY}")
    A(f"v_lshrrev_b32 v{vT0}, 4, v{vLane}\nv_and_b32 v{vT1}, 15, v{vLane}")
    A(f"v_xor_b32 v{vU}, v{vT1}, v{vT0}\nv_lshlrev_b32 v{vU}, 4, v{vU}\nv_lshl_add_u32 v{vQd}, v{vT0}, 8, v{vU}")
    A(f"s_lshr_b32 s{sE2}, s2, 3\ns_bitcmp1_b32 {hex(0xff000000 | firstb << 8)}, s{sE2}\ns_cselect_b32 s{sB}, s{sBB}, s{sBA}")
    A(f"s_mul_i32 s{sOffQ}, s{sW}, 8704\ns_add_u32 s{sOffQ}, s{sOffQ}, {PB}")
    A(f"s_mov_b32 s10, {QB}\ns_mov_b32 s11, 0x20000")

    def q_own():
        A(f"s_lshl_b32 s{sE2}, s{sB}, 3\ns_add_u32 s{sE2}, s{sE2}, s{sH}\ns_lshl_b32 s{sE2}, s{sE2}, 2\ns_add_u32 s{sE2}, s{sE2}, s{sW}")
        A(f"s_lshl_b32 s{sE2}, s{sE2}, 13\ns_add_u32 s{sE2}, s{sE2}, s{sPar}\ns_xor_b32 s{sF2}, s{sE2}, 4096")

    def q_own_loads(qpol=qpol):
        for r in range(8):
            A(f"s_add_u32 m0, s{sOffQ}, {r * 1088 - (r & 3) * 1024}\ns_nop 0")
            A(f"buffer_load_dwordx4 v{vQd}, {SQ}, s{sE2 if r < 4 else sF2} offen offset:{(r & 3) * 1024} {qpol} lds")

    q_own()
    A(f"s_mov_b32 m0, {A_TAB}\ns_and_b32 s{sC}, s{sW}, 6\ns_cmp_eq_u32 s{sC}, 4")
    A("s_waitcnt lgkmcnt(0)")
    A("s_cbranch_scc0 L_notab")
    A(f"global_load_lds_dwordx4 v{vT2}, s[54:55]\ns_mov_b32 m0, {A_TAB + 1024}\ns_setprio {lprio}\nglobal_load_lds_dwordx4 v{vT3}, s[54:55]")
    A("L_notab:")
    A(f"s_load_dword s{sCntA}, s[56:57], s{sA}\ns_load_dword s{sCntB}, s[56:57], s{sBb}")
    A(f"s_mov_b32 s8, s48\ns_mov_b32 s9, s49\ns_cmp_lt_u32 s{sW}, 4")
    A("s_barrier")
    A("s_cbranch_scc0 L_noq")
    if q3:
        A(f"s_cmp_eq_u32 s{sRole}, 3\ns_cbranch_scc0 L_q012")
        q_own_loads("")
        A("s_branch L_noq\nL_q012:")
    q_own_loads()
    A("L_noq:")
    for srd, p, n in ((12, 50, KVB), (16, 52, KVB), (20, 62, WSB), (24, 58, QB), (28, 60, 256)):
        A(f"s_mov_b32 s{srd}, s{p}\ns_mov_b32 s{srd + 1}, s{p + 1}\ns_mov_b32 s{srd + 2}, {n}\n"
          f"s_mov_b32 s{srd + 3}, 0x20000")
    box_off(sE2, 0)
    A(f"v_lshrrev_b32 v{vT2}, 2, v{vLane}\nv_min_u32 v{vT2}, 5, v{vT2}\nv_mul_u32_u24 v{vT2}, {BOX}, v{vT2}")
    A(f"v_and_b32 v{vT3}, 3, v{vLane}\nv_lshl_add_u32 v{vFa}, v{vT3}, 7, v{vT2}\ns_add_u32 s{sE2}, s{sE2}, 16896\nv_add_u32 v{vFa}, s{sE2}, v{vFa}")
    A(f"s_cmp_eq_u32 s{sW}, 5\ns_cbranch_scc0 L_nosnap")
    A(f"buffer_load_dword v{vF0}, v{vFa}, {SWS}, 0 offen sc1")
    A(f"v_add_u32 v{vT2}, {A_HIST}, v{vL16}")
    for j in range(4):
        A(f"v_mov_b32 v{68 + j}, 0")
    A(f"ds_write_b128 v{vT2}, v[68:71]")
    if touch:
        A(f"s_lshr_b32 s{sE2}, s2, 3\ns_lshl_b32 s{sE2}, s{sE2}, 22\nv_and_b32 v{vT2}, 1, v{vLane}\nv_lshlrev_b32 v{vT2}, 21, v{vT2}")
        A(f"buffer_load_dword v{vPoll}, v{vT2}, {SK}, s{sE2} offen nt\nbuffer_load_dword v{vPoll2}, v{vT2}, {SV}, s{sE2} offen nt")
    A("L_nosnap:")
    A(f"v_and_b32 v{vDnA}, 3, v{vLane}\nv_lshlrev_b32 v{vDnA}, 8, v{vDnA}\nv_add_u32 v{vDnA}, {A_DONE}, v{vDnA}")
    A(f"s_lshl_b32 s{sE2}, s{sH}, 8")
    A(f"v_lshl_add_u32 v{vT2}, v{vT0}, 11, v{vU}\nv_add_u32 v{vKo}, s{sE2}, v{vT2}")
    A(f"v_and_b32 v{vT2}, 1, v{vT0}\nv_lshlrev_b32 v{vT2}, 1, v{vT2}\nv_xor_b32 v{vT2}, v{vT2}, v{vT1}\nv_lshlrev_b32 v{vT2}, 4, v{vT2}")
    A(f"v_lshl_add_u32 v{vT2}, v{vT0}, 13, v{vT2}\nv_add_u32 v{vVo}, s{sE2}, v{vT2}")
    for j in range(1, 4):
        A(f"v_add_u32 v{vKo + j}, {j * (8192 - 1088)}, v{vKo}\nv_add_u32 v{vVo + j}, {j * (2048 - 1088)}, v{vVo}")
    A("s_waitcnt lgkmcnt(0)")
    st(1)
    A(f"s_min_i32 s{sA}, s{sCntA}, 0x1000\ns_cmp_lt_i32 s{sA}, 1\ns_cselect_b32 s{sA}, 0x1000, s{sA}\ns_cselect_b32 s{sC}, 1, 0")
    A(f"s_min_i32 s{sBb}, s{sCntB}, 0x1000\ns_cmp_lt_i32 s{sBb}, 1\ns_cselect_b32 s{sBb}, 0x1000, s{sBb}\ns_cselect_b32 s{sD}, 1, 0")
    A(f"s_mov_b32 s{sE2}, s{sBA}\ns_cmp_lt_u32 s{sA}, s{sBb}\ns_cselect_b32 s{sSwap}, 1, 0")
    A(f"s_cselect_b32 s{sCntA}, s{sBb}, s{sA}\ns_cselect_b32 s{sCntB}, s{sA}, s{sBb}")
    A(f"s_cselect_b32 s{sBA}, s{sBB}, s{sBA}\ns_cselect_b32 s{sBB}, s{sE2}, s{sBB}")
    A(f"s_cselect_b32 s{sZ}, s{sD}, s{sC}\ns_cselect_b32 s{sD}, s{sC}, s{sD}\ns_lshl_b32 s{sD}, s{sD}, 1\ns_or_b32 s{sZ}, s{sZ}, s{sD}")
    A(f"s_cmp_eq_u32 s{sRole}, 3\ns_cselect_b32 s{sNv}, s{sCntB}, s{sCntA}")
    A(f"s_sub_u32 s{sNv}, s{sNv}, 1\ns_and_b32 s{sNv}, s{sNv}, 31\ns_add_u32 s{sNv}, s{sNv}, 1")
    A(f"s_add_u32 s{sTopA}, s{sCntA}, 31\ns_lshr_b32 s{sTopA}, s{sTopA}, 5")
    A(f"s_add_u32 s{sTopB}, s{sCntB}, 31\ns_lshr_b32 s{sTopB}, s{sTopB}, 5")
    A(f"s_add_u32 s{sA}, s{sTopA}, s{sTopB}\ns_add_u32 s{sA}, s{sA}, {2 * delta + ex + ra}\ns_lshr_b32 s{sA}, s{sA}, 2\ns_max_u32 s{sA}, s{sA}, 1")
    A(f"s_min_u32 s{sCntA}, s{sA}, s{sTopA}\ns_min_u32 s{sCntB}, s{sA}, s{sTopB}")
    if th2:
        A(f"s_add_u32 s{sC}, s{sTopA}, 1\ns_lshr_b32 s{sC}, s{sC}, 1\ns_add_u32 s{sD}, s{sTopB}, 1\ns_lshr_b32 s{sD}, s{sD}, 1")
        A(f"s_sub_u32 s{sA}, s{sTopA}, s{sTopB}\ns_cmp_le_u32 s{sA}, {th2}")
        A(f"s_cselect_b32 s{sCntA}, s{sC}, s{sCntA}\ns_cselect_b32 s{sCntB}, s{sD}, s{sCntB}\ns_cselect_b32 s{sF2}, 0x1000, {theta}")
    A(f"s_sub_u32 s{sC}, s{sTopA}, s{sCntA}\ns_sub_u32 s{sD}, s{sTopB}, s{sCntB}")
    A(f"s_add_u32 s{sBb}, s{sC}, s{sD}\ns_add_u32 s{sBb}, s{sBb}, {ex + rx}\ns_lshr_b32 s{sBb}, s{sBb}, 1\ns_min_u32 s{sBb}, s{sBb}, s{sC}")
    A(f"s_sub_u32 s{sExp}, s{sC}, s{sBb}\ns_cmp_le_u32 s{sExp}, {f's{sF2}' if th2 else theta}\ns_cselect_b32 s{sBb}, s{sC}, s{sBb}\ns_cselect_b32 s{sExp}, 0, s{sExp}")
    A(f"s_cmp_ge_u32 s{sRole}, 2\ns_cbranch_scc1 L_plan_top")
    A(f"s_mov_b32 s{sNv}, 32\ns_mov_b32 s{sTopB}, s{sD}\ns_mov_b32 s{sCntB}, s{sD}")
    A(f"s_cmp_eq_u32 s{sRole}, 0\ns_cselect_b32 s{sCntA}, s{sBb}, s{sExp}\ns_cselect_b32 s{sTopA}, s{sBb}, s{sC}")
    A("L_plan_top:")
    A(f"s_bitcmp1_b32 s{sRole}, 0\ns_cselect_b32 s{sCntB}, s{sCntB}, 0\ns_cselect_b32 s{sExp}, 0, s{sExp}")
    A(f"s_cmp_eq_u32 s{sRole}, 3\ns_cselect_b32 s{sCntA}, 0, s{sCntA}")
    A(f"s_cmp_lt_u32 s{sW}, 4\ns_cbranch_scc1 L_consumer\ns_cmp_eq_u32 s{sW}, 6\ns_cbranch_scc1 L_pacer")
    A(f"s_sub_u32 s{sA}, s{sW}, 4\ns_mul_i32 s{sA}, s{sA}, {k0}\nv_add_u32 v{vRow + 2}, s{sA}, v{vLane}")
    A(f"s_add_u32 s{sCnt}, s{sCntA}, s{sCntB}\ns_add_u32 s{sBb}, s{sTopB}, s{sCntA}\nv_cmp_gt_u32 vcc, s{sCntA}, v{vRow + 2}")
    A(f"v_mov_b32 v{vT2}, s{sTopA}\nv_mov_b32 v{vT3}, s{sBb}\ns_lshl_b32 s{sA}, s{sSwap}, 10\ns_add_u32 s{sA}, s{sA}, {A_TAB}")
    A(f"v_cndmask_b32 v{vT2}, v{vT3}, v{vT2}, vcc\ns_lshl_b32 s{sBb}, s{sSwap}, 10\ns_sub_u32 s{sBb}, {A_TAB + 1024}, s{sBb}")
    A(f"v_xad_u32 v{vT2}, v{vRow + 2}, -1, v{vT2}\nv_mov_b32 v{vT3}, s{sA}\nv_mov_b32 v{vRow}, s{sBb}")
    A(f"v_and_b32 v{vT2}, 127, v{vT2}\nv_cndmask_b32 v{vT3}, v{vRow}, v{vT3}, vcc\nv_lshl_add_u32 v{vT2}, v{vT2}, 3, v{vT3}")
    A(f"s_cmp_eq_u32 s{sW}, 5\ns_cbranch_scc1 L_helper")

    def min4(dst, add):
        A(f"v_readlane_b32 s{sA}, v{vDn}, 0\nv_readlane_b32 s{sBb}, v{vDn}, 1\nv_readlane_b32 s{sC}, v{vDn}, 2\n"
          f"v_readlane_b32 s{sD}, v{vDn}, 3")
        A(f"s_min_u32 s{sA}, s{sA}, s{sBb}\ns_min_u32 s{sC}, s{sC}, s{sD}\ns_min_u32 s{dst}, s{sA}, s{sC}")
        if add:
            A(f"s_add_u32 s{dst}, s{dst}, {add}")

    A(f"s_cmp_eq_u32 s{sCnt}, 0\ns_cbranch_scc1 L_ldone")
    A(f"s_waitcnt vmcnt(0)\nds_read_b64 {vr(vRow, 2)}, v{vT2}")
    st(2)
    A(f"s_mov_b32 s{sS}, 1\ns_mov_b32 s{sOff}, {SLOT}\ns_mov_b32 s{sPub}, 0\ns_mov_b32 s{sFree}, {NS}")
    if skipb:
        A(f"s_cmp_le_u32 s{sNv}, 16")
    A(f"s_mov_b32 s{sTile}, 1\ns_mov_b32 s{sSw}, {k0 if not nosort else 64}\ns_mov_b32 m0, 0")
    A(f"s_waitcnt lgkmcnt(0)\nv_lshlrev_b32 v{vRow}, 15, v{vRow}\nv_lshlrev_b32 v{vRow + 1}, 15, v{vRow + 1}")
    A(f"v_readlane_b32 s{sA}, v{vRow}, 0\nv_readlane_b32 s{sBb}, v{vRow + 1}, 0\nv_readlane_b32 s{sN0}, v{vRow}, 1\nv_readlane_b32 s{sN1}, v{vRow + 1}, 1")
    A(f"s_mov_b32 s{sO0}, s{sA}\n" + (f"s_cselect_b32 s{sO1}, {hex(OOB)}, s{sBb}" if skipb else f"s_mov_b32 s{sO1}, s{sBb}"))
    for g in range(2):
        if g:
            A("s_mov_b32 m0, 4352\ns_nop 0")
        for j in range(4):
            A(f"buffer_load_dwordx4 v{vKo + j}, {SK}, s{sO0 + g} offen offset:{j * 1088} {pol} lds")
    if lag:
        A(f"s_mov_b32 s{sLag}, {lag}\ns_lshr_b32 s{sDec}, s2, 3\ns_and_b32 s{sDec}, s{sDec}, {dmask}")
        if dmul != 4:
            A(f"s_mul_i32 s{sDec}, s{sDec}, {dmul}\ns_lshr_b32 s{sDec}, s{sDec}, 2")
        A(f"s_add_u32 s{sDec}, s{sDec}, {dec0}")
    A(f"v_lshlrev_b32 v{vT2}, 3, v{vLane}\nv_add_u32 v{vT2}, {A_LIST}, v{vT2}\nv_mov_b32 v{vT3}, {A_SIG}")
    sLvl = 53
    A(f"s_mov_b32 s{sA}, {A_SIG + 8}\nv_writelane_b32 v{vDnA}, s{sA}, 4\ns_mov_b32 s{sLvl}, {l0}")
    A("L_next:")
    A(f"s_sub_u32 s{sCnt}, s{sCnt}, 1\ns_cmp_eq_u32 s{sCnt}, 0\ns_cbranch_scc1 L_lsegend")
    A(f"s_mov_b32 s{sP0}, s{sO0}\ns_mov_b32 s{sP1}, s{sO1}\ns_mov_b32 s{sO0}, s{sN0}\ns_mov_b32 s{sO1}, s{sN1}")
    A(f"s_cmp_lt_u32 s{sS}, s{sFree}\ns_cbranch_scc0 L_full_a")
    A("L_free_a:")

    def tree(lo, hi):
        if lo == hi:
            stage_loop(str(lo), w_lo + 2 * lo)
            return
        mid = (lo + hi + 1) // 2
        A(f"s_cmp_ge_i32 s{sLvl}, {mid}\ns_cbranch_scc1 L_t{mid}_{hi}")
        tree(lo, mid - 1)
        A(f"L_t{mid}_{hi}:")
        tree(mid, hi)

    def next_offsets(tag):
        A(f"s_add_u32 s{sTile}, s{sTile}, 1\ns_cmp_eq_u32 s{sTile}, s{sSw}\ns_cbranch_scc1 L_sw_{tag}")
        A(f"L_swd_{tag}:")
        A(f"v_readlane_b32 s{sN0}, v{vRow}, s{sTile}\nv_readlane_b32 s{sN1}, v{vRow + 1}, s{sTile}")

    def publish(back, lagged):
        A(f"s_sub_u32 s{sE2}, s{sS}, {back}")
        if lagged:
            A(f"s_sub_u32 s{sF2}, s{sE2}, s{sLag}\ns_max_i32 s{sPub}, s{sPub}, s{sF2}")
        else:
            A(f"s_max_i32 s{sPub}, s{sPub}, s{sE2}")
        A(f"v_mov_b32 v{vPub}, s{sPub}")
        if lagged:
            A(f"v_writelane_b32 v{vPub}, s{sE2}, 1")

    def stage_loop(tag, w):
        pub_i = -(-((w - gran) % 16) // gran) * gran
        back = (w - gran) // 16
        if pub_i == 16:
            pub_i, back = 0, back + 1
        for i in range(16):
            g, j = i >> 2, i & 3
            srd, vo, so = ((SK, vKo, sO0), (SK, vKo, sO1), (SV, vVo, sP0), (SV, vVo, sP1))[g]
            if j == 0:
                A(f"s_mov_b32 m0, s{sOff}" if g == 0 else f"s_add_u32 m0, s{sOff}, {g * 4352}")
            if i == pub_i:
                publish(back, lag)
            if i % gran == 0:
                A(f"s_waitcnt vmcnt({w - gran})")
            elif j == 0:
                A("s_nop 0")
            if i == pub_i:
                A(f"ds_write_b32 v{vDoneA}, v{vPub}")
            A(f"buffer_load_dwordx4 v{vo + j}, {srd}, s{so} offen offset:{j * 1088} {pol} lds")
            if i == 3:
                next_offsets(tag)
            if i == 8:
                A(f"ds_read_b32 v{vDn}, v{vDnA}")
            if i == 10:
                A("s_waitcnt lgkmcnt(0)")
                min4(sFree, NS)
            if i == 12:
                AL(adv(sOff))
                A(f"v_readlane_b32 s{sBb}, v{vDn}, 4\ns_cmp_lt_u32 s{sS}, {n1 - 1}\ns_cselect_b32 s{sA}, {l1}, {l2}")
                if nm:
                    A(f"s_cmp_lt_u32 s{sS}, {nm - 1}\ns_cselect_b32 s{sA}, {lm}, s{sA}")
                A(f"s_cmp_lt_u32 s{sS}, {n0 - 1}\ns_cselect_b32 s{sA}, {l0}, s{sA}\ns_add_u32 s{sLvl}, s{sA}, s{sBb}")
            if i == 13 and lag:
                assert lag == 1
                A(f"s_cmp_ge_u32 s{sS}, s{sDec}\ns_cselect_b32 s{sLag}, 0, 1")
        A(f"s_add_u32 s{sS}, s{sS}, 1")
        A("s_branch L_stg" if stamp or noload else "s_branch L_next")

    tree(0, 7)
    if stamp or noload:
        A("L_stg:")
        for k, n in ((5, 8), (6, 24), (7, 40)):
            A(f"s_cmp_lg_u32 s{sS}, {n}\ns_cbranch_scc1 L_ns{k}")
            st(k)
            A(f"L_ns{k}:")
        if noload:
            A(f"s_cmp_lt_u32 s{sS}, {NS}\ns_cbranch_scc1 L_next\ns_waitcnt vmcnt(0)\nv_mov_b32 v{vPub}, 0x7fffffff\n"
              f"ds_write_b32 v{vDoneA}, v{vPub}\ns_branch L_ldone")
        A("s_branch L_next")
    A("L_lsegend:")
    if pre:
        A(f"ds_read_b32 v{vPoll}, v{vT3}")
    A(f"s_cmp_lt_u32 s{sS}, s{sFree}\ns_cbranch_scc0 L_full_e")
    A("L_free_e:")
    assert wmax <= 32
    for i in range(9):
        g, j = 2 + (i >> 2), i & 3
        if j == 0 and i < 8:
            A(f"s_add_u32 m0, s{sOff}, {g * 4352}\ns_nop 0")
        if i == ek:
            publish(1, False)
            A(f"s_waitcnt vmcnt({16 + i})\nds_write_b32 v{vDoneA}, v{vPub}")
        if i < 8:
            A(f"buffer_load_dwordx4 v{vVo + j}, {SV}, s{sO0 if g == 2 else sO1} offen offset:{j * 1088} {pol} lds")
    st(3)
    if pre:
        A(f"s_bitcmp1_b32 s{sRole}, 0\ns_cselect_b32 s48, s{sBB}, s{sBA}\ns_lshl_b32 s48, s48, 3\ns_add_u32 s48, s48, s{sH}")
        A(f"s_lshl_b32 s48, s48, 15\ns_add_u32 s48, s48, s{sPar}")
        A(f"v_lshrrev_b32 v93, 5, v{vLane}\nv_lshlrev_b32 v93, 12, v93\nv_lshl_add_u32 v93, v{vLane}, 7, v93\nv_lshlrev_b32 v95, 7, v{vLane}")
        A(f"s_xor_b32 s{sA}, s{sRole}, 2\ns_lshr_b32 s{sBb}, s{sRole}, 1\ns_add_u32 s{sBb}, s{sBb}, 4")
        box_off(50, f"s{sA}")
        box_off(49, f"s{sBb}")
        A(f"s_cmp_eq_u32 s{sExp}, 0\ns_cselect_b32 s49, {hex(OOB)}, s49\ns_cselect_b32 s51, s50, s49")
        A(f"v_and_b32 v94, 4, v{vLane}\nv_cmp_eq_u32 vcc, 0, v94\nv_mov_b32 v94, s50\nv_mov_b32 v96, s51\nv_and_b32 v97, 3, v{vLane}")
        A(f"v_cndmask_b32 v94, v96, v94, vcc\nv_lshl_add_u32 v94, v97, 7, v94")
    npre = 5 if pre else 0

    def pre_loads():
        A(f"s_waitcnt lgkmcnt(0)\nv_readfirstlane_b32 s{sA}, v{vPoll}\ns_nop 0\ns_cmp_eq_u32 s{sA}, 1")
        A(f"s_cselect_b32 s48, s48, {hex(OOB)}\ns_cselect_b32 s49, s49, {hex(OOB)}\ns_cselect_b32 s50, 16384, {hex(OOB)}")
        A("s_add_u32 s51, s48, 16384\ns_add_u32 s52, s49, 8192")
        A(f"buffer_load_dword v96, v94, {SWS}, s50 offen {prepol}")
        A(f"buffer_load_dword v96, v93, {SO}, s48 offen {prepol}\nbuffer_load_dword v96, v93, {SO}, s51 offen {prepol}")
        A(f"buffer_load_dword v96, v95, {SWS}, s49 offen {prepol}\nbuffer_load_dword v96, v95, {SWS}, s52 offen {prepol}")

    backs = [0, -1]
    for n, back in enumerate(backs):
        if pre and n == pre - 1:
            pre_loads()
        ex_n = npre if pre and n >= pre - 1 else 0
        publish(back, False) if back >= 0 else A(f"s_add_u32 s{sA}, s{sS}, 1\nv_mov_b32 v{vPub}, s{sA}")
        A(f"s_waitcnt vmcnt({(16 * back + 8 if back >= 0 else 0) + ex_n})\nds_write_b32 v{vDoneA}, v{vPub}")
    if pre > len(backs):
        pre_loads()
    A("L_ldone:")
    st(4)
    dump_stamps(0)
    A("s_endpgm")
    for tag in "01234567":
        A(f"L_sw_{tag}:")
        budget()
        A(f"ds_read_b32 v{vDn}, v{vT3} offset:4\nds_read_b64 {vr(vRow, 2)}, v{vT2}\ns_waitcnt lgkmcnt(0)\nv_readfirstlane_b32 s{sA}, v{vDn}\ns_nop 0")
        A(f"s_cmp_eq_u32 s{sA}, 0\ns_cbranch_scc1 L_sw_{tag}")
        A(f"s_mov_b32 s{sTile}, 0\ns_mov_b32 s{sSw}, -1\ns_branch L_swd_{tag}")
    for tag in "ae":
        A(f"L_full_{tag}:")
        budget()
        A(f"ds_read_b32 v{vDn}, v{vDnA}\ns_waitcnt lgkmcnt(0)")
        min4(sFree, NS)
        A(f"s_cmp_lt_u32 s{sS}, s{sFree}\ns_cbranch_scc0 L_full_{tag}\ns_branch L_free_{tag}")

    A("L_pacer:")
    sPos, sIdx, sLine, sNx = 54, 55, 56, 57
    A(f"s_add_u32 s{sCnt}, s{sCntA}, s{sCntB}\ns_lshr_b32 s{sIdx}, s2, 3")
    A(f"s_sub_u32 s{sA}, s{sCnt}, {base}\ns_mul_i32 s{sA}, s{sA}, {sg}\ns_add_u32 s{sA}, s{sA}, {128 - sg * 3 // 4}\ns_ashr_i32 s{sA}, s{sA}, 8")
    A(f"s_min_i32 s{sA}, s{sA}, {amax}\ns_max_i32 s{sA}, s{sA}, {-amax}\nv_mov_b32 v101, s{sA}\nv_mov_b32 v{vT3}, {A_SIG + 8}\nds_write_b32 v{vT3}, v101")
    A(f"s_lshl_b32 s{sA}, s{sH}, 7\ns_add_u32 s{sLine}, s{sA}, {64 * 6 * BOX}\nv_and_b32 v98, 31, v{vLane}\nv_lshlrev_b32 v98, 2, v98")
    A(f"s_lshl_b64 s[58:59], 1, s{sIdx}\nbuffer_load_dword v99, v98, {SWS}, s{sLine} offen sc1")
    A(f"s_and_b32 s{sNx}, s{sIdx}, 1\ns_add_u32 s{sNx}, s{sNx}, {fb0}\ns_waitcnt vmcnt(0)")
    A("L_pc0:")
    A(f"s_cmp_ge_u32 s{sNx}, s{sCnt}\ns_cbranch_scc1 L_end")
    A("L_pc1:")
    budget()
    if fsleep:
        A(f"s_sleep {fsleep}")
    A(f"ds_read_b32 v{vF}, v{vRdyA} offset:4\ns_waitcnt lgkmcnt(0)\nv_readfirstlane_b32 s{sF}, v{vF}\ns_nop 0")
    A(f"s_cmp_lt_i32 s{sF}, s{sNx}\ns_cbranch_scc1 L_pc1")
    A(f"s_sub_u32 s{sBb}, s{sCnt}, s{sF}\ns_sub_u32 s{sPos}, 128, s{sBb}\nv_add_u32 v102, s{sPos}, v99\ns_mov_b64 exec, s[58:59]")
    A(f"buffer_store_dword v102, v98, {SWS}, s{sLine} offen\ns_mov_b64 exec, -1")
    A(f"buffer_load_dword v100, v98, {SWS}, s{sLine} offen sc1")
    A(f"s_add_u32 s{sNx}, s{sF}, 2\ns_sub_u32 s{sA}, s{sBb}, 2\ns_min_i32 s{sA}, s{sA}, {rhi}\ns_max_i32 s{sA}, s{sA}, {rlo}")
    A(f"v_cvt_f32_u32 v102, s{sA}\ns_lshl_b32 s{sD}, s{sPos}, 5\ns_sub_u32 s{sD}, s{sD}, {foff}\nv_rcp_f32 v102, v102\ns_waitcnt vmcnt(0)")
    A(f"v_sub_u32 v101, v100, v99\nv_cmp_eq_u32 vcc, 0, v101\ns_nop 0")
    for sh in (1, 2, 4, 8):
        A(f"v_add_u32_dpp v101, v101, v101 row_shr:{sh} row_mask:0xf bank_mask:0xf bound_ctrl:0\ns_nop 1")
    A(f"v_add_u32_dpp v101, v101, v101 row_bcast:15 row_mask:0xa bank_mask:0xf\ns_cbranch_vccnz L_pc0")
    A(f"v_subrev_u32 v101, s{sD}, v101\nv_cvt_f32_i32 v101, v101\nv_mul_f32 v101, {hex(f2u(fbg / 32))}, v101\nv_mul_f32 v101, v101, v102")
    A(f"v_rndne_f32 v101, v101\nv_cvt_i32_f32 v101, v101\nv_med3_i32 v101, v101, {-amax}, {amax}")
    A(f"s_mov_b32 exec_lo, 0x80000000\ns_mov_b32 exec_hi, 0\nds_write_b32 v{vT3}, v101\ns_mov_b64 exec, -1\ns_branch L_pc0")

    A("L_helper:")
    a_0, a_1, p_0, p_1, hh, tt, one = 64, 65, 66, 67, 68, 96, 75
    A(f"s_waitcnt vmcnt({hw0})\nds_read_b64 {vr(vRow, 2)}, v{vT2}")
    A(f"v_mov_b32 v{a_0}, {A_HIST}\nv_mov_b32 v{a_1}, {A_HIST + 512}\nv_add_u32 v{vT3}, {A_HIST}, v{vL16}")
    A(f"v_cndmask_b32 v{p_0}, v{a_1}, v{a_0}, vcc\nv_cmp_gt_u32 vcc, s{sCnt}, v{vRow + 2}\nv_mov_b32 v{one}, 1")
    A(f"s_waitcnt lgkmcnt(0)\nv_bfe_u32 v{a_0}, v{vRow}, {bsh}, 7\nv_bfe_u32 v{a_1}, v{vRow + 1}, {bsh}, 7")
    A(f"v_lshl_add_u32 v{a_0}, v{a_0}, 2, v{p_0}\nv_lshl_add_u32 v{a_1}, v{a_1}, 2, v{p_0}")
    A(f"s_mov_b64 s[48:49], vcc\ns_mov_b64 exec, vcc")
    A(f"ds_add_rtn_u32 v{p_0}, v{a_0}, v{one}\nds_add_rtn_u32 v{p_1}, v{a_1}, v{one}")
    A(f"s_mov_b64 exec, -1\nds_read_b128 {vr(hh, 4)}, v{vT3}")
    A(f"v_lshlrev_b32 v{vRow}, 15, v{vRow}\nv_lshlrev_b32 v{vRow + 1}, 15, v{vRow + 1}\ns_waitcnt lgkmcnt(0)")
    A(f"v_add_u32 v{hh + 1}, v{hh}, v{hh + 1}\nv_add_u32 v{hh + 2}, v{hh + 1}, v{hh + 2}\nv_add_u32 v{hh + 3}, v{hh + 2}, v{hh + 3}")
    A(f"v_mov_b32 v{tt}, v{hh + 3}\ns_nop 1")
    for sh in (1, 2, 4, 8):
        A(f"v_add_u32_dpp v{tt}, v{tt}, v{tt} row_shr:{sh} row_mask:0xf bank_mask:0xf bound_ctrl:0\ns_nop 1")
    A(f"v_add_u32_dpp v{tt}, v{tt}, v{tt} row_bcast:15 row_mask:0xa bank_mask:0xf\ns_nop 1")
    A(f"v_add_u32_dpp v{tt}, v{tt}, v{tt} row_bcast:31 row_mask:0xc bank_mask:0xf")
    A(f"v_sub_u32 v{tt}, v{tt}, v{hh + 3}")
    for j in range(3):
        A(f"v_add_u32 v{tt + 1 + j}, v{tt}, v{hh + j}")
    A(f"ds_write_b128 v{vT3}, {vr(tt, 4)}\nds_read_b32 v{a_0}, v{a_0}\nds_read_b32 v{a_1}, v{a_1}")
    A(f"v_mov_b32 v{vT3}, {A_LIST}\nv_mov_b32 v{vT2}, {A_SIG}\ns_mov_b64 exec, s[48:49]\ns_waitcnt lgkmcnt(0)")
    A(f"v_add_u32 v{p_0}, v{p_0}, v{a_0}\nv_add_u32 v{p_1}, v{p_1}, v{a_1}")
    A(f"v_lshl_add_u32 v{p_0}, v{p_0}, 2, v{vT3}\nv_lshl_add_u32 v{p_1}, v{p_1}, 2, v{vT3}")
    A(f"ds_write_b32 v{p_0}, v{vRow}\nds_write_b32 v{p_1}, v{vRow + 1}")
    A(f"s_mov_b64 exec, -1\nds_write_b32 v{vT2}, v{one} offset:4")
    st(5)
    A(f"s_setprio 0\ns_mov_b32 s{sItem}, 1")
    A(f"s_cmp_eq_u32 s{sCntA}, 0\ns_cselect_b32 s{sCntB}, 0, s{sCntB}")

    def pb_free(tag):
        A(f"s_branch L_hfree_{tag}")
        A(f"L_hfree0_{tag}:")
        budget()
        if psleep:
            A(f"s_sleep {psleep}")
        A(f"L_hfree_{tag}:")
        A(f"ds_read_b32 v{vDn}, v{vDnA} offset:1536\ns_waitcnt lgkmcnt(0)")
        min4(sA, 0)
        A(f"s_cmp_lt_u32 s{sA}, s{sItem}\ns_cbranch_scc1 L_hfree0_{tag}")

    def pb_publish():
        A(f"s_add_u32 s{sItem}, s{sItem}, 1\nv_mov_b32 v{vPub}, s{sItem}\ns_waitcnt vmcnt(0)\nds_write_b32 v{vDoneA}, v{vPub}")

    def q_item(w):
        A(f"s_lshl_b32 s{sO1}, s{sB}, 3\ns_add_u32 s{sO1}, s{sO1}, s{sH}\ns_lshl_b32 s{sO1}, s{sO1}, 15\ns_xor_b32 s{sO0}, s{sO1}, s{sPar}")
        for r in range(32):
            A(f"s_mov_b32 m0, {PB + r * 1088 - (r & 3) * 1024}")
            if r and (r & 3) == 0:
                A(f"s_add_u32 s{sO1}, s{sO1}, 4096\ns_xor_b32 s{sO0}, s{sO1}, s{sPar}")
            elif w and r >= w:
                A(f"s_waitcnt vmcnt({w - 1})")
            else:
                A("s_nop 0")
            A(f"buffer_load_dwordx4 v{vQd}, {SQ}, s{sO0} offen offset:{(r & 3) * 1024} {q2pol} lds")

    def wait_progress(tag):
        A(f"s_branch L_hp_{tag}")
        A(f"L_hp0_{tag}:")
        budget()
        if psleep:
            A(f"s_sleep {psleep}")
        A(f"L_hp_{tag}:")
        A(f"ds_read_b32 v{vF}, v{vRdyA}\ns_waitcnt lgkmcnt(0)\nv_readfirstlane_b32 s{sF}, v{vF}\ns_nop 0")
        A(f"s_cmp_lt_u32 s{sF}, s{sNeed}\ns_cbranch_scc1 L_hp0_{tag}")

    A(f"s_lshl_b32 s{sA}, s{sGrp}, 2\nv_mov_b32 v{vDb}, s{sA}\ns_getreg_b32 s{sA}, hwreg(HW_REG_XCC_ID, 0, 4)")
    A(f"s_or_b32 s{sD}, s{sA}, 16\ns_lshl_b32 s{sBb}, s{sRole}, 3\ns_lshl_b32 s{sA}, s{sD}, s{sBb}\ns_mul_i32 s{sK}, s{sD}, 0x01010101")
    A(f"s_waitcnt vmcnt(0)\nv_mov_b32 v{vPoll}, s{sA}")
    A(f"ds_write_b32 v{vDoneA}, v{vF0} offset:1536")
    A(f"s_mov_b64 exec, 1\nbuffer_atomic_or v{vPoll}, v{vDb}, {SD}, 0 offen sc1\ns_mov_b64 exec, -1")
    st(2)
    A(f"s_cmp_eq_u32 s{sCntB}, 0\ns_cbranch_scc1 L_hq2")
    A(f"s_mov_b32 s{sB}, s{sBB}")
    pb_free("q")
    q_item(hwin)
    A(f"v_mov_b32 v{vPub}, 1\ns_waitcnt vmcnt(0)\nds_write_b32 v{vDoneA}, v{vPub}")
    A("L_hq2:")
    A(f"s_lshr_b32 s{sIt}, s2, 3\ns_and_b32 s{sIt}, s{sIt}, {cmask}")
    if rmode < 2:
        A(f"s_add_u32 s{sNeed}, s{sIt}, {chk0}\ns_min_u32 s{sNeed}, s{sNeed}, s{sCnt}")
        wait_progress("c")
        A("s_branch L_hchk")
        A("L_hchk0:")
        budget()
        if psleep:
            A(f"s_sleep {4 * psleep}")
        A("L_hchk:")
        A(f"buffer_load_dword v{vPoll2}, v{vDb}, {SD}, 0 offen sc1\ns_waitcnt vmcnt(0)")
        A(f"v_readfirstlane_b32 s{sA}, v{vPoll2}\ns_nop 0\ns_and_b32 s{sBb}, s{sA}, 0x10101010\ns_cmp_eq_u32 s{sBb}, 0x10101010\ns_cbranch_scc0 L_hchk0")
        A(f"s_cmp_eq_u32 s{sA}, s{sK}\ns_cselect_b32 s{sK}, 1, 2")
    if force or rmode >= 2:
        A(f"s_mov_b32 s{sK}, {force or 1}")
    A(f"v_mov_b32 v{vPoll2}, s{sK}")
    A(f"v_mov_b32 v{vT2}, {A_SIG}\nds_write_b32 v{vT2}, v{vPoll2}")
    A(f"s_cmp_eq_u32 s{sRole}, 1\ns_cbranch_scc0 L_hdone\ns_cmp_eq_u32 s{sCntA}, 0\ns_cbranch_scc1 L_hdone")
    A(f"s_mov_b32 s{sItem}, 2")
    pb_free("h")
    A(f"v_add_u32 v{vT3}, {PB}, v{vL16}\nv_mul_u32_u24 v{vT2}, 8704, v{vT0}\nv_lshl_add_u32 v{vT2}, v{vT1}, 4, v{vT2}")
    A(f"v_add_u32 v{vT2}, {PB + 8192}, v{vT2}")
    for r in range(32):
        A(f"ds_read_b128 {vr(HR + 4 * r, 4)}, v{vT3} offset:{(r >> 3) * 8704 + (r & 7) * 1024}")
    A(f"ds_read_b128 {vr(HR + 128, 4)}, v{vT2}")
    box_off(sE2, 4)
    A(f"v_lshrrev_b32 v{vT2}, 3, v{vT1}\nv_mul_u32_u24 v{vT2}, {BOX}, v{vT2}\nv_lshl_add_u32 v{vT2}, v{vT0}, 7, v{vT2}")
    A(f"v_and_b32 v{vT3}, 7, v{vT1}\nv_lshl_add_u32 v{vT2}, v{vT3}, 4, v{vT2}")
    A(f"v_add_u32 v{vF0}, 1, v{vF0}")
    A(f"s_cmp_eq_u32 s{sK}, 1\ns_cselect_b32 s{sA}, {lead}, 1\ns_sub_u32 s{sNeed}, s{sCnt}, s{sA}\ns_max_i32 s{sNeed}, s{sNeed}, 0")
    wait_progress("h")
    st(3)
    A(f"s_cmp_eq_u32 s{sK}, 1\ns_cbranch_scc0 L_hwt")
    for pl in (hpol, "sc1"):
        if pl == "sc1":
            A("L_hwt:")
        for r in range(32):
            if (r & 3) == 0:
                A(f"s_add_u32 s{sO1}, s{sE2}, {((r >> 2) & 1) * BOX + (r >> 3) * 4096}")
            A(f"buffer_store_dwordx4 {vr(HR + 4 * r, 4)}, v{vL16}, {SWS}, s{sO1} offen offset:{(r & 3) * 1024} {pl}")
        A(f"s_add_u32 s{sO0}, s{sE2}, 16384")
        A(f"buffer_store_dwordx4 {vr(HR + 128, 4)}, v{vT2}, {SWS}, s{sO0} offen {pl}")
        A("s_mov_b64 exec, 0xff0000\ns_waitcnt vmcnt(0)")
        A(f"buffer_store_dword v{vF0}, v{vFa}, {SWS}, 0 offen {pl}")
        A("s_mov_b64 exec, -1")
        if pl != "sc1":
            A("s_branch L_hdone")
    A("L_hdone:")
    if trace:
        A(f"s_cmp_eq_u32 s{sRole}, 0\ns_cbranch_scc0 L_end")
        A(f"s_mov_b32 s{sIt}, 0\nv_mov_b32 v100, 0\nv_mov_b32 v101, 0\nv_mov_b32 v102, 0\nv_mov_b32 v103, 0")
        A("L_tr:")
        A(f"s_memrealtime s[84:85]\ns_memtime s[86:87]\nds_read_b32 v{vF}, v{vRdyA}\nds_read_b32 v{vDn}, v{vDnA}\ns_waitcnt lgkmcnt(0)")
        A(f"v_readfirstlane_b32 s{sF}, v{vF}\nv_readfirstlane_b32 s{sA}, v{vDn}\ns_mov_b32 m0, s{sIt}\ns_nop 3")
        A(f"v_writelane_b32 v100, s84, m0\nv_writelane_b32 v101, s86, m0\nv_writelane_b32 v102, s{sF}, m0\nv_writelane_b32 v103, s{sA}, m0")
        A("L_tr2:")
        A(f"s_sleep 2\ns_memrealtime s[88:89]\ns_waitcnt lgkmcnt(0)\ns_sub_u32 s{sA}, s88, s84\ns_cmp_lt_u32 s{sA}, {trace}\ns_cbranch_scc1 L_tr2")
        A(f"s_add_u32 s{sIt}, s{sIt}, 1\ns_cmp_ge_u32 s{sF}, s{sCnt}\ns_cbranch_scc1 L_tr3\ns_cmp_lt_u32 s{sIt}, 64\ns_cbranch_scc1 L_tr")
        A("L_tr3:")
        A(f"s_lshl_b32 s{sA}, s2, 10\ns_add_u32 s{sA}, s{sA}, {WSB - 64 * 1024}")
        A(f"buffer_store_dwordx4 v[100:103], v{vL16}, {SWS}, s{sA} offen")
    st(4)
    dump_stamps(64)
    A("s_endpgm")

    A("L_consumer:")
    A(f"v_lshlrev_b32 v{vG4}, 2, v{vT0}")
    A(f"v_lshrrev_b32 v{vT2}, 2, v{vT1}\nv_mul_u32_u24 v{vT2}, 1088, v{vT2}\nv_and_b32 v{vT3}, 3, v{vT1}")
    A(f"v_lshl_add_u32 v{vKc}, v{vT3}, 8, v{vT2}\nv_xor_b32 v{vU}, v{vT3}, v{vT0}\nv_lshl_add_u32 v{vKc}, v{vU}, 4, v{vKc}")
    A(f"v_lshl_add_u32 v{vT2}, v{vT0}, 8, v{vT2}\nv_lshl_add_u32 v{vT2}, v{vT3}, 3, v{vT2}\nv_add_u32 v{vT2}, 8704, v{vT2}")
    A(f"v_and_b32 v{vU}, 1, v{vT0}\nv_lshl_add_u32 v{vV0c}, v{vU}, 5, v{vT2}\nv_xor_b32 v{vV1c}, 32, v{vV0c}")
    A(f"v_lshlrev_b32 v{vQo}, 8, v{vT1}\nv_lshl_add_u32 v{vQo}, v{vU}, 5, v{vQo}\nv_lshrrev_b32 v{vU}, 1, v{vT0}\nv_lshl_add_u32 v{vQo}, v{vU}, 4, v{vQo}")
    if fullrow:
        A(f"v_lshrrev_b32 v{vU}, 3, v{vT1}\nv_mul_u32_u24 v{vU}, {2048 - 64}, v{vU}\nv_sub_u32 v{vQo}, v{vQo}, v{vU}")
    for j in range(4):
        A(f"v_mov_b32 v{ON + j}, 0x3f803f80")
    A(f"v_lshlrev_b32 v{vPL}, 3, v{vT1}\nv_mov_b32 v{vPd}, 0")
    A(f"s_mov_b32 s{sT}, 0\ns_mov_b32 s{sOffK}, 0\ns_mov_b32 s{sItem}, 0")
    sSd, sSs, sFo, sOut, sPi, sHi, sPs, sHs, sPd, sHd, sMy, sLp, sLh = range(48, 61)
    sCs, sCr, sCt = 61, 62, 63
    A(f"s_mov_b32 s{sCs}, {SLOT}\ns_mov_b32 s{sCr}, {RING}\ns_mov_b32 s{sCt}, {hex(f2u(T))}")
    A(f"s_bitcmp1_b32 s{sRole}, 0\ns_cselect_b32 s{sOut}, s{sBB}, s{sBA}")
    A(f"s_lshl_b32 s{sOut}, s{sOut}, 3\ns_add_u32 s{sOut}, s{sOut}, s{sH}\ns_lshl_b32 s{sOut}, s{sOut}, 2\n"
      f"s_add_u32 s{sOut}, s{sOut}, s{sW}\ns_lshl_b32 s{sOut}, s{sOut}, 13\ns_add_u32 s{sOut}, s{sOut}, s{sPar}")
    box_off(sMy, f"s{sRole}")
    A(f"s_lshl_b32 s{sC}, s{sW}, 12\ns_lshl_b32 s{sD}, s{sW}, 7\ns_add_u32 s{sD}, s{sD}, 16384\ns_add_u32 s{sFo}, s{sD}, 512")
    if alias:
        A(f"s_xor_b32 s{sSd}, s{sOut}, 4096")
    else:
        A(f"s_add_u32 s{sSd}, s{sMy}, s{sC}")
    A(f"s_add_u32 s{sSs}, s{sMy}, s{sD}")
    A(f"s_xor_b32 s{sLp}, s{sRole}, 2\ns_lshr_b32 s{sLh}, s{sRole}, 1\ns_add_u32 s{sLh}, s{sLh}, 4")
    A(f"s_cmp_eq_u32 s{sExp}, 0\ns_cselect_b32 s{sLh}, s{sLp}, s{sLh}")
    box_off(sPi, f"s{sLp}")
    box_off(sHi, f"s{sLh}")
    A(f"s_add_u32 s{sPs}, s{sPi}, s{sD}\ns_add_u32 s{sHs}, s{sHi}, s{sD}\ns_add_u32 s{sHd}, s{sHi}, s{sC}")
    A(f"s_mov_b32 s{sPd}, s{sOut}" if alias else f"s_add_u32 s{sPd}, s{sPi}, s{sC}")
    vPo, vSa = 246, 247
    A(f"v_mov_b32 v{vSa}, s{sRole}\nv_writelane_b32 v{vSa}, s{sLp}, 0\nv_writelane_b32 v{vSa}, s{sLh}, 1")
    A(f"v_mov_b32 v{vPo}, s{sMy}\nv_writelane_b32 v{vPo}, s{sPi}, 0\nv_writelane_b32 v{vPo}, s{sHi}, 1")
    A(f"s_lshl_b32 s{sA}, s{sW}, 2\ns_add_u32 s{sA}, s{sA}, {A_SIG + 256}\nv_lshl_add_u32 v{vSa}, v{vSa}, 4, s{sA}")
    if nopart:
        for x in (sPs, sHs, sPd, sHd):
            A(f"s_mov_b32 s{x}, {hex(OOB)}")

    def zero_acc():
        for i in range(LA, O + 64):
            A(f"v_mov_b32 v{i}, 0")

    zero_acc()
    A(f"s_cmp_eq_u32 s{sCntA}, 0\ns_cselect_b32 s{sA}, s{sBB}, s{sBA}\ns_cmp_eq_u32 s{sA}, s{sB}\ns_cbranch_scc1 L_qok")
    A(f"s_mov_b32 s{sB}, s{sA}")
    q_own()
    A("s_waitcnt vmcnt(0)")
    q_own_loads()
    A("L_qok:")
    A(f"s_cmp_eq_u32 s{sCntA}, 0\ns_cbranch_scc1 L_segB")
    A(f"s_mov_b32 s{sCnt}, s{sCntA}\ns_bitcmp1_b32 s{sZ}, 0\ns_branch L_seg")
    A("L_segB:")
    A(f"s_cmp_eq_u32 s{sCntB}, 0\ns_cbranch_scc1 L_empty")
    A(f"s_mov_b32 s{sB}, s{sBB}\ns_mov_b32 s{sCnt}, s{sCntB}\ns_mov_b32 s{sCntA}, 0\ns_bitcmp1_b32 s{sZ}, 1")

    def spin(tag, off=0, need=None, le=False):
        A(f"L_spin_{tag}:")
        budget()
        A(f"ds_read_b32 v{vF}, v{vRdyA} offset:{off}\ns_waitcnt lgkmcnt(0)\nv_readfirstlane_b32 s{sF}, v{vF}\ns_nop 0")
        A(f"s_cmp_{'le' if le else 'lt'}_u32 s{sF}, s{need or sNeed}\ns_cbranch_scc1 L_spin_{tag}")

    def addrs():
        return [f"v_add_u32 v{vK}, s{sOffK}, v{vKc}", f"v_add_u32 v{vV0}, s{sOffK}, v{vV0c}",
                f"v_add_u32 v{vV1}, s{sOffK}, v{vV1c}"]

    def kreads(dst=KF):
        return [f"ds_read_b128 {vr(dst + 4 * f, 4)}, v{vK} offset:{(f & 1) * 4352 + (f >> 1) * 64}" for f in range(8)]

    def vreads(dst=VF):
        return [f"ds_read_b64_tr_b16 {vr(dst + 4 * dt + 2 * u, 2)}, v{vV1 if dt & 1 else vV0} "
                f"offset:{u * 4352 + (dt >> 1) * 64}" for dt in range(8) for u in range(2)]

    MF = "v_mfma_f32_16x16x32_bf16"

    def qk(first):
        out = []
        for ks, kh in ([(a, b) for a in range(4) for b in range(2)] if first else [(a, b) for b in range(2) for a in range(4)]):
            if True:
                for qh in range(2):
                    d = vr(S + 8 * qh + 4 * kh, 4)
                    c = d if ks else ("0" if first else vr(CM + 4 * qh, 4))
                    out.append(f"{MF} {d}, {vr(KF + 4 * (2 * ks + kh), 4)}, {vr(Q + 4 * (2 * ks + qh), 4)}, {c}")
        return out

    def pv(dt, qh, src=VF):
        d = vr(O + 32 * qh + 4 * dt, 4)
        return f"{MF} {d}, {vr(src + 4 * dt, 4)}, {vr(P + 4 * qh, 4)}, {d}"

    def rs(qh):
        return f"{MF} {vr(LA + 4 * qh, 4)}, {vr(ON, 4)}, {vr(P + 4 * qh, 4)}, {vr(LA + 4 * qh, 4)}"

    def cvt(j):
        return f"v_cvt_pk_bf16_f32 v{P + j}, v{E + 2 * j}, v{E + 2 * j + 1}"

    def maxes():
        o = []
        for a in (0, 3, 5):
            for qh, m in ((0, vMx), (1, vMx2)):
                b = S + 8 * qh + a
                o.append(f"v_max3_f32 v{m}, v{b}, v{b + 1}, v{b + 2}" if a == 0 else f"v_max3_f32 v{m}, v{m}, v{b}, v{b + 1}")
        return o

    def new_max(floor0):
        A(f"v_max_f32 v{vMx}, v{vMx}, v{S + 7}\nv_max_f32 v{vMx2}, v{vMx2}, v{S + 15}")
        for sw in ("v_permlane32_swap_b32", "v_permlane16_swap_b32"):
            A(f"v_mov_b32 v{vT0}, v{vMx}\nv_mov_b32 v{vT1}, v{vMx2}\ns_nop 0")
            A(f"{sw} v{vMx}, v{vT0}\n{sw} v{vMx2}, v{vT1}\ns_nop 0")
            A(f"v_max_f32 v{vMx}, v{vMx}, v{vT0}\nv_max_f32 v{vMx2}, v{vMx2}, v{vT1}")
        if floor0:
            A(f"v_max_f32 v{vMx}, 0, v{vMx}\nv_max_f32 v{vMx2}, 0, v{vMx2}")
        A(f"v_ceil_f32 v{vMx}, v{vMx}\nv_ceil_f32 v{vMx2}, v{vMx2}")

    def exp_shifted():
        for i in range(16):
            A(f"v_sub_f32 v{E + i}, v{S + i}, v{vMx if i < 8 else vMx2}")
        for i in range(16):
            A(f"v_exp_f32 v{E + i}, v{E + i}")

    def scale_acc(f, with_la=True):
        for qh in range(2):
            sel = "op_sel_hi:[1,0]" if qh == 0 else "op_sel:[0,1] op_sel_hi:[1,1]"
            for i in range(16):
                r = O + 32 * qh + 2 * i
                A(f"v_pk_mul_f32 {vr(r, 2)}, {vr(r, 2)}, {vr(f, 2)} {sel}")
            if with_la:
                A(f"v_mul_f32 v{LA + 4 * qh}, v{f + qh}, v{LA + 4 * qh}")

    def pack_o(i, dst=KF):
        for j in range(4):
            r = O + 8 * i + 2 * j
            A(f"v_cvt_pk_bf16_f32 v{dst + 4 * i + j}, v{r}, v{r + 1}")

    def park():
        A(f"v_add_u32 v{vT2}, s{sOffQ}, v{vL16}\nv_add_u32 v{vT3}, s{sOffQ}, v{vPL}")
        A(f"v_mov_b32 v{CM + 1}, v{LA}\nv_mov_b32 v{CM + 5}, v{LA + 4}")
        A(f"ds_write_b64 v{vT3}, {vr(CM, 2)} offset:8192\nds_write_b64 v{vT3}, {vr(CM + 4, 2)} offset:8320")
        for i in range(8):
            pack_o(i)
            A(f"ds_write_b128 v{vT2}, {vr(KF + 4 * i, 4)} offset:{i * 1024}")
        zero_acc()

    A("L_seg:")
    c = f2u(1.4426950408889634 / 128 ** 0.5)
    A(f"s_cselect_b32 s{sScale}, 0, {hex(c)}")
    A(f"s_add_u32 s{sEnd}, s{sT}, s{sCnt}\ns_add_u32 s{sNeed}, s{sT}, 1")
    A(f"s_cmp_eq_u32 s{sRole}, 1\ns_cselect_b32 s{sRet}, s{sCntA}, 0")
    A(f"v_add_u32 v{vK}, s{sOffQ}, v{vKc}\nv_mov_b32 v{vF2}, s{sScale}")
    A(f"s_cmp_eq_u32 s{sT}, 0\ns_cbranch_scc0 L_hold")
    A("s_waitcnt vmcnt(0)")
    AL(kreads(Q))
    A("L_nohold:")
    A(f"v_add_u32 v{vPd}, 1, v{vPd}\nds_write_b32 v{vDoneA}, v{vPd} offset:1536")
    A(f"v_add_u32 v{vK}, s{sOffK}, v{vKc}\nv_mov_b32 v{vDone}, s{sNeed}")
    AL(adv(sOffK))
    for t in range(8):
        A(f"s_waitcnt lgkmcnt({8 - t})")
        for j in range(4):
            r = Q + 4 * t + j
            A(f"v_lshlrev_b32 v{vU + 2 * j}, 16, v{r}\nv_and_b32 v{vU + 2 * j + 1}, 0xffff0000, v{r}")
        for j in range(4):
            A(f"v_pk_mul_f32 {vr(vU + 2 * j, 2)}, {vr(vU + 2 * j, 2)}, {vr(vF2, 2)} op_sel_hi:[1,0]")
        for j in range(4):
            A(f"v_cvt_pk_bf16_f32 v{Q + 4 * t + j}, v{vU + 2 * j}, v{vU + 2 * j + 1}")
    if not st2:
        st(2)
    spin("p0")
    if not st2:
        st(3)
    AL(kreads())
    A(f"ds_write_b32 v{vDoneA}, v{vDone}")
    A(f"s_add_u32 s{sNeed}, s{sT}, 2\ns_min_u32 s{sNeed}, s{sNeed}, s{sEnd}")
    A(f"v_sub_u32 v{vT2}, s{sNv}, v{vG4}")
    A(f"v_mov_b32 v{vT3}, 0xff800000")
    for i, x in enumerate(qk(True)):
        if i % 2 == 0:
            A(f"s_waitcnt lgkmcnt({8 - i // 2})")
        A(x)
    AL(addrs())
    spin("p1")
    AL(kreads())
    A(f"s_cmp_eq_u32 s{sNv}, 32\ns_cbranch_scc1 L_nomask")
    for kh in range(2):
        for r in range(4):
            a = S + 4 * kh + r
            A(f"v_cmp_lt_i32 vcc, {16 * kh + r}, v{vT2}\ns_nop 1\nv_cndmask_b32 v{a}, v{vT3}, v{a}, vcc\n"
              f"v_cndmask_b32 v{a + 8}, v{vT3}, v{a + 8}, vcc")
    A("L_nomask:")
    AL(maxes())
    new_max(False)
    for i in range(8):
        A(f"v_sub_f32 v{CM + i}, 0, v{vMx if i < 4 else vMx2}")
    exp_shifted()
    A(f"s_waitcnt lgkmcnt(0)\ns_sub_u32 s{sIt}, s{sCnt}, 2\ns_cbranch_scc1 L_final")

    A(".p2align 3")
    A("L_loop:")
    loop_start = len(L)
    vrd = vreads()
    f_inc, f_wr, f_rd = f"v_add_u32 v{vDone}, 1, v{vDone}", f"ds_write_b32 v{vDoneA}, v{vDone}", f"ds_read2st64_b32 {vr(vF2, 2)}, v{vRdyA} offset0:0 offset1:6"
    ex1 = lambda i: f"v_exp_f32 v{E + i}, v{S + i}"
    lg = lambda n: f"s_waitcnt lgkmcnt({n})"
    krd = kreads()
    krd = krd[0::2] + krd[1::2]
    mo = [0, 1, 2, 3, 8, 9, 10, 11, 4, 5, 6, 7, 12, 13, 14, 15]
    mxs = [f"v_max3_f32 v{vT0}, v{S + mo[0]}, v{S + mo[1]}, v{S + mo[2]}"]
    mxs += [f"v_max3_f32 v{vT0}, v{vT0}, v{S + mo[i]}, v{S + mo[i + 1]}" for i in range(3, 15, 2)]
    mxs += [f"v_max_f32 v{vT0}, v{vT0}, v{S + 15}", f"v_cmp_lt_f32 vcc, s{sCt}, v{vT0}"]
    aa = addrs()
    ad = [f"s_add_u32 s{sOffK}, s{sOffK}, s{sCs}", f"s_cmp_ge_u32 s{sOffK}, s{sCr}", f"s_cselect_b32 s{sOffK}, 0, s{sOffK}"]
    fa = [[vrd[i], cvt(j)] for i, j in enumerate((0, 1, 4, 5, 2, 3, 6, 7))]
    fa[0].insert(0, f"s_add_u32 s{sNeed}, s{sNeed}, 1")
    fa[1].insert(0, f"s_sub_u32 s{sIt}, s{sIt}, 1")
    fa[2].insert(0, f"s_cselect_b32 s{sA}, -1, s{sNeed}")
    for i in range(3):
        fa[3 + i].insert(0, ad[i])
    fa[7].insert(0, lg(7))
    fa += [[vrd[8], f_rd], [vrd[9], f_inc], [vrd[10], ex1(0)], [vrd[11], ex1(1)], [vrd[12], ex1(2)],
           [vrd[13], ex1(3)], [vrd[14], ex1(8)], [lg(6), vrd[15], f_wr]]
    for x, f in zip(qk(False), fa):
        A(x)
        AL(f)
    mf = []
    for dt in range(8):
        mf += [pv(dt, 1), pv(dt, 0)]
        if dt == 3:
            mf += [rs(0), rs(1)]
    if pvo == 1:
        mf = mf[:4]
        mf[2], mf[3] = mf[3], mf[2]
        mf += [pv(2, 1), pv(2, 0), pv(3, 0), pv(3, 1), rs(1), rs(0), pv(4, 0), pv(4, 1), pv(5, 1), pv(5, 0), pv(6, 0), pv(6, 1), pv(7, 1), pv(7, 0)]
    if pvo == 2:
        mf = mf[:4] + [pv(2, 0), pv(3, 0), rs(0), pv(2, 1), pv(3, 1), rs(1)] + [pv(d, 1) for d in range(4, 8)] + [pv(d, 0) for d in range(4, 8)]
    if nors:
        mf = [x if f"{vr(ON, 4)}" not in x else "s_nop 0" for x in mf]
    AL([mf[0], f"v_readfirstlane_b32 s{sF}, v{vF2}", aa[0]])
    AL([mf[1], ex1(9)])
    AL([mf[2], f"s_cmp_lt_u32 s{sF}, s{sA}", ex1(10)])
    AL([mf[3], "s_cbranch_scc1 L_slow"])
    A("L_back:")

    def phase_b(kr):
        k = list(kr) if kr else [None] * 8
        n = (lambda x: x) if kr else (lambda x: 0)
        A(ex1(11))
        fb = [[k[0], mxs[0], mxs[1]], [k[1], ex1(4)], [k[2], mxs[2], mxs[3]], [ex1(5)], [k[3], mxs[4], mxs[5]],
              [lg(n(4)), ex1(6)], [k[4], mxs[6], mxs[7]], [ex1(7)], [k[5], mxs[8], aa[1]], [ex1(12)],
              [k[6], aa[2]], [ex1(13)], [k[7], ex1(14)], [lg(n(4)), ex1(15)]]
        for i in range(4, 18):
            A(mf[i])
            AL([x for x in fb[i - 4] if x])

    phase_b(krd)
    if nocomp:
        keep = []
        for x in L[loop_start:]:
            y = x.strip()
            if nocomp & 1 and y.startswith("v_mfma"):
                continue
            if nocomp & 2 and y.startswith(("v_exp", "v_max", "v_cvt")):
                continue
            if nocomp & 4 and y.startswith(("ds_read_b128", "ds_read_b64_tr")):
                continue
            keep.append(x)
        L[loop_start:] = keep
        A("s_mov_b64 vcc, 0")
    A("s_cbranch_vccz L_loop\ns_branch L_rare")

    HB = Q

    def send_stats(spol=spol):
        A(f"v_mov_b32 v{CM + 5}, v{LA + 4}")
        if smask:
            A("s_mov_b64 exec, 0xffff")
        A(f"buffer_store_dwordx2 {vr(CM + 4, 2)}, v{vPL}, {SWS}, s{sSs} offen {spol}")
        if smask:
            A("s_mov_b64 exec, -1")

    def send(i, spol=spol):
        pack_o(i, Q)
        A(f"buffer_store_dwordx4 {vr(Q + 4 * i, 4)}, v{vL16}, {SO if alias else SWS}, s{sSd} offen offset:{(i & 3) * 1024} {spol}")

    def final():
        A("L_lastg:")
        phase_b([])
        A("s_cbranch_vccnz L_rare")
        A("L_final:")
        A(f"{f_rd}\ns_add_u32 s{sNeed}, s{sEnd}, 1\ns_mov_b32 s{sT}, s{sEnd}")
        for j in range(8):
            A(cvt(j))
        A("s_nop 0")
        A(rs(0))
        A(rs(1))
        A(f"s_cmp_lg_u32 s{sRet}, 0\ns_cbranch_scc1 L_final_a")
        A(f"s_waitcnt lgkmcnt(0)\nv_readfirstlane_b32 s{sF}, v{vF2}\nv_readfirstlane_b32 s{sK}, v{vF2 + 1}")
        A(f"s_cmp_ge_u32 s{sF}, s{sNeed}\ns_cbranch_scc1 L_final1")
        spin("f")
        A(f"L_final1:\nds_read_b32 v{vU + 1}, v{vSa}")
        AL(vrd)
        A(f"s_cmp_eq_u32 s{sK}, 1\ns_cbranch_scc1 L_final2")
        for pl in ("sc1", spol):
            send_stats(pl)
            for dt in range(8):
                A(f"s_waitcnt lgkmcnt({14 - 2 * dt})")
                A(pv(dt, 1))
                if dt >= 5:
                    send(dt - 1, pl)
            for dt in range(8):
                A(pv(dt, 0))
                if dt == 2:
                    send(7, pl)
                    st(4)
            if pl == "sc1":
                A("s_branch L_sentw\nL_final2:")

    A("L_slow:")
    A(f"s_cmp_ge_i32 s{sIt}, 0\ns_cbranch_scc1 L_slow1")
    if spincnt:
        A(f"s_waitcnt lgkmcnt(0)\ns_sub_u32 s{sSt + 2}, 0x400000, s{sBud}\ns_sub_u32 s{sSt + 4}, s{sF}, s{sNeed}\ns_add_u32 s{sSt + 4}, s{sSt + 4}, 100")
        st(3)
    if tail:
        A(f"v_readfirstlane_b32 s{sK}, v{vF2 + 1}\ns_cmp_lt_u32 s{sF}, s{sNeed}\ns_cselect_b32 s{sA}, 1, s{sRet}")
        A(f"s_xor_b32 s{sBb}, s{sK}, 1\ns_or_b32 s{sA}, s{sA}, s{sBb}\ns_cbranch_scc1 L_lastg")
        A("L_tail:")
        if st3:
            st(1)
        AL([f"ds_read_b32 v{vU + 1}, v{vSa}"] + aa[1:] + [lg(1)])
        vk = vreads(KF)
        m1 = [pv(dt, 1) for dt in range(2, 8)] + [rs(1)]
        ft = [[ex1(11), mxs[0]], [ex1(12), mxs[1]], [ex1(13), mxs[2]], [ex1(14), mxs[3]], [ex1(15), mxs[4]],
              [mxs[5], mxs[6]], [mxs[7], mxs[8]]]
        AL(vk[:2])
        for i in range(7):
            A(m1[i])
            AL(vk[2 * i + 2:2 * i + 4] + ft[i])
        if st3:
            st(2)
        A("s_cbranch_vccnz L_tail_fix")
        for j in range(4, 8):
            A(cvt(j))
        A(pv(2, 0))
        A(ex1(4))
        A(rs(1))
        for dt in range(8):
            A(lg(14 - 2 * dt))
            A(pv(dt, 1, KF))
            if dt == 4:
                if st3:
                    st(3)
                send_stats()
            if dt >= 5:
                send(dt - 1)
        for dt in range(3, 8):
            A(pv(dt, 0))
            if dt < 6:
                A(ex1(dt + 2))
            if dt == 4:
                send(7)
                st(4)
        A(rs(0))
        for j in range(4):
            A(cvt(j))
        A("s_nop 1")
        A(rs(0))
        for dt in range(8):
            A(pv(dt, 0, KF))
    else:
        final()
    A("L_sent:")
    st(5)
    if not nopart:
        A(f"v_add_u32 v{vU + 2}, 1, v{vU + 1}\ns_mov_b64 exec, 4\ns_waitcnt vmcnt(0)")
        A(f"buffer_store_dword v{vU + 2}, v{vPo}, {SWS}, s{sFo} offen")
        A("L_reld:")
        if st2:
            st(1)
        A(f"s_mov_b64 exec, 3\nv_mov_b32 v{vU + 3}, v{vU + 1}")
        A("L_poll0:")
        budget()
        A(f"buffer_load_dword v{vU + 3}, v{vPo}, {SWS}, s{sFo} offen {fpol}")
        if csleep:
            A(f"s_sleep {csleep}")
        A(f"s_waitcnt vmcnt({npoll})")
        A(f"v_cmp_eq_u32 vcc, v{vU + 3}, v{vU + 1}\ns_cbranch_vccnz L_poll0")
        A("s_mov_b64 exec, -1")
    st(6)
    A(f"buffer_load_dwordx2 {vr(vU + 4, 2)}, v{vPL}, {SWS}, s{sPs} offen {lpol}")
    A(f"buffer_load_dwordx2 {vr(vU + 6, 2)}, v{vPL}, {SWS}, s{sHs} offen {hlpol}")
    for i in range(4):
        A(f"buffer_load_dwordx4 {vr(HB + 16 + 4 * i, 4)}, v{vL16}, {SO if alias else SWS}, s{sPd} offen offset:{i * 1024} {lpol}")

    def unpack_fma(src, i, f, sel):
        for j in range(4):
            A(f"v_lshlrev_b32 v{E + 2 * j}, 16, v{src + j}\nv_and_b32 v{E + 2 * j + 1}, 0xffff0000, v{src + j}")
        for j in range(4):
            o = O + 8 * i + 2 * j
            A(f"v_pk_fma_f32 {vr(o, 2)}, {vr(E + 2 * j, 2)}, {vr(f, 2)}, {vr(o, 2)} {sel}")

    def finish(held):
        n = 8 if held else 4
        if held:
            for i in range(4):
                A(f"buffer_load_dwordx4 {vr(HB + 4 * i, 4)}, v{vL16}, {SWS}, s{sHd} offen offset:{i * 1024} {hlpol}")
        A(f"s_waitcnt vmcnt({n})")
        if st2:
            st(2)
        if held:
            A(f"v_min3_f32 v{vT0}, v{CM}, v{vU + 4}, v{vU + 6}")
        else:
            A(f"v_min_f32 v{vT0}, v{CM}, v{vU + 4}")
        A(f"v_sub_f32 v{vT2}, v{vT0}, v{CM}\nv_sub_f32 v{vMx}, v{vT0}, v{vU + 4}")
        if held:
            A(f"v_sub_f32 v{vMx2}, v{vT0}, v{vU + 6}")
        A(f"v_exp_f32 v{vT2}, v{vT2}\nv_exp_f32 v{vMx}, v{vMx}")
        A(f"v_exp_f32 v{vMx2}, v{vMx2}" if held else "s_nop 0")
        A(f"v_mul_f32 v{vT1}, v{vT2}, v{LA}\nv_fmac_f32 v{vT1}, v{vMx}, v{vU + 5}")
        if held:
            A(f"v_fmac_f32 v{vT1}, v{vMx2}, v{vU + 7}")
        A(f"v_rcp_f32 v{vT1}, v{vT1}\ns_nop 0\nv_mul_f32 v{vT2}, v{vT2}, v{vT1}\nv_mul_f32 v{vMx}, v{vMx}, v{vT1}")
        if held:
            A(f"v_mul_f32 v{vMx2}, v{vMx2}, v{vT1}")
        for i in range(16):
            A(f"v_pk_mul_f32 {vr(O + 2 * i, 2)}, {vr(O + 2 * i, 2)}, {vr(vT2, 2)} op_sel_hi:[1,0]")
        if held:
            for i in range(4):
                A(f"s_waitcnt vmcnt({7 - i})")
                unpack_fma(HB + 16 + 4 * i, i, vMx, "op_sel_hi:[1,0,1]")
        for i in range(4):
            if i < 2:
                A(f"s_waitcnt vmcnt({0 if i else 3})")
            if held:
                unpack_fma(HB + 4 * i, i, vMx, "op_sel:[0,1,0] op_sel_hi:[1,1,1]")
            else:
                unpack_fma(HB + 16 + 4 * i, i, vMx, "op_sel_hi:[1,0,1]")
            if fullrow:
                if i == 2:
                    out_store2(0)
            elif i:
                out_store(i - 1)
            pack_o(i)
        A("s_nop 1")
        if fullrow:
            out_store2(2)
        else:
            out_store(3)
        if st2:
            st(3)
        if stamp:
            A("s_waitcnt vmcnt(0)")
            st(7)
            A(f"s_cmp_eq_u32 s{sW}, {sw}\ns_cbranch_scc0 L_end")
        dump_stamps(32)
        A("s_endpgm")

    def out_store(i):
        d = KF + 4 * i
        A(f"v_permlane16_swap_b32 v{d}, v{d + 2}\nv_permlane16_swap_b32 v{d + 1}, v{d + 3}")
        A(f"buffer_store_dwordx4 {vr(d, 4)}, v{vQo}, {SO}, s{sOut} offen offset:{i * 64} {opol}")

    def out_store2(i):
        d = KF + 4 * i
        for x in (d, d + 4):
            A(f"v_permlane16_swap_b32 v{x}, v{x + 2}\nv_permlane16_swap_b32 v{x + 1}, v{x + 3}")
        for j in range(4):
            A(f"v_mov_b32 v{S + j}, v{d + j}")
        for j in range(4):
            A(f"v_mov_b32_dpp v{d + j}, v{d + 4 + j} row_ror:8 row_mask:0xf bank_mask:0xc")
        for j in range(4):
            A(f"v_mov_b32_dpp v{d + 4 + j}, v{S + j} row_ror:8 row_mask:0xf bank_mask:0x3")
        A(f"buffer_store_dwordx4 {vr(d, 4)}, v{vQo}, {SO}, s{sOut} offen offset:{i * 64} {opol}")
        A(f"buffer_store_dwordx4 {vr(d + 4, 4)}, v{vQo}, {SO}, s{sOut} offen offset:{2048 + i * 64} {opol}")

    A(f"s_cmp_lg_u32 s{sExp}, 0\ns_cbranch_scc1 L_fin_held")
    finish(False)
    A("L_fin_held:")
    finish(True)
    A("L_end:\ns_endpgm")

    if tail:
        final()
        A("s_branch L_sent")
        A("L_tail_fix:")
        for dt in range(2, 8):
            A(pv(dt, 0))
        A(rs(0))
        A("s_branch L_rare")
    A("L_final_a:")
    spin("g")
    AL(vrd)
    for dt in range(8):
        A(f"s_waitcnt lgkmcnt({14 - 2 * dt})")
        A(pv(dt, 1))
        A(pv(dt, 0))
    A("s_branch L_segB")
    A("L_sentw:")
    if nopart:
        A("s_branch L_sent")
    else:
        A(f"v_mov_b32 v{vT0}, {A_SIG}")
        A("L_peers:")
        budget()
        A(f"ds_read_b32 v{vF}, v{vT0}\nds_read_b32 v{vU + 1}, v{vSa}\ns_waitcnt lgkmcnt(0)\nv_readfirstlane_b32 s{sA}, v{vF}\ns_nop 0")
        A(f"s_cmp_eq_u32 s{sA}, 0\ns_cbranch_scc1 L_peers")
        A(f"v_add_u32 v{vU + 2}, 1, v{vU + 1}\ns_mov_b64 exec, 4\ns_waitcnt vmcnt(0)")
        A(f"buffer_store_dword v{vU + 2}, v{vPo}, {SWS}, s{sFo} offen sc1\ns_branch L_reld")
    A("L_hold:")
    spin("q", off=256, need=sItem, le=True)
    AL(kreads(Q))
    park()
    A("s_branch L_nohold")
    A("L_empty:")
    A(f"s_cmp_eq_u32 s{sT}, 0\ns_cbranch_scc1 L_empty1\ns_nop 5")
    park()
    A(f"v_add_u32 v{vPd}, 1, v{vPd}\nds_write_b32 v{vDoneA}, v{vPd} offset:1536")
    A("L_empty1:")
    A(f"v_mov_b32 v{CM}, {hex(BIG)}\nv_mov_b32 v{CM + 4}, {hex(BIG)}")
    A("s_waitcnt vmcnt(0)")
    send_stats("sc1")
    for i in range(4, 8):
        send(i, "sc1")
    A("s_branch L_sentw")
    A("L_slow1:")
    if sleep:
        A(f"s_branch L_slow2\nL_slow3:\ns_sleep {sleep}\nL_slow2:")
        budget()
        A(f"ds_read_b32 v{vF}, v{vRdyA}\ns_waitcnt lgkmcnt(0)\nv_readfirstlane_b32 s{sF}, v{vF}\ns_nop 0")
        A(f"s_cmp_lt_u32 s{sF}, s{sNeed}\ns_cbranch_scc1 L_slow3")
    else:
        spin("s")
    A("s_branch L_back")
    A("L_rare:")
    AL(maxes())
    new_max(True)
    A(f"v_exp_f32 v{vT2}, -v{vMx}\nv_exp_f32 v{vT3}, -v{vMx2}")
    for i in range(8):
        A(f"v_sub_f32 v{CM + i}, v{CM + i}, v{vMx if i < 4 else vMx2}")
    exp_shifted()
    scale_acc(vT2)
    A(f"s_cmp_lt_i32 s{sIt}, 0\ns_cbranch_scc1 L_final\ns_branch L_loop")

    A("L_code_end:")
    A(f""".section .rodata,"a"
.p2align 6
.amdhsa_kernel {NAME}
  .amdhsa_next_free_vgpr 256
  .amdhsa_next_free_sgpr 102
  .amdhsa_accum_offset 256
  .amdhsa_group_segment_fixed_size 0
  .amdhsa_kernarg_size 64
  .amdhsa_user_sgpr_count 2
  .amdhsa_user_sgpr_kernarg_segment_ptr 1
  .amdhsa_system_sgpr_workgroup_id_x 1
.end_amdhsa_kernel""")
    notes = {'L_next': '; ---- loader: one stage (K of tile s, V of tile s-1) per trip, eight copies that differ in the depth only', 'L_lsegend': '; ---- loader: V of the last tile, drain, then fetch the lines the hand-off will use', 'L_pacer': '; ==== wave 6: position report and depth correction (speed only)', 'L_helper': '; ==== wave 5: bucket sort of the block list, group hand-shake, second Q, held partial', 'L_consumer': '; ==== waves 0-3', 'L_seg': '; ---- segment start: Q (scaled by log2(e)/sqrt(D)), first tile with mask and true max', 'L_loop': '; ---- steady loop: S(t+1), P(t), V(t) reads | O += V(t) P(t), exp(t+1), max check, K(t+2) reads', 'L_slow': '; ---- next stage not there yet, or last trip; L_tail: the half that is sent goes first', 'L_sent': '; ---- hand-off word, wait for the partner, merge, normalise, store', 'L_lastg': '; ---- last two tiles in plain order', 'L_rare': '; ---- a score rose more than 2^8 above the max in use: move to the true running max', 'L_empty': '; ---- no keys of the batch this workgroup ends on', 'L_hold': '; ---- role 1 between its segments: park the partial of A in LDS', 'L_sentw': '; ---- write-through hand-off'}
    out = []
    for x in L:
        if x.endswith(":") and x[:-1] in notes:
            out.append(notes[x[:-1]])
        out.append(x)
    L[:] = out
    if nostore:
        L[:] = [x for x in L if not (x.strip().startswith("buffer_store") and "v[16:19]" not in x and "v[20:23]" not in x
                                     and "v[100:103], v239, s[20:23], s73 offen" != x.strip()[21:]
                                     and ((SWS in x and nostore & 1) or (SO in x and nostore & 2)))]
    return "\n".join(L) + "\n"


def parse(spec):
    kw = {}
    for kv in spec.split(","):
        if not kv or kv == "default":
            continue
        k, v = kv.split("=")
        try:
            kw[k] = int(v)
        except ValueError:
            try:
                kw[k] = float(v)
            except ValueError:
                kw[k] = v.replace("+", " ").replace("none", "")
    return kw


if __name__ == "__main__":
    from build import build
    import hz
    files = []
    for spec in sys.argv[1:]:
        txt = gen(**parse(spec))
        pr = hz.check(txt)
        for p in pr:
            print("HAZARD", p, file=sys.stderr)
        fn = "k_" + spec.replace("=", "").replace(",", "_").replace("+", "") + ".s"
        open(fn, "w").write(txt)
        build(fn)
        files.append(fn)
    print(" ".join(files))
```

```python
import sys
import struct

NAME = "standalone__paged_block_table_kv_pagedattention__sampling_kernel"
WSB = 537395200
KVB = 4100 * 32768
QB = 16 * 32 * 32 * 128 * 2

HDR = """; Paged GQA attention, B=16 Hq=32 Hkv=8 Sq=32 D=128 block=16, bf16.  Generated by the author's own script.
;
"""

PAIRS = [(4, 13), (9, 8), (14, 3), (0, 12), (5, 7), (10, 2), (15, 11), (1, 6)]


def f2u(x):
    return struct.unpack('<I', struct.pack('<f', x))[0]


def gen(NS=7, win=23, win2=27, ntail=0, gran=2, win0=16, n0=5, lag=0, dec0=16, decs=8,
        delta=0, ex=0, theta=2, lead=8, npoll=1, hwin=8, psleep=16, csleep=0, lprio=3, rdy0=2, chk0=10, rmode=1, cmask=15, base=48, kb=6, firstb=-1, th2=22, b1=4, pre=2, prepol='', k0=4, nosort=0, tail=1, st3=0, smask=0, sleep=4, pvo=0, qko=0, nors=0, sw=0, spincnt=0, bsh=5, touch=0, ra=2, rx=1, apol='sc1', fpol='sc1', alias=1, fullrow=0, st2=0, hpol='', hlpol='sc1', force=0, remap=0, w_lo=10, l0=3, l1=5, l2=6, fbg=12.0, rlo=4, rhi=24, amax=5, fb0=3, sg=45, foff=40, fsleep=8, nm=9, lm=4, q2pol='nt', q3=0, skipb=1, cpf=1, cpol='', ek=6, hw0=0, th3=60, amin=6, nlev=12, bia=0.0, bib=0.0, nsc=1, mix=0, clead=0, kap=6, win1=20, n1=14, dmask=31, dmul=3,
        pol="nt", qpol="nt", opol="", spol="", lpol="sc1", T=8.0,
        stamp=0, trace=0, nocomp=0, noload=0, nopart=0, nostore=0):
    if firstb < 0:
        nt = [-(-(4096 - ((i + 1) * 2654435761) % 2048) // 32) for i in range(16)]
        firstb = sum(1 << i for i, (a, b) in enumerate(PAIRS) if nt[a] - nt[b] <= max(th2, 2 * theta))
        firstb3 = sum(1 << i for i, (a, b) in enumerate(PAIRS) if nt[a] - nt[b] <= max(th3, 2 * theta))
    amin = amin or amax
    SLOT = 17408
    RING = NS * SLOT
    PB = RING
    A_DONE = PB + 2 * SLOT
    A_READY = A_DONE + 1024
    A_PDONE = A_DONE + 1536
    A_SIG = A_PDONE + 1024
    A_TAB = A_SIG + 512
    A_LIST = A_TAB + 2048
    A_HIST = A_LIST + 512
    LDS = A_HIST + 1024
    wmax = w_lo + 2 * (nlev - 1)
    assert LDS <= 163840
    assert NS >= (wmax - 1) // 16 + lag + 3 and wmax <= 52
    BOX = 17408
    BIG = f2u(1e30)
    OOB = 0x40000000
    L = []

    def A(s):
        for x in s.split('\n'):
            L.append(x if x.endswith(':') or x.startswith(('.', ';')) else '    ' + x)

    vLane, vT0, vT1, vT2, vT3 = 1, 2, 3, 4, 5
    vKc, vV0c, vV1c, vK, vV0, vV1 = 6, 7, 8, 9, 10, 11
    vQo, vRdyA, vDoneA, vF = 12, 13, 14, 15
    S, E, CM, LA, O, Q, KF, VF, P, ON = 16, 32, 48, 56, 64, 128, 160, 192, 224, 232
    vMx, vMx2, vDone, vL16, vG4, vPd, vPA, vPL = 236, 237, 238, 239, 240, 241, 242, 243
    vF2, vU = 244, 248
    TA, TBb, vRow = 64, 68, 72
    vKo, vVo = 76, 80
    vPoll, vPub, vDn, vDnA, vF0, vDb, vPoll2, vFa = 84, 85, 86, 87, 89, 90, 91, 92
    vQd = 242
    HR = 100

    sW, sH, sRole = 3, 32, 33
    sBA, sBB, sCntA, sCntB, sTopA, sTopB, sNv, sExp, sZ = 35, 36, 37, 38, 39, 40, 41, 42, 43
    sGrp, sSwap, sBud, sPar = 44, 45, 46, 47
    sB, sCnt, sT, sEnd, sOffK, sRet, sNeed, sF, sScale = 64, 65, 66, 67, 68, 69, 70, 71, 72
    sA, sBb, sC, sD, sE2, sF2 = 73, 74, 75, 76, 77, 78
    sQoff, sIt, sOffQ, sItem, sK = 79, 80, 81, 82, 83
    sS, sOff, sPub, sFree, sTile, sO0, sO1, sN0, sN1, sLag, sDec = 66, 67, 68, 69, 70, 71, 72, 79, 80, 81, 82
    sP0, sP1, sSw = 34, 64, 41
    sSt = 84
    SQ, SK, SV, SWS, SO, SD = "s[8:11]", "s[12:15]", "s[16:19]", "s[20:23]", "s[24:27]", "s[28:31]"

    def vr(a, n):
        return f"v[{a}:{a + n - 1}]" if n > 1 else f"v{a}"

    def adv(s):
        return [f"s_add_u32 s{s}, s{s}, {SLOT}", f"s_cmp_ge_u32 s{s}, {RING}", f"s_cselect_b32 s{s}, 0, s{s}"]

    def AL(lst):
        for x in lst:
            A(x)

    def budget():
        A(f"s_sub_u32 s{sBud}, s{sBud}, 1\ns_cbranch_scc1 L_end")

    def st(i):
        if stamp:
            A(f"{'s_memrealtime' if stamp == 1 else 's_memtime'} s[{sSt + 2 * i}:{sSt + 2 * i + 1}]")

    def dump_stamps(base):
        if not stamp:
            return
        A("s_waitcnt lgkmcnt(0)")
        for i in range(8):
            A(f"v_mov_b32 v{16 + i}, s{sSt + 2 * i}")
        A(f"s_mul_i32 s{sA}, s2, 96\ns_add_u32 s{sA}, s{sA}, {WSB - 256 * 96 + base}")
        A(f"v_mov_b32 v{vT0}, 0\ns_mov_b64 exec, 1")
        A(f"buffer_store_dwordx4 v[16:19], v{vT0}, {SWS}, s{sA} offen")
        A(f"buffer_store_dwordx4 v[20:23], v{vT0}, {SWS}, s{sA} offen offset:16")
        A("s_mov_b64 exec, -1")

    def box_off(dst, k):
        A(f"s_mul_i32 s{dst}, s{sGrp}, 6\ns_add_u32 s{dst}, s{dst}, {k}\ns_mul_i32 s{dst}, s{dst}, {BOX}")

    tabA = sum(p[0] << (4 * i) for i, p in enumerate(PAIRS))
    tabB = sum(p[1] << (4 * i) for i, p in enumerate(PAIRS))

    A(HDR.rstrip())
    A(f"; @launch grid=(256,1,1) block=(448,1,1) lds={LDS}")
    A('.amdgcn_target "amdgcn-amd-amdhsa--gfx950"\n.text')
    A(f".globl {NAME}\n.p2align 8\n.type {NAME},@function\n{NAME}:")
    A("s_cmp_ge_u32 s2, 256\ns_cbranch_scc1 L_end")
    A("s_load_dwordx16 s[48:63], s[0:1], 0")
    if remap:
        A(f"s_lshr_b32 s4, s2, {6 if remap == 1 else 7}\ns_add_u32 s4, s4, s2\ns_and_b32 s4, s4, 7\ns_and_b32 s2, s2, 0xf8\ns_or_b32 s2, s2, s4")
    if stamp:
        for i in range(8):
            A(f"s_mov_b64 s[{sSt + 2 * i}:{sSt + 2 * i + 1}], 0")
    st(0)
    A(f"v_lshrrev_b32 v{vT0}, 6, v0\nv_and_b32 v{vLane}, 63, v0")
    A(f"v_readfirstlane_b32 s{sW}, v{vT0}")
    if cpf:
        A("s_getpc_b64 s[4:5]\nL_pc:")
        A(f"s_and_b32 s6, s2, {0xf8 if cpf == 1 else 0x38}\nv_subrev_u32 v{vT1}, 384, v0\nv_cmp_gt_u32 vcc, {8 if cpf == 1 else 32}, v{vT1}")
        if cpf == 2:
            A("s_lshl_b32 s6, s6, 2")
        A(f"v_add_u32 v{vT1}, s6, v{vT1}\nv_lshlrev_b32 v{vT1}, 7, v{vT1}\nv_min_u32 v{vT1}, L_code_end-L_pc-4, v{vT1}")
        A(f"s_and_saveexec_b64 s[6:7], vcc\ns_cbranch_execz L_nocp\nglobal_load_dword v{vU + 7}, v{vT1}, s[4:5] {cpol}\nL_nocp:\ns_mov_b64 exec, s[6:7]")
    A(f"v_lshlrev_b32 v{vL16}, 4, v{vLane}")
    if mix:
        A(f"s_lshr_b32 s{sH}, s2, 3\ns_mul_i32 s{sH}, s{sH}, {mix}\ns_add_u32 s{sH}, s{sH}, s2")
    A(f"s_and_b32 s{sH}, {f's{sH}' if mix else 's2'}, 7\ns_lshr_b32 s{sRole}, s2, 6\ns_lshr_b32 s{sA}, s2, 1\ns_and_b32 s{sA}, s{sA}, 28")
    A(f"s_lshr_b32 s{sBA}, {hex(tabA)}, s{sA}\ns_lshr_b32 s{sBB}, {hex(tabB)}, s{sA}")
    A(f"s_and_b32 s{sBA}, s{sBA}, 15\ns_and_b32 s{sBB}, s{sBB}, 15")
    A(f"s_lshl_b32 s{sA}, s{sBA}, 2\ns_lshl_b32 s{sBb}, s{sBB}, 2")
    A(f"s_lshl_b32 s{sC}, s{sBA}, 10\ns_lshl_b32 s{sD}, s{sBB}, 10")
    A(f"v_add_u32 v{vT2}, s{sC}, v{vL16}\nv_add_u32 v{vT3}, s{sD}, v{vL16}")
    A(f"s_mov_b32 s{sBud}, 0x400000\ns_and_b32 s{sGrp}, s2, 63")
    A(f"s_cmp_lt_u32 s{sRole}, 2\ns_cselect_b32 s{sPar}, 4096, 0")
    A(f"v_min_u32 v{vDoneA}, 383, v0\nv_lshlrev_b32 v{vDoneA}, 2, v{vDoneA}\nv_add_u32 v{vDoneA}, {A_DONE}, v{vDoneA}")
    A(f"v_mov_b32 v{vDone}, 0")
    A(f"ds_write_b32 v{vDoneA}, v{vDone}\nds_write_b32 v{vDoneA}, v{vDone} offset:1536")
    A(f"v_mov_b32 v{vRdyA}, {A_READY}")
    A(f"v_lshrrev_b32 v{vT0}, 4, v{vLane}\nv_and_b32 v{vT1}, 15, v{vLane}")
    A(f"v_xor_b32 v{vU}, v{vT1}, v{vT0}\nv_lshlrev_b32 v{vU}, 4, v{vU}\nv_lshl_add_u32 v{vQd}, v{vT0}, 8, v{vU}")
    if th3:
        A(f"s_and_b32 s{sE2}, s{sH}, 3\ns_cmp_eq_u32 s{sE2}, 1\ns_cselect_b32 s34, {th2}, {th3}")
        A(f"s_mov_b32 s{sF2}, {hex(0xff000000 | firstb3 << 8)}\ns_cselect_b32 s{sF2}, {hex(0xff000000 | firstb << 8)}, s{sF2}")
        A(f"s_lshr_b32 s{sE2}, s2, 3\ns_bitcmp1_b32 s{sF2}, s{sE2}\ns_cselect_b32 s{sB}, s{sBB}, s{sBA}")
    else:
        A(f"s_lshr_b32 s{sE2}, s2, 3\ns_bitcmp1_b32 {hex(0xff000000 | firstb << 8)}, s{sE2}\ns_cselect_b32 s{sB}, s{sBB}, s{sBA}")
    A(f"s_mul_i32 s{sOffQ}, s{sW}, 8704\ns_add_u32 s{sOffQ}, s{sOffQ}, {PB}")
    A(f"s_mov_b32 s10, {QB}\ns_mov_b32 s11, 0x20000")

    def q_own():
        A(f"s_lshl_b32 s{sE2}, s{sB}, 3\ns_add_u32 s{sE2}, s{sE2}, s{sH}\ns_lshl_b32 s{sE2}, s{sE2}, 2\ns_add_u32 s{sE2}, s{sE2}, s{sW}")
        A(f"s_lshl_b32 s{sE2}, s{sE2}, 13\ns_add_u32 s{sE2}, s{sE2}, s{sPar}\ns_xor_b32 s{sF2}, s{sE2}, 4096")

    def q_own_loads(qpol=qpol):
        for r in range(8):
            A(f"s_add_u32 m0, s{sOffQ}, {r * 1088 - (r & 3) * 1024}\ns_nop 0")
            A(f"buffer_load_dwordx4 v{vQd}, {SQ}, s{sE2 if r < 4 else sF2} offen offset:{(r & 3) * 1024} {qpol} lds")

    q_own()
    A(f"s_mov_b32 m0, {A_TAB}\ns_and_b32 s{sC}, s{sW}, 6\ns_cmp_eq_u32 s{sC}, 4")
    A("s_waitcnt lgkmcnt(0)")
    A("s_cbranch_scc0 L_notab")
    A(f"global_load_lds_dwordx4 v{vT2}, s[54:55]\ns_mov_b32 m0, {A_TAB + 1024}\ns_setprio {lprio}\nglobal_load_lds_dwordx4 v{vT3}, s[54:55]")
    A("L_notab:")
    A(f"s_load_dword s{sCntA}, s[56:57], s{sA}\ns_load_dword s{sCntB}, s[56:57], s{sBb}")
    A(f"s_mov_b32 s8, s48\ns_mov_b32 s9, s49\ns_cmp_lt_u32 s{sW}, 4")
    A("s_barrier")
    A("s_cbranch_scc0 L_noq")
    if q3:
        A(f"s_cmp_eq_u32 s{sRole}, 3\ns_cbranch_scc0 L_q012")
        q_own_loads("")
        A("s_branch L_noq\nL_q012:")
    q_own_loads()
    A("L_noq:")
    for srd, p, n in ((12, 50, KVB), (16, 52, KVB), (20, 62, WSB), (24, 58, QB), (28, 60, 256)):
        A(f"s_mov_b32 s{srd}, s{p}\ns_mov_b32 s{srd + 1}, s{p + 1}\ns_mov_b32 s{srd + 2}, {n}\n"
          f"s_mov_b32 s{srd + 3}, 0x20000")
    box_off(sE2, 0)
    A(f"v_lshrrev_b32 v{vT2}, 2, v{vLane}\nv_min_u32 v{vT2}, 5, v{vT2}\nv_mul_u32_u24 v{vT2}, {BOX}, v{vT2}")
    A(f"v_and_b32 v{vT3}, 3, v{vLane}\nv_lshl_add_u32 v{vFa}, v{vT3}, 7, v{vT2}\ns_add_u32 s{sE2}, s{sE2}, 16896\nv_add_u32 v{vFa}, s{sE2}, v{vFa}")
    A(f"s_cmp_eq_u32 s{sW}, 5\ns_cbranch_scc0 L_nosnap")
    A(f"buffer_load_dword v{vF0}, v{vFa}, {SWS}, 0 offen sc1")
    A(f"v_add_u32 v{vT2}, {A_HIST}, v{vL16}")
    for j in range(4):
        A(f"v_mov_b32 v{68 + j}, 0")
    A(f"ds_write_b128 v{vT2}, v[68:71]")
    if touch:
        A(f"s_lshr_b32 s{sE2}, s2, 3\ns_lshl_b32 s{sE2}, s{sE2}, 22\nv_and_b32 v{vT2}, 1, v{vLane}\nv_lshlrev_b32 v{vT2}, 21, v{vT2}")
        A(f"buffer_load_dword v{vPoll}, v{vT2}, {SK}, s{sE2} offen nt\nbuffer_load_dword v{vPoll2}, v{vT2}, {SV}, s{sE2} offen nt")
    A("L_nosnap:")
    A(f"v_and_b32 v{vDnA}, 3, v{vLane}\nv_lshlrev_b32 v{vDnA}, 8, v{vDnA}\nv_add_u32 v{vDnA}, {A_DONE}, v{vDnA}")
    A(f"s_lshl_b32 s{sE2}, s{sH}, 8")
    A(f"v_lshl_add_u32 v{vT2}, v{vT0}, 11, v{vU}\nv_add_u32 v{vKo}, s{sE2}, v{vT2}")
    A(f"v_and_b32 v{vT2}, 1, v{vT0}\nv_lshlrev_b32 v{vT2}, 1, v{vT2}\nv_xor_b32 v{vT2}, v{vT2}, v{vT1}\nv_lshlrev_b32 v{vT2}, 4, v{vT2}")
    A(f"v_lshl_add_u32 v{vT2}, v{vT0}, 13, v{vT2}\nv_add_u32 v{vVo}, s{sE2}, v{vT2}")
    for j in range(1, 4):
        A(f"v_add_u32 v{vKo + j}, {j * (8192 - 1088)}, v{vKo}\nv_add_u32 v{vVo + j}, {j * (2048 - 1088)}, v{vVo}")
    A("s_waitcnt lgkmcnt(0)")
    st(1)
    A(f"s_min_i32 s{sA}, s{sCntA}, 0x1000\ns_cmp_lt_i32 s{sA}, 1\ns_cselect_b32 s{sA}, 0x1000, s{sA}\ns_cselect_b32 s{sC}, 1, 0")
    A(f"s_min_i32 s{sBb}, s{sCntB}, 0x1000\ns_cmp_lt_i32 s{sBb}, 1\ns_cselect_b32 s{sBb}, 0x1000, s{sBb}\ns_cselect_b32 s{sD}, 1, 0")
    A(f"s_mov_b32 s{sE2}, s{sBA}\ns_cmp_lt_u32 s{sA}, s{sBb}\ns_cselect_b32 s{sSwap}, 1, 0")
    A(f"s_cselect_b32 s{sCntA}, s{sBb}, s{sA}\ns_cselect_b32 s{sCntB}, s{sA}, s{sBb}")
    A(f"s_cselect_b32 s{sBA}, s{sBB}, s{sBA}\ns_cselect_b32 s{sBB}, s{sE2}, s{sBB}")
    A(f"s_cselect_b32 s{sZ}, s{sD}, s{sC}\ns_cselect_b32 s{sD}, s{sC}, s{sD}\ns_lshl_b32 s{sD}, s{sD}, 1\ns_or_b32 s{sZ}, s{sZ}, s{sD}")
    A(f"s_cmp_eq_u32 s{sRole}, 3\ns_cselect_b32 s{sNv}, s{sCntB}, s{sCntA}")
    A(f"s_sub_u32 s{sNv}, s{sNv}, 1\ns_and_b32 s{sNv}, s{sNv}, 31\ns_add_u32 s{sNv}, s{sNv}, 1")
    A(f"s_add_u32 s{sTopA}, s{sCntA}, 31\ns_lshr_b32 s{sTopA}, s{sTopA}, 5")
    A(f"s_add_u32 s{sTopB}, s{sCntB}, 31\ns_lshr_b32 s{sTopB}, s{sTopB}, 5")
    A(f"s_add_u32 s{sA}, s{sTopA}, s{sTopB}\ns_add_u32 s{sA}, s{sA}, {2 * delta + ex + ra}\ns_lshr_b32 s{sA}, s{sA}, 2\ns_max_u32 s{sA}, s{sA}, 1")
    A(f"s_min_u32 s{sCntA}, s{sA}, s{sTopA}\ns_min_u32 s{sCntB}, s{sA}, s{sTopB}")
    if th2:
        A(f"s_add_u32 s{sC}, s{sTopA}, 1\ns_lshr_b32 s{sC}, s{sC}, 1\ns_add_u32 s{sD}, s{sTopB}, 1\ns_lshr_b32 s{sD}, s{sD}, 1")
        A(f"s_sub_u32 s{sA}, s{sTopA}, s{sTopB}\ns_cmp_le_u32 s{sA}, {'s34' if th3 else th2}")
        A(f"s_cselect_b32 s{sCntA}, s{sC}, s{sCntA}\ns_cselect_b32 s{sCntB}, s{sD}, s{sCntB}\ns_cselect_b32 s{sF2}, 0x1000, {theta}")
    A(f"s_sub_u32 s{sC}, s{sTopA}, s{sCntA}\ns_sub_u32 s{sD}, s{sTopB}, s{sCntB}")
    A(f"s_add_u32 s{sBb}, s{sC}, s{sD}\ns_add_u32 s{sBb}, s{sBb}, {ex + rx}\ns_lshr_b32 s{sBb}, s{sBb}, 1\ns_min_u32 s{sBb}, s{sBb}, s{sC}")
    A(f"s_sub_u32 s{sExp}, s{sC}, s{sBb}\ns_cmp_le_u32 s{sExp}, {f's{sF2}' if th2 else theta}\ns_cselect_b32 s{sBb}, s{sC}, s{sBb}\ns_cselect_b32 s{sExp}, 0, s{sExp}")
    A(f"s_cmp_ge_u32 s{sRole}, 2\ns_cbranch_scc1 L_plan_top")
    A(f"s_mov_b32 s{sNv}, 32\ns_mov_b32 s{sTopB}, s{sD}\ns_mov_b32 s{sCntB}, s{sD}")
    A(f"s_cmp_eq_u32 s{sRole}, 0\ns_cselect_b32 s{sCntA}, s{sBb}, s{sExp}\ns_cselect_b32 s{sTopA}, s{sBb}, s{sC}")
    A("L_plan_top:")
    A(f"s_bitcmp1_b32 s{sRole}, 0\ns_cselect_b32 s{sCntB}, s{sCntB}, 0\ns_cselect_b32 s{sExp}, 0, s{sExp}")
    A(f"s_cmp_eq_u32 s{sRole}, 3\ns_cselect_b32 s{sCntA}, 0, s{sCntA}")
    A(f"s_cmp_lt_u32 s{sW}, 4\ns_cbranch_scc1 L_consumer\ns_cmp_eq_u32 s{sW}, 6\ns_cbranch_scc1 L_pacer")
    A(f"s_sub_u32 s{sA}, s{sW}, 4\ns_mul_i32 s{sA}, s{sA}, {k0}\nv_add_u32 v{vRow + 2}, s{sA}, v{vLane}")
    A(f"s_add_u32 s{sCnt}, s{sCntA}, s{sCntB}\ns_add_u32 s{sBb}, s{sTopB}, s{sCntA}\nv_cmp_gt_u32 vcc, s{sCntA}, v{vRow + 2}")
    A(f"v_mov_b32 v{vT2}, s{sTopA}\nv_mov_b32 v{vT3}, s{sBb}\ns_lshl_b32 s{sA}, s{sSwap}, 10\ns_add_u32 s{sA}, s{sA}, {A_TAB}")
    A(f"v_cndmask_b32 v{vT2}, v{vT3}, v{vT2}, vcc\ns_lshl_b32 s{sBb}, s{sSwap}, 10\ns_sub_u32 s{sBb}, {A_TAB + 1024}, s{sBb}")
    A(f"v_xad_u32 v{vT2}, v{vRow + 2}, -1, v{vT2}\nv_mov_b32 v{vT3}, s{sA}\nv_mov_b32 v{vRow}, s{sBb}")
    A(f"v_and_b32 v{vT2}, 127, v{vT2}\nv_cndmask_b32 v{vT3}, v{vRow}, v{vT3}, vcc\nv_lshl_add_u32 v{vT2}, v{vT2}, 3, v{vT3}")
    A(f"s_cmp_eq_u32 s{sW}, 5\ns_cbranch_scc1 L_helper")

    def min4(dst, add):
        A(f"v_readlane_b32 s{sA}, v{vDn}, 0\nv_readlane_b32 s{sBb}, v{vDn}, 1\nv_readlane_b32 s{sC}, v{vDn}, 2\n"
          f"v_readlane_b32 s{sD}, v{vDn}, 3")
        A(f"s_min_u32 s{sA}, s{sA}, s{sBb}\ns_min_u32 s{sC}, s{sC}, s{sD}\ns_min_u32 s{dst}, s{sA}, s{sC}")
        if add:
            A(f"s_add_u32 s{dst}, s{dst}, {add}")

    A(f"s_cmp_eq_u32 s{sCnt}, 0\ns_cbranch_scc1 L_ldone")
    A(f"s_waitcnt vmcnt(0)\nds_read_b64 {vr(vRow, 2)}, v{vT2}")
    st(2)
    A(f"s_mov_b32 s{sS}, 1\ns_mov_b32 s{sOff}, {SLOT}\ns_mov_b32 s{sPub}, 0\ns_mov_b32 s{sFree}, {NS}")
    if skipb:
        A(f"s_cmp_le_u32 s{sNv}, 16")
    A(f"s_mov_b32 s{sTile}, 1\ns_mov_b32 s{sSw}, {k0 if not nosort else 64}\ns_mov_b32 m0, 0")
    A(f"s_waitcnt lgkmcnt(0)\nv_lshlrev_b32 v{vRow}, 15, v{vRow}\nv_lshlrev_b32 v{vRow + 1}, 15, v{vRow + 1}")
    A(f"v_readlane_b32 s{sA}, v{vRow}, 0\nv_readlane_b32 s{sBb}, v{vRow + 1}, 0\nv_readlane_b32 s{sN0}, v{vRow}, 1\nv_readlane_b32 s{sN1}, v{vRow + 1}, 1")
    A(f"s_mov_b32 s{sO0}, s{sA}\n" + (f"s_cselect_b32 s{sO1}, {hex(OOB)}, s{sBb}" if skipb else f"s_mov_b32 s{sO1}, s{sBb}"))
    for g in range(2):
        if g:
            A("s_mov_b32 m0, 4352\ns_nop 0")
        for j in range(4):
            A(f"buffer_load_dwordx4 v{vKo + j}, {SK}, s{sO0 + g} offen offset:{j * 1088} {pol} lds")
    if lag:
        A(f"s_mov_b32 s{sLag}, {lag}\ns_lshr_b32 s{sDec}, s2, 3\ns_and_b32 s{sDec}, s{sDec}, {dmask}")
        if dmul != 4:
            A(f"s_mul_i32 s{sDec}, s{sDec}, {dmul}\ns_lshr_b32 s{sDec}, s{sDec}, 2")
        A(f"s_add_u32 s{sDec}, s{sDec}, {dec0}")
    A(f"v_lshlrev_b32 v{vT2}, 3, v{vLane}\nv_add_u32 v{vT2}, {A_LIST}, v{vT2}\nv_mov_b32 v{vT3}, {A_SIG}")
    sLvl = 53
    A(f"s_mov_b32 s{sA}, {A_SIG + 8}\nv_writelane_b32 v{vDnA}, s{sA}, 4\ns_mov_b32 s{sLvl}, {l0}")
    if nsc:
        for r, n in ((54, n0), (55, nm), (56, n1)):
            A(f"s_mul_i32 s{r}, s{sCnt}, {round((n - 0.5) * 256 / 49)}\ns_lshr_b32 s{r}, s{r}, 8")
        if lag:
            A(f"s_mul_i32 s{sDec}, s{sDec}, s{sCnt}\ns_mul_i32 s{sDec}, s{sDec}, 84\ns_lshr_b32 s{sDec}, s{sDec}, 12")
    A("L_next:")
    A(f"s_sub_u32 s{sCnt}, s{sCnt}, 1\ns_cmp_eq_u32 s{sCnt}, 0\ns_cbranch_scc1 L_lsegend")
    A(f"s_mov_b32 s{sP0}, s{sO0}\ns_mov_b32 s{sP1}, s{sO1}\ns_mov_b32 s{sO0}, s{sN0}\ns_mov_b32 s{sO1}, s{sN1}")
    A(f"s_cmp_lt_u32 s{sS}, s{sFree}\ns_cbranch_scc0 L_full_a")
    A("L_free_a:")

    def tree(lo, hi):
        if lo == hi:
            stage_loop(str(lo), w_lo + 2 * lo)
            return
        mid = (lo + hi + 1) // 2
        A(f"s_cmp_ge_i32 s{sLvl}, {mid}\ns_cbranch_scc1 L_t{mid}_{hi}")
        tree(lo, mid - 1)
        A(f"L_t{mid}_{hi}:")
        tree(mid, hi)

    def next_offsets(tag):
        A(f"s_add_u32 s{sTile}, s{sTile}, 1\ns_cmp_eq_u32 s{sTile}, s{sSw}\ns_cbranch_scc1 L_sw_{tag}")
        A(f"L_swd_{tag}:")
        A(f"v_readlane_b32 s{sN0}, v{vRow}, s{sTile}\nv_readlane_b32 s{sN1}, v{vRow + 1}, s{sTile}")

    def publish(back, lagged):
        A(f"s_sub_u32 s{sE2}, s{sS}, {back}")
        if lagged:
            A(f"s_sub_u32 s{sF2}, s{sE2}, s{sLag}\ns_max_i32 s{sPub}, s{sPub}, s{sF2}")
        else:
            A(f"s_max_i32 s{sPub}, s{sPub}, s{sE2}")
        A(f"v_mov_b32 v{vPub}, s{sPub}")
        if lagged:
            A(f"v_writelane_b32 v{vPub}, s{sE2}, 1")

    def stage_loop(tag, w):
        pub_i = -(-((w - gran) % 16) // gran) * gran
        back = (w - gran) // 16
        if pub_i == 16:
            pub_i, back = 0, back + 1
        for i in range(16):
            g, j = i >> 2, i & 3
            srd, vo, so = ((SK, vKo, sO0), (SK, vKo, sO1), (SV, vVo, sP0), (SV, vVo, sP1))[g]
            if j == 0:
                A(f"s_mov_b32 m0, s{sOff}" if g == 0 else f"s_add_u32 m0, s{sOff}, {g * 4352}")
            if i == pub_i:
                publish(back, lag)
            if i % gran == 0:
                A(f"s_waitcnt vmcnt({w - gran})")
            elif j == 0:
                A("s_nop 0")
            if i == pub_i:
                A(f"ds_write_b32 v{vDoneA}, v{vPub}")
            A(f"buffer_load_dwordx4 v{vo + j}, {srd}, s{so} offen offset:{j * 1088} {pol} lds")
            if i == 3:
                next_offsets(tag)
            if i == 8:
                A(f"ds_read_b32 v{vDn}, v{vDnA}")
            if i == 10:
                A("s_waitcnt lgkmcnt(0)")
                min4(sFree, NS)
            if i == 12:
                AL(adv(sOff))
                A(f"v_readlane_b32 s{sBb}, v{vDn}, 4\ns_cmp_lt_u32 s{sS}, {'s56' if nsc else n1 - 1}\ns_cselect_b32 s{sA}, {l1}, {l2}")
                if nm:
                    A(f"s_cmp_lt_u32 s{sS}, {'s55' if nsc else nm - 1}\ns_cselect_b32 s{sA}, {lm}, s{sA}")
                A(f"s_cmp_lt_u32 s{sS}, {'s54' if nsc else n0 - 1}\ns_cselect_b32 s{sA}, {l0}, s{sA}\ns_add_u32 s{sLvl}, s{sA}, s{sBb}")
            if i == 13 and lag:
                assert lag == 1
                A(f"s_cmp_ge_u32 s{sS}, s{sDec}\ns_cselect_b32 s{sLag}, 0, 1")
        A(f"s_add_u32 s{sS}, s{sS}, 1")
        A("s_branch L_stg" if stamp or noload else "s_branch L_next")

    tree(0, nlev - 1)
    if stamp or noload:
        A("L_stg:")
        for k, n in ((5, 8), (6, 24), (7, 40)):
            A(f"s_cmp_lg_u32 s{sS}, {n}\ns_cbranch_scc1 L_ns{k}")
            st(k)
            A(f"L_ns{k}:")
        if noload:
            A(f"s_cmp_lt_u32 s{sS}, {NS}\ns_cbranch_scc1 L_next\ns_waitcnt vmcnt(0)\nv_mov_b32 v{vPub}, 0x7fffffff\n"
              f"ds_write_b32 v{vDoneA}, v{vPub}\ns_branch L_ldone")
        A("s_branch L_next")
    A("L_lsegend:")
    if pre:
        A(f"ds_read_b32 v{vPoll}, v{vT3}")
    A(f"s_cmp_lt_u32 s{sS}, s{sFree}\ns_cbranch_scc0 L_full_e")
    A("L_free_e:")
    assert wmax <= 32
    for i in range(9):
        g, j = 2 + (i >> 2), i & 3
        if j == 0 and i < 8:
            A(f"s_add_u32 m0, s{sOff}, {g * 4352}\ns_nop 0")
        if i == ek:
            publish(1, False)
            A(f"s_waitcnt vmcnt({16 + i})\nds_write_b32 v{vDoneA}, v{vPub}")
        if i < 8:
            A(f"buffer_load_dwordx4 v{vVo + j}, {SV}, s{sO0 if g == 2 else sO1} offen offset:{j * 1088} {pol} lds")
    st(3)
    if pre:
        A(f"s_bitcmp1_b32 s{sRole}, 0\ns_cselect_b32 s48, s{sBB}, s{sBA}\ns_lshl_b32 s48, s48, 3\ns_add_u32 s48, s48, s{sH}")
        A(f"s_lshl_b32 s48, s48, 15\ns_add_u32 s48, s48, s{sPar}")
        A(f"v_lshrrev_b32 v93, 5, v{vLane}\nv_lshlrev_b32 v93, 12, v93\nv_lshl_add_u32 v93, v{vLane}, 7, v93\nv_lshlrev_b32 v95, 7, v{vLane}")
        A(f"s_xor_b32 s{sA}, s{sRole}, 2\ns_lshr_b32 s{sBb}, s{sRole}, 1\ns_add_u32 s{sBb}, s{sBb}, 4")
        box_off(50, f"s{sA}")
        box_off(49, f"s{sBb}")
        A(f"s_cmp_eq_u32 s{sExp}, 0\ns_cselect_b32 s49, {hex(OOB)}, s49\ns_cselect_b32 s51, s50, s49")
        A(f"v_and_b32 v94, 4, v{vLane}\nv_cmp_eq_u32 vcc, 0, v94\nv_mov_b32 v94, s50\nv_mov_b32 v96, s51\nv_and_b32 v97, 3, v{vLane}")
        A(f"v_cndmask_b32 v94, v96, v94, vcc\nv_lshl_add_u32 v94, v97, 7, v94")
    npre = 5 if pre else 0

    def pre_loads():
        A(f"s_waitcnt lgkmcnt(0)\nv_readfirstlane_b32 s{sA}, v{vPoll}\ns_nop 0\ns_cmp_eq_u32 s{sA}, 1")
        A(f"s_cselect_b32 s48, s48, {hex(OOB)}\ns_cselect_b32 s49, s49, {hex(OOB)}\ns_cselect_b32 s50, 16384, {hex(OOB)}")
        A(f"s_mov_b32 m0, {A_HIST}\ns_add_u32 s51, s48, 16384\ns_add_u32 s52, s49, 8192")
        for va, srd, so in ((94, SWS, 50), (93, SO, 48), (93, SO, 51), (95, SWS, 49), (95, SWS, 52)):
            A(f"buffer_load_dword v{va}, {srd}, s{so} offen {prepol} lds")

    backs = [0, -1]
    for n, back in enumerate(backs):
        if pre and n == pre - 1:
            pre_loads()
        ex_n = npre if pre and n >= pre - 1 else 0
        publish(back, False) if back >= 0 else A(f"s_add_u32 s{sA}, s{sS}, 1\nv_mov_b32 v{vPub}, s{sA}")
        A(f"s_waitcnt vmcnt({(16 * back + 8 if back >= 0 else 0) + ex_n})\nds_write_b32 v{vDoneA}, v{vPub}")
    if pre > len(backs):
        pre_loads()
    A("L_ldone:")
    st(4)
    dump_stamps(0)
    A("s_endpgm")
    for tag in map(str, range(nlev)):
        A(f"L_sw_{tag}:")
        budget()
        A(f"ds_read_b32 v{vDn}, v{vT3} offset:4\nds_read_b64 {vr(vRow, 2)}, v{vT2}\ns_waitcnt lgkmcnt(0)\nv_readfirstlane_b32 s{sA}, v{vDn}\ns_nop 0")
        A(f"s_cmp_eq_u32 s{sA}, 0\ns_cbranch_scc1 L_sw_{tag}")
        A(f"s_mov_b32 s{sTile}, 0\ns_mov_b32 s{sSw}, -1\ns_branch L_swd_{tag}")
    for tag in "ae":
        A(f"L_full_{tag}:")
        budget()
        A(f"ds_read_b32 v{vDn}, v{vDnA}\ns_waitcnt lgkmcnt(0)")
        min4(sFree, NS)
        A(f"s_cmp_lt_u32 s{sS}, s{sFree}\ns_cbranch_scc0 L_full_{tag}\ns_branch L_free_{tag}")

    A("L_pacer:")
    sPos, sIdx, sLine, sNx = 54, 55, 56, 57
    A(f"s_add_u32 s{sCnt}, s{sCntA}, s{sCntB}\ns_lshr_b32 s{sIdx}, s2, 3")
    A(f"s_sub_u32 s{sA}, s{sCnt}, {base}\ns_mul_i32 s{sA}, s{sA}, {sg}\ns_add_u32 s{sA}, s{sA}, {128 - sg * 3 // 4}\ns_ashr_i32 s{sA}, s{sA}, 8")
    A(f"s_min_i32 s{sA}, s{sA}, {amax}\ns_max_i32 s{sA}, s{sA}, {-amin}\nv_mov_b32 v101, s{sA}\nv_mov_b32 v{vT3}, {A_SIG + 8}\nds_write_b32 v{vT3}, v101")
    if kap:
        A("v_mov_b32 v105, v101")
    A(f"s_and_b32 s{sA}, s2, 7\ns_lshl_b32 s{sA}, s{sA}, 7\ns_add_u32 s{sLine}, s{sA}, {64 * 6 * BOX}\nv_and_b32 v98, 31, v{vLane}\nv_lshlrev_b32 v98, 2, v98")
    A(f"s_lshl_b64 s[58:59], 1, s{sIdx}\nbuffer_load_dword v99, v98, {SWS}, s{sLine} offen sc1")
    if bia or bib:
        A(f"s_mov_b32 s{sA}, {hex(f2u(bib))}\ns_cmp_eq_u32 s34, {th2}\ns_cselect_b32 s{sA}, {hex(f2u(bia))}, s{sA}\nv_mov_b32 v104, s{sA}")
    if clead:
        A(f"s_cmp_eq_u32 s{sExp}, 0\ns_cselect_b32 s60, {foff}, {foff + clead}")
    A(f"s_and_b32 s{sNx}, s{sIdx}, 1\ns_add_u32 s{sNx}, s{sNx}, {fb0}\ns_waitcnt vmcnt(0)")
    A("L_pc0:")
    A(f"s_cmp_ge_u32 s{sNx}, s{sCnt}\ns_cbranch_scc1 L_end")
    A("L_pc1:")
    budget()
    if fsleep:
        A(f"s_sleep {fsleep}")
    A(f"ds_read_b32 v{vF}, v{vRdyA} offset:4\ns_waitcnt lgkmcnt(0)\nv_readfirstlane_b32 s{sF}, v{vF}\ns_nop 0")
    A(f"s_cmp_lt_i32 s{sF}, s{sNx}\ns_cbranch_scc1 L_pc1")
    A(f"s_sub_u32 s{sBb}, s{sCnt}, s{sF}\ns_sub_u32 s{sPos}, 128, s{sBb}\nv_add_u32 v102, s{sPos}, v99\ns_mov_b64 exec, s[58:59]")
    A(f"buffer_store_dword v102, v98, {SWS}, s{sLine} offen\ns_mov_b64 exec, -1")
    A(f"buffer_load_dword v100, v98, {SWS}, s{sLine} offen sc1")
    A(f"s_add_u32 s{sNx}, s{sF}, 2\ns_sub_u32 s{sA}, s{sBb}, 2\ns_min_i32 s{sA}, s{sA}, {rhi}\ns_max_i32 s{sA}, s{sA}, {rlo}")
    A(f"v_cvt_f32_u32 v102, s{sA}\ns_lshl_b32 s{sD}, s{sPos}, 5\ns_sub_u32 s{sD}, s{sD}, {'s60' if clead else foff}\nv_rcp_f32 v102, v102\ns_waitcnt vmcnt(0)")
    A(f"v_sub_u32 v101, v100, v99\nv_cmp_eq_u32 vcc, 0, v101\ns_nop 0")
    for sh in (1, 2, 4, 8):
        A(f"v_add_u32_dpp v101, v101, v101 row_shr:{sh} row_mask:0xf bank_mask:0xf bound_ctrl:0\ns_nop 1")
    A(f"v_add_u32_dpp v101, v101, v101 row_bcast:15 row_mask:0xa bank_mask:0xf\ns_cbranch_vccnz L_pc0")
    if kap:
        A(f"v_mad_i32_i24 v101, v105, {-kap}, v101")
    A(f"v_subrev_u32 v101, s{sD}, v101\nv_cvt_f32_i32 v101, v101\nv_mul_f32 v101, {hex(f2u(fbg / 32))}, v101\n" + ("v_fma_f32 v101, v101, v102, v104" if bia or bib else "v_mul_f32 v101, v101, v102"))
    A(f"v_rndne_f32 v101, v101\nv_cvt_i32_f32 v101, v101\nv_med3_i32 v101, v101, {-amin}, {amax}")
    if kap:
        A("v_mov_b32 v105, v101")
    A(f"s_mov_b32 exec_lo, 0x80000000\ns_mov_b32 exec_hi, 0\nds_write_b32 v{vT3}, v101\ns_mov_b64 exec, -1\ns_branch L_pc0")

    A("L_helper:")
    a_0, a_1, p_0, p_1, hh, tt, one = 64, 65, 66, 67, 68, 96, 75
    A(f"s_waitcnt vmcnt({hw0})\nds_read_b64 {vr(vRow, 2)}, v{vT2}")
    A(f"v_mov_b32 v{a_0}, {A_HIST}\nv_mov_b32 v{a_1}, {A_HIST + 512}\nv_add_u32 v{vT3}, {A_HIST}, v{vL16}")
    A(f"v_cndmask_b32 v{p_0}, v{a_1}, v{a_0}, vcc\nv_cmp_gt_u32 vcc, s{sCnt}, v{vRow + 2}\nv_mov_b32 v{one}, 1")
    A(f"s_waitcnt lgkmcnt(0)\nv_bfe_u32 v{a_0}, v{vRow}, {bsh}, 7\nv_bfe_u32 v{a_1}, v{vRow + 1}, {bsh}, 7")
    A(f"v_lshl_add_u32 v{a_0}, v{a_0}, 2, v{p_0}\nv_lshl_add_u32 v{a_1}, v{a_1}, 2, v{p_0}")
    A(f"s_mov_b64 s[48:49], vcc\ns_mov_b64 exec, vcc")
    A(f"ds_add_rtn_u32 v{p_0}, v{a_0}, v{one}\nds_add_rtn_u32 v{p_1}, v{a_1}, v{one}")
    A(f"s_mov_b64 exec, -1\nds_read_b128 {vr(hh, 4)}, v{vT3}")
    A(f"v_lshlrev_b32 v{vRow}, 15, v{vRow}\nv_lshlrev_b32 v{vRow + 1}, 15, v{vRow + 1}\ns_waitcnt lgkmcnt(0)")
    A(f"v_add_u32 v{hh + 1}, v{hh}, v{hh + 1}\nv_add_u32 v{hh + 2}, v{hh + 1}, v{hh + 2}\nv_add_u32 v{hh + 3}, v{hh + 2}, v{hh + 3}")
    A(f"v_mov_b32 v{tt}, v{hh + 3}\ns_nop 1")
    for sh in (1, 2, 4, 8):
        A(f"v_add_u32_dpp v{tt}, v{tt}, v{tt} row_shr:{sh} row_mask:0xf bank_mask:0xf bound_ctrl:0\ns_nop 1")
    A(f"v_add_u32_dpp v{tt}, v{tt}, v{tt} row_bcast:15 row_mask:0xa bank_mask:0xf\ns_nop 1")
    A(f"v_add_u32_dpp v{tt}, v{tt}, v{tt} row_bcast:31 row_mask:0xc bank_mask:0xf")
    A(f"v_sub_u32 v{tt}, v{tt}, v{hh + 3}")
    for j in range(3):
        A(f"v_add_u32 v{tt + 1 + j}, v{tt}, v{hh + j}")
    A(f"ds_write_b128 v{vT3}, {vr(tt, 4)}\nds_read_b32 v{a_0}, v{a_0}\nds_read_b32 v{a_1}, v{a_1}")
    A(f"v_mov_b32 v{vT3}, {A_LIST}\nv_mov_b32 v{vT2}, {A_SIG}\ns_mov_b64 exec, s[48:49]\ns_waitcnt lgkmcnt(0)")
    A(f"v_add_u32 v{p_0}, v{p_0}, v{a_0}\nv_add_u32 v{p_1}, v{p_1}, v{a_1}")
    A(f"v_lshl_add_u32 v{p_0}, v{p_0}, 2, v{vT3}\nv_lshl_add_u32 v{p_1}, v{p_1}, 2, v{vT3}")
    A(f"ds_write_b32 v{p_0}, v{vRow}\nds_write_b32 v{p_1}, v{vRow + 1}")
    A(f"s_mov_b64 exec, -1\nds_write_b32 v{vT2}, v{one} offset:4")
    st(5)
    A(f"s_setprio 0\ns_mov_b32 s{sItem}, 1")
    A(f"s_cmp_eq_u32 s{sCntA}, 0\ns_cselect_b32 s{sCntB}, 0, s{sCntB}")

    def pb_free(tag):
        A(f"s_branch L_hfree_{tag}")
        A(f"L_hfree0_{tag}:")
        budget()
        if psleep:
            A(f"s_sleep {psleep}")
        A(f"L_hfree_{tag}:")
        A(f"ds_read_b32 v{vDn}, v{vDnA} offset:1536\ns_waitcnt lgkmcnt(0)")
        min4(sA, 0)
        A(f"s_cmp_lt_u32 s{sA}, s{sItem}\ns_cbranch_scc1 L_hfree0_{tag}")

    def pb_publish():
        A(f"s_add_u32 s{sItem}, s{sItem}, 1\nv_mov_b32 v{vPub}, s{sItem}\ns_waitcnt vmcnt(0)\nds_write_b32 v{vDoneA}, v{vPub}")

    def q_item(w):
        A(f"s_lshl_b32 s{sO1}, s{sB}, 3\ns_add_u32 s{sO1}, s{sO1}, s{sH}\ns_lshl_b32 s{sO1}, s{sO1}, 15\ns_xor_b32 s{sO0}, s{sO1}, s{sPar}")
        for r in range(32):
            A(f"s_mov_b32 m0, {PB + r * 1088 - (r & 3) * 1024}")
            if r and (r & 3) == 0:
                A(f"s_add_u32 s{sO1}, s{sO1}, 4096\ns_xor_b32 s{sO0}, s{sO1}, s{sPar}")
            elif w and r >= w:
                A(f"s_waitcnt vmcnt({w - 1})")
            else:
                A("s_nop 0")
            A(f"buffer_load_dwordx4 v{vQd}, {SQ}, s{sO0} offen offset:{(r & 3) * 1024} {q2pol} lds")

    def wait_progress(tag):
        A(f"s_branch L_hp_{tag}")
        A(f"L_hp0_{tag}:")
        budget()
        if psleep:
            A(f"s_sleep {psleep}")
        A(f"L_hp_{tag}:")
        A(f"ds_read_b32 v{vF}, v{vRdyA}\ns_waitcnt lgkmcnt(0)\nv_readfirstlane_b32 s{sF}, v{vF}\ns_nop 0")
        A(f"s_cmp_lt_u32 s{sF}, s{sNeed}\ns_cbranch_scc1 L_hp0_{tag}")

    A(f"s_lshl_b32 s{sA}, s{sGrp}, 2\nv_mov_b32 v{vDb}, s{sA}\ns_getreg_b32 s{sA}, hwreg(HW_REG_XCC_ID, 0, 4)")
    A(f"s_or_b32 s{sD}, s{sA}, 16\ns_lshl_b32 s{sBb}, s{sRole}, 3\ns_lshl_b32 s{sA}, s{sD}, s{sBb}\ns_mul_i32 s{sK}, s{sD}, 0x01010101")
    A(f"s_waitcnt vmcnt(0)\nv_mov_b32 v{vPoll}, s{sA}")
    A(f"ds_write_b32 v{vDoneA}, v{vF0} offset:1536")
    A(f"s_mov_b64 exec, 1\nbuffer_atomic_or v{vPoll}, v{vDb}, {SD}, 0 offen sc1\ns_mov_b64 exec, -1")
    st(2)
    A(f"s_cmp_eq_u32 s{sCntB}, 0\ns_cbranch_scc1 L_hq2")
    A(f"s_mov_b32 s{sB}, s{sBB}")
    pb_free("q")
    q_item(hwin)
    A(f"v_mov_b32 v{vPub}, 1\ns_waitcnt vmcnt(0)\nds_write_b32 v{vDoneA}, v{vPub}")
    A("L_hq2:")
    A(f"s_lshr_b32 s{sIt}, s2, 3\ns_and_b32 s{sIt}, s{sIt}, {cmask}")
    if rmode < 2:
        A(f"s_add_u32 s{sNeed}, s{sIt}, {chk0}\ns_min_u32 s{sNeed}, s{sNeed}, s{sCnt}")
        wait_progress("c")
        A("s_branch L_hchk")
        A("L_hchk0:")
        budget()
        if psleep:
            A(f"s_sleep {4 * psleep}")
        A("L_hchk:")
        A(f"buffer_load_dword v{vPoll2}, v{vDb}, {SD}, 0 offen sc1\ns_waitcnt vmcnt(0)")
        A(f"v_readfirstlane_b32 s{sA}, v{vPoll2}\ns_nop 0\ns_and_b32 s{sBb}, s{sA}, 0x10101010\ns_cmp_eq_u32 s{sBb}, 0x10101010\ns_cbranch_scc0 L_hchk0")
        A(f"s_cmp_eq_u32 s{sA}, s{sK}\ns_cselect_b32 s{sK}, 1, 2")
    if force or rmode >= 2:
        A(f"s_mov_b32 s{sK}, {force or 1}")
    A(f"v_mov_b32 v{vPoll2}, s{sK}")
    A(f"v_mov_b32 v{vT2}, {A_SIG}\nds_write_b32 v{vT2}, v{vPoll2}")
    A(f"s_cmp_eq_u32 s{sRole}, 1\ns_cbranch_scc0 L_hdone\ns_cmp_eq_u32 s{sCntA}, 0\ns_cbranch_scc1 L_hdone")
    A(f"s_mov_b32 s{sItem}, 2")
    pb_free("h")
    A(f"v_add_u32 v{vT3}, {PB}, v{vL16}\nv_mul_u32_u24 v{vT2}, 8704, v{vT0}\nv_lshl_add_u32 v{vT2}, v{vT1}, 4, v{vT2}")
    A(f"v_add_u32 v{vT2}, {PB + 8192}, v{vT2}")
    for r in range(32):
        A(f"ds_read_b128 {vr(HR + 4 * r, 4)}, v{vT3} offset:{(r >> 3) * 8704 + (r & 7) * 1024}")
    A(f"ds_read_b128 {vr(HR + 128, 4)}, v{vT2}")
    box_off(sE2, 4)
    A(f"v_lshrrev_b32 v{vT2}, 3, v{vT1}\nv_mul_u32_u24 v{vT2}, {BOX}, v{vT2}\nv_lshl_add_u32 v{vT2}, v{vT0}, 7, v{vT2}")
    A(f"v_and_b32 v{vT3}, 7, v{vT1}\nv_lshl_add_u32 v{vT2}, v{vT3}, 4, v{vT2}")
    A(f"v_add_u32 v{vF0}, 1, v{vF0}")
    A(f"s_cmp_eq_u32 s{sK}, 1\ns_cselect_b32 s{sA}, {lead}, 1\ns_sub_u32 s{sNeed}, s{sCnt}, s{sA}\ns_max_i32 s{sNeed}, s{sNeed}, 0")
    wait_progress("h")
    st(3)
    A(f"s_cmp_eq_u32 s{sK}, 1\ns_cbranch_scc0 L_hwt")
    for pl in (hpol, "sc1"):
        if pl == "sc1":
            A("L_hwt:")
        for r in range(32):
            if (r & 3) == 0:
                A(f"s_add_u32 s{sO1}, s{sE2}, {((r >> 2) & 1) * BOX + (r >> 3) * 4096}")
            A(f"buffer_store_dwordx4 {vr(HR + 4 * r, 4)}, v{vL16}, {SWS}, s{sO1} offen offset:{(r & 3) * 1024} {pl}")
        A(f"s_add_u32 s{sO0}, s{sE2}, 16384")
        A(f"buffer_store_dwordx4 {vr(HR + 128, 4)}, v{vT2}, {SWS}, s{sO0} offen {pl}")
        A("s_mov_b64 exec, 0xff0000\ns_waitcnt vmcnt(0)")
        A(f"buffer_store_dword v{vF0}, v{vFa}, {SWS}, 0 offen {pl}")
        A("s_mov_b64 exec, -1")
        if pl != "sc1":
            A("s_branch L_hdone")
    A("L_hdone:")
    if trace:
        A(f"s_cmp_eq_u32 s{sRole}, 0\ns_cbranch_scc0 L_end")
        A(f"s_mov_b32 s{sIt}, 0\nv_mov_b32 v100, 0\nv_mov_b32 v101, 0\nv_mov_b32 v102, 0\nv_mov_b32 v103, 0")
        A("L_tr:")
        A(f"s_memrealtime s[84:85]\ns_memtime s[86:87]\nds_read_b32 v{vF}, v{vRdyA}\nds_read_b32 v{vDn}, v{vDnA}\ns_waitcnt lgkmcnt(0)")
        A(f"v_readfirstlane_b32 s{sF}, v{vF}\nv_readfirstlane_b32 s{sA}, v{vDn}\ns_mov_b32 m0, s{sIt}\ns_nop 3")
        A(f"v_writelane_b32 v100, s84, m0\nv_writelane_b32 v101, s86, m0\nv_writelane_b32 v102, s{sF}, m0\nv_writelane_b32 v103, s{sA}, m0")
        A("L_tr2:")
        A(f"s_sleep 2\ns_memrealtime s[88:89]\ns_waitcnt lgkmcnt(0)\ns_sub_u32 s{sA}, s88, s84\ns_cmp_lt_u32 s{sA}, {trace}\ns_cbranch_scc1 L_tr2")
        A(f"s_add_u32 s{sIt}, s{sIt}, 1\ns_cmp_ge_u32 s{sF}, s{sCnt}\ns_cbranch_scc1 L_tr3\ns_cmp_lt_u32 s{sIt}, 64\ns_cbranch_scc1 L_tr")
        A("L_tr3:")
        A(f"s_lshl_b32 s{sA}, s2, 10\ns_add_u32 s{sA}, s{sA}, {WSB - 64 * 1024}")
        A(f"buffer_store_dwordx4 v[100:103], v{vL16}, {SWS}, s{sA} offen")
    st(4)
    dump_stamps(64)
    A("s_endpgm")

    A("L_consumer:")
    A(f"v_lshlrev_b32 v{vG4}, 2, v{vT0}")
    A(f"v_lshrrev_b32 v{vT2}, 2, v{vT1}\nv_mul_u32_u24 v{vT2}, 1088, v{vT2}\nv_and_b32 v{vT3}, 3, v{vT1}")
    A(f"v_lshl_add_u32 v{vKc}, v{vT3}, 8, v{vT2}\nv_xor_b32 v{vU}, v{vT3}, v{vT0}\nv_lshl_add_u32 v{vKc}, v{vU}, 4, v{vKc}")
    A(f"v_lshl_add_u32 v{vT2}, v{vT0}, 8, v{vT2}\nv_lshl_add_u32 v{vT2}, v{vT3}, 3, v{vT2}\nv_add_u32 v{vT2}, 8704, v{vT2}")
    A(f"v_and_b32 v{vU}, 1, v{vT0}\nv_lshl_add_u32 v{vV0c}, v{vU}, 5, v{vT2}\nv_xor_b32 v{vV1c}, 32, v{vV0c}")
    A(f"v_lshlrev_b32 v{vQo}, 8, v{vT1}\nv_lshl_add_u32 v{vQo}, v{vU}, 5, v{vQo}\nv_lshrrev_b32 v{vU}, 1, v{vT0}\nv_lshl_add_u32 v{vQo}, v{vU}, 4, v{vQo}")
    if fullrow:
        A(f"v_lshrrev_b32 v{vU}, 3, v{vT1}\nv_mul_u32_u24 v{vU}, {2048 - 64}, v{vU}\nv_sub_u32 v{vQo}, v{vQo}, v{vU}")
    for j in range(4):
        A(f"v_mov_b32 v{ON + j}, 0x3f803f80")
    A(f"v_lshlrev_b32 v{vPL}, 3, v{vT1}\nv_mov_b32 v{vPd}, 0")
    A(f"s_mov_b32 s{sT}, 0\ns_mov_b32 s{sOffK}, 0\ns_mov_b32 s{sItem}, 0")
    sSd, sSs, sFo, sOut, sPi, sHi, sPs, sHs, sPd, sHd, sMy, sLp, sLh = range(48, 61)
    sCs, sCr, sCt = 61, 62, 63
    A(f"s_mov_b32 s{sCs}, {SLOT}\ns_mov_b32 s{sCr}, {RING}\ns_mov_b32 s{sCt}, {hex(f2u(T))}")
    A(f"s_bitcmp1_b32 s{sRole}, 0\ns_cselect_b32 s{sOut}, s{sBB}, s{sBA}")
    A(f"s_lshl_b32 s{sOut}, s{sOut}, 3\ns_add_u32 s{sOut}, s{sOut}, s{sH}\ns_lshl_b32 s{sOut}, s{sOut}, 2\n"
      f"s_add_u32 s{sOut}, s{sOut}, s{sW}\ns_lshl_b32 s{sOut}, s{sOut}, 13\ns_add_u32 s{sOut}, s{sOut}, s{sPar}")
    box_off(sMy, f"s{sRole}")
    A(f"s_lshl_b32 s{sC}, s{sW}, 12\ns_lshl_b32 s{sD}, s{sW}, 7\ns_add_u32 s{sD}, s{sD}, 16384\ns_add_u32 s{sFo}, s{sD}, 512")
    if alias:
        A(f"s_xor_b32 s{sSd}, s{sOut}, 4096")
    else:
        A(f"s_add_u32 s{sSd}, s{sMy}, s{sC}")
    A(f"s_add_u32 s{sSs}, s{sMy}, s{sD}")
    A(f"s_xor_b32 s{sLp}, s{sRole}, 2\ns_lshr_b32 s{sLh}, s{sRole}, 1\ns_add_u32 s{sLh}, s{sLh}, 4")
    A(f"s_cmp_eq_u32 s{sExp}, 0\ns_cselect_b32 s{sLh}, s{sLp}, s{sLh}")
    box_off(sPi, f"s{sLp}")
    box_off(sHi, f"s{sLh}")
    A(f"s_add_u32 s{sPs}, s{sPi}, s{sD}\ns_add_u32 s{sHs}, s{sHi}, s{sD}\ns_add_u32 s{sHd}, s{sHi}, s{sC}")
    A(f"s_mov_b32 s{sPd}, s{sOut}" if alias else f"s_add_u32 s{sPd}, s{sPi}, s{sC}")
    vPo, vSa = 246, 247
    A(f"v_mov_b32 v{vSa}, s{sRole}\nv_writelane_b32 v{vSa}, s{sLp}, 0\nv_writelane_b32 v{vSa}, s{sLh}, 1")
    A(f"v_mov_b32 v{vPo}, s{sMy}\nv_writelane_b32 v{vPo}, s{sPi}, 0\nv_writelane_b32 v{vPo}, s{sHi}, 1")
    A(f"s_lshl_b32 s{sA}, s{sW}, 2\ns_add_u32 s{sA}, s{sA}, {A_SIG + 256}\nv_lshl_add_u32 v{vSa}, v{vSa}, 4, s{sA}")
    if nopart:
        for x in (sPs, sHs, sPd, sHd):
            A(f"s_mov_b32 s{x}, {hex(OOB)}")

    def zero_acc():
        for i in range(LA, O + 64):
            A(f"v_mov_b32 v{i}, 0")

    zero_acc()
    A(f"s_cmp_eq_u32 s{sCntA}, 0\ns_cselect_b32 s{sA}, s{sBB}, s{sBA}\ns_cmp_eq_u32 s{sA}, s{sB}\ns_cbranch_scc1 L_qok")
    A(f"s_mov_b32 s{sB}, s{sA}")
    q_own()
    A("s_waitcnt vmcnt(0)")
    q_own_loads()
    A("L_qok:")
    A(f"s_cmp_eq_u32 s{sCntA}, 0\ns_cbranch_scc1 L_segB")
    A(f"s_mov_b32 s{sCnt}, s{sCntA}\ns_bitcmp1_b32 s{sZ}, 0\ns_branch L_seg")
    A("L_segB:")
    A(f"s_cmp_eq_u32 s{sCntB}, 0\ns_cbranch_scc1 L_empty")
    A(f"s_mov_b32 s{sB}, s{sBB}\ns_mov_b32 s{sCnt}, s{sCntB}\ns_mov_b32 s{sCntA}, 0\ns_bitcmp1_b32 s{sZ}, 1")

    def spin(tag, off=0, need=None, le=False):
        A(f"L_spin_{tag}:")
        budget()
        A(f"ds_read_b32 v{vF}, v{vRdyA} offset:{off}\ns_waitcnt lgkmcnt(0)\nv_readfirstlane_b32 s{sF}, v{vF}\ns_nop 0")
        A(f"s_cmp_{'le' if le else 'lt'}_u32 s{sF}, s{need or sNeed}\ns_cbranch_scc1 L_spin_{tag}")

    def addrs():
        return [f"v_add_u32 v{vK}, s{sOffK}, v{vKc}", f"v_add_u32 v{vV0}, s{sOffK}, v{vV0c}",
                f"v_add_u32 v{vV1}, s{sOffK}, v{vV1c}"]

    def kreads(dst=KF):
        return [f"ds_read_b128 {vr(dst + 4 * f, 4)}, v{vK} offset:{(f & 1) * 4352 + (f >> 1) * 64}" for f in range(8)]

    def vreads(dst=VF):
        return [f"ds_read_b64_tr_b16 {vr(dst + 4 * dt + 2 * u, 2)}, v{vV1 if dt & 1 else vV0} "
                f"offset:{u * 4352 + (dt >> 1) * 64}" for dt in range(8) for u in range(2)]

    MF = "v_mfma_f32_16x16x32_bf16"

    def qk(first):
        out = []
        for ks, kh in ([(a, b) for a in range(4) for b in range(2)] if first else [(a, b) for b in range(2) for a in range(4)]):
            if True:
                for qh in range(2):
                    d = vr(S + 8 * qh + 4 * kh, 4)
                    c = d if ks else ("0" if first else vr(CM + 4 * qh, 4))
                    out.append(f"{MF} {d}, {vr(KF + 4 * (2 * ks + kh), 4)}, {vr(Q + 4 * (2 * ks + qh), 4)}, {c}")
        return out

    def pv(dt, qh, src=VF):
        d = vr(O + 32 * qh + 4 * dt, 4)
        return f"{MF} {d}, {vr(src + 4 * dt, 4)}, {vr(P + 4 * qh, 4)}, {d}"

    def rs(qh):
        return f"{MF} {vr(LA + 4 * qh, 4)}, {vr(ON, 4)}, {vr(P + 4 * qh, 4)}, {vr(LA + 4 * qh, 4)}"

    def cvt(j):
        return f"v_cvt_pk_bf16_f32 v{P + j}, v{E + 2 * j}, v{E + 2 * j + 1}"

    def maxes():
        o = []
        for a in (0, 3, 5):
            for qh, m in ((0, vMx), (1, vMx2)):
                b = S + 8 * qh + a
                o.append(f"v_max3_f32 v{m}, v{b}, v{b + 1}, v{b + 2}" if a == 0 else f"v_max3_f32 v{m}, v{m}, v{b}, v{b + 1}")
        return o

    def new_max(floor0):
        A(f"v_max_f32 v{vMx}, v{vMx}, v{S + 7}\nv_max_f32 v{vMx2}, v{vMx2}, v{S + 15}")
        for sw in ("v_permlane32_swap_b32", "v_permlane16_swap_b32"):
            A(f"v_mov_b32 v{vT0}, v{vMx}\nv_mov_b32 v{vT1}, v{vMx2}\ns_nop 0")
            A(f"{sw} v{vMx}, v{vT0}\n{sw} v{vMx2}, v{vT1}\ns_nop 0")
            A(f"v_max_f32 v{vMx}, v{vMx}, v{vT0}\nv_max_f32 v{vMx2}, v{vMx2}, v{vT1}")
        if floor0:
            A(f"v_max_f32 v{vMx}, 0, v{vMx}\nv_max_f32 v{vMx2}, 0, v{vMx2}")
        A(f"v_ceil_f32 v{vMx}, v{vMx}\nv_ceil_f32 v{vMx2}, v{vMx2}")

    def exp_shifted():
        for i in range(16):
            A(f"v_sub_f32 v{E + i}, v{S + i}, v{vMx if i < 8 else vMx2}")
        for i in range(16):
            A(f"v_exp_f32 v{E + i}, v{E + i}")

    def scale_acc(f, with_la=True):
        for qh in range(2):
            sel = "op_sel_hi:[1,0]" if qh == 0 else "op_sel:[0,1] op_sel_hi:[1,1]"
            for i in range(16):
                r = O + 32 * qh + 2 * i
                A(f"v_pk_mul_f32 {vr(r, 2)}, {vr(r, 2)}, {vr(f, 2)} {sel}")
            if with_la:
                A(f"v_mul_f32 v{LA + 4 * qh}, v{f + qh}, v{LA + 4 * qh}")

    def pack_o(i, dst=KF):
        for j in range(4):
            r = O + 8 * i + 2 * j
            A(f"v_cvt_pk_bf16_f32 v{dst + 4 * i + j}, v{r}, v{r + 1}")

    def park():
        A(f"v_add_u32 v{vT2}, s{sOffQ}, v{vL16}\nv_add_u32 v{vT3}, s{sOffQ}, v{vPL}")
        A(f"v_mov_b32 v{CM + 1}, v{LA}\nv_mov_b32 v{CM + 5}, v{LA + 4}")
        A(f"ds_write_b64 v{vT3}, {vr(CM, 2)} offset:8192\nds_write_b64 v{vT3}, {vr(CM + 4, 2)} offset:8320")
        for i in range(8):
            pack_o(i)
            A(f"ds_write_b128 v{vT2}, {vr(KF + 4 * i, 4)} offset:{i * 1024}")
        zero_acc()

    A("L_seg:")
    c = f2u(1.4426950408889634 / 128 ** 0.5)
    A(f"s_cselect_b32 s{sScale}, 0, {hex(c)}")
    A(f"s_add_u32 s{sEnd}, s{sT}, s{sCnt}\ns_add_u32 s{sNeed}, s{sT}, 1")
    A(f"s_cmp_eq_u32 s{sRole}, 1\ns_cselect_b32 s{sRet}, s{sCntA}, 0")
    A(f"v_add_u32 v{vK}, s{sOffQ}, v{vKc}\nv_mov_b32 v{vF2}, s{sScale}")
    A(f"s_cmp_eq_u32 s{sT}, 0\ns_cbranch_scc0 L_hold")
    A("s_waitcnt vmcnt(0)")
    AL(kreads(Q))
    A("L_nohold:")
    A(f"v_add_u32 v{vPd}, 1, v{vPd}\nds_write_b32 v{vDoneA}, v{vPd} offset:1536")
    A(f"v_add_u32 v{vK}, s{sOffK}, v{vKc}\nv_mov_b32 v{vDone}, s{sNeed}")
    AL(adv(sOffK))
    for t in range(8):
        A(f"s_waitcnt lgkmcnt({8 - t})")
        for j in range(4):
            r = Q + 4 * t + j
            A(f"v_lshlrev_b32 v{vU + 2 * j}, 16, v{r}\nv_and_b32 v{vU + 2 * j + 1}, 0xffff0000, v{r}")
        for j in range(4):
            A(f"v_pk_mul_f32 {vr(vU + 2 * j, 2)}, {vr(vU + 2 * j, 2)}, {vr(vF2, 2)} op_sel_hi:[1,0]")
        for j in range(4):
            A(f"v_cvt_pk_bf16_f32 v{Q + 4 * t + j}, v{vU + 2 * j}, v{vU + 2 * j + 1}")
    if not st2:
        st(2)
    spin("p0")
    if not st2:
        st(3)
    AL(kreads())
    A(f"ds_write_b32 v{vDoneA}, v{vDone}")
    A(f"s_add_u32 s{sNeed}, s{sT}, 2\ns_min_u32 s{sNeed}, s{sNeed}, s{sEnd}")
    A(f"v_sub_u32 v{vT2}, s{sNv}, v{vG4}")
    A(f"v_mov_b32 v{vT3}, 0xff800000")
    for i, x in enumerate(qk(True)):
        if i % 2 == 0:
            A(f"s_waitcnt lgkmcnt({8 - i // 2})")
        A(x)
    AL(addrs())
    spin("p1")
    AL(kreads())
    A(f"s_cmp_eq_u32 s{sNv}, 32\ns_cbranch_scc1 L_nomask")
    for kh in range(2):
        for r in range(4):
            a = S + 4 * kh + r
            A(f"v_cmp_lt_i32 vcc, {16 * kh + r}, v{vT2}\ns_nop 1\nv_cndmask_b32 v{a}, v{vT3}, v{a}, vcc\n"
              f"v_cndmask_b32 v{a + 8}, v{vT3}, v{a + 8}, vcc")
    A("L_nomask:")
    AL(maxes())
    new_max(False)
    for i in range(8):
        A(f"v_sub_f32 v{CM + i}, 0, v{vMx if i < 4 else vMx2}")
    exp_shifted()
    A(f"s_waitcnt lgkmcnt(0)\ns_sub_u32 s{sIt}, s{sCnt}, 2\ns_cbranch_scc1 L_final")

    A(".p2align 3")
    A("L_loop:")
    loop_start = len(L)
    vrd = vreads()
    f_inc, f_wr, f_rd = f"v_add_u32 v{vDone}, 1, v{vDone}", f"ds_write_b32 v{vDoneA}, v{vDone}", f"ds_read2st64_b32 {vr(vF2, 2)}, v{vRdyA} offset0:0 offset1:6"
    ex1 = lambda i: f"v_exp_f32 v{E + i}, v{S + i}"
    lg = lambda n: f"s_waitcnt lgkmcnt({n})"
    krd = kreads()
    krd = krd[0::2] + krd[1::2]
    mo = [0, 1, 2, 3, 8, 9, 10, 11, 4, 5, 6, 7, 12, 13, 14, 15]
    mxs = [f"v_max3_f32 v{vT0}, v{S + mo[0]}, v{S + mo[1]}, v{S + mo[2]}"]
    mxs += [f"v_max3_f32 v{vT0}, v{vT0}, v{S + mo[i]}, v{S + mo[i + 1]}" for i in range(3, 15, 2)]
    mxs += [f"v_max_f32 v{vT0}, v{vT0}, v{S + 15}", f"v_cmp_lt_f32 vcc, s{sCt}, v{vT0}"]
    aa = addrs()
    ad = [f"s_add_u32 s{sOffK}, s{sOffK}, s{sCs}", f"s_cmp_ge_u32 s{sOffK}, s{sCr}", f"s_cselect_b32 s{sOffK}, 0, s{sOffK}"]
    fa = [[vrd[i], cvt(j)] for i, j in enumerate((0, 1, 4, 5, 2, 3, 6, 7))]
    fa[0].insert(0, f"s_add_u32 s{sNeed}, s{sNeed}, 1")
    fa[1].insert(0, f"s_sub_u32 s{sIt}, s{sIt}, 1")
    fa[2].insert(0, f"s_cselect_b32 s{sA}, -1, s{sNeed}")
    for i in range(3):
        fa[3 + i].insert(0, ad[i])
    fa[7].insert(0, lg(7))
    fa += [[vrd[8], f_rd], [vrd[9], f_inc], [vrd[10], ex1(0)], [vrd[11], ex1(1)], [vrd[12], ex1(2)],
           [vrd[13], ex1(3)], [vrd[14], ex1(8)], [lg(6), vrd[15], f_wr]]
    for x, f in zip(qk(False), fa):
        A(x)
        AL(f)
    mf = []
    for dt in range(8):
        mf += [pv(dt, 1), pv(dt, 0)]
        if dt == 3:
            mf += [rs(0), rs(1)]
    if pvo == 1:
        mf = mf[:4]
        mf[2], mf[3] = mf[3], mf[2]
        mf += [pv(2, 1), pv(2, 0), pv(3, 0), pv(3, 1), rs(1), rs(0), pv(4, 0), pv(4, 1), pv(5, 1), pv(5, 0), pv(6, 0), pv(6, 1), pv(7, 1), pv(7, 0)]
    if pvo == 2:
        mf = mf[:4] + [pv(2, 0), pv(3, 0), rs(0), pv(2, 1), pv(3, 1), rs(1)] + [pv(d, 1) for d in range(4, 8)] + [pv(d, 0) for d in range(4, 8)]
    if nors:
        mf = [x if f"{vr(ON, 4)}" not in x else "s_nop 0" for x in mf]
    AL([mf[0], f"v_readfirstlane_b32 s{sF}, v{vF2}", aa[0]])
    AL([mf[1], ex1(9)])
    AL([mf[2], f"s_cmp_lt_u32 s{sF}, s{sA}", ex1(10)])
    AL([mf[3], "s_cbranch_scc1 L_slow"])
    A("L_back:")

    def phase_b(kr):
        k = list(kr) if kr else [None] * 8
        n = (lambda x: x) if kr else (lambda x: 0)
        A(ex1(11))
        fb = [[k[0], mxs[0], mxs[1]], [k[1], ex1(4)], [k[2], mxs[2], mxs[3]], [ex1(5)], [k[3], mxs[4], mxs[5]],
              [lg(n(4)), ex1(6)], [k[4], mxs[6], mxs[7]], [ex1(7)], [k[5], mxs[8], aa[1]], [ex1(12)],
              [k[6], aa[2]], [ex1(13)], [k[7], ex1(14)], [lg(n(4)), ex1(15)]]
        for i in range(4, 18):
            A(mf[i])
            AL([x for x in fb[i - 4] if x])

    phase_b(krd)
    if nocomp:
        keep = []
        for x in L[loop_start:]:
            y = x.strip()
            if nocomp & 1 and y.startswith("v_mfma"):
                continue
            if nocomp & 2 and y.startswith(("v_exp", "v_max", "v_cvt")):
                continue
            if nocomp & 4 and y.startswith(("ds_read_b128", "ds_read_b64_tr")):
                continue
            keep.append(x)
        L[loop_start:] = keep
        A("s_mov_b64 vcc, 0")
    A("s_cbranch_vccz L_loop\ns_branch L_rare")

    HB = Q

    def send_stats(spol=spol):
        A(f"v_mov_b32 v{CM + 5}, v{LA + 4}")
        if smask:
            A("s_mov_b64 exec, 0xffff")
        A(f"buffer_store_dwordx2 {vr(CM + 4, 2)}, v{vPL}, {SWS}, s{sSs} offen {spol}")
        if smask:
            A("s_mov_b64 exec, -1")

    def send(i, spol=spol):
        pack_o(i, Q)
        A(f"buffer_store_dwordx4 {vr(Q + 4 * i, 4)}, v{vL16}, {SO if alias else SWS}, s{sSd} offen offset:{(i & 3) * 1024} {spol}")

    def final():
        A("L_lastg:")
        phase_b([])
        A("s_cbranch_vccnz L_rare")
        A("L_final:")
        A(f"{f_rd}\ns_add_u32 s{sNeed}, s{sEnd}, 1\ns_mov_b32 s{sT}, s{sEnd}")
        for j in range(8):
            A(cvt(j))
        A("s_nop 0")
        A(rs(0))
        A(rs(1))
        A(f"s_cmp_lg_u32 s{sRet}, 0\ns_cbranch_scc1 L_final_a")
        A(f"s_waitcnt lgkmcnt(0)\nv_readfirstlane_b32 s{sF}, v{vF2}\nv_readfirstlane_b32 s{sK}, v{vF2 + 1}")
        A(f"s_cmp_ge_u32 s{sF}, s{sNeed}\ns_cbranch_scc1 L_final1")
        spin("f")
        A(f"L_final1:\nds_read_b32 v{vU + 1}, v{vSa}")
        AL(vrd)
        A(f"s_cmp_eq_u32 s{sK}, 1\ns_cbranch_scc1 L_final2")
        for pl in ("sc1", spol):
            send_stats(pl)
            for dt in range(8):
                A(f"s_waitcnt lgkmcnt({14 - 2 * dt})")
                A(pv(dt, 1))
                if dt >= 5:
                    send(dt - 1, pl)
            for dt in range(8):
                A(pv(dt, 0))
                if dt == 2:
                    send(7, pl)
                    st(4)
            if pl == "sc1":
                A("s_branch L_sentw\nL_final2:")

    A("L_slow:")
    A(f"s_cmp_ge_i32 s{sIt}, 0\ns_cbranch_scc1 L_slow1")
    if spincnt:
        A(f"s_waitcnt lgkmcnt(0)\ns_sub_u32 s{sSt + 2}, 0x400000, s{sBud}\ns_sub_u32 s{sSt + 4}, s{sF}, s{sNeed}\ns_add_u32 s{sSt + 4}, s{sSt + 4}, 100")
        st(3)
    if tail:
        A(f"v_readfirstlane_b32 s{sK}, v{vF2 + 1}\ns_cmp_lt_u32 s{sF}, s{sNeed}\ns_cselect_b32 s{sA}, 1, s{sRet}")
        A(f"s_xor_b32 s{sBb}, s{sK}, 1\ns_or_b32 s{sA}, s{sA}, s{sBb}\ns_cbranch_scc1 L_lastg")
        A("L_tail:")
        if st3:
            st(1)
        AL([f"ds_read_b32 v{vU + 1}, v{vSa}"] + aa[1:] + [lg(1)])
        vk = vreads(KF)
        m1 = [pv(dt, 1) for dt in range(2, 8)] + [rs(1)]
        ft = [[ex1(11), mxs[0]], [ex1(12), mxs[1]], [ex1(13), mxs[2]], [ex1(14), mxs[3]], [ex1(15), mxs[4]],
              [mxs[5], mxs[6]], [mxs[7], mxs[8]]]
        AL(vk[:2])
        for i in range(7):
            A(m1[i])
            AL(vk[2 * i + 2:2 * i + 4] + ft[i])
        if st3:
            st(2)
        A("s_cbranch_vccnz L_tail_fix")
        for j in range(4, 8):
            A(cvt(j))
        A(pv(2, 0))
        A(ex1(4))
        A(rs(1))
        for dt in range(8):
            A(lg(14 - 2 * dt))
            A(pv(dt, 1, KF))
            if dt == 4:
                if st3:
                    st(3)
                send_stats()
            if dt >= 5:
                send(dt - 1)
        for dt in range(3, 8):
            A(pv(dt, 0))
            if dt < 6:
                A(ex1(dt + 2))
            if dt == 4:
                send(7)
                st(4)
        A(rs(0))
        for j in range(4):
            A(cvt(j))
        A("s_nop 1")
        A(rs(0))
        for dt in range(8):
            A(pv(dt, 0, KF))
    else:
        final()
    A("L_sent:")
    st(5)
    if not nopart:
        A(f"v_add_u32 v{vU + 2}, 1, v{vU + 1}\ns_mov_b64 exec, 4\ns_waitcnt vmcnt(0)")
        A(f"buffer_store_dword v{vU + 2}, v{vPo}, {SWS}, s{sFo} offen")
        A("L_reld:")
        if st2:
            st(1)
        A(f"s_mov_b64 exec, 3\nv_mov_b32 v{vU + 3}, v{vU + 1}")
        A("L_poll0:")
        budget()
        A(f"buffer_load_dword v{vU + 3}, v{vPo}, {SWS}, s{sFo} offen {fpol}")
        if csleep:
            A(f"s_sleep {csleep}")
        A(f"s_waitcnt vmcnt({npoll})")
        A(f"v_cmp_eq_u32 vcc, v{vU + 3}, v{vU + 1}\ns_cbranch_vccnz L_poll0")
        A("s_mov_b64 exec, -1")
    st(6)
    A(f"buffer_load_dwordx2 {vr(vU + 4, 2)}, v{vPL}, {SWS}, s{sPs} offen {lpol}")
    A(f"buffer_load_dwordx2 {vr(vU + 6, 2)}, v{vPL}, {SWS}, s{sHs} offen {hlpol}")
    for i in range(4):
        A(f"buffer_load_dwordx4 {vr(HB + 16 + 4 * i, 4)}, v{vL16}, {SO if alias else SWS}, s{sPd} offen offset:{i * 1024} {lpol}")

    def unpack_fma(src, i, f, sel):
        for j in range(4):
            A(f"v_lshlrev_b32 v{E + 2 * j}, 16, v{src + j}\nv_and_b32 v{E + 2 * j + 1}, 0xffff0000, v{src + j}")
        for j in range(4):
            o = O + 8 * i + 2 * j
            A(f"v_pk_fma_f32 {vr(o, 2)}, {vr(E + 2 * j, 2)}, {vr(f, 2)}, {vr(o, 2)} {sel}")

    def finish(held):
        n = 8 if held else 4
        if held:
            for i in range(4):
                A(f"buffer_load_dwordx4 {vr(HB + 4 * i, 4)}, v{vL16}, {SWS}, s{sHd} offen offset:{i * 1024} {hlpol}")
        A(f"s_waitcnt vmcnt({n})")
        if st2:
            st(2)
        if held:
            A(f"v_min3_f32 v{vT0}, v{CM}, v{vU + 4}, v{vU + 6}")
        else:
            A(f"v_min_f32 v{vT0}, v{CM}, v{vU + 4}")
        A(f"v_sub_f32 v{vT2}, v{vT0}, v{CM}\nv_sub_f32 v{vMx}, v{vT0}, v{vU + 4}")
        if held:
            A(f"v_sub_f32 v{vMx2}, v{vT0}, v{vU + 6}")
        A(f"v_exp_f32 v{vT2}, v{vT2}\nv_exp_f32 v{vMx}, v{vMx}")
        A(f"v_exp_f32 v{vMx2}, v{vMx2}" if held else "s_nop 0")
        A(f"v_mul_f32 v{vT1}, v{vT2}, v{LA}\nv_fmac_f32 v{vT1}, v{vMx}, v{vU + 5}")
        if held:
            A(f"v_fmac_f32 v{vT1}, v{vMx2}, v{vU + 7}")
        A(f"v_rcp_f32 v{vT1}, v{vT1}\ns_nop 0\nv_mul_f32 v{vT2}, v{vT2}, v{vT1}\nv_mul_f32 v{vMx}, v{vMx}, v{vT1}")
        if held:
            A(f"v_mul_f32 v{vMx2}, v{vMx2}, v{vT1}")
        for i in range(16):
            A(f"v_pk_mul_f32 {vr(O + 2 * i, 2)}, {vr(O + 2 * i, 2)}, {vr(vT2, 2)} op_sel_hi:[1,0]")
        if held:
            for i in range(4):
                A(f"s_waitcnt vmcnt({7 - i})")
                unpack_fma(HB + 16 + 4 * i, i, vMx, "op_sel_hi:[1,0,1]")
        for i in range(4):
            if i < 2:
                A(f"s_waitcnt vmcnt({0 if i else 3})")
            if held:
                unpack_fma(HB + 4 * i, i, vMx, "op_sel:[0,1,0] op_sel_hi:[1,1,1]")
            else:
                unpack_fma(HB + 16 + 4 * i, i, vMx, "op_sel_hi:[1,0,1]")
            if fullrow:
                if i == 2:
                    out_store2(0)
            elif i:
                out_store(i - 1)
            pack_o(i)
        A("s_nop 1")
        if fullrow:
            out_store2(2)
        else:
            out_store(3)
        if st2:
            st(3)
        if stamp:
            A("s_waitcnt vmcnt(0)")
            st(7)
            A(f"s_cmp_eq_u32 s{sW}, {sw}\ns_cbranch_scc0 L_end")
        dump_stamps(32)
        A("s_endpgm")

    def out_store(i):
        d = KF + 4 * i
        A(f"v_permlane16_swap_b32 v{d}, v{d + 2}\nv_permlane16_swap_b32 v{d + 1}, v{d + 3}")
        A(f"buffer_store_dwordx4 {vr(d, 4)}, v{vQo}, {SO}, s{sOut} offen offset:{i * 64} {opol}")

    def out_store2(i):
        d = KF + 4 * i
        for x in (d, d + 4):
            A(f"v_permlane16_swap_b32 v{x}, v{x + 2}\nv_permlane16_swap_b32 v{x + 1}, v{x + 3}")
        for j in range(4):
            A(f"v_mov_b32 v{S + j}, v{d + j}")
        for j in range(4):
            A(f"v_mov_b32_dpp v{d + j}, v{d + 4 + j} row_ror:8 row_mask:0xf bank_mask:0xc")
        for j in range(4):
            A(f"v_mov_b32_dpp v{d + 4 + j}, v{S + j} row_ror:8 row_mask:0xf bank_mask:0x3")
        A(f"buffer_store_dwordx4 {vr(d, 4)}, v{vQo}, {SO}, s{sOut} offen offset:{i * 64} {opol}")
        A(f"buffer_store_dwordx4 {vr(d + 4, 4)}, v{vQo}, {SO}, s{sOut} offen offset:{2048 + i * 64} {opol}")

    A(f"s_cmp_lg_u32 s{sExp}, 0\ns_cbranch_scc1 L_fin_held")
    finish(False)
    A("L_fin_held:")
    finish(True)
    A("L_end:\ns_endpgm")

    if tail:
        final()
        A("s_branch L_sent")
        A("L_tail_fix:")
        for dt in range(2, 8):
            A(pv(dt, 0))
        A(rs(0))
        A("s_branch L_rare")
    A("L_final_a:")
    spin("g")
    AL(vrd)
    for dt in range(8):
        A(f"s_waitcnt lgkmcnt({14 - 2 * dt})")
        A(pv(dt, 1))
        A(pv(dt, 0))
    A("s_branch L_segB")
    A("L_sentw:")
    if nopart:
        A("s_branch L_sent")
    else:
        A(f"v_mov_b32 v{vT0}, {A_SIG}")
        A("L_peers:")
        budget()
        A(f"ds_read_b32 v{vF}, v{vT0}\nds_read_b32 v{vU + 1}, v{vSa}\ns_waitcnt lgkmcnt(0)\nv_readfirstlane_b32 s{sA}, v{vF}\ns_nop 0")
        A(f"s_cmp_eq_u32 s{sA}, 0\ns_cbranch_scc1 L_peers")
        A(f"v_add_u32 v{vU + 2}, 1, v{vU + 1}\ns_mov_b64 exec, 4\ns_waitcnt vmcnt(0)")
        A(f"buffer_store_dword v{vU + 2}, v{vPo}, {SWS}, s{sFo} offen sc1\ns_branch L_reld")
    A("L_hold:")
    spin("q", off=256, need=sItem, le=True)
    AL(kreads(Q))
    park()
    A("s_branch L_nohold")
    A("L_empty:")
    A(f"s_cmp_eq_u32 s{sT}, 0\ns_cbranch_scc1 L_empty1\ns_nop 5")
    park()
    A(f"v_add_u32 v{vPd}, 1, v{vPd}\nds_write_b32 v{vDoneA}, v{vPd} offset:1536")
    A("L_empty1:")
    A(f"v_mov_b32 v{CM}, {hex(BIG)}\nv_mov_b32 v{CM + 4}, {hex(BIG)}")
    A("s_waitcnt vmcnt(0)")
    send_stats("sc1")
    for i in range(4, 8):
        send(i, "sc1")
    A("s_branch L_sentw")
    A("L_slow1:")
    if sleep:
        A(f"s_branch L_slow2\nL_slow3:\ns_sleep {sleep}\nL_slow2:")
        budget()
        A(f"ds_read_b32 v{vF}, v{vRdyA}\ns_waitcnt lgkmcnt(0)\nv_readfirstlane_b32 s{sF}, v{vF}\ns_nop 0")
        A(f"s_cmp_lt_u32 s{sF}, s{sNeed}\ns_cbranch_scc1 L_slow3")
    else:
        spin("s")
    A("s_branch L_back")
    A("L_rare:")
    AL(maxes())
    new_max(True)
    A(f"v_exp_f32 v{vT2}, -v{vMx}\nv_exp_f32 v{vT3}, -v{vMx2}")
    for i in range(8):
        A(f"v_sub_f32 v{CM + i}, v{CM + i}, v{vMx if i < 4 else vMx2}")
    exp_shifted()
    scale_acc(vT2)
    A(f"s_cmp_lt_i32 s{sIt}, 0\ns_cbranch_scc1 L_final\ns_branch L_loop")

    A("L_code_end:")
    A(f""".section .rodata,"a"
.p2align 6
.amdhsa_kernel {NAME}
  .amdhsa_next_free_vgpr 256
  .amdhsa_next_free_sgpr 102
  .amdhsa_accum_offset 256
  .amdhsa_group_segment_fixed_size 0
  .amdhsa_kernarg_size 64
  .amdhsa_user_sgpr_count 2
  .amdhsa_user_sgpr_kernarg_segment_ptr 1
  .amdhsa_system_sgpr_workgroup_id_x 1
.end_amdhsa_kernel""")
    notes = {'L_next': '; ---- loader: one stage (K of tile s, V of tile s-1) per trip, copies that differ in the depth only', 'L_lsegend': '; ---- loader: V of the last tile, drain, then fetch the lines the hand-off will use', 'L_pacer': '; ==== wave 6: position report and depth correction (speed only)', 'L_helper': '; ==== wave 5: bucket sort of the block list, group hand-shake, second Q, held partial', 'L_consumer': '; ==== waves 0-3', 'L_seg': '; ---- segment start: Q (scaled by log2(e)/sqrt(D)), first tile with mask and true max', 'L_loop': '; ---- steady loop: S(t+1), P(t), V(t) reads | O += V(t) P(t), exp(t+1), max check, K(t+2) reads', 'L_slow': '; ---- next stage not there yet, or last trip; L_tail: the half that is sent goes first', 'L_sent': '; ---- hand-off word, wait for the partner, merge, normalise, store', 'L_lastg': '; ---- last two tiles in plain order', 'L_rare': '; ---- a score rose more than 2^8 above the max in use: move to the true running max', 'L_empty': '; ---- no keys of the batch this workgroup ends on', 'L_hold': '; ---- role 1 between its segments: park the partial of A in LDS', 'L_sentw': '; ---- write-through hand-off'}
    out = []
    for x in L:
        if x.endswith(":") and x[:-1] in notes:
            out.append(notes[x[:-1]])
        out.append(x)
    L[:] = out
    if nostore:
        L[:] = [x for x in L if not (x.strip().startswith("buffer_store") and "v[16:19]" not in x and "v[20:23]" not in x
                                     and "v[100:103], v239, s[20:23], s73 offen" != x.strip()[21:]
                                     and ((SWS in x and nostore & 1) or (SO in x and nostore & 2)))]
    return "\n".join(L) + "\n"


def parse(spec):
    kw = {}
    for kv in spec.split(","):
        if not kv or kv == "default":
            continue
        k, v = kv.split("=")
        try:
            kw[k] = int(v)
        except ValueError:
            try:
                kw[k] = float(v)
            except ValueError:
                kw[k] = v.replace("+", " ").replace("none", "")
    return kw


if __name__ == "__main__":
    from build import build
    import hz
    files = []
    for spec in sys.argv[1:]:
        txt = gen(**parse(spec))
        pr = hz.check(txt)
        for p in pr:
            print("HAZARD", p, file=sys.stderr)
        fn = "k_" + spec.replace("=", "").replace(",", "_").replace("+", "") + ".s"
        open(fn, "w").write(txt)
        build(fn)
        files.append(fn)
    print(" ".join(files))
```

```python
import sys
import struct

NAME = "standalone__paged_block_table_kv_pagedattention__sampling_kernel"
WSB = 537395200
KVB = 4100 * 32768
QB = 16 * 32 * 32 * 128 * 2

HDR = """; Paged GQA attention, B=16 Hq=32 Hkv=8 Sq=32 D=128 block=16, bf16.  Generated by the author's own script.
;
"""

PAIRS = [(4, 13), (9, 8), (14, 3), (0, 12), (5, 7), (10, 2), (15, 11), (1, 6)]


def f2u(x):
    return struct.unpack('<I', struct.pack('<f', x))[0]


def gen(NS=7, win=23, win2=27, ntail=0, gran=2, win0=16, n0=5, lag=0, dec0=16, decs=8,
        delta=0, ex=0, theta=2, lead=8, npoll=1, hwin=8, psleep=16, csleep=0, lprio=3, rdy0=2, chk0=10, rmode=1, cmask=15, base=48, kb=6, firstb=-1, th2=22, b1=4, pre=2, prepol='', k0=4, nosort=0, tail=1, st3=0, smask=0, sleep=4, pvo=0, qko=0, nors=0, sw=0, spincnt=0, bsh=5, touch=0, ra=2, rx=1, apol='sc1', fpol='sc1', alias=1, fullrow=0, st2=0, hpol='', hlpol='sc1', force=0, remap=0, w_lo=10, l0=3, l1=5, l2=6, fbg=12.0, rlo=4, rhi=24, amax=5, fb0=3, sg=45, foff=40, fsleep=8, nm=9, lm=4, q2pol='nt', q3=0, skipb=1, cpf=1, cpol='', cw=384, il=0, ek=6, hw0=0, th3=60, amin=6, nlev=12, bia=0.0, bib=0.0, nsc=1, mix=0, clead=0, kap=6, win1=20, n1=14, dmask=31, dmul=3,
        pol="nt", qpol="nt", opol="", spol="", lpol="sc1", T=8.0,
        stamp=0, trace=0, nocomp=0, noload=0, nopart=0, nostore=0):
    if firstb < 0:
        nt = [-(-(4096 - ((i + 1) * 2654435761) % 2048) // 32) for i in range(16)]
        firstb = sum(1 << i for i, (a, b) in enumerate(PAIRS) if nt[a] - nt[b] <= max(th2, 2 * theta))
        firstb3 = sum(1 << i for i, (a, b) in enumerate(PAIRS) if nt[a] - nt[b] <= max(th3, 2 * theta))
    amin = amin or amax
    SLOT = 17408
    RING = NS * SLOT
    PB = RING
    A_DONE = PB + 2 * SLOT
    A_READY = A_DONE + 1024
    A_PDONE = A_DONE + 1536
    A_SIG = A_PDONE + 1024
    A_TAB = A_SIG + 512
    A_LIST = A_TAB + 2048
    A_HIST = A_LIST + 512
    LDS = A_HIST + 1024
    wmax = w_lo + 2 * (nlev - 1)
    assert LDS <= 163840
    assert NS >= (wmax - 1) // 16 + lag + 3 and wmax <= 52
    BOX = 17408
    BIG = f2u(1e30)
    OOB = 0x40000000
    L = []

    def A(s):
        for x in s.split('\n'):
            L.append(x if x.endswith(':') or x.startswith(('.', ';')) else '    ' + x)

    vLane, vT0, vT1, vT2, vT3 = 1, 2, 3, 4, 5
    vKc, vV0c, vV1c, vK, vV0, vV1 = 6, 7, 8, 9, 10, 11
    vQo, vRdyA, vDoneA, vF = 12, 13, 14, 15
    S, E, CM, LA, O, Q, KF, VF, P, ON = 16, 32, 48, 56, 64, 128, 160, 192, 224, 232
    vMx, vMx2, vDone, vL16, vG4, vPd, vPA, vPL = 236, 237, 238, 239, 240, 241, 242, 243
    vF2, vU = 244, 248
    TA, TBb, vRow = 64, 68, 72
    vKo, vVo = 76, 80
    vPoll, vPub, vDn, vDnA, vF0, vDb, vPoll2, vFa = 84, 85, 86, 87, 89, 90, 91, 92
    vQd = 242
    HR = 100

    sW, sH, sRole = 3, 32, 33
    sBA, sBB, sCntA, sCntB, sTopA, sTopB, sNv, sExp, sZ = 35, 36, 37, 38, 39, 40, 41, 42, 43
    sGrp, sSwap, sBud, sPar = 44, 45, 46, 47
    sB, sCnt, sT, sEnd, sOffK, sRet, sNeed, sF, sScale = 64, 65, 66, 67, 68, 69, 70, 71, 72
    sA, sBb, sC, sD, sE2, sF2 = 73, 74, 75, 76, 77, 78
    sQoff, sIt, sOffQ, sItem, sK = 79, 80, 81, 82, 83
    sS, sOff, sPub, sFree, sTile, sO0, sO1, sN0, sN1, sLag, sDec = 66, 67, 68, 69, 70, 71, 72, 79, 80, 81, 82
    sP0, sP1, sSw = 34, 64, 41
    sSt = 84
    SQ, SK, SV, SWS, SO, SD = "s[8:11]", "s[12:15]", "s[16:19]", "s[20:23]", "s[24:27]", "s[28:31]"

    def vr(a, n):
        return f"v[{a}:{a + n - 1}]" if n > 1 else f"v{a}"

    def adv(s):
        return [f"s_add_u32 s{s}, s{s}, {SLOT}", f"s_cmp_ge_u32 s{s}, {RING}", f"s_cselect_b32 s{s}, 0, s{s}"]

    def AL(lst):
        for x in lst:
            A(x)

    def budget():
        A(f"s_sub_u32 s{sBud}, s{sBud}, 1\ns_cbranch_scc1 L_end")

    def st(i):
        if stamp:
            A(f"{'s_memrealtime' if stamp == 1 else 's_memtime'} s[{sSt + 2 * i}:{sSt + 2 * i + 1}]")

    def dump_stamps(base):
        if not stamp:
            return
        A("s_waitcnt lgkmcnt(0)")
        for i in range(8):
            A(f"v_mov_b32 v{16 + i}, s{sSt + 2 * i}")
        A(f"s_mul_i32 s{sA}, s2, 96\ns_add_u32 s{sA}, s{sA}, {WSB - 256 * 96 + base}")
        A(f"v_mov_b32 v{vT0}, 0\ns_mov_b64 exec, 1")
        A(f"buffer_store_dwordx4 v[16:19], v{vT0}, {SWS}, s{sA} offen")
        A(f"buffer_store_dwordx4 v[20:23], v{vT0}, {SWS}, s{sA} offen offset:16")
        A("s_mov_b64 exec, -1")

    def box_off(dst, k):
        A(f"s_mul_i32 s{dst}, s{sGrp}, 6\ns_add_u32 s{dst}, s{dst}, {k}\ns_mul_i32 s{dst}, s{dst}, {BOX}")

    tabA = sum(p[0] << (4 * i) for i, p in enumerate(PAIRS))
    tabB = sum(p[1] << (4 * i) for i, p in enumerate(PAIRS))

    A(HDR.rstrip())
    A(f"; @launch grid=(256,1,1) block=(448,1,1) lds={LDS}")
    A('.amdgcn_target "amdgcn-amd-amdhsa--gfx950"\n.text')
    A(f".globl {NAME}\n.p2align 8\n.type {NAME},@function\n{NAME}:")
    A("s_cmp_ge_u32 s2, 256\ns_cbranch_scc1 L_end")
    A("s_load_dwordx16 s[48:63], s[0:1], 0")
    if remap:
        A(f"s_lshr_b32 s4, s2, {6 if remap == 1 else 7}\ns_add_u32 s4, s4, s2\ns_and_b32 s4, s4, 7\ns_and_b32 s2, s2, 0xf8\ns_or_b32 s2, s2, s4")
    if stamp:
        for i in range(8):
            A(f"s_mov_b64 s[{sSt + 2 * i}:{sSt + 2 * i + 1}], 0")
    st(0)
    A(f"v_lshrrev_b32 v{vT0}, 6, v0\nv_and_b32 v{vLane}, 63, v0")
    A(f"v_readfirstlane_b32 s{sW}, v{vT0}")
    if cpf:
        A("s_getpc_b64 s[4:5]\nL_pc:")
        A(f"s_and_b32 s6, s2, {0xf8 if cpf == 1 else 0x38}\nv_subrev_u32 v{vT1}, {cw}, v0\nv_cmp_gt_u32 vcc, {8 if cpf == 1 else 32}, v{vT1}")
        if cpf == 2:
            A("s_lshl_b32 s6, s6, 2")
        A(f"v_add_u32 v{vT1}, s6, v{vT1}\nv_lshlrev_b32 v{vT1}, 7, v{vT1}\nv_min_u32 v{vT1}, L_code_end-L_pc-4, v{vT1}")
        A(f"s_and_saveexec_b64 s[6:7], vcc\ns_cbranch_execz L_nocp\nglobal_load_dword v{vU + 7}, v{vT1}, s[4:5] {cpol}\nL_nocp:\ns_mov_b64 exec, s[6:7]")
    A(f"v_lshlrev_b32 v{vL16}, 4, v{vLane}")
    if mix:
        A(f"s_lshr_b32 s{sH}, s2, 3\ns_mul_i32 s{sH}, s{sH}, {mix}\ns_add_u32 s{sH}, s{sH}, s2")
    A(f"s_and_b32 s{sH}, {f's{sH}' if mix else 's2'}, 7\ns_lshr_b32 s{sRole}, s2, 6\ns_lshr_b32 s{sA}, s2, 1\ns_and_b32 s{sA}, s{sA}, 28")
    A(f"s_lshr_b32 s{sBA}, {hex(tabA)}, s{sA}\ns_lshr_b32 s{sBB}, {hex(tabB)}, s{sA}")
    A(f"s_and_b32 s{sBA}, s{sBA}, 15\ns_and_b32 s{sBB}, s{sBB}, 15")
    A(f"s_lshl_b32 s{sA}, s{sBA}, 2\ns_lshl_b32 s{sBb}, s{sBB}, 2")
    A(f"s_lshl_b32 s{sC}, s{sBA}, 10\ns_lshl_b32 s{sD}, s{sBB}, 10")
    A(f"v_add_u32 v{vT2}, s{sC}, v{vL16}\nv_add_u32 v{vT3}, s{sD}, v{vL16}")
    A(f"s_mov_b32 s{sBud}, 0x400000\ns_and_b32 s{sGrp}, s2, 63")
    A(f"s_cmp_lt_u32 s{sRole}, 2\ns_cselect_b32 s{sPar}, 4096, 0")
    A(f"v_min_u32 v{vDoneA}, 383, v0\nv_lshlrev_b32 v{vDoneA}, 2, v{vDoneA}\nv_add_u32 v{vDoneA}, {A_DONE}, v{vDoneA}")
    A(f"v_mov_b32 v{vDone}, 0")
    A(f"ds_write_b32 v{vDoneA}, v{vDone}\nds_write_b32 v{vDoneA}, v{vDone} offset:1536")
    A(f"v_mov_b32 v{vRdyA}, {A_READY}")
    A(f"v_lshrrev_b32 v{vT0}, 4, v{vLane}\nv_and_b32 v{vT1}, 15, v{vLane}")
    A(f"v_xor_b32 v{vU}, v{vT1}, v{vT0}\nv_lshlrev_b32 v{vU}, 4, v{vU}\nv_lshl_add_u32 v{vQd}, v{vT0}, 8, v{vU}")
    if th3:
        A(f"s_and_b32 s{sE2}, s{sH}, 3\ns_cmp_eq_u32 s{sE2}, 1\ns_cselect_b32 s34, {th2}, {th3}")
        A(f"s_mov_b32 s{sF2}, {hex(0xff000000 | firstb3 << 8)}\ns_cselect_b32 s{sF2}, {hex(0xff000000 | firstb << 8)}, s{sF2}")
        A(f"s_lshr_b32 s{sE2}, s2, 3\ns_bitcmp1_b32 s{sF2}, s{sE2}\ns_cselect_b32 s{sB}, s{sBB}, s{sBA}")
    else:
        A(f"s_lshr_b32 s{sE2}, s2, 3\ns_bitcmp1_b32 {hex(0xff000000 | firstb << 8)}, s{sE2}\ns_cselect_b32 s{sB}, s{sBB}, s{sBA}")
    A(f"s_mul_i32 s{sOffQ}, s{sW}, 8704\ns_add_u32 s{sOffQ}, s{sOffQ}, {PB}")
    A(f"s_mov_b32 s10, {QB}\ns_mov_b32 s11, 0x20000")

    def q_own():
        A(f"s_lshl_b32 s{sE2}, s{sB}, 3\ns_add_u32 s{sE2}, s{sE2}, s{sH}\ns_lshl_b32 s{sE2}, s{sE2}, 2\ns_add_u32 s{sE2}, s{sE2}, s{sW}")
        A(f"s_lshl_b32 s{sE2}, s{sE2}, 13\ns_add_u32 s{sE2}, s{sE2}, s{sPar}\ns_xor_b32 s{sF2}, s{sE2}, 4096")

    def q_own_loads(qpol=qpol):
        for r in range(8):
            A(f"s_add_u32 m0, s{sOffQ}, {r * 1088 - (r & 3) * 1024}\ns_nop 0")
            A(f"buffer_load_dwordx4 v{vQd}, {SQ}, s{sE2 if r < 4 else sF2} offen offset:{(r & 3) * 1024} {qpol} lds")

    q_own()
    A(f"s_mov_b32 m0, {A_TAB}\ns_and_b32 s{sC}, s{sW}, 6\ns_cmp_eq_u32 s{sC}, 4")
    A("s_waitcnt lgkmcnt(0)")
    A("s_cbranch_scc0 L_notab")
    A(f"global_load_lds_dwordx4 v{vT2}, s[54:55]\ns_mov_b32 m0, {A_TAB + 1024}\ns_setprio {lprio}\nglobal_load_lds_dwordx4 v{vT3}, s[54:55]")
    A("L_notab:")
    A(f"s_load_dword s{sCntA}, s[56:57], s{sA}\ns_load_dword s{sCntB}, s[56:57], s{sBb}")
    A(f"s_mov_b32 s8, s48\ns_mov_b32 s9, s49\ns_cmp_lt_u32 s{sW}, 4")
    A("s_barrier")
    A("s_cbranch_scc0 L_noq")
    if q3:
        A(f"s_cmp_eq_u32 s{sRole}, 3\ns_cbranch_scc0 L_q012")
        q_own_loads("")
        A("s_branch L_noq\nL_q012:")
    q_own_loads()
    A("L_noq:")
    for srd, p, n in ((12, 50, KVB), (16, 52, KVB), (20, 62, WSB), (24, 58, QB), (28, 60, 256)):
        A(f"s_mov_b32 s{srd}, s{p}\ns_mov_b32 s{srd + 1}, s{p + 1}\ns_mov_b32 s{srd + 2}, {n}\n"
          f"s_mov_b32 s{srd + 3}, 0x20000")
    box_off(sE2, 0)
    A(f"v_lshrrev_b32 v{vT2}, 2, v{vLane}\nv_min_u32 v{vT2}, 5, v{vT2}\nv_mul_u32_u24 v{vT2}, {BOX}, v{vT2}")
    A(f"v_and_b32 v{vT3}, 3, v{vLane}\nv_lshl_add_u32 v{vFa}, v{vT3}, 7, v{vT2}\ns_add_u32 s{sE2}, s{sE2}, 16896\nv_add_u32 v{vFa}, s{sE2}, v{vFa}")
    A(f"s_cmp_eq_u32 s{sW}, 5\ns_cbranch_scc0 L_nosnap")
    A(f"buffer_load_dword v{vF0}, v{vFa}, {SWS}, 0 offen sc1")
    A(f"v_add_u32 v{vT2}, {A_HIST}, v{vL16}")
    for j in range(4):
        A(f"v_mov_b32 v{68 + j}, 0")
    A(f"ds_write_b128 v{vT2}, v[68:71]")
    if touch:
        A(f"s_lshr_b32 s{sE2}, s2, 3\ns_lshl_b32 s{sE2}, s{sE2}, 22\nv_and_b32 v{vT2}, 1, v{vLane}\nv_lshlrev_b32 v{vT2}, 21, v{vT2}")
        A(f"buffer_load_dword v{vPoll}, v{vT2}, {SK}, s{sE2} offen nt\nbuffer_load_dword v{vPoll2}, v{vT2}, {SV}, s{sE2} offen nt")
    A("L_nosnap:")
    A(f"v_and_b32 v{vDnA}, 3, v{vLane}\nv_lshlrev_b32 v{vDnA}, 8, v{vDnA}\nv_add_u32 v{vDnA}, {A_DONE}, v{vDnA}")
    A(f"s_lshl_b32 s{sE2}, s{sH}, 8")
    A(f"v_lshl_add_u32 v{vT2}, v{vT0}, 11, v{vU}\nv_add_u32 v{vKo}, s{sE2}, v{vT2}")
    A(f"v_and_b32 v{vT2}, 1, v{vT0}\nv_lshlrev_b32 v{vT2}, 1, v{vT2}\nv_xor_b32 v{vT2}, v{vT2}, v{vT1}\nv_lshlrev_b32 v{vT2}, 4, v{vT2}")
    A(f"v_lshl_add_u32 v{vT2}, v{vT0}, 13, v{vT2}\nv_add_u32 v{vVo}, s{sE2}, v{vT2}")
    for j in range(1, 4):
        A(f"v_add_u32 v{vKo + j}, {j * (8192 - 1088)}, v{vKo}\nv_add_u32 v{vVo + j}, {j * (2048 - 1088)}, v{vVo}")
    A("s_waitcnt lgkmcnt(0)")
    st(1)
    A(f"s_min_i32 s{sA}, s{sCntA}, 0x1000\ns_cmp_lt_i32 s{sA}, 1\ns_cselect_b32 s{sA}, 0x1000, s{sA}\ns_cselect_b32 s{sC}, 1, 0")
    A(f"s_min_i32 s{sBb}, s{sCntB}, 0x1000\ns_cmp_lt_i32 s{sBb}, 1\ns_cselect_b32 s{sBb}, 0x1000, s{sBb}\ns_cselect_b32 s{sD}, 1, 0")
    A(f"s_mov_b32 s{sE2}, s{sBA}\ns_cmp_lt_u32 s{sA}, s{sBb}\ns_cselect_b32 s{sSwap}, 1, 0")
    A(f"s_cselect_b32 s{sCntA}, s{sBb}, s{sA}\ns_cselect_b32 s{sCntB}, s{sA}, s{sBb}")
    A(f"s_cselect_b32 s{sBA}, s{sBB}, s{sBA}\ns_cselect_b32 s{sBB}, s{sE2}, s{sBB}")
    A(f"s_cselect_b32 s{sZ}, s{sD}, s{sC}\ns_cselect_b32 s{sD}, s{sC}, s{sD}\ns_lshl_b32 s{sD}, s{sD}, 1\ns_or_b32 s{sZ}, s{sZ}, s{sD}")
    A(f"s_cmp_eq_u32 s{sRole}, 3\ns_cselect_b32 s{sNv}, s{sCntB}, s{sCntA}")
    A(f"s_sub_u32 s{sNv}, s{sNv}, 1\ns_and_b32 s{sNv}, s{sNv}, 31\ns_add_u32 s{sNv}, s{sNv}, 1")
    A(f"s_add_u32 s{sTopA}, s{sCntA}, 31\ns_lshr_b32 s{sTopA}, s{sTopA}, 5")
    A(f"s_add_u32 s{sTopB}, s{sCntB}, 31\ns_lshr_b32 s{sTopB}, s{sTopB}, 5")
    A(f"s_add_u32 s{sA}, s{sTopA}, s{sTopB}\ns_add_u32 s{sA}, s{sA}, {2 * delta + ex + ra}\ns_lshr_b32 s{sA}, s{sA}, 2\ns_max_u32 s{sA}, s{sA}, 1")
    A(f"s_min_u32 s{sCntA}, s{sA}, s{sTopA}\ns_min_u32 s{sCntB}, s{sA}, s{sTopB}")
    if th2:
        A(f"s_add_u32 s{sC}, s{sTopA}, 1\ns_lshr_b32 s{sC}, s{sC}, 1\ns_add_u32 s{sD}, s{sTopB}, 1\ns_lshr_b32 s{sD}, s{sD}, 1")
        A(f"s_sub_u32 s{sA}, s{sTopA}, s{sTopB}\ns_cmp_le_u32 s{sA}, {'s34' if th3 else th2}")
        A(f"s_cselect_b32 s{sCntA}, s{sC}, s{sCntA}\ns_cselect_b32 s{sCntB}, s{sD}, s{sCntB}\ns_cselect_b32 s{sF2}, 0x1000, {theta}")
    A(f"s_sub_u32 s{sC}, s{sTopA}, s{sCntA}\ns_sub_u32 s{sD}, s{sTopB}, s{sCntB}")
    A(f"s_add_u32 s{sBb}, s{sC}, s{sD}\ns_add_u32 s{sBb}, s{sBb}, {ex + rx}\ns_lshr_b32 s{sBb}, s{sBb}, 1\ns_min_u32 s{sBb}, s{sBb}, s{sC}")
    A(f"s_sub_u32 s{sExp}, s{sC}, s{sBb}\ns_cmp_le_u32 s{sExp}, {f's{sF2}' if th2 else theta}\ns_cselect_b32 s{sBb}, s{sC}, s{sBb}\ns_cselect_b32 s{sExp}, 0, s{sExp}")
    A(f"s_cmp_ge_u32 s{sRole}, 2\ns_cbranch_scc1 L_plan_top")
    A(f"s_mov_b32 s{sNv}, 32\ns_mov_b32 s{sTopB}, s{sD}\ns_mov_b32 s{sCntB}, s{sD}")
    A(f"s_cmp_eq_u32 s{sRole}, 0\ns_cselect_b32 s{sCntA}, s{sBb}, s{sExp}\ns_cselect_b32 s{sTopA}, s{sBb}, s{sC}")
    A("L_plan_top:")
    A(f"s_bitcmp1_b32 s{sRole}, 0\ns_cselect_b32 s{sCntB}, s{sCntB}, 0\ns_cselect_b32 s{sExp}, 0, s{sExp}")
    A(f"s_cmp_eq_u32 s{sRole}, 3\ns_cselect_b32 s{sCntA}, 0, s{sCntA}")
    A(f"s_cmp_lt_u32 s{sW}, 4\ns_cbranch_scc1 L_consumer\ns_cmp_eq_u32 s{sW}, 6\ns_cbranch_scc1 L_pacer")
    A(f"s_sub_u32 s{sA}, s{sW}, 4\ns_mul_i32 s{sA}, s{sA}, {k0}\nv_add_u32 v{vRow + 2}, s{sA}, v{vLane}")
    A(f"s_add_u32 s{sCnt}, s{sCntA}, s{sCntB}\ns_add_u32 s{sBb}, s{sTopB}, s{sCntA}\nv_cmp_gt_u32 vcc, s{sCntA}, v{vRow + 2}")
    A(f"v_mov_b32 v{vT2}, s{sTopA}\nv_mov_b32 v{vT3}, s{sBb}\ns_lshl_b32 s{sA}, s{sSwap}, 10\ns_add_u32 s{sA}, s{sA}, {A_TAB}")
    A(f"v_cndmask_b32 v{vT2}, v{vT3}, v{vT2}, vcc\ns_lshl_b32 s{sBb}, s{sSwap}, 10\ns_sub_u32 s{sBb}, {A_TAB + 1024}, s{sBb}")
    A(f"v_xad_u32 v{vT2}, v{vRow + 2}, -1, v{vT2}\nv_mov_b32 v{vT3}, s{sA}\nv_mov_b32 v{vRow}, s{sBb}")
    A(f"v_and_b32 v{vT2}, 127, v{vT2}\nv_cndmask_b32 v{vT3}, v{vRow}, v{vT3}, vcc\nv_lshl_add_u32 v{vT2}, v{vT2}, 3, v{vT3}")
    A(f"s_cmp_eq_u32 s{sW}, 5\ns_cbranch_scc1 L_helper")

    def min4(dst, add):
        A(f"v_readlane_b32 s{sA}, v{vDn}, 0\nv_readlane_b32 s{sBb}, v{vDn}, 1\nv_readlane_b32 s{sC}, v{vDn}, 2\n"
          f"v_readlane_b32 s{sD}, v{vDn}, 3")
        A(f"s_min_u32 s{sA}, s{sA}, s{sBb}\ns_min_u32 s{sC}, s{sC}, s{sD}\ns_min_u32 s{dst}, s{sA}, s{sC}")
        if add:
            A(f"s_add_u32 s{dst}, s{dst}, {add}")

    A(f"s_cmp_eq_u32 s{sCnt}, 0\ns_cbranch_scc1 L_ldone")
    A(f"s_waitcnt vmcnt(0)\nds_read_b64 {vr(vRow, 2)}, v{vT2}")
    st(2)
    A(f"s_mov_b32 s{sS}, 1\ns_mov_b32 s{sOff}, {SLOT}\ns_mov_b32 s{sPub}, 0\ns_mov_b32 s{sFree}, {NS}")
    if skipb:
        A(f"s_cmp_le_u32 s{sNv}, 16")
    A(f"s_mov_b32 s{sTile}, 1\ns_mov_b32 s{sSw}, {k0 if not nosort else 64}\ns_mov_b32 m0, 0")
    A(f"s_waitcnt lgkmcnt(0)\nv_lshlrev_b32 v{vRow}, 15, v{vRow}\nv_lshlrev_b32 v{vRow + 1}, 15, v{vRow + 1}")
    A(f"v_readlane_b32 s{sA}, v{vRow}, 0\nv_readlane_b32 s{sBb}, v{vRow + 1}, 0\nv_readlane_b32 s{sN0}, v{vRow}, 1\nv_readlane_b32 s{sN1}, v{vRow + 1}, 1")
    A(f"s_mov_b32 s{sO0}, s{sA}\n" + (f"s_cselect_b32 s{sO1}, {hex(OOB)}, s{sBb}" if skipb else f"s_mov_b32 s{sO1}, s{sBb}"))
    for g in range(2):
        if g:
            A("s_mov_b32 m0, 4352\ns_nop 0")
        for j in range(4):
            A(f"buffer_load_dwordx4 v{vKo + j}, {SK}, s{sO0 + g} offen offset:{j * 1088} {pol} lds")
    if lag:
        A(f"s_mov_b32 s{sLag}, {lag}\ns_lshr_b32 s{sDec}, s2, 3\ns_and_b32 s{sDec}, s{sDec}, {dmask}")
        if dmul != 4:
            A(f"s_mul_i32 s{sDec}, s{sDec}, {dmul}\ns_lshr_b32 s{sDec}, s{sDec}, 2")
        A(f"s_add_u32 s{sDec}, s{sDec}, {dec0}")
    A(f"v_lshlrev_b32 v{vT2}, 3, v{vLane}\nv_add_u32 v{vT2}, {A_LIST}, v{vT2}\nv_mov_b32 v{vT3}, {A_SIG}")
    sLvl = 53
    A(f"s_mov_b32 s{sA}, {A_SIG + 8}\nv_writelane_b32 v{vDnA}, s{sA}, 4\ns_mov_b32 s{sLvl}, {l0}")
    if nsc:
        for r, n in ((54, n0), (55, nm), (56, n1)):
            A(f"s_mul_i32 s{r}, s{sCnt}, {round((n - 0.5) * 256 / 49)}\ns_lshr_b32 s{r}, s{r}, 8")
        if lag:
            A(f"s_mul_i32 s{sDec}, s{sDec}, s{sCnt}\ns_mul_i32 s{sDec}, s{sDec}, 84\ns_lshr_b32 s{sDec}, s{sDec}, 12")
    A("L_next:")
    A(f"s_sub_u32 s{sCnt}, s{sCnt}, 1\ns_cmp_eq_u32 s{sCnt}, 0\ns_cbranch_scc1 L_lsegend")
    A(f"s_mov_b32 s{sP0}, s{sO0}\ns_mov_b32 s{sP1}, s{sO1}\ns_mov_b32 s{sO0}, s{sN0}\ns_mov_b32 s{sO1}, s{sN1}")
    A(f"s_cmp_lt_u32 s{sS}, s{sFree}\ns_cbranch_scc0 L_full_a")
    A("L_free_a:")

    def tree(lo, hi):
        if lo == hi:
            stage_loop(str(lo), w_lo + 2 * lo)
            return
        mid = (lo + hi + 1) // 2
        A(f"s_cmp_ge_i32 s{sLvl}, {mid}\ns_cbranch_scc1 L_t{mid}_{hi}")
        tree(lo, mid - 1)
        A(f"L_t{mid}_{hi}:")
        tree(mid, hi)

    def next_offsets(tag):
        A(f"s_add_u32 s{sTile}, s{sTile}, 1\ns_cmp_eq_u32 s{sTile}, s{sSw}\ns_cbranch_scc1 L_sw_{tag}")
        A(f"L_swd_{tag}:")
        A(f"v_readlane_b32 s{sN0}, v{vRow}, s{sTile}\nv_readlane_b32 s{sN1}, v{vRow + 1}, s{sTile}")

    def publish(back, lagged):
        A(f"s_sub_u32 s{sE2}, s{sS}, {back}")
        if lagged:
            A(f"s_sub_u32 s{sF2}, s{sE2}, s{sLag}\ns_max_i32 s{sPub}, s{sPub}, s{sF2}")
        else:
            A(f"s_max_i32 s{sPub}, s{sPub}, s{sE2}")
        A(f"v_mov_b32 v{vPub}, s{sPub}")
        if lagged:
            A(f"v_writelane_b32 v{vPub}, s{sE2}, 1")

    def stage_loop(tag, w):
        pub_i = -(-((w - gran) % 16) // gran) * gran
        back = (w - gran) // 16
        if pub_i == 16:
            pub_i, back = 0, back + 1
        for i in range(16):
            run = {0: 8, 1: 4, 2: 2, 3: 1}[il]
            kv, n8 = (i // run) & 1, (i // (2 * run)) * run + i % run
            g, j = 2 * kv + (n8 >> 2), n8 & 3
            newm0 = j == 0 or i % run == 0
            srd, vo, so = ((SK, vKo, sO0), (SK, vKo, sO1), (SV, vVo, sP0), (SV, vVo, sP1))[g]
            if newm0:
                A(f"s_mov_b32 m0, s{sOff}" if g == 0 else f"s_add_u32 m0, s{sOff}, {g * 4352}")
            if i == pub_i:
                publish(back, lag)
            if i % gran == 0:
                A(f"s_waitcnt vmcnt({w - gran})")
            elif newm0:
                A("s_nop 0")
            if i == pub_i:
                A(f"ds_write_b32 v{vDoneA}, v{vPub}")
            A(f"buffer_load_dwordx4 v{vo + j}, {srd}, s{so} offen offset:{j * 1088} {pol} lds")
            if i == 3:
                next_offsets(tag)
            if i == 8:
                A(f"ds_read_b32 v{vDn}, v{vDnA}")
            if i == 10:
                A("s_waitcnt lgkmcnt(0)")
                min4(sFree, NS)
            if i == (12 if il < 2 else 15):
                AL(adv(sOff))
            if i == 12:
                A(f"v_readlane_b32 s{sBb}, v{vDn}, 4\ns_cmp_lt_u32 s{sS}, {'s56' if nsc else n1 - 1}\ns_cselect_b32 s{sA}, {l1}, {l2}")
                if nm:
                    A(f"s_cmp_lt_u32 s{sS}, {'s55' if nsc else nm - 1}\ns_cselect_b32 s{sA}, {lm}, s{sA}")
                A(f"s_cmp_lt_u32 s{sS}, {'s54' if nsc else n0 - 1}\ns_cselect_b32 s{sA}, {l0}, s{sA}\ns_add_u32 s{sLvl}, s{sA}, s{sBb}")
            if i == 13 and lag:
                assert lag == 1
                A(f"s_cmp_ge_u32 s{sS}, s{sDec}\ns_cselect_b32 s{sLag}, 0, 1")
        A(f"s_add_u32 s{sS}, s{sS}, 1")
        A("s_branch L_stg" if stamp or noload else "s_branch L_next")

    tree(0, nlev - 1)
    if stamp or noload:
        A("L_stg:")
        for k, n in ((5, 8), (6, 24), (7, 40)):
            A(f"s_cmp_lg_u32 s{sS}, {n}\ns_cbranch_scc1 L_ns{k}")
            st(k)
            A(f"L_ns{k}:")
        if noload:
            A(f"s_cmp_lt_u32 s{sS}, {NS}\ns_cbranch_scc1 L_next\ns_waitcnt vmcnt(0)\nv_mov_b32 v{vPub}, 0x7fffffff\n"
              f"ds_write_b32 v{vDoneA}, v{vPub}\ns_branch L_ldone")
        A("s_branch L_next")
    A("L_lsegend:")
    if pre:
        A(f"ds_read_b32 v{vPoll}, v{vT3}")
    A(f"s_cmp_lt_u32 s{sS}, s{sFree}\ns_cbranch_scc0 L_full_e")
    A("L_free_e:")
    assert wmax <= 32
    for i in range(9):
        g, j = 2 + (i >> 2), i & 3
        if j == 0 and i < 8:
            A(f"s_add_u32 m0, s{sOff}, {g * 4352}\ns_nop 0")
        if i == ek:
            publish(1, False)
            A(f"s_waitcnt vmcnt({16 + i})\nds_write_b32 v{vDoneA}, v{vPub}")
        if i < 8:
            A(f"buffer_load_dwordx4 v{vVo + j}, {SV}, s{sO0 if g == 2 else sO1} offen offset:{j * 1088} {pol} lds")
    st(3)
    if pre:
        A(f"s_bitcmp1_b32 s{sRole}, 0\ns_cselect_b32 s48, s{sBB}, s{sBA}\ns_lshl_b32 s48, s48, 3\ns_add_u32 s48, s48, s{sH}")
        A(f"s_lshl_b32 s48, s48, 15\ns_add_u32 s48, s48, s{sPar}")
        A(f"v_lshrrev_b32 v93, 5, v{vLane}\nv_lshlrev_b32 v93, 12, v93\nv_lshl_add_u32 v93, v{vLane}, 7, v93\nv_lshlrev_b32 v95, 7, v{vLane}")
        A(f"s_xor_b32 s{sA}, s{sRole}, 2\ns_lshr_b32 s{sBb}, s{sRole}, 1\ns_add_u32 s{sBb}, s{sBb}, 4")
        box_off(50, f"s{sA}")
        box_off(49, f"s{sBb}")
        A(f"s_cmp_eq_u32 s{sExp}, 0\ns_cselect_b32 s49, {hex(OOB)}, s49\ns_cselect_b32 s51, s50, s49")
        A(f"v_and_b32 v94, 4, v{vLane}\nv_cmp_eq_u32 vcc, 0, v94\nv_mov_b32 v94, s50\nv_mov_b32 v96, s51\nv_and_b32 v97, 3, v{vLane}")
        A(f"v_cndmask_b32 v94, v96, v94, vcc\nv_lshl_add_u32 v94, v97, 7, v94")
    npre = 5 if pre else 0

    def pre_loads():
        A(f"s_waitcnt lgkmcnt(0)\nv_readfirstlane_b32 s{sA}, v{vPoll}\ns_nop 0\ns_cmp_eq_u32 s{sA}, 1")
        A(f"s_cselect_b32 s48, s48, {hex(OOB)}\ns_cselect_b32 s49, s49, {hex(OOB)}\ns_cselect_b32 s50, 16384, {hex(OOB)}")
        A(f"s_mov_b32 m0, {A_HIST}\ns_add_u32 s51, s48, 16384\ns_add_u32 s52, s49, 8192")
        for va, srd, so in ((94, SWS, 50), (93, SO, 48), (93, SO, 51), (95, SWS, 49), (95, SWS, 52)):
            A(f"buffer_load_dword v{va}, {srd}, s{so} offen {prepol} lds")

    backs = [0, -1]
    for n, back in enumerate(backs):
        if pre and n == pre - 1:
            pre_loads()
        ex_n = npre if pre and n >= pre - 1 else 0
        publish(back, False) if back >= 0 else A(f"s_add_u32 s{sA}, s{sS}, 1\nv_mov_b32 v{vPub}, s{sA}")
        A(f"s_waitcnt vmcnt({(16 * back + 8 if back >= 0 else 0) + ex_n})\nds_write_b32 v{vDoneA}, v{vPub}")
    if pre > len(backs):
        pre_loads()
    A("L_ldone:")
    st(4)
    dump_stamps(0)
    A("s_endpgm")
    for tag in map(str, range(nlev)):
        A(f"L_sw_{tag}:")
        budget()
        A(f"ds_read_b32 v{vDn}, v{vT3} offset:4\nds_read_b64 {vr(vRow, 2)}, v{vT2}\ns_waitcnt lgkmcnt(0)\nv_readfirstlane_b32 s{sA}, v{vDn}\ns_nop 0")
        A(f"s_cmp_eq_u32 s{sA}, 0\ns_cbranch_scc1 L_sw_{tag}")
        A(f"s_mov_b32 s{sTile}, 0\ns_mov_b32 s{sSw}, -1\ns_branch L_swd_{tag}")
    for tag in "ae":
        A(f"L_full_{tag}:")
        budget()
        A(f"ds_read_b32 v{vDn}, v{vDnA}\ns_waitcnt lgkmcnt(0)")
        min4(sFree, NS)
        A(f"s_cmp_lt_u32 s{sS}, s{sFree}\ns_cbranch_scc0 L_full_{tag}\ns_branch L_free_{tag}")

    A("L_pacer:")
    sPos, sIdx, sLine, sNx = 54, 55, 56, 57
    A(f"s_add_u32 s{sCnt}, s{sCntA}, s{sCntB}\ns_lshr_b32 s{sIdx}, s2, 3")
    A(f"s_sub_u32 s{sA}, s{sCnt}, {base}\ns_mul_i32 s{sA}, s{sA}, {sg}\ns_add_u32 s{sA}, s{sA}, {128 - sg * 3 // 4}\ns_ashr_i32 s{sA}, s{sA}, 8")
    A(f"s_min_i32 s{sA}, s{sA}, {amax}\ns_max_i32 s{sA}, s{sA}, {-amin}\nv_mov_b32 v101, s{sA}\nv_mov_b32 v{vT3}, {A_SIG + 8}\nds_write_b32 v{vT3}, v101")
    if kap:
        A("v_mov_b32 v105, v101")
    A(f"s_and_b32 s{sA}, s2, 7\ns_lshl_b32 s{sA}, s{sA}, 7\ns_add_u32 s{sLine}, s{sA}, {64 * 6 * BOX}\nv_and_b32 v98, 31, v{vLane}\nv_lshlrev_b32 v98, 2, v98")
    A(f"s_lshl_b64 s[58:59], 1, s{sIdx}\nbuffer_load_dword v99, v98, {SWS}, s{sLine} offen sc1")
    if bia or bib:
        A(f"s_mov_b32 s{sA}, {hex(f2u(bib))}\ns_cmp_eq_u32 s34, {th2}\ns_cselect_b32 s{sA}, {hex(f2u(bia))}, s{sA}\nv_mov_b32 v104, s{sA}")
    if clead:
        A(f"s_cmp_eq_u32 s{sExp}, 0\ns_cselect_b32 s60, {foff}, {foff + clead}")
    A(f"s_and_b32 s{sNx}, s{sIdx}, 1\ns_add_u32 s{sNx}, s{sNx}, {fb0}\ns_waitcnt vmcnt(0)")
    A("L_pc0:")
    A(f"s_cmp_ge_u32 s{sNx}, s{sCnt}\ns_cbranch_scc1 L_end")
    A("L_pc1:")
    budget()
    if fsleep:
        A(f"s_sleep {fsleep}")
    A(f"ds_read_b32 v{vF}, v{vRdyA} offset:4\ns_waitcnt lgkmcnt(0)\nv_readfirstlane_b32 s{sF}, v{vF}\ns_nop 0")
    A(f"s_cmp_lt_i32 s{sF}, s{sNx}\ns_cbranch_scc1 L_pc1")
    A(f"s_sub_u32 s{sBb}, s{sCnt}, s{sF}\ns_sub_u32 s{sPos}, 128, s{sBb}\nv_add_u32 v102, s{sPos}, v99\ns_mov_b64 exec, s[58:59]")
    A(f"buffer_store_dword v102, v98, {SWS}, s{sLine} offen\ns_mov_b64 exec, -1")
    A(f"buffer_load_dword v100, v98, {SWS}, s{sLine} offen sc1")
    A(f"s_add_u32 s{sNx}, s{sF}, 2\ns_sub_u32 s{sA}, s{sBb}, 2\ns_min_i32 s{sA}, s{sA}, {rhi}\ns_max_i32 s{sA}, s{sA}, {rlo}")
    A(f"v_cvt_f32_u32 v102, s{sA}\ns_lshl_b32 s{sD}, s{sPos}, 5\ns_sub_u32 s{sD}, s{sD}, {'s60' if clead else foff}\nv_rcp_f32 v102, v102\ns_waitcnt vmcnt(0)")
    A(f"v_sub_u32 v101, v100, v99\nv_cmp_eq_u32 vcc, 0, v101\ns_nop 0")
    for sh in (1, 2, 4, 8):
        A(f"v_add_u32_dpp v101, v101, v101 row_shr:{sh} row_mask:0xf bank_mask:0xf bound_ctrl:0\ns_nop 1")
    A(f"v_add_u32_dpp v101, v101, v101 row_bcast:15 row_mask:0xa bank_mask:0xf\ns_cbranch_vccnz L_pc0")
    if kap:
        A(f"v_mad_i32_i24 v101, v105, {-kap}, v101")
    A(f"v_subrev_u32 v101, s{sD}, v101\nv_cvt_f32_i32 v101, v101\nv_mul_f32 v101, {hex(f2u(fbg / 32))}, v101\n" + ("v_fma_f32 v101, v101, v102, v104" if bia or bib else "v_mul_f32 v101, v101, v102"))
    A(f"v_rndne_f32 v101, v101\nv_cvt_i32_f32 v101, v101\nv_med3_i32 v101, v101, {-amin}, {amax}")
    if kap:
        A("v_mov_b32 v105, v101")
    A(f"s_mov_b32 exec_lo, 0x80000000\ns_mov_b32 exec_hi, 0\nds_write_b32 v{vT3}, v101\ns_mov_b64 exec, -1\ns_branch L_pc0")

    A("L_helper:")
    a_0, a_1, p_0, p_1, hh, tt, one = 64, 65, 66, 67, 68, 96, 75
    A(f"s_waitcnt vmcnt({hw0})\nds_read_b64 {vr(vRow, 2)}, v{vT2}")
    A(f"v_mov_b32 v{a_0}, {A_HIST}\nv_mov_b32 v{a_1}, {A_HIST + 512}\nv_add_u32 v{vT3}, {A_HIST}, v{vL16}")
    A(f"v_cndmask_b32 v{p_0}, v{a_1}, v{a_0}, vcc\nv_cmp_gt_u32 vcc, s{sCnt}, v{vRow + 2}\nv_mov_b32 v{one}, 1")
    A(f"s_waitcnt lgkmcnt(0)\nv_bfe_u32 v{a_0}, v{vRow}, {bsh}, 7\nv_bfe_u32 v{a_1}, v{vRow + 1}, {bsh}, 7")
    A(f"v_lshl_add_u32 v{a_0}, v{a_0}, 2, v{p_0}\nv_lshl_add_u32 v{a_1}, v{a_1}, 2, v{p_0}")
    A(f"s_mov_b64 s[48:49], vcc\ns_mov_b64 exec, vcc")
    A(f"ds_add_rtn_u32 v{p_0}, v{a_0}, v{one}\nds_add_rtn_u32 v{p_1}, v{a_1}, v{one}")
    A(f"s_mov_b64 exec, -1\nds_read_b128 {vr(hh, 4)}, v{vT3}")
    A(f"v_lshlrev_b32 v{vRow}, 15, v{vRow}\nv_lshlrev_b32 v{vRow + 1}, 15, v{vRow + 1}\ns_waitcnt lgkmcnt(0)")
    A(f"v_add_u32 v{hh + 1}, v{hh}, v{hh + 1}\nv_add_u32 v{hh + 2}, v{hh + 1}, v{hh + 2}\nv_add_u32 v{hh + 3}, v{hh + 2}, v{hh + 3}")
    A(f"v_mov_b32 v{tt}, v{hh + 3}\ns_nop 1")
    for sh in (1, 2, 4, 8):
        A(f"v_add_u32_dpp v{tt}, v{tt}, v{tt} row_shr:{sh} row_mask:0xf bank_mask:0xf bound_ctrl:0\ns_nop 1")
    A(f"v_add_u32_dpp v{tt}, v{tt}, v{tt} row_bcast:15 row_mask:0xa bank_mask:0xf\ns_nop 1")
    A(f"v_add_u32_dpp v{tt}, v{tt}, v{tt} row_bcast:31 row_mask:0xc bank_mask:0xf")
    A(f"v_sub_u32 v{tt}, v{tt}, v{hh + 3}")
    for j in range(3):
        A(f"v_add_u32 v{tt + 1 + j}, v{tt}, v{hh + j}")
    A(f"ds_write_b128 v{vT3}, {vr(tt, 4)}\nds_read_b32 v{a_0}, v{a_0}\nds_read_b32 v{a_1}, v{a_1}")
    A(f"v_mov_b32 v{vT3}, {A_LIST}\nv_mov_b32 v{vT2}, {A_SIG}\ns_mov_b64 exec, s[48:49]\ns_waitcnt lgkmcnt(0)")
    A(f"v_add_u32 v{p_0}, v{p_0}, v{a_0}\nv_add_u32 v{p_1}, v{p_1}, v{a_1}")
    A(f"v_lshl_add_u32 v{p_0}, v{p_0}, 2, v{vT3}\nv_lshl_add_u32 v{p_1}, v{p_1}, 2, v{vT3}")
    A(f"ds_write_b32 v{p_0}, v{vRow}\nds_write_b32 v{p_1}, v{vRow + 1}")
    A(f"s_mov_b64 exec, -1\nds_write_b32 v{vT2}, v{one} offset:4")
    st(5)
    A(f"s_setprio 0\ns_mov_b32 s{sItem}, 1")
    A(f"s_cmp_eq_u32 s{sCntA}, 0\ns_cselect_b32 s{sCntB}, 0, s{sCntB}")

    def pb_free(tag):
        A(f"s_branch L_hfree_{tag}")
        A(f"L_hfree0_{tag}:")
        budget()
        if psleep:
            A(f"s_sleep {psleep}")
        A(f"L_hfree_{tag}:")
        A(f"ds_read_b32 v{vDn}, v{vDnA} offset:1536\ns_waitcnt lgkmcnt(0)")
        min4(sA, 0)
        A(f"s_cmp_lt_u32 s{sA}, s{sItem}\ns_cbranch_scc1 L_hfree0_{tag}")

    def pb_publish():
        A(f"s_add_u32 s{sItem}, s{sItem}, 1\nv_mov_b32 v{vPub}, s{sItem}\ns_waitcnt vmcnt(0)\nds_write_b32 v{vDoneA}, v{vPub}")

    def q_item(w):
        A(f"s_lshl_b32 s{sO1}, s{sB}, 3\ns_add_u32 s{sO1}, s{sO1}, s{sH}\ns_lshl_b32 s{sO1}, s{sO1}, 15\ns_xor_b32 s{sO0}, s{sO1}, s{sPar}")
        for r in range(32):
            A(f"s_mov_b32 m0, {PB + r * 1088 - (r & 3) * 1024}")
            if r and (r & 3) == 0:
                A(f"s_add_u32 s{sO1}, s{sO1}, 4096\ns_xor_b32 s{sO0}, s{sO1}, s{sPar}")
            elif w and r >= w:
                A(f"s_waitcnt vmcnt({w - 1})")
            else:
                A("s_nop 0")
            A(f"buffer_load_dwordx4 v{vQd}, {SQ}, s{sO0} offen offset:{(r & 3) * 1024} {q2pol} lds")

    def wait_progress(tag):
        A(f"s_branch L_hp_{tag}")
        A(f"L_hp0_{tag}:")
        budget()
        if psleep:
            A(f"s_sleep {psleep}")
        A(f"L_hp_{tag}:")
        A(f"ds_read_b32 v{vF}, v{vRdyA}\ns_waitcnt lgkmcnt(0)\nv_readfirstlane_b32 s{sF}, v{vF}\ns_nop 0")
        A(f"s_cmp_lt_u32 s{sF}, s{sNeed}\ns_cbranch_scc1 L_hp0_{tag}")

    A(f"s_lshl_b32 s{sA}, s{sGrp}, 2\nv_mov_b32 v{vDb}, s{sA}\ns_getreg_b32 s{sA}, hwreg(HW_REG_XCC_ID, 0, 4)")
    A(f"s_or_b32 s{sD}, s{sA}, 16\ns_lshl_b32 s{sBb}, s{sRole}, 3\ns_lshl_b32 s{sA}, s{sD}, s{sBb}\ns_mul_i32 s{sK}, s{sD}, 0x01010101")
    A(f"s_waitcnt vmcnt(0)\nv_mov_b32 v{vPoll}, s{sA}")
    A(f"ds_write_b32 v{vDoneA}, v{vF0} offset:1536")
    A(f"s_mov_b64 exec, 1\nbuffer_atomic_or v{vPoll}, v{vDb}, {SD}, 0 offen sc1\ns_mov_b64 exec, -1")
    st(2)
    A(f"s_cmp_eq_u32 s{sCntB}, 0\ns_cbranch_scc1 L_hq2")
    A(f"s_mov_b32 s{sB}, s{sBB}")
    pb_free("q")
    q_item(hwin)
    A(f"v_mov_b32 v{vPub}, 1\ns_waitcnt vmcnt(0)\nds_write_b32 v{vDoneA}, v{vPub}")
    A("L_hq2:")
    A(f"s_lshr_b32 s{sIt}, s2, 3\ns_and_b32 s{sIt}, s{sIt}, {cmask}")
    if rmode < 2:
        A(f"s_add_u32 s{sNeed}, s{sIt}, {chk0}\ns_min_u32 s{sNeed}, s{sNeed}, s{sCnt}")
        wait_progress("c")
        A("s_branch L_hchk")
        A("L_hchk0:")
        budget()
        if psleep:
            A(f"s_sleep {4 * psleep}")
        A("L_hchk:")
        A(f"buffer_load_dword v{vPoll2}, v{vDb}, {SD}, 0 offen sc1\ns_waitcnt vmcnt(0)")
        A(f"v_readfirstlane_b32 s{sA}, v{vPoll2}\ns_nop 0\ns_and_b32 s{sBb}, s{sA}, 0x10101010\ns_cmp_eq_u32 s{sBb}, 0x10101010\ns_cbranch_scc0 L_hchk0")
        A(f"s_cmp_eq_u32 s{sA}, s{sK}\ns_cselect_b32 s{sK}, 1, 2")
    if force or rmode >= 2:
        A(f"s_mov_b32 s{sK}, {force or 1}")
    A(f"v_mov_b32 v{vPoll2}, s{sK}")
    A(f"v_mov_b32 v{vT2}, {A_SIG}\nds_write_b32 v{vT2}, v{vPoll2}")
    A(f"s_cmp_eq_u32 s{sRole}, 1\ns_cbranch_scc0 L_hdone\ns_cmp_eq_u32 s{sCntA}, 0\ns_cbranch_scc1 L_hdone")
    A(f"s_mov_b32 s{sItem}, 2")
    pb_free("h")
    A(f"v_add_u32 v{vT3}, {PB}, v{vL16}\nv_mul_u32_u24 v{vT2}, 8704, v{vT0}\nv_lshl_add_u32 v{vT2}, v{vT1}, 4, v{vT2}")
    A(f"v_add_u32 v{vT2}, {PB + 8192}, v{vT2}")
    for r in range(32):
        A(f"ds_read_b128 {vr(HR + 4 * r, 4)}, v{vT3} offset:{(r >> 3) * 8704 + (r & 7) * 1024}")
    A(f"ds_read_b128 {vr(HR + 128, 4)}, v{vT2}")
    box_off(sE2, 4)
    A(f"v_lshrrev_b32 v{vT2}, 3, v{vT1}\nv_mul_u32_u24 v{vT2}, {BOX}, v{vT2}\nv_lshl_add_u32 v{vT2}, v{vT0}, 7, v{vT2}")
    A(f"v_and_b32 v{vT3}, 7, v{vT1}\nv_lshl_add_u32 v{vT2}, v{vT3}, 4, v{vT2}")
    A(f"v_add_u32 v{vF0}, 1, v{vF0}")
    A(f"s_cmp_eq_u32 s{sK}, 1\ns_cselect_b32 s{sA}, {lead}, 1\ns_sub_u32 s{sNeed}, s{sCnt}, s{sA}\ns_max_i32 s{sNeed}, s{sNeed}, 0")
    wait_progress("h")
    st(3)
    A(f"s_cmp_eq_u32 s{sK}, 1\ns_cbranch_scc0 L_hwt")
    for pl in (hpol, "sc1"):
        if pl == "sc1":
            A("L_hwt:")
        for r in range(32):
            if (r & 3) == 0:
                A(f"s_add_u32 s{sO1}, s{sE2}, {((r >> 2) & 1) * BOX + (r >> 3) * 4096}")
            A(f"buffer_store_dwordx4 {vr(HR + 4 * r, 4)}, v{vL16}, {SWS}, s{sO1} offen offset:{(r & 3) * 1024} {pl}")
        A(f"s_add_u32 s{sO0}, s{sE2}, 16384")
        A(f"buffer_store_dwordx4 {vr(HR + 128, 4)}, v{vT2}, {SWS}, s{sO0} offen {pl}")
        A("s_mov_b64 exec, 0xff0000\ns_waitcnt vmcnt(0)")
        A(f"buffer_store_dword v{vF0}, v{vFa}, {SWS}, 0 offen {pl}")
        A("s_mov_b64 exec, -1")
        if pl != "sc1":
            A("s_branch L_hdone")
    A("L_hdone:")
    if trace:
        A(f"s_cmp_eq_u32 s{sRole}, 0\ns_cbranch_scc0 L_end")
        A(f"s_mov_b32 s{sIt}, 0\nv_mov_b32 v100, 0\nv_mov_b32 v101, 0\nv_mov_b32 v102, 0\nv_mov_b32 v103, 0")
        A("L_tr:")
        A(f"s_memrealtime s[84:85]\ns_memtime s[86:87]\nds_read_b32 v{vF}, v{vRdyA}\nds_read_b32 v{vDn}, v{vDnA}\ns_waitcnt lgkmcnt(0)")
        A(f"v_readfirstlane_b32 s{sF}, v{vF}\nv_readfirstlane_b32 s{sA}, v{vDn}\ns_mov_b32 m0, s{sIt}\ns_nop 3")
        A(f"v_writelane_b32 v100, s84, m0\nv_writelane_b32 v101, s86, m0\nv_writelane_b32 v102, s{sF}, m0\nv_writelane_b32 v103, s{sA}, m0")
        A("L_tr2:")
        A(f"s_sleep 2\ns_memrealtime s[88:89]\ns_waitcnt lgkmcnt(0)\ns_sub_u32 s{sA}, s88, s84\ns_cmp_lt_u32 s{sA}, {trace}\ns_cbranch_scc1 L_tr2")
        A(f"s_add_u32 s{sIt}, s{sIt}, 1\ns_cmp_ge_u32 s{sF}, s{sCnt}\ns_cbranch_scc1 L_tr3\ns_cmp_lt_u32 s{sIt}, 64\ns_cbranch_scc1 L_tr")
        A("L_tr3:")
        A(f"s_lshl_b32 s{sA}, s2, 10\ns_add_u32 s{sA}, s{sA}, {WSB - 64 * 1024}")
        A(f"buffer_store_dwordx4 v[100:103], v{vL16}, {SWS}, s{sA} offen")
    st(4)
    dump_stamps(64)
    A("s_endpgm")

    A("L_consumer:")
    A(f"v_lshlrev_b32 v{vG4}, 2, v{vT0}")
    A(f"v_lshrrev_b32 v{vT2}, 2, v{vT1}\nv_mul_u32_u24 v{vT2}, 1088, v{vT2}\nv_and_b32 v{vT3}, 3, v{vT1}")
    A(f"v_lshl_add_u32 v{vKc}, v{vT3}, 8, v{vT2}\nv_xor_b32 v{vU}, v{vT3}, v{vT0}\nv_lshl_add_u32 v{vKc}, v{vU}, 4, v{vKc}")
    A(f"v_lshl_add_u32 v{vT2}, v{vT0}, 8, v{vT2}\nv_lshl_add_u32 v{vT2}, v{vT3}, 3, v{vT2}\nv_add_u32 v{vT2}, 8704, v{vT2}")
    A(f"v_and_b32 v{vU}, 1, v{vT0}\nv_lshl_add_u32 v{vV0c}, v{vU}, 5, v{vT2}\nv_xor_b32 v{vV1c}, 32, v{vV0c}")
    A(f"v_lshlrev_b32 v{vQo}, 8, v{vT1}\nv_lshl_add_u32 v{vQo}, v{vU}, 5, v{vQo}\nv_lshrrev_b32 v{vU}, 1, v{vT0}\nv_lshl_add_u32 v{vQo}, v{vU}, 4, v{vQo}")
    if fullrow:
        A(f"v_lshrrev_b32 v{vU}, 3, v{vT1}\nv_mul_u32_u24 v{vU}, {2048 - 64}, v{vU}\nv_sub_u32 v{vQo}, v{vQo}, v{vU}")
    for j in range(4):
        A(f"v_mov_b32 v{ON + j}, 0x3f803f80")
    A(f"v_lshlrev_b32 v{vPL}, 3, v{vT1}\nv_mov_b32 v{vPd}, 0")
    A(f"s_mov_b32 s{sT}, 0\ns_mov_b32 s{sOffK}, 0\ns_mov_b32 s{sItem}, 0")
    sSd, sSs, sFo, sOut, sPi, sHi, sPs, sHs, sPd, sHd, sMy, sLp, sLh = range(48, 61)
    sCs, sCr, sCt = 61, 62, 63
    A(f"s_mov_b32 s{sCs}, {SLOT}\ns_mov_b32 s{sCr}, {RING}\ns_mov_b32 s{sCt}, {hex(f2u(T))}")
    A(f"s_bitcmp1_b32 s{sRole}, 0\ns_cselect_b32 s{sOut}, s{sBB}, s{sBA}")
    A(f"s_lshl_b32 s{sOut}, s{sOut}, 3\ns_add_u32 s{sOut}, s{sOut}, s{sH}\ns_lshl_b32 s{sOut}, s{sOut}, 2\n"
      f"s_add_u32 s{sOut}, s{sOut}, s{sW}\ns_lshl_b32 s{sOut}, s{sOut}, 13\ns_add_u32 s{sOut}, s{sOut}, s{sPar}")
    box_off(sMy, f"s{sRole}")
    A(f"s_lshl_b32 s{sC}, s{sW}, 12\ns_lshl_b32 s{sD}, s{sW}, 7\ns_add_u32 s{sD}, s{sD}, 16384\ns_add_u32 s{sFo}, s{sD}, 512")
    if alias:
        A(f"s_xor_b32 s{sSd}, s{sOut}, 4096")
    else:
        A(f"s_add_u32 s{sSd}, s{sMy}, s{sC}")
    A(f"s_add_u32 s{sSs}, s{sMy}, s{sD}")
    A(f"s_xor_b32 s{sLp}, s{sRole}, 2\ns_lshr_b32 s{sLh}, s{sRole}, 1\ns_add_u32 s{sLh}, s{sLh}, 4")
    A(f"s_cmp_eq_u32 s{sExp}, 0\ns_cselect_b32 s{sLh}, s{sLp}, s{sLh}")
    box_off(sPi, f"s{sLp}")
    box_off(sHi, f"s{sLh}")
    A(f"s_add_u32 s{sPs}, s{sPi}, s{sD}\ns_add_u32 s{sHs}, s{sHi}, s{sD}\ns_add_u32 s{sHd}, s{sHi}, s{sC}")
    A(f"s_mov_b32 s{sPd}, s{sOut}" if alias else f"s_add_u32 s{sPd}, s{sPi}, s{sC}")
    vPo, vSa = 246, 247
    A(f"v_mov_b32 v{vSa}, s{sRole}\nv_writelane_b32 v{vSa}, s{sLp}, 0\nv_writelane_b32 v{vSa}, s{sLh}, 1")
    A(f"v_mov_b32 v{vPo}, s{sMy}\nv_writelane_b32 v{vPo}, s{sPi}, 0\nv_writelane_b32 v{vPo}, s{sHi}, 1")
    A(f"s_lshl_b32 s{sA}, s{sW}, 2\ns_add_u32 s{sA}, s{sA}, {A_SIG + 256}\nv_lshl_add_u32 v{vSa}, v{vSa}, 4, s{sA}")
    if nopart:
        for x in (sPs, sHs, sPd, sHd):
            A(f"s_mov_b32 s{x}, {hex(OOB)}")

    def zero_acc():
        for i in range(LA, O + 64):
            A(f"v_mov_b32 v{i}, 0")

    zero_acc()
    A(f"s_cmp_eq_u32 s{sCntA}, 0\ns_cselect_b32 s{sA}, s{sBB}, s{sBA}\ns_cmp_eq_u32 s{sA}, s{sB}\ns_cbranch_scc1 L_qok")
    A(f"s_mov_b32 s{sB}, s{sA}")
    q_own()
    A("s_waitcnt vmcnt(0)")
    q_own_loads()
    A("L_qok:")
    A(f"s_cmp_eq_u32 s{sCntA}, 0\ns_cbranch_scc1 L_segB")
    A(f"s_mov_b32 s{sCnt}, s{sCntA}\ns_bitcmp1_b32 s{sZ}, 0\ns_branch L_seg")
    A("L_segB:")
    A(f"s_cmp_eq_u32 s{sCntB}, 0\ns_cbranch_scc1 L_empty")
    A(f"s_mov_b32 s{sB}, s{sBB}\ns_mov_b32 s{sCnt}, s{sCntB}\ns_mov_b32 s{sCntA}, 0\ns_bitcmp1_b32 s{sZ}, 1")

    def spin(tag, off=0, need=None, le=False):
        A(f"L_spin_{tag}:")
        budget()
        A(f"ds_read_b32 v{vF}, v{vRdyA} offset:{off}\ns_waitcnt lgkmcnt(0)\nv_readfirstlane_b32 s{sF}, v{vF}\ns_nop 0")
        A(f"s_cmp_{'le' if le else 'lt'}_u32 s{sF}, s{need or sNeed}\ns_cbranch_scc1 L_spin_{tag}")

    def addrs():
        return [f"v_add_u32 v{vK}, s{sOffK}, v{vKc}", f"v_add_u32 v{vV0}, s{sOffK}, v{vV0c}",
                f"v_add_u32 v{vV1}, s{sOffK}, v{vV1c}"]

    def kreads(dst=KF):
        return [f"ds_read_b128 {vr(dst + 4 * f, 4)}, v{vK} offset:{(f & 1) * 4352 + (f >> 1) * 64}" for f in range(8)]

    def vreads(dst=VF):
        return [f"ds_read_b64_tr_b16 {vr(dst + 4 * dt + 2 * u, 2)}, v{vV1 if dt & 1 else vV0} "
                f"offset:{u * 4352 + (dt >> 1) * 64}" for dt in range(8) for u in range(2)]

    MF = "v_mfma_f32_16x16x32_bf16"

    def qk(first):
        out = []
        for ks, kh in ([(a, b) for a in range(4) for b in range(2)] if first else [(a, b) for b in range(2) for a in range(4)]):
            if True:
                for qh in range(2):
                    d = vr(S + 8 * qh + 4 * kh, 4)
                    c = d if ks else ("0" if first else vr(CM + 4 * qh, 4))
                    out.append(f"{MF} {d}, {vr(KF + 4 * (2 * ks + kh), 4)}, {vr(Q + 4 * (2 * ks + qh), 4)}, {c}")
        return out

    def pv(dt, qh, src=VF):
        d = vr(O + 32 * qh + 4 * dt, 4)
        return f"{MF} {d}, {vr(src + 4 * dt, 4)}, {vr(P + 4 * qh, 4)}, {d}"

    def rs(qh):
        return f"{MF} {vr(LA + 4 * qh, 4)}, {vr(ON, 4)}, {vr(P + 4 * qh, 4)}, {vr(LA + 4 * qh, 4)}"

    def cvt(j):
        return f"v_cvt_pk_bf16_f32 v{P + j}, v{E + 2 * j}, v{E + 2 * j + 1}"

    def maxes():
        o = []
        for a in (0, 3, 5):
            for qh, m in ((0, vMx), (1, vMx2)):
                b = S + 8 * qh + a
                o.append(f"v_max3_f32 v{m}, v{b}, v{b + 1}, v{b + 2}" if a == 0 else f"v_max3_f32 v{m}, v{m}, v{b}, v{b + 1}")
        return o

    def new_max(floor0):
        A(f"v_max_f32 v{vMx}, v{vMx}, v{S + 7}\nv_max_f32 v{vMx2}, v{vMx2}, v{S + 15}")
        for sw in ("v_permlane32_swap_b32", "v_permlane16_swap_b32"):
            A(f"v_mov_b32 v{vT0}, v{vMx}\nv_mov_b32 v{vT1}, v{vMx2}\ns_nop 0")
            A(f"{sw} v{vMx}, v{vT0}\n{sw} v{vMx2}, v{vT1}\ns_nop 0")
            A(f"v_max_f32 v{vMx}, v{vMx}, v{vT0}\nv_max_f32 v{vMx2}, v{vMx2}, v{vT1}")
        if floor0:
            A(f"v_max_f32 v{vMx}, 0, v{vMx}\nv_max_f32 v{vMx2}, 0, v{vMx2}")
        A(f"v_ceil_f32 v{vMx}, v{vMx}\nv_ceil_f32 v{vMx2}, v{vMx2}")

    def exp_shifted():
        for i in range(16):
            A(f"v_sub_f32 v{E + i}, v{S + i}, v{vMx if i < 8 else vMx2}")
        for i in range(16):
            A(f"v_exp_f32 v{E + i}, v{E + i}")

    def scale_acc(f, with_la=True):
        for qh in range(2):
            sel = "op_sel_hi:[1,0]" if qh == 0 else "op_sel:[0,1] op_sel_hi:[1,1]"
            for i in range(16):
                r = O + 32 * qh + 2 * i
                A(f"v_pk_mul_f32 {vr(r, 2)}, {vr(r, 2)}, {vr(f, 2)} {sel}")
            if with_la:
                A(f"v_mul_f32 v{LA + 4 * qh}, v{f + qh}, v{LA + 4 * qh}")

    def pack_o(i, dst=KF):
        for j in range(4):
            r = O + 8 * i + 2 * j
            A(f"v_cvt_pk_bf16_f32 v{dst + 4 * i + j}, v{r}, v{r + 1}")

    def park():
        A(f"v_add_u32 v{vT2}, s{sOffQ}, v{vL16}\nv_add_u32 v{vT3}, s{sOffQ}, v{vPL}")
        A(f"v_mov_b32 v{CM + 1}, v{LA}\nv_mov_b32 v{CM + 5}, v{LA + 4}")
        A(f"ds_write_b64 v{vT3}, {vr(CM, 2)} offset:8192\nds_write_b64 v{vT3}, {vr(CM + 4, 2)} offset:8320")
        for i in range(8):
            pack_o(i)
            A(f"ds_write_b128 v{vT2}, {vr(KF + 4 * i, 4)} offset:{i * 1024}")
        zero_acc()

    A("L_seg:")
    c = f2u(1.4426950408889634 / 128 ** 0.5)
    A(f"s_cselect_b32 s{sScale}, 0, {hex(c)}")
    A(f"s_add_u32 s{sEnd}, s{sT}, s{sCnt}\ns_add_u32 s{sNeed}, s{sT}, 1")
    A(f"s_cmp_eq_u32 s{sRole}, 1\ns_cselect_b32 s{sRet}, s{sCntA}, 0")
    A(f"v_add_u32 v{vK}, s{sOffQ}, v{vKc}\nv_mov_b32 v{vF2}, s{sScale}")
    A(f"s_cmp_eq_u32 s{sT}, 0\ns_cbranch_scc0 L_hold")
    A("s_waitcnt vmcnt(0)")
    AL(kreads(Q))
    A("L_nohold:")
    A(f"v_add_u32 v{vPd}, 1, v{vPd}\nds_write_b32 v{vDoneA}, v{vPd} offset:1536")
    A(f"v_add_u32 v{vK}, s{sOffK}, v{vKc}\nv_mov_b32 v{vDone}, s{sNeed}")
    AL(adv(sOffK))
    for t in range(8):
        A(f"s_waitcnt lgkmcnt({8 - t})")
        for j in range(4):
            r = Q + 4 * t + j
            A(f"v_lshlrev_b32 v{vU + 2 * j}, 16, v{r}\nv_and_b32 v{vU + 2 * j + 1}, 0xffff0000, v{r}")
        for j in range(4):
            A(f"v_pk_mul_f32 {vr(vU + 2 * j, 2)}, {vr(vU + 2 * j, 2)}, {vr(vF2, 2)} op_sel_hi:[1,0]")
        for j in range(4):
            A(f"v_cvt_pk_bf16_f32 v{Q + 4 * t + j}, v{vU + 2 * j}, v{vU + 2 * j + 1}")
    if not st2:
        st(2)
    spin("p0")
    if not st2:
        st(3)
    AL(kreads())
    A(f"ds_write_b32 v{vDoneA}, v{vDone}")
    A(f"s_add_u32 s{sNeed}, s{sT}, 2\ns_min_u32 s{sNeed}, s{sNeed}, s{sEnd}")
    A(f"v_sub_u32 v{vT2}, s{sNv}, v{vG4}")
    A(f"v_mov_b32 v{vT3}, 0xff800000")
    for i, x in enumerate(qk(True)):
        if i % 2 == 0:
            A(f"s_waitcnt lgkmcnt({8 - i // 2})")
        A(x)
    AL(addrs())
    spin("p1")
    AL(kreads())
    A(f"s_cmp_eq_u32 s{sNv}, 32\ns_cbranch_scc1 L_nomask")
    for kh in range(2):
        for r in range(4):
            a = S + 4 * kh + r
            A(f"v_cmp_lt_i32 vcc, {16 * kh + r}, v{vT2}\ns_nop 1\nv_cndmask_b32 v{a}, v{vT3}, v{a}, vcc\n"
              f"v_cndmask_b32 v{a + 8}, v{vT3}, v{a + 8}, vcc")
    A("L_nomask:")
    AL(maxes())
    new_max(False)
    for i in range(8):
        A(f"v_sub_f32 v{CM + i}, 0, v{vMx if i < 4 else vMx2}")
    exp_shifted()
    A(f"s_waitcnt lgkmcnt(0)\ns_sub_u32 s{sIt}, s{sCnt}, 2\ns_cbranch_scc1 L_final")

    A(".p2align 3")
    A("L_loop:")
    loop_start = len(L)
    vrd = vreads()
    f_inc, f_wr, f_rd = f"v_add_u32 v{vDone}, 1, v{vDone}", f"ds_write_b32 v{vDoneA}, v{vDone}", f"ds_read2st64_b32 {vr(vF2, 2)}, v{vRdyA} offset0:0 offset1:6"
    ex1 = lambda i: f"v_exp_f32 v{E + i}, v{S + i}"
    lg = lambda n: f"s_waitcnt lgkmcnt({n})"
    krd = kreads()
    krd = krd[0::2] + krd[1::2]
    mo = [0, 1, 2, 3, 8, 9, 10, 11, 4, 5, 6, 7, 12, 13, 14, 15]
    mxs = [f"v_max3_f32 v{vT0}, v{S + mo[0]}, v{S + mo[1]}, v{S + mo[2]}"]
    mxs += [f"v_max3_f32 v{vT0}, v{vT0}, v{S + mo[i]}, v{S + mo[i + 1]}" for i in range(3, 15, 2)]
    mxs += [f"v_max_f32 v{vT0}, v{vT0}, v{S + 15}", f"v_cmp_lt_f32 vcc, s{sCt}, v{vT0}"]
    aa = addrs()
    ad = [f"s_add_u32 s{sOffK}, s{sOffK}, s{sCs}", f"s_cmp_ge_u32 s{sOffK}, s{sCr}", f"s_cselect_b32 s{sOffK}, 0, s{sOffK}"]
    fa = [[vrd[i], cvt(j)] for i, j in enumerate((0, 1, 4, 5, 2, 3, 6, 7))]
    fa[0].insert(0, f"s_add_u32 s{sNeed}, s{sNeed}, 1")
    fa[1].insert(0, f"s_sub_u32 s{sIt}, s{sIt}, 1")
    fa[2].insert(0, f"s_cselect_b32 s{sA}, -1, s{sNeed}")
    for i in range(3):
        fa[3 + i].insert(0, ad[i])
    fa[7].insert(0, lg(7))
    fa += [[vrd[8], f_rd], [vrd[9], f_inc], [vrd[10], ex1(0)], [vrd[11], ex1(1)], [vrd[12], ex1(2)],
           [vrd[13], ex1(3)], [vrd[14], ex1(8)], [lg(6), vrd[15], f_wr]]
    for x, f in zip(qk(False), fa):
        A(x)
        AL(f)
    mf = []
    for dt in range(8):
        mf += [pv(dt, 1), pv(dt, 0)]
        if dt == 3:
            mf += [rs(0), rs(1)]
    if pvo == 1:
        mf = mf[:4]
        mf[2], mf[3] = mf[3], mf[2]
        mf += [pv(2, 1), pv(2, 0), pv(3, 0), pv(3, 1), rs(1), rs(0), pv(4, 0), pv(4, 1), pv(5, 1), pv(5, 0), pv(6, 0), pv(6, 1), pv(7, 1), pv(7, 0)]
    if pvo == 2:
        mf = mf[:4] + [pv(2, 0), pv(3, 0), rs(0), pv(2, 1), pv(3, 1), rs(1)] + [pv(d, 1) for d in range(4, 8)] + [pv(d, 0) for d in range(4, 8)]
    if nors:
        mf = [x if f"{vr(ON, 4)}" not in x else "s_nop 0" for x in mf]
    AL([mf[0], f"v_readfirstlane_b32 s{sF}, v{vF2}", aa[0]])
    AL([mf[1], ex1(9)])
    AL([mf[2], f"s_cmp_lt_u32 s{sF}, s{sA}", ex1(10)])
    AL([mf[3], "s_cbranch_scc1 L_slow"])
    A("L_back:")

    def phase_b(kr):
        k = list(kr) if kr else [None] * 8
        n = (lambda x: x) if kr else (lambda x: 0)
        A(ex1(11))
        fb = [[k[0], mxs[0], mxs[1]], [k[1], ex1(4)], [k[2], mxs[2], mxs[3]], [ex1(5)], [k[3], mxs[4], mxs[5]],
              [lg(n(4)), ex1(6)], [k[4], mxs[6], mxs[7]], [ex1(7)], [k[5], mxs[8], aa[1]], [ex1(12)],
              [k[6], aa[2]], [ex1(13)], [k[7], ex1(14)], [lg(n(4)), ex1(15)]]
        for i in range(4, 18):
            A(mf[i])
            AL([x for x in fb[i - 4] if x])

    phase_b(krd)
    if nocomp:
        keep = []
        for x in L[loop_start:]:
            y = x.strip()
            if nocomp & 1 and y.startswith("v_mfma"):
                continue
            if nocomp & 2 and y.startswith(("v_exp", "v_max", "v_cvt")):
                continue
            if nocomp & 4 and y.startswith(("ds_read_b128", "ds_read_b64_tr")):
                continue
            keep.append(x)
        L[loop_start:] = keep
        A("s_mov_b64 vcc, 0")
    A("s_cbranch_vccz L_loop\ns_branch L_rare")

    HB = Q

    def send_stats(spol=spol):
        A(f"v_mov_b32 v{CM + 5}, v{LA + 4}")
        if smask:
            A("s_mov_b64 exec, 0xffff")
        A(f"buffer_store_dwordx2 {vr(CM + 4, 2)}, v{vPL}, {SWS}, s{sSs} offen {spol}")
        if smask:
            A("s_mov_b64 exec, -1")

    def send(i, spol=spol):
        pack_o(i, Q)
        A(f"buffer_store_dwordx4 {vr(Q + 4 * i, 4)}, v{vL16}, {SO if alias else SWS}, s{sSd} offen offset:{(i & 3) * 1024} {spol}")

    def final():
        A("L_lastg:")
        phase_b([])
        A("s_cbranch_vccnz L_rare")
        A("L_final:")
        A(f"{f_rd}\ns_add_u32 s{sNeed}, s{sEnd}, 1\ns_mov_b32 s{sT}, s{sEnd}")
        for j in range(8):
            A(cvt(j))
        A("s_nop 0")
        A(rs(0))
        A(rs(1))
        A(f"s_cmp_lg_u32 s{sRet}, 0\ns_cbranch_scc1 L_final_a")
        A(f"s_waitcnt lgkmcnt(0)\nv_readfirstlane_b32 s{sF}, v{vF2}\nv_readfirstlane_b32 s{sK}, v{vF2 + 1}")
        A(f"s_cmp_ge_u32 s{sF}, s{sNeed}\ns_cbranch_scc1 L_final1")
        spin("f")
        A(f"L_final1:\nds_read_b32 v{vU + 1}, v{vSa}")
        AL(vrd)
        A(f"s_cmp_eq_u32 s{sK}, 1\ns_cbranch_scc1 L_final2")
        for pl in ("sc1", spol):
            send_stats(pl)
            for dt in range(8):
                A(f"s_waitcnt lgkmcnt({14 - 2 * dt})")
                A(pv(dt, 1))
                if dt >= 5:
                    send(dt - 1, pl)
            for dt in range(8):
                A(pv(dt, 0))
                if dt == 2:
                    send(7, pl)
                    st(4)
            if pl == "sc1":
                A("s_branch L_sentw\nL_final2:")

    A("L_slow:")
    A(f"s_cmp_ge_i32 s{sIt}, 0\ns_cbranch_scc1 L_slow1")
    if spincnt:
        A(f"s_waitcnt lgkmcnt(0)\ns_sub_u32 s{sSt + 2}, 0x400000, s{sBud}\ns_sub_u32 s{sSt + 4}, s{sF}, s{sNeed}\ns_add_u32 s{sSt + 4}, s{sSt + 4}, 100")
        st(3)
    if tail:
        A(f"v_readfirstlane_b32 s{sK}, v{vF2 + 1}\ns_cmp_lt_u32 s{sF}, s{sNeed}\ns_cselect_b32 s{sA}, 1, s{sRet}")
        A(f"s_xor_b32 s{sBb}, s{sK}, 1\ns_or_b32 s{sA}, s{sA}, s{sBb}\ns_cbranch_scc1 L_lastg")
        A("L_tail:")
        if st3:
            st(1)
        AL([f"ds_read_b32 v{vU + 1}, v{vSa}"] + aa[1:] + [lg(1)])
        vk = vreads(KF)
        m1 = [pv(dt, 1) for dt in range(2, 8)] + [rs(1)]
        ft = [[ex1(11), mxs[0]], [ex1(12), mxs[1]], [ex1(13), mxs[2]], [ex1(14), mxs[3]], [ex1(15), mxs[4]],
              [mxs[5], mxs[6]], [mxs[7], mxs[8]]]
        AL(vk[:2])
        for i in range(7):
            A(m1[i])
            AL(vk[2 * i + 2:2 * i + 4] + ft[i])
        if st3:
            st(2)
        A("s_cbranch_vccnz L_tail_fix")
        for j in range(4, 8):
            A(cvt(j))
        A(pv(2, 0))
        A(ex1(4))
        A(rs(1))
        for dt in range(8):
            A(lg(14 - 2 * dt))
            A(pv(dt, 1, KF))
            if dt == 4:
                if st3:
                    st(3)
                send_stats()
            if dt >= 5:
                send(dt - 1)
        for dt in range(3, 8):
            A(pv(dt, 0))
            if dt < 6:
                A(ex1(dt + 2))
            if dt == 4:
                send(7)
                st(4)
        A(rs(0))
        for j in range(4):
            A(cvt(j))
        A("s_nop 1")
        A(rs(0))
        for dt in range(8):
            A(pv(dt, 0, KF))
    else:
        final()
    A("L_sent:")
    st(5)
    if not nopart:
        A(f"v_add_u32 v{vU + 2}, 1, v{vU + 1}\ns_mov_b64 exec, 4\ns_waitcnt vmcnt(0)")
        A(f"buffer_store_dword v{vU + 2}, v{vPo}, {SWS}, s{sFo} offen")
        A("L_reld:")
        if st2:
            st(1)
        A(f"s_mov_b64 exec, 3\nv_mov_b32 v{vU + 3}, v{vU + 1}")
        A("L_poll0:")
        budget()
        A(f"buffer_load_dword v{vU + 3}, v{vPo}, {SWS}, s{sFo} offen {fpol}")
        if csleep:
            A(f"s_sleep {csleep}")
        A(f"s_waitcnt vmcnt({npoll})")
        A(f"v_cmp_eq_u32 vcc, v{vU + 3}, v{vU + 1}\ns_cbranch_vccnz L_poll0")
        A("s_mov_b64 exec, -1")
    st(6)
    A(f"buffer_load_dwordx2 {vr(vU + 4, 2)}, v{vPL}, {SWS}, s{sPs} offen {lpol}")
    A(f"buffer_load_dwordx2 {vr(vU + 6, 2)}, v{vPL}, {SWS}, s{sHs} offen {hlpol}")
    for i in range(4):
        A(f"buffer_load_dwordx4 {vr(HB + 16 + 4 * i, 4)}, v{vL16}, {SO if alias else SWS}, s{sPd} offen offset:{i * 1024} {lpol}")

    def unpack_fma(src, i, f, sel):
        for j in range(4):
            A(f"v_lshlrev_b32 v{E + 2 * j}, 16, v{src + j}\nv_and_b32 v{E + 2 * j + 1}, 0xffff0000, v{src + j}")
        for j in range(4):
            o = O + 8 * i + 2 * j
            A(f"v_pk_fma_f32 {vr(o, 2)}, {vr(E + 2 * j, 2)}, {vr(f, 2)}, {vr(o, 2)} {sel}")

    def finish(held):
        n = 8 if held else 4
        if held:
            for i in range(4):
                A(f"buffer_load_dwordx4 {vr(HB + 4 * i, 4)}, v{vL16}, {SWS}, s{sHd} offen offset:{i * 1024} {hlpol}")
        A(f"s_waitcnt vmcnt({n})")
        if st2:
            st(2)
        if held:
            A(f"v_min3_f32 v{vT0}, v{CM}, v{vU + 4}, v{vU + 6}")
        else:
            A(f"v_min_f32 v{vT0}, v{CM}, v{vU + 4}")
        A(f"v_sub_f32 v{vT2}, v{vT0}, v{CM}\nv_sub_f32 v{vMx}, v{vT0}, v{vU + 4}")
        if held:
            A(f"v_sub_f32 v{vMx2}, v{vT0}, v{vU + 6}")
        A(f"v_exp_f32 v{vT2}, v{vT2}\nv_exp_f32 v{vMx}, v{vMx}")
        A(f"v_exp_f32 v{vMx2}, v{vMx2}" if held else "s_nop 0")
        A(f"v_mul_f32 v{vT1}, v{vT2}, v{LA}\nv_fmac_f32 v{vT1}, v{vMx}, v{vU + 5}")
        if held:
            A(f"v_fmac_f32 v{vT1}, v{vMx2}, v{vU + 7}")
        A(f"v_rcp_f32 v{vT1}, v{vT1}\ns_nop 0\nv_mul_f32 v{vT2}, v{vT2}, v{vT1}\nv_mul_f32 v{vMx}, v{vMx}, v{vT1}")
        if held:
            A(f"v_mul_f32 v{vMx2}, v{vMx2}, v{vT1}")
        for i in range(16):
            A(f"v_pk_mul_f32 {vr(O + 2 * i, 2)}, {vr(O + 2 * i, 2)}, {vr(vT2, 2)} op_sel_hi:[1,0]")
        if held:
            for i in range(4):
                A(f"s_waitcnt vmcnt({7 - i})")
                unpack_fma(HB + 16 + 4 * i, i, vMx, "op_sel_hi:[1,0,1]")
        for i in range(4):
            if i < 2:
                A(f"s_waitcnt vmcnt({0 if i else 3})")
            if held:
                unpack_fma(HB + 4 * i, i, vMx, "op_sel:[0,1,0] op_sel_hi:[1,1,1]")
            else:
                unpack_fma(HB + 16 + 4 * i, i, vMx, "op_sel_hi:[1,0,1]")
            if fullrow:
                if i == 2:
                    out_store2(0)
            elif i:
                out_store(i - 1)
            pack_o(i)
        A("s_nop 1")
        if fullrow:
            out_store2(2)
        else:
            out_store(3)
        if st2:
            st(3)
        if stamp:
            A("s_waitcnt vmcnt(0)")
            st(7)
            A(f"s_cmp_eq_u32 s{sW}, {sw}\ns_cbranch_scc0 L_end")
        dump_stamps(32)
        A("s_endpgm")

    def out_store(i):
        d = KF + 4 * i
        A(f"v_permlane16_swap_b32 v{d}, v{d + 2}\nv_permlane16_swap_b32 v{d + 1}, v{d + 3}")
        A(f"buffer_store_dwordx4 {vr(d, 4)}, v{vQo}, {SO}, s{sOut} offen offset:{i * 64} {opol}")

    def out_store2(i):
        d = KF + 4 * i
        for x in (d, d + 4):
            A(f"v_permlane16_swap_b32 v{x}, v{x + 2}\nv_permlane16_swap_b32 v{x + 1}, v{x + 3}")
        for j in range(4):
            A(f"v_mov_b32 v{S + j}, v{d + j}")
        for j in range(4):
            A(f"v_mov_b32_dpp v{d + j}, v{d + 4 + j} row_ror:8 row_mask:0xf bank_mask:0xc")
        for j in range(4):
            A(f"v_mov_b32_dpp v{d + 4 + j}, v{S + j} row_ror:8 row_mask:0xf bank_mask:0x3")
        A(f"buffer_store_dwordx4 {vr(d, 4)}, v{vQo}, {SO}, s{sOut} offen offset:{i * 64} {opol}")
        A(f"buffer_store_dwordx4 {vr(d + 4, 4)}, v{vQo}, {SO}, s{sOut} offen offset:{2048 + i * 64} {opol}")

    A(f"s_cmp_lg_u32 s{sExp}, 0\ns_cbranch_scc1 L_fin_held")
    finish(False)
    A("L_fin_held:")
    finish(True)
    A("L_end:\ns_endpgm")

    if tail:
        final()
        A("s_branch L_sent")
        A("L_tail_fix:")
        for dt in range(2, 8):
            A(pv(dt, 0))
        A(rs(0))
        A("s_branch L_rare")
    A("L_final_a:")
    spin("g")
    AL(vrd)
    for dt in range(8):
        A(f"s_waitcnt lgkmcnt({14 - 2 * dt})")
        A(pv(dt, 1))
        A(pv(dt, 0))
    A("s_branch L_segB")
    A("L_sentw:")
    if nopart:
        A("s_branch L_sent")
    else:
        A(f"v_mov_b32 v{vT0}, {A_SIG}")
        A("L_peers:")
        budget()
        A(f"ds_read_b32 v{vF}, v{vT0}\nds_read_b32 v{vU + 1}, v{vSa}\ns_waitcnt lgkmcnt(0)\nv_readfirstlane_b32 s{sA}, v{vF}\ns_nop 0")
        A(f"s_cmp_eq_u32 s{sA}, 0\ns_cbranch_scc1 L_peers")
        A(f"v_add_u32 v{vU + 2}, 1, v{vU + 1}\ns_mov_b64 exec, 4\ns_waitcnt vmcnt(0)")
        A(f"buffer_store_dword v{vU + 2}, v{vPo}, {SWS}, s{sFo} offen sc1\ns_branch L_reld")
    A("L_hold:")
    spin("q", off=256, need=sItem, le=True)
    AL(kreads(Q))
    park()
    A("s_branch L_nohold")
    A("L_empty:")
    A(f"s_cmp_eq_u32 s{sT}, 0\ns_cbranch_scc1 L_empty1\ns_nop 5")
    park()
    A(f"v_add_u32 v{vPd}, 1, v{vPd}\nds_write_b32 v{vDoneA}, v{vPd} offset:1536")
    A("L_empty1:")
    A(f"v_mov_b32 v{CM}, {hex(BIG)}\nv_mov_b32 v{CM + 4}, {hex(BIG)}")
    A("s_waitcnt vmcnt(0)")
    send_stats("sc1")
    for i in range(4, 8):
        send(i, "sc1")
    A("s_branch L_sentw")
    A("L_slow1:")
    if sleep:
        A(f"s_branch L_slow2\nL_slow3:\ns_sleep {sleep}\nL_slow2:")
        budget()
        A(f"ds_read_b32 v{vF}, v{vRdyA}\ns_waitcnt lgkmcnt(0)\nv_readfirstlane_b32 s{sF}, v{vF}\ns_nop 0")
        A(f"s_cmp_lt_u32 s{sF}, s{sNeed}\ns_cbranch_scc1 L_slow3")
    else:
        spin("s")
    A("s_branch L_back")
    A("L_rare:")
    AL(maxes())
    new_max(True)
    A(f"v_exp_f32 v{vT2}, -v{vMx}\nv_exp_f32 v{vT3}, -v{vMx2}")
    for i in range(8):
        A(f"v_sub_f32 v{CM + i}, v{CM + i}, v{vMx if i < 4 else vMx2}")
    exp_shifted()
    scale_acc(vT2)
    A(f"s_cmp_lt_i32 s{sIt}, 0\ns_cbranch_scc1 L_final\ns_branch L_loop")

    A("L_code_end:")
    A(f""".section .rodata,"a"
.p2align 6
.amdhsa_kernel {NAME}
  .amdhsa_next_free_vgpr 256
  .amdhsa_next_free_sgpr 102
  .amdhsa_accum_offset 256
  .amdhsa_group_segment_fixed_size 0
  .amdhsa_kernarg_size 64
  .amdhsa_user_sgpr_count 2
  .amdhsa_user_sgpr_kernarg_segment_ptr 1
  .amdhsa_system_sgpr_workgroup_id_x 1
.end_amdhsa_kernel""")
    notes = {'L_next': '; ---- loader: one stage (K of tile s, V of tile s-1) per trip, copies that differ in the depth only', 'L_lsegend': '; ---- loader: V of the last tile, drain, then fetch the lines the hand-off will use', 'L_pacer': '; ==== wave 6: position report and depth correction (speed only)', 'L_helper': '; ==== wave 5: bucket sort of the block list, group hand-shake, second Q, held partial', 'L_consumer': '; ==== waves 0-3', 'L_seg': '; ---- segment start: Q (scaled by log2(e)/sqrt(D)), first tile with mask and true max', 'L_loop': '; ---- steady loop: S(t+1), P(t), V(t) reads | O += V(t) P(t), exp(t+1), max check, K(t+2) reads', 'L_slow': '; ---- next stage not there yet, or last trip; L_tail: the half that is sent goes first', 'L_sent': '; ---- hand-off word, wait for the partner, merge, normalise, store', 'L_lastg': '; ---- last two tiles in plain order', 'L_rare': '; ---- a score rose more than 2^8 above the max in use: move to the true running max', 'L_empty': '; ---- no keys of the batch this workgroup ends on', 'L_hold': '; ---- role 1 between its segments: park the partial of A in LDS', 'L_sentw': '; ---- write-through hand-off'}
    out = []
    for x in L:
        if x.endswith(":") and x[:-1] in notes:
            out.append(notes[x[:-1]])
        out.append(x)
    L[:] = out
    if nostore:
        L[:] = [x for x in L if not (x.strip().startswith("buffer_store") and "v[16:19]" not in x and "v[20:23]" not in x
                                     and "v[100:103], v239, s[20:23], s73 offen" != x.strip()[21:]
                                     and ((SWS in x and nostore & 1) or (SO in x and nostore & 2)))]
    return "\n".join(L) + "\n"


def parse(spec):
    kw = {}
    for kv in spec.split(","):
        if not kv or kv == "default":
            continue
        k, v = kv.split("=")
        try:
            kw[k] = int(v)
        except ValueError:
            try:
                kw[k] = float(v)
            except ValueError:
                kw[k] = v.replace("+", " ").replace("none", "")
    return kw


if __name__ == "__main__":
    from build import build
    import hz
    files = []
    for spec in sys.argv[1:]:
        txt = gen(**parse(spec))
        pr = hz.check(txt)
        for p in pr:
            print("HAZARD", p, file=sys.stderr)
        fn = "k_" + spec.replace("=", "").replace(",", "_").replace("+", "") + ".s"
        open(fn, "w").write(txt)
        build(fn)
        files.append(fn)
    print(" ".join(files))
```
